```python
import torch

def _softmax(x, axis=-1):
    return torch.softmax(x, dim=axis)
def _gelu(x):
    return torch.nn.functional.gelu(x, approximate="tanh")
def _silu(x):
    return torch.nn.functional.silu(x)
def _sigmoid(x):
    return torch.sigmoid(x)
def _layernorm(x, axis=-1, eps=1e-5):
    m = x.mean(dim=axis, keepdim=True)
    v = x.var(dim=axis, keepdim=True, unbiased=False)
    return (x - m) / torch.sqrt(v + eps)
def _scatter_add(tgt, idx, src, axis=0):
    return tgt.clone().index_add_(axis, idx, src)
def _segment_sum(src, seg, n):
    out = torch.zeros((n,) + src.shape[1:], dtype=src.dtype)
    return out.index_add_(0, seg, src)
def _pad(x, pw):
    flat = tuple(v for pair in reversed(pw) for v in pair)
    return torch.nn.functional.pad(x, flat)

kernel_name = 'concat_heads__mha_block_cached__mha_block_cached__near_ridge'

def setup_inputs():

    _w = (lambda a: (lambda t: t.to(torch.bfloat16) if t.is_floating_point() else t)(torch.as_tensor(a)))
    def _A_setup():
        B, Sq, D = 8, 144, 512
        H, Sk, Dh = 32, 512, 128
        return {
            "x": _w((lambda *s: torch.randn(*s, dtype=torch.bfloat16) * 0.8)(B, Sq, D)),
            "k_cache": _w((lambda *s: torch.randn(*s, dtype=torch.bfloat16) * 0.8)(B, H, Sk, Dh)),
            "v_cache": _w((lambda *s: torch.randn(*s, dtype=torch.bfloat16) * 0.05)(B, H, Sk, Dh)),
            "wq": _w((lambda *s: torch.randn(*s, dtype=torch.bfloat16) * 0.8)(D, H * Dh) * (D ** -0.5)),
            "wo": _w((lambda *s: torch.randn(*s, dtype=torch.bfloat16) * 0.05)(H * Dh, D) * ((H * Dh) ** -0.5)),
        }
    _A_in = _A_setup()

    def _B_setup():
        B, Sq, D = 8, 144, 512
        H, Sk, Dh = 32, 512, 128
        return {
            "x": _w((lambda *s: torch.randn(*s, dtype=torch.bfloat16) * 0.8)(B, Sq, D)),
            "k_cache": _w((lambda *s: torch.randn(*s, dtype=torch.bfloat16) * 0.8)(B, H, Sk, Dh)),
            "v_cache": _w((lambda *s: torch.randn(*s, dtype=torch.bfloat16) * 0.05)(B, H, Sk, Dh)),
            "wq": _w((lambda *s: torch.randn(*s, dtype=torch.bfloat16) * 0.8)(D, H * Dh) * (D ** -0.5)),
            "wo": _w((lambda *s: torch.randn(*s, dtype=torch.bfloat16) * 0.05)(H * Dh, D) * ((H * Dh) ** -0.5)),
        }
    _B_in = _B_setup()

    return {
        "A_x": _A_in["x"],
        "A_k_cache": _A_in["k_cache"],
        "A_v_cache": _A_in["v_cache"],
        "A_wq": _A_in["wq"],
        "A_wo": _A_in["wo"],
        "B_x": _B_in["x"],
        "B_k_cache": _B_in["k_cache"],
        "B_v_cache": _B_in["v_cache"],
        "B_wq": _B_in["wq"],
        "B_wo": _B_in["wo"],
    }

def reference(A_x, A_k_cache, A_v_cache, A_wq, A_wo, B_x, B_k_cache, B_v_cache, B_wq, B_wo):
    def _A_ref(x, k_cache, v_cache, wq, wo):
        B, Sq, D = x.shape
        H, Dh = 32, 128
        q = (lambda x, *d: x.permute(*d))((x @ wq).reshape(B, Sq, H, Dh), 0, 2, 1, 3)
        scores = torch.einsum("bhqd,bhkd->bhqk", q, k_cache) * (Dh ** -0.5)
        p = _softmax(scores, axis=-1)
        o = torch.einsum("bhqk,bhkd->bhqd", p, v_cache)
        return (lambda x, *d: x.permute(*d))(o, 0, 2, 1, 3).reshape(B, Sq, H * Dh) @ wo

    def _B_ref(x, k_cache, v_cache, wq, wo):
        B, Sq, D = x.shape
        H, Dh = 32, 128
        q = (lambda x, *d: x.permute(*d))((x @ wq).reshape(B, Sq, H, Dh), 0, 2, 1, 3)
        scores = torch.einsum("bhqd,bhkd->bhqk", q, k_cache) * (Dh ** -0.5)
        p = _softmax(scores, axis=-1)
        o = torch.einsum("bhqk,bhkd->bhqd", p, v_cache)
        return (lambda x, *d: x.permute(*d))(o, 0, 2, 1, 3).reshape(B, Sq, H * Dh) @ wo

    a = _A_ref(A_x, A_k_cache, A_v_cache, A_wq, A_wo)
    b = _B_ref(B_x, B_k_cache, B_v_cache, B_wq, B_wo)
    return torch.concatenate([a, b], axis=-1)
```

```python
import re

TRANS = ("v_exp_f32", "v_log_f32", "v_rcp_f32", "v_rsq_f32", "v_sqrt_f32", "v_sin_f32", "v_cos_f32")

_reg_re = re.compile(r"^(-)?(abs\()?([vsa])(\d+|\[(\d+):(\d+)\])\)?$")


def regs_of(op):
    op = op.strip()
    if op in ("vcc", "exec", "m0", "scc"):
        return [(op, 0)]
    if op in ("vcc_lo", "vcc_hi"):
        return [("vcc", 0)]
    m = _reg_re.match(op)
    if not m:
        return []
    k = m.group(3)
    if m.group(5) is not None:
        return [(k, i) for i in range(int(m.group(5)), int(m.group(6)) + 1)]
    return [(k, int(m.group(4)))]


class Inst:
    __slots__ = ("text", "mn", "cls", "dst", "src", "srcC", "srcAB", "states", "is_trans", "wide_store", "lds_dma")


def parse(text):
    t = text.split(";")[0].strip()
    parts = t.split(None, 1)
    mn = parts[0]
    ops = []
    if len(parts) > 1:
        ops = [o.strip() for o in parts[1].split(",")]
        last = ops[-1].split()
        mods = last[1:] if len(last) > 1 else []
        ops[-1] = last[0] if last else ""
    else:
        mods = []
    I = Inst()
    I.text = text
    I.mn = mn
    I.dst, I.src, I.srcC, I.srcAB = [], [], [], []
    I.states = 1
    I.is_trans = False
    I.wide_store = False
    I.lds_dma = False
    if mn == "s_nop":
        I.cls = "salu"
        I.states = int(ops[0], 0) + 1
    elif mn.startswith("v_mfma"):
        I.cls = "mfma"
        I.dst = regs_of(ops[0])
        I.srcAB = regs_of(ops[1]) + regs_of(ops[2])
        I.srcC = regs_of(ops[3])
        I.src = I.srcAB + I.srcC
    elif mn.startswith("v_"):
        I.cls = "valu"
        I.is_trans = any(mn.startswith(x) for x in TRANS)
        if mn.startswith("v_permlane") and "swap" in mn:
            I.dst = regs_of(ops[0]) + regs_of(ops[1])
            I.src = list(I.dst)
        elif mn.startswith("v_cmp"):
            I.dst = regs_of(ops[0])
            for o in ops[1:]:
                I.src += regs_of(o)
        elif mn.startswith(("v_add_co", "v_sub_co", "v_addc_co", "v_subb_co")):
            I.dst = regs_of(ops[0]) + regs_of(ops[1])
            for o in ops[2:]:
                I.src += regs_of(o)
        else:
            I.dst = regs_of(ops[0])
            for o in ops[1:]:
                I.src += regs_of(o)
            if mn.startswith(("v_fmac", "v_mac")):
                I.src += I.dst
            if mn.startswith("v_cndmask") and len(ops) == 3:
                I.src += [("vcc", 0)]
    elif mn.startswith(("buffer_", "global_")):
        I.cls = "vmem"
        is_lds = "lds" in mods
        if "store" in mn or "atomic" in mn:
            for o in ops:
                I.src += regs_of(o)
            if mn.endswith(("x3", "x4")):
                I.wide_store = True
                I.srcC = regs_of(ops[0]) if mn.startswith("buffer_") else regs_of(ops[1])
        elif is_lds:
            I.lds_dma = True
            for o in ops:
                I.src += regs_of(o)
            I.src += [("m0", 0)]
        elif mn in ("buffer_wbl2", "buffer_inv"):
            pass
        else:
            I.dst = regs_of(ops[0])
            for o in ops[1:]:
                I.src += regs_of(o)
    elif mn.startswith("ds_"):
        I.cls = "ds"
        if "read" in mn or "permute" in mn or "swizzle" in mn:
            I.dst = regs_of(ops[0])
            for o in ops[1:]:
                I.src += regs_of(o)
        else:
            for o in ops:
                I.src += regs_of(o)
    elif mn.startswith("s_"):
        I.cls = "salu"
        if mn in ("s_waitcnt", "s_barrier", "s_endpgm", "s_setprio", "s_branch", "s_sleep") or mn.startswith("s_cbranch") or mn.startswith("s_cmp"):
            for o in ops:
                I.src += regs_of(o)
        else:
            I.dst = regs_of(ops[0])
            for o in ops[1:]:
                I.src += regs_of(o)
    else:
        raise ValueError("unknown instruction " + text)
    return I


def need(p, c):
    n = 0
    pd, cs, cd = set(p.dst), set(c.src), set(c.dst)
    if p.cls == "valu":
        vw = {r for r in pd if r[0] == "v"}
        sw = {r for r in pd if r[0] in ("s", "vcc")}
        if c.cls == "mfma" and vw & cs:
            n = max(n, 2)
        if c.cls == "valu":
            if p.is_trans and not c.is_trans and vw & (cs | cd):
                n = max(n, 1)
            if c.mn.startswith("v_permlane") and vw & cs:
                n = max(n, 2)
            if c.mn.startswith(("v_readfirstlane", "v_readlane")) and vw & cs:
                n = max(n, 1)
            if "dpp" in c.text and vw & cs:
                n = max(n, 2)
            if sw & cs:
                n = max(n, 4 if c.mn.startswith(("v_readlane", "v_writelane")) else 2)
        if c.cls == "vmem" and sw & cs:
            n = max(n, 5)
        if ("exec", 0) in pd:
            n = max(n, 5)
    if p.cls == "mfma":
        if c.cls == "mfma":
            if pd & set(c.srcAB):
                n = max(n, 8)
            if pd & set(c.srcC):
                if p.dst != c.srcC:
                    n = max(n, 6)
            elif pd & cd:
                n = max(n, 8)
        elif c.cls in ("valu", "vmem", "ds"):
            if pd & (cs | cd):
                n = max(n, 8)
            if c.cls == "valu" and set(p.srcC) & cd:
                n = max(n, 3)
    if p.cls == "salu" and ("m0", 0) in pd and c.lds_dma:
        n = max(n, 1)
    if p.cls == "vmem" and p.wide_store:
        if set(p.srcC) & cd:
            n = max(n, 2)
    return n


class Asm:
    WINDOW = 12

    def __init__(self):
        self.out = []
        self.hist = []
        self.ninst = 0

    def raw(self, text):
        self.out.append(text)

    def comment(self, text):
        self.out.append("    ; " + text)

    def _push(self, I):
        self.out.append("    " + I.text)
        self.hist.append(I)
        if len(self.hist) > 24:
            self.hist.pop(0)
        self.ninst += 1

    def nop(self, n):
        while n > 0:
            k = min(n, 16)
            self._push(parse("s_nop %d" % (k - 1)))
            n -= k

    def __call__(self, text):
        for line in text.strip().split("\n"):
            line = line.strip()
            if not line or line.startswith(";"):
                continue
            I = parse(line)
            dist = 0
            pad = 0
            for p in reversed(self.hist):
                if dist >= self.WINDOW:
                    break
                r = need(p, I)
                if r > dist:
                    pad = max(pad, r - dist)
                dist += p.states
            if pad:
                self.nop(pad)
            self._push(I)

    def flush(self):
        dist = 0
        pad = 0
        for p in reversed(self.hist):
            if dist >= self.WINDOW:
                break
            worst = 0
            if p.cls == "mfma":
                worst = 8
            elif p.cls == "valu":
                worst = 5 if any(r[0] in ("s", "vcc", "exec") for r in p.dst) else 2
            elif p.cls == "salu" and ("m0", 0) in p.dst:
                worst = 1
            elif p.cls == "vmem" and p.wide_store:
                worst = 2
            if worst > dist:
                pad = max(pad, worst - dist)
            dist += p.states
        if pad:
            self.nop(pad)

    def label(self, name):
        self.flush()
        self.out.append(name + ":")

    def text(self):
        return "\n".join(self.out) + "\n"


class VmQ:
    def __init__(self):
        self.q = []

    def issue(self, tag):
        self.q.append(tag)

    def wait_for(self, tags):
        last = -1
        for i, t in enumerate(self.q):
            if t in tags:
                last = i
        n = len(self.q) - 1 - last
        self.q = self.q[last + 1:]
        return n
```

```python
import sys, os, struct
sys.path.insert(0, os.path.dirname(os.path.abspath(__file__)))
from asmlib import Asm, VmQ

NAME = "concat_heads__mha_block_cached__mha_block_cached__near_ridge"
O_BRANCH_BYTES = 1152 * 4096 * 2
P_BASE = 2 * O_BRANCH_BYTES
SCALE_C = 1.4426950408889634 / (128.0 ** 0.5)


def f32bits(x):
    return struct.unpack("<I", struct.pack("<f", x))[0]


def vr(base, n):
    return "v[%d:%d]" % (base, base + n - 1)


def sr(base, n):
    return "s[%d:%d]" % (base, base + n - 1)


def load_kernargs(A):
    A("s_load_dwordx16 s[4:19], s[0:1], 0")
    A("s_load_dwordx8 s[20:27], s[0:1], 64")
    A("s_load_dwordx2 s[28:29], s[0:1], 96")


def make_srd(A, d, lo, hi, off_s, nrec):
    A("s_add_u32 s%d, s%d, %s" % (d, lo, off_s))
    A("s_addc_u32 s%d, s%d, 0" % (d + 1, hi))
    A("s_and_b32 s%d, s%d, 0xffff" % (d + 1, d + 1))
    A("s_mov_b32 s%d, %s" % (d + 2, nrec))
    A("s_mov_b32 s%d, 0x00020000" % (d + 3))


def gemm_phase(A, nk, wstride, xstride, sW, sX, sWave, R, hooks, pre_hooks):
    XD = 8
    vq = VmQ()
    lane, t0, t1, t2, t3 = R["lane"], R["t0"], R["t1"], R["t2"], R["t3"]
    wdma, vx, wrd = R["wdma"], R["vx"], R["wrd"]
    sq0, sq1, swb, sm0, st = R["sq0"], R["sq1"], R["swb"], R["sm0"], R["st"]
    A("v_lshrrev_b32 v%d, 4, v%d" % (t0, lane))
    A("v_and_b32 v%d, 15, v%d" % (t1, lane))
    A("s_and_b32 s%d, s%d, 1" % (st, sWave))
    A("s_lshl_b32 s%d, s%d, 2" % (st, st))
    A("v_or_b32 v%d, s%d, v%d" % (t2, st, t0))
    A("v_lshrrev_b32 v%d, 1, v%d" % (t3, t1))
    A("v_xor_b32 v%d, v%d, v%d" % (t2, t2, t3))
    A("v_lshlrev_b32 v%d, 5, v%d" % (t2, t2))
    A("v_and_b32 v%d, 1, v%d" % (t3, lane))
    A("v_lshl_add_u32 v%d, v%d, 4, v%d" % (t2, t3, t2))
    A("v_mul_u32_u24 v%d, %d, v%d" % (t3, wstride, t0))
    A("v_add_u32 v%d, v%d, v%d" % (wdma, t2, t3))
    A("v_mul_u32_u24 v%d, %d, v%d" % (t2, xstride, t1))
    A("v_lshl_add_u32 v%d, v%d, 4, v%d" % (vx, t0, t2))
    A("v_bfe_u32 v%d, v%d, 2, 2" % (t1, lane))
    A("v_and_b32 v%d, 1, v%d" % (t2, t0))
    A("v_lshl_add_u32 v%d, v%d, 2, v%d" % (t2, t2, t1))
    A("s_lshl_b32 s%d, s%d, 1" % (st, sWave))
    A("v_xor_b32 v%d, s%d, v%d" % (t2, st, t2))
    A("v_lshlrev_b32 v%d, 5, v%d" % (t2, t2))
    A("v_lshl_add_u32 v%d, v%d, 3, v%d" % (t3, t0, t1))
    A("v_lshl_add_u32 v%d, v%d, 8, v%d" % (t2, t3, t2))
    A("v_and_b32 v%d, 3, v%d" % (t3, lane))
    A("v_lshl_add_u32 v%d, v%d, 3, v%d" % (wrd, t3, t2))
    for dl in range(1, 8):
        A("v_xor_b32 v%d, %d, v%d" % (wrd + dl, dl << 5, wrd))
    A("s_mul_i32 s%d, s%d, %d" % (sq0, sWave, 32 * xstride))
    A("s_add_u32 s%d, s%d, %d" % (sq1, sq0, 16 * xstride))
    A("s_mul_i32 s%d, s%d, %d" % (swb, sWave, 8 * wstride))
    A("s_lshl_b32 s%d, s%d, 11" % (sm0, sWave))

    def dma_chunk(ks):
        slot = ks % 8
        for mm in range(2):
            A("s_add_u32 m0, s%d, %d" % (sm0, slot * 8192 + mm * 1024))
            A("s_add_u32 s%d, s%d, %d" % (st, swb, (32 * ks + 4 * mm) * wstride))
            A("buffer_load_dwordx4 v%d, %s, s%d offen lds" % (wdma, sr(sW, 4), st))
            vq.issue(("w", ks))

    def xload(ks):
        base = R["xr"] + (ks % XD) * 12
        A("buffer_load_dwordx4 %s, v%d, %s, s%d offen offset:%d" % (vr(base, 4), vx, sr(sX, 4), sq0, 64 * ks))
        A("buffer_load_dwordx4 %s, v%d, %s, s%d offen offset:%d" % (vr(base + 4, 4), vx, sr(sX, 4), sq1, 64 * ks))
        A("s_mov_b32 s%d, %d" % (st, 128 * xstride))
        A("buffer_load_dwordx4 %s, v%d, %s, s%d offen offset:%d" % (vr(base + 8, 4), vx, sr(sX, 4), st, 64 * ks))
        for _ in range(3):
            vq.issue(("x", ks))

    for i in range(8):
        dma_chunk(i)
        if i < XD - 1:
            xload(i)
    if pre_hooks:
        pre_hooks(A, vq)
    acc, fr = R["acc"], R["fr"]
    for ks in range(nk):
        n = vq.wait_for({("w", ks), ("x", ks)})
        A("s_waitcnt vmcnt(%d)" % n)
        A("s_barrier")
        if ks >= 1 and ks - 1 + 8 < nk:
            dma_chunk(ks - 1 + 8)
        if ks in hooks:
            hooks[ks](A, vq)
        if ks + XD - 1 < nk:
            xload(ks + XD - 1)
        slot = ks % 8
        for dl in range(8):
            for h in range(2):
                A("ds_read_b64_tr_b16 %s, v%d offset:%d" % (vr(fr + dl * 4 + h * 2, 2), wrd + dl, slot * 8192 + h * 1024))
        xb = R["xr"] + (ks % XD) * 12
        for dl in range(8):
            A("s_waitcnt lgkmcnt(%d)" % (2 * (7 - dl)))
            for t in range(3):
                if t == 2 and dl >= 2:
                    continue
                a = acc + (t * 8 + dl) * 4 if t < 2 else acc + 64 + dl * 4
                c = "0" if ks == 0 else vr(a, 4)
                A("v_mfma_f32_16x16x32_bf16 %s, %s, %s, %s" % (vr(a, 4), vr(fr + dl * 4, 4), vr(xb + t * 4, 4), c))
    return vq


def cross_lane(A, op, v, tmp):
    A("v_mov_b32 v%d, v%d" % (tmp, v))
    A("v_permlane32_swap_b32 v%d, v%d" % (v, tmp))
    A("%s v%d, v%d, v%d" % (op, v, v, tmp))
    A("v_mov_b32 v%d, v%d" % (tmp, v))
    A("v_permlane16_swap_b32 v%d, v%d" % (v, tmp))
    A("%s v%d, v%d, v%d" % (op, v, v, tmp))


def kernel_attn(A):
    K1 = "attn_kernel"
    A.raw(".globl %s\n.p2align 8\n.type %s,@function\n%s:" % (K1, K1, K1))
    A("s_cmp_ge_u32 s2, 512")
    A("s_cbranch_scc1 L1_done")
    load_kernargs(A)
    sBr, sH, sB, sWv = 30, 31, 32, 33
    A("s_and_b32 s34, s2, 7")
    A("s_lshr_b32 s35, s2, 3")
    A("s_lshr_b32 s%d, s34, 2" % sBr)
    A("s_and_b32 s34, s34, 3")
    A("s_lshl_b32 s34, s34, 3")
    A("s_and_b32 s%d, s35, 7" % sH)
    A("s_add_u32 s%d, s%d, s34" % (sH, sH))
    A("s_lshr_b32 s%d, s35, 3" % sB)
    O, QF, S, P, F = 0, 96, 144, 180, 200
    M, L = 232, 235
    T0, T1, T2, T3, T4, T5 = 238, 239, 240, 241, 242, 243
    VKB, VVB, VKD, VVD, VKJ, VVJ = 244, 245, 246, 247, 248, 249
    TA = 250
    LANE = 254
    A("v_and_b32 v%d, 63, v0" % LANE)
    A("v_lshrrev_b32 v%d, 6, v0" % T0)
    A("v_readfirstlane_b32 s%d, v%d" % (sWv, T0))
    A("s_waitcnt lgkmcnt(0)")
    A("s_cmp_eq_u32 s%d, 0" % sBr)
    A("s_cselect_b64 s[4:5], s[4:5], s[14:15]")
    A("s_cselect_b64 s[6:7], s[6:7], s[16:17]")
    A("s_cselect_b64 s[8:9], s[8:9], s[18:19]")
    A("s_cselect_b64 s[10:11], s[10:11], s[20:21]")
    sK, sV, sW, sX, sO = 36, 40, 44, 48, 52
    A("s_lshl_b32 s34, s%d, 5" % sB)
    A("s_add_u32 s34, s34, s%d" % sH)
    A("s_lshl_b32 s34, s34, 17")
    make_srd(A, sK, 6, 7, "s34", "131072")
    make_srd(A, sV, 8, 9, "s34", "131072")
    A("s_lshl_b32 s34, s%d, 8" % sH)
    A("s_sub_u32 s35, %d, s34" % (512 * 8192))
    make_srd(A, sW, 10, 11, "s34", "s35")
    A("s_mul_i32 s35, s%d, 147456" % sB)
    make_srd(A, sX, 4, 5, "s35", "147456")
    A("s_mul_i32 s35, s%d, %d" % (sBr, O_BRANCH_BYTES))
    A("s_mul_i32 s56, s%d, %d" % (sB, 144 * 8192))
    A("s_add_u32 s35, s35, s56")
    A("s_add_u32 s35, s35, s34")
    A("s_sub_u32 s56, %d, s34" % (144 * 8192))
    make_srd(A, sO, 28, 29, "s35", "s56")
    sC = 56
    A("s_mov_b32 s%d, 0x%08x" % (sC, f32bits(SCALE_C)))
    sW1k, sT, sT2 = 57, 58, 59
    A("s_lshl_b32 s%d, s%d, 10" % (sW1k, sWv))

    g, lo = T0, T1
    A("v_lshrrev_b32 v%d, 4, v%d" % (g, LANE))
    A("v_and_b32 v%d, 15, v%d" % (lo, LANE))
    A("s_lshl_b32 s%d, s%d, 2" % (sT, sWv))
    A("v_add_u32 v%d, s%d, v%d" % (T2, sT, g))
    A("v_xor_b32 v%d, v%d, v%d" % (T3, lo, T2))
    A("v_lshlrev_b32 v%d, 4, v%d" % (T3, T3))
    A("v_lshl_add_u32 v%d, v%d, 8, v%d" % (VKD, T2, T3))
    A("v_and_b32 v%d, 7, v%d" % (T3, T2))
    A("v_lshlrev_b32 v%d, 1, v%d" % (T3, T3))
    A("v_xor_b32 v%d, v%d, v%d" % (T3, lo, T3))
    A("v_lshlrev_b32 v%d, 4, v%d" % (T3, T3))
    A("v_lshl_add_u32 v%d, v%d, 8, v%d" % (VVD, T2, T3))
    A("s_lshl_b32 s%d, s%d, 12" % (sT, sWv))
    A("v_xor_b32 v%d, v%d, v%d" % (T2, g, lo))
    A("v_lshlrev_b32 v%d, 4, v%d" % (T2, T2))
    A("v_lshl_add_u32 v%d, v%d, 8, v%d" % (T2, lo, T2))
    A("v_add_u32 v%d, s%d, v%d" % (VKB, sT, T2))
    A("v_lshrrev_b32 v%d, 2, v%d" % (T2, LANE))
    A("v_and_b32 v%d, 7, v%d" % (T3, T2))
    A("v_lshlrev_b32 v%d, 5, v%d" % (T3, T3))
    A("v_lshl_add_u32 v%d, v%d, 8, v%d" % (T3, T2, T3))
    A("v_and_b32 v%d, 3, v%d" % (T2, LANE))
    A("v_lshl_add_u32 v%d, v%d, 3, v%d" % (T3, T2, T3))
    A("v_add_u32 v%d, s%d, v%d" % (VVB, sT, T3))

    def kv_item_static(n):
        def fn(A, vq):
            srd, vd = (sK, VKD) if n % 2 == 0 else (sV, VVD)
            slot = (n + 4) % 5
            for i in range(4):
                A("s_add_u32 m0, s%d, %d" % (sW1k, slot * 16384 + i * 4096))
                A("s_mov_b32 s%d, %d" % (sT2, (n // 2) * 16384 + i * 4096))
                A("buffer_load_dwordx4 v%d, %s, s%d offen lds" % (vd, sr(srd, 4), sT2))
                vq.issue(("kv", n))
        return fn

    R = dict(acc=0, xr=96, fr=200, wrd=72, wdma=80, vx=81, lane=LANE, t0=T0, t1=T1, t2=T2, t3=T3,
             sq0=60, sq1=61, swb=62, sm0=63, st=64)
    hooks = {10: kv_item_static(1), 12: kv_item_static(2), 14: kv_item_static(3)}
    vq = gemm_phase(A, 16, 8192, 1024, sW, sX, sWv, R, hooks, kv_item_static(0))
    assert vq.q == [("kv", 1)] * 4 + [("kv", 2)] * 4 + [("kv", 3)] * 4, vq.q

    A("s_barrier")
    SCR = 49152
    A("v_lshrrev_b32 v%d, 4, v%d" % (g, LANE))
    A("v_and_b32 v%d, 15, v%d" % (lo, LANE))
    A("s_lshl_b32 s%d, s%d, 2" % (sT, sWv))
    A("v_lshrrev_b32 v%d, 1, v%d" % (T2, g))
    A("v_or_b32 v%d, s%d, v%d" % (T2, sT, T2))
    A("v_xor_b32 v%d, v%d, v%d" % (T2, T2, lo))
    A("v_lshlrev_b32 v%d, 4, v%d" % (T2, T2))
    A("v_lshl_add_u32 v%d, v%d, 8, v%d" % (T2, lo, T2))
    A("v_and_b32 v%d, 1, v%d" % (T3, g))
    A("v_lshl_add_u32 v%d, v%d, 3, v%d" % (T2, T3, T2))
    A("s_lshl_b32 s%d, s%d, 12" % (sT, sWv))
    A("v_add_u32 v%d, s%d, v%d" % (T3, sT, T2))
    A("v_xor_b32 v%d, v%d, v%d" % (T4, g, lo))
    A("v_lshlrev_b32 v%d, 4, v%d" % (T4, T4))
    A("v_lshl_add_u32 v%d, v%d, 8, v%d" % (T4, lo, T4))
    A("v_add_u32 v%d, s%d, v%d" % (T5, sT, T4))
    PK = 200
    for t in range(2):
        for dl in range(8):
            a = (t * 8 + dl) * 4
            A("v_cvt_pk_bf16_f32 v%d, v%d, v%d" % (PK + dl * 2, a, a + 1))
            A("v_cvt_pk_bf16_f32 v%d, v%d, v%d" % (PK + dl * 2 + 1, a + 2, a + 3))
            A("v_xor_b32 v%d, %d, v%d" % (TA + (dl & 3), dl << 5, T3))
            A("ds_write_b64 v%d, %s offset:%d" % (TA + (dl & 3), vr(PK + dl * 2, 2), SCR))
        for ds in range(4):
            A("v_xor_b32 v%d, %d, v%d" % (TA + ds, ds << 6, T5))
            A("ds_read_b128 %s, v%d offset:%d" % (vr(QF + t * 16 + ds * 4, 4), TA + ds, SCR))
        A("s_waitcnt lgkmcnt(0)")
    A("s_barrier")
    for dl in range(2):
        a = 64 + dl * 4
        A("v_cvt_pk_bf16_f32 v%d, v%d, v%d" % (PK + dl * 2, a, a + 1))
        A("v_cvt_pk_bf16_f32 v%d, v%d, v%d" % (PK + dl * 2 + 1, a + 2, a + 3))
        A("v_xor_b32 v%d, %d, v%d" % (TA + dl, dl << 5, T2))
        A("ds_write_b64 v%d, %s offset:%d" % (TA + dl, vr(PK + dl * 2, 2), SCR))
    A("s_waitcnt lgkmcnt(0)")
    A("s_barrier")
    for ds in range(4):
        A("v_xor_b32 v%d, %d, v%d" % (TA + ds, ds << 6, T4))
        A("ds_read_b128 %s, v%d offset:%d" % (vr(QF + 32 + ds * 4, 4), TA + ds, SCR))
    for i in range(96):
        A("v_mov_b32 v%d, 0" % (O + i))
    for t in range(3):
        A("v_mov_b32 v%d, 0xf149f2ca" % (M + t))
        A("v_mov_b32 v%d, 0" % (L + t))
    A("s_waitcnt lgkmcnt(0)")
    sJ, sA_, sB_, sC_ = 60, 61, 62, 63
    A("s_mov_b32 s%d, 0" % sJ)
    A("s_mov_b32 s%d, %d" % (sA_, 4 * 16384))
    A("s_mov_b32 s%d, %d" % (sB_, 0))
    A("s_mov_b32 s%d, %d" % (sC_, 3 * 16384))

    def kv_dma(srd, vd, sslot, goff):
        A("s_add_u32 s%d, s%d, s%d" % (sT, sslot, sW1k))
        for i in range(4):
            A("s_add_u32 m0, s%d, %d" % (sT, i * 4096))
            A("s_add_u32 s%d, s%d, %d" % (sT2, sJ, goff + i * 4096))
            A("buffer_load_dwordx4 v%d, %s, s%d offen lds" % (vd, sr(srd, 4), sT2))

    A.label("L1_loop")
    A("s_waitcnt vmcnt(12)")
    A("s_barrier")
    kv_dma(sK, VKD, sC_, 32768)
    A("v_add_u32 v%d, s%d, v%d" % (VKJ, sA_, VKB))

    def kreads(l):
        for ds in range(4):
            x = (l << 12) | (ds << 6)
            if x:
                A("v_xor_b32 v%d, 0x%x, v%d" % (TA + ds, x, VKJ))
                ad = TA + ds
            else:
                ad = VKJ
            A("ds_read_b128 %s, v%d" % (vr(F + (l & 1) * 16 + ds * 4, 4), ad))

    kreads(0)
    kreads(1)
    for l in range(4):
        A("s_waitcnt lgkmcnt(%d)" % (4 if l < 3 else 0))
        for ds in range(4):
            fa = vr(F + (l & 1) * 16 + ds * 4, 4)
            for t in range(3):
                if t == 2 and l != 0:
                    continue
                d = S + t * 16 + l * 4 if t < 2 else S + 32
                c = "0" if ds == 0 else vr(d, 4)
                A("v_mfma_f32_16x16x32_bf16 %s, %s, %s, %s" % (vr(d, 4), fa, vr(QF + t * 16 + ds * 4, 4), c))
        if l + 2 < 4:
            kreads(l + 2)
    for t in range(3):
        nv = 16 if t < 2 else 4
        s0 = S + t * 16
        mx, tmp, al = T0, T1, T2
        if nv == 16:
            A("v_max3_f32 v%d, v%d, v%d, v%d" % (mx, s0, s0 + 1, s0 + 2))
            for i in range(3, 15, 2):
                A("v_max3_f32 v%d, v%d, v%d, v%d" % (mx, mx, s0 + i, s0 + i + 1))
            A("v_max_f32 v%d, v%d, v%d" % (mx, mx, s0 + 15))
        else:
            A("v_max3_f32 v%d, v%d, v%d, v%d" % (mx, s0, s0 + 1, s0 + 2))
            A("v_max_f32 v%d, v%d, v%d" % (mx, mx, s0 + 3))
        cross_lane(A, "v_max_f32", mx, tmp)
        A("v_mul_f32 v%d, s%d, v%d" % (mx, sC, mx))
        A("v_max_f32 v%d, v%d, v%d" % (mx, mx, M + t))
        A("v_sub_f32 v%d, v%d, v%d" % (al, M + t, mx))
        A("v_exp_f32 v%d, v%d" % (al, al))
        A("v_mov_b32 v%d, v%d" % (M + t, mx))
        for i in range(nv):
            A("v_fma_f32 v%d, v%d, s%d, -v%d" % (s0 + i, s0 + i, sC, mx))
        for i in range(nv):
            A("v_exp_f32 v%d, v%d" % (s0 + i, s0 + i))
        A("v_mul_f32 v%d, v%d, v%d" % (L + t, L + t, al))
        for i in range(nv):
            A("v_add_f32 v%d, v%d, v%d" % (L + t, L + t, s0 + i))
        p0 = P + t * 8
        for i in range(0, nv, 2):
            A("v_cvt_pk_bf16_f32 v%d, v%d, v%d" % (p0 + i // 2, s0 + i, s0 + i + 1))
        for i in range(32):
            A("v_mul_f32 v%d, v%d, v%d" % (O + t * 32 + i, O + t * 32 + i, al))
    A("s_waitcnt vmcnt(12)")
    A("s_barrier")
    kv_dma(sV, VVD, sA_, 32768)
    A("v_add_u32 v%d, s%d, v%d" % (VVJ, sB_, VVB))

    def vreads(f):
        u, dt = f // 8, f % 8
        for hh in range(2):
            l = 2 * u + hh
            x = (l << 12) | (dt << 5)
            ta = TA + ((2 * f + hh) & 3)
            if x:
                A("v_xor_b32 v%d, 0x%x, v%d" % (ta, x, VVJ))
                ad = ta
            else:
                ad = VVJ
            A("ds_read_b64_tr_b16 %s, v%d" % (vr(F + (f % 8) * 4 + hh * 2, 2), ad))

    PD = 6
    for f in range(PD):
        vreads(f)
    for f in range(16):
        u, dt = f // 8, f % 8
        rem = min(16, f + PD) - (f + 1)
        A("s_waitcnt lgkmcnt(%d)" % (2 * rem))
        fa = F + (f % 8) * 4
        for t in range(2):
            d = vr(O + t * 32 + dt * 4, 4)
            A("v_mfma_f32_16x16x32_bf16 %s, %s, %s, %s" % (d, vr(fa, 4), vr(P + t * 8 + u * 4, 4), d))
        if u == 0:
            d = vr(O + 64 + dt * 4, 4)
            A("v_mfma_f32_16x16x16_bf16 %s, %s, %s, %s" % (d, vr(fa, 2), vr(P + 16, 2), d))
        if f + PD < 16:
            vreads(f + PD)
    A("s_mov_b32 s%d, s%d" % (sC_, sB_))
    for s in (sA_, sB_):
        A("s_add_u32 s%d, s%d, 32768" % (s, s))
        A("s_sub_u32 s%d, s%d, 81920" % (sT, s))
        A("s_cmp_ge_u32 s%d, 81920" % s)
        A("s_cselect_b32 s%d, s%d, s%d" % (s, sT, s))
    A("s_add_u32 s%d, s%d, 16384" % (sJ, sJ))
    A("s_cmp_lt_u32 s%d, 131072" % sJ)
    A.flush()
    A("s_cbranch_scc1 L1_loop")

    A("s_waitcnt vmcnt(0)")
    A("s_barrier")
    for t in range(3):
        cross_lane(A, "v_add_f32", L + t, T1)
    A("v_lshlrev_b32 v%d, 4, v%d" % (T2, LANE))
    A("s_lshl_b32 s%d, s%d, 13" % (sT, sWv))
    A("v_add_u32 v%d, s%d, v%d" % (T3, sT, T2))
    for dt in range(8):
        A("ds_write_b128 v%d, %s offset:%d" % (T3, vr(O + 64 + dt * 4, 4), dt * 1024))
    A("v_and_b32 v%d, 15, v%d" % (T4, LANE))
    A("v_lshlrev_b32 v%d, 3, v%d" % (T4, T4))
    A("s_lshl_b32 s%d, s%d, 7" % (sT, sWv))
    A("v_add_u32 v%d, s%d, v%d" % (T5, sT, T4))
    A("v_mov_b32 v%d, v%d" % (TA, M + 2))
    A("v_mov_b32 v%d, v%d" % (TA + 1, L + 2))
    A("ds_write_b64 v%d, %s offset:32768" % (T5, vr(TA, 2)))
    VO = T0
    A("v_and_b32 v%d, 15, v%d" % (VO, LANE))
    A("v_lshlrev_b32 v%d, 13, v%d" % (VO, VO))
    A("v_lshrrev_b32 v%d, 4, v%d" % (T1, LANE))
    A("v_lshl_add_u32 v%d, v%d, 3, v%d" % (VO, T1, VO))
    A("s_lshl_b32 s%d, s%d, 18" % (sT, sWv))
    for t in range(2):
        A("v_rcp_f32 v%d, v%d" % (T1, L + t))
        for i in range(32):
            A("v_mul_f32 v%d, v%d, v%d" % (O + t * 32 + i, O + t * 32 + i, T1))
        for dt in range(8):
            a = O + t * 32 + dt * 4
            A("v_cvt_pk_bf16_f32 v%d, v%d, v%d" % (F + dt * 2, a, a + 1))
            A("v_cvt_pk_bf16_f32 v%d, v%d, v%d" % (F + dt * 2 + 1, a + 2, a + 3))
            A("buffer_store_dwordx2 %s, v%d, %s, s%d offen offset:%d" % (vr(F + dt * 2, 2), VO, sr(sO, 4), sT, 32 * dt))
        if t == 0:
            A("s_add_u32 s%d, s%d, 131072" % (sT, sT))
            A("s_waitcnt vmcnt(0)")
    A("s_waitcnt lgkmcnt(0)")
    A("s_barrier")
    ML = S
    OP = S + 8
    for w2 in range(4):
        A("ds_read_b64 %s, v%d offset:%d" % (vr(ML + 2 * w2, 2), T4, 32768 + w2 * 128))
    A("s_lshl_b32 s%d, s%d, 11" % (sT, sWv))
    A("v_add_u32 v%d, s%d, v%d" % (T3, sT, T2))
    for w2 in range(4):
        for dd in range(2):
            A("ds_read_b128 %s, v%d offset:%d" % (vr(OP + (w2 * 2 + dd) * 4, 4), T3, w2 * 8192 + dd * 1024))
    A("s_waitcnt lgkmcnt(0)")
    A("v_max3_f32 v%d, v%d, v%d, v%d" % (T1, ML, ML + 2, ML + 4))
    A("v_max_f32 v%d, v%d, v%d" % (T1, T1, ML + 6))
    for w2 in range(4):
        A("v_sub_f32 v%d, v%d, v%d" % (ML + 2 * w2, ML + 2 * w2, T1))
        A("v_exp_f32 v%d, v%d" % (ML + 2 * w2, ML + 2 * w2))
    A("v_mul_f32 v%d, v%d, v%d" % (T5, ML, ML + 1))
    for w2 in range(1, 4):
        A("v_fma_f32 v%d, v%d, v%d, v%d" % (T5, ML + 2 * w2, ML + 2 * w2 + 1, T5))
    A("v_rcp_f32 v%d, v%d" % (T5, T5))
    for w2 in range(4):
        A("v_mul_f32 v%d, v%d, v%d" % (ML + 2 * w2, ML + 2 * w2, T5))
    for dd in range(2):
        for r in range(4):
            d = O + dd * 4 + r
            A("v_mul_f32 v%d, v%d, v%d" % (d, OP + dd * 4 + r, ML))
            for w2 in range(1, 4):
                A("v_fma_f32 v%d, v%d, v%d, v%d" % (d, OP + (w2 * 2 + dd) * 4 + r, ML + 2 * w2, d))
    A("s_lshl_b32 s%d, s%d, 6" % (sT, sWv))
    A("s_add_u32 s%d, s%d, %d" % (sT, sT, 8 * 131072))
    for dd in range(2):
        a = O + dd * 4
        A("v_cvt_pk_bf16_f32 v%d, v%d, v%d" % (F + 16 + dd * 2, a, a + 1))
        A("v_cvt_pk_bf16_f32 v%d, v%d, v%d" % (F + 16 + dd * 2 + 1, a + 2, a + 3))
        A("buffer_store_dwordx2 %s, v%d, %s, s%d offen offset:%d" % (vr(F + 16 + dd * 2, 2), VO, sr(sO, 4), sT, 32 * dd))
    A.label("L1_done")
    A("s_endpgm")


def kernel_oproj(A):
    K2 = "oproj_kernel"
    A.raw(".globl %s\n.p2align 8\n.type %s,@function\n%s:" % (K2, K2, K2))
    A("s_cmp_ge_u32 s2, 256")
    A("s_cbranch_scc1 L2_done")
    load_kernargs(A)
    sBr, sKq, sB, sNb, sWv = 30, 31, 32, 33, 34
    A("s_and_b32 s35, s2, 7")
    A("s_lshr_b32 s%d, s35, 2" % sBr)
    A("s_and_b32 s%d, s35, 3" % sKq)
    A("s_lshr_b32 s35, s2, 3")
    A("s_lshr_b32 s%d, s35, 2" % sB)
    A("s_and_b32 s%d, s35, 3" % sNb)
    LANE, T0, T1, T2, T3 = 254, 238, 239, 240, 241
    A("v_and_b32 v%d, 63, v0" % LANE)
    A("v_lshrrev_b32 v%d, 6, v0" % T0)
    A("v_readfirstlane_b32 s%d, v%d" % (sWv, T0))
    A("s_waitcnt lgkmcnt(0)")
    A("s_cmp_eq_u32 s%d, 0" % sBr)
    A("s_cselect_b64 s[12:13], s[12:13], s[22:23]")
    sW, sX, sO = 44, 48, 52
    A("s_lshl_b32 s35, s%d, 20" % sKq)
    A("s_lshl_b32 s36, s%d, 8" % sNb)
    A("s_add_u32 s35, s35, s36")
    A("s_sub_u32 s37, %d, s36" % (1024 * 1024))
    make_srd(A, sW, 12, 13, "s35", "s37")
    A("s_mul_i32 s35, s%d, %d" % (sBr, O_BRANCH_BYTES))
    A("s_mul_i32 s36, s%d, %d" % (sB, 144 * 8192))
    A("s_add_u32 s35, s35, s36")
    A("s_lshl_b32 s36, s%d, 11" % sKq)
    A("s_add_u32 s35, s35, s36")
    A("s_sub_u32 s37, %d, s36" % (144 * 8192))
    make_srd(A, sX, 28, 29, "s35", "s37")
    A("s_lshl_b32 s35, s%d, 1" % sKq)
    A("s_add_u32 s35, s35, s%d" % sBr)
    A("s_mul_i32 s35, s35, 1152")
    A("s_mul_i32 s36, s%d, 144" % sB)
    A("s_add_u32 s35, s35, s36")
    A("s_lshl_b32 s35, s35, 11")
    A("s_lshl_b32 s36, s%d, 9" % sNb)
    A("s_add_u32 s35, s35, s36")
    A("s_add_u32 s35, s35, %d" % P_BASE)
    A("s_sub_u32 s37, %d, s36" % (144 * 2048))
    make_srd(A, sO, 28, 29, "s35", "s37")
    R = dict(acc=0, xr=96, fr=200, wrd=72, wdma=80, vx=81, lane=LANE, t0=T0, t1=T1, t2=T2, t3=T3,
             sq0=60, sq1=61, swb=62, sm0=63, st=64)
    gemm_phase(A, 32, 1024, 8192, sW, sX, sWv, R, {}, None)
    A("v_and_b32 v%d, 15, v%d" % (T0, LANE))
    A("v_lshlrev_b32 v%d, 11, v%d" % (T0, T0))
    A("v_lshrrev_b32 v%d, 4, v%d" % (T1, LANE))
    A("v_lshl_add_u32 v%d, v%d, 4, v%d" % (T0, T1, T0))
    A("s_lshl_b32 s35, s%d, 7" % sWv)
    A("v_add_u32 v%d, s35, v%d" % (T0, T0))
    A("s_lshl_b32 s36, s%d, 16" % sWv)
    A("s_add_u32 s37, s36, 32768")
    A("s_mov_b32 s38, %d" % (8 * 32768))
    for t in range(3):
        for dl in range(8 if t < 2 else 2):
            a = (t * 8 + dl) * 4 if t < 2 else 64 + dl * 4
            ta = 242 + (dl & 3)
            if dl:
                A("v_xor_b32 v%d, %d, v%d" % (ta, dl << 6, T0))
            else:
                ta = T0
            A("buffer_store_dwordx4 %s, v%d, %s, s%d offen" % (vr(a, 4), ta, sr(sO, 4), 36 + t))
    A.label("L2_done")
    A("s_endpgm")


def kernel_reduce(A):
    K3 = "reduce_kernel"
    A.raw(".globl %s\n.p2align 8\n.type %s,@function\n%s:" % (K3, K3, K3))
    A("s_cmp_ge_u32 s2, 576")
    A("s_cbranch_scc1 L3_done")
    A("s_load_dwordx2 s[24:25], s[0:1], 80")
    A("s_load_dwordx2 s[28:29], s[0:1], 96")
    A("s_cmp_ge_u32 s2, 288")
    A("s_cselect_b32 s30, 1, 0")
    A("s_mul_i32 s31, s30, 288")
    A("s_sub_u32 s31, s2, s31")
    A("s_waitcnt lgkmcnt(0)")
    A("s_mul_i32 s32, s30, 1152")
    A("s_lshl_b32 s33, s31, 2")
    A("s_add_u32 s32, s32, s33")
    A("s_lshl_b32 s32, s32, 11")
    A("s_add_u32 s32, s32, %d" % P_BASE)
    make_srd(A, 36, 28, 29, "s32", "%d" % (3 * 2 * 1152 * 2048 + 4 * 2048))
    A("s_lshl_b32 s32, s31, 13")
    A("s_lshl_b32 s33, s30, 10")
    A("s_add_u32 s32, s32, s33")
    A("s_sub_u32 s34, 8192, s33")
    make_srd(A, 40, 24, 25, "s32", "s34")
    A("v_lshlrev_b32 v1, 5, v0")
    for kq in range(4):
        A("s_mov_b32 s%d, %d" % (44 + kq, kq * 2 * 1152 * 2048))
        A("buffer_load_dwordx4 %s, v1, s[36:39], s%d offen" % (vr(4 + kq * 8, 4), 44 + kq))
        A("buffer_load_dwordx4 %s, v1, s[36:39], s%d offen offset:16" % (vr(8 + kq * 8, 4), 44 + kq))
    A("v_lshrrev_b32 v2, 6, v0")
    A("v_lshlrev_b32 v2, 11, v2")
    A("v_and_b32 v3, 63, v0")
    A("v_lshl_add_u32 v2, v3, 4, v2")
    A("s_waitcnt vmcnt(0)")
    for i in range(8):
        A("v_add_f32 v%d, v%d, v%d" % (4 + i, 4 + i, 12 + i))
        A("v_add_f32 v%d, v%d, v%d" % (20 + i, 20 + i, 28 + i))
    for i in range(8):
        A("v_add_f32 v%d, v%d, v%d" % (4 + i, 4 + i, 20 + i))
    for i in range(4):
        A("v_cvt_pk_bf16_f32 v%d, v%d, v%d" % (36 + i, 4 + 2 * i, 5 + 2 * i))
    A("buffer_store_dwordx4 v[36:39], v2, s[40:43], 0 offen")
    A.label("L3_done")
    A("s_endpgm")


def kd(name, vgpr, sgpr=102):
    return """.amdhsa_kernel %s
  .amdhsa_next_free_vgpr %d
  .amdhsa_next_free_sgpr %d
  .amdhsa_accum_offset %d
  .amdhsa_group_segment_fixed_size 0
  .amdhsa_kernarg_size 104
  .amdhsa_user_sgpr_count 2
  .amdhsa_user_sgpr_kernarg_segment_ptr 1
  .amdhsa_system_sgpr_workgroup_id_x 1
.end_amdhsa_kernel
""" % (name, vgpr, sgpr, (vgpr + 3) // 4 * 4)


def main():
    A = Asm()
    hdr = open(os.path.join(os.path.dirname(os.path.abspath(__file__)), "..", "cdna_kernels", NAME + ".s.ref")).read().split("\n")
    head = [l for l in hdr if l.startswith(";") and "@launch" not in l and "Override launch" not in l and "grid=ceil" not in l]
    out = "\n".join(head) + "\n"
    out += "; @launch kernel=attn_kernel grid=(512,1,1) block=(256,1,1) lds=81920\n"
    out += "; @launch kernel=oproj_kernel grid=(256,1,1) block=(256,1,1) lds=65536\n"
    out += "; @launch kernel=reduce_kernel grid=(576,1,1) block=(256,1,1) lds=0\n"
    out += '.amdgcn_target "amdgcn-amd-amdhsa--gfx950"\n.text\n'
    kernel_attn(A)
    kernel_oproj(A)
    kernel_reduce(A)
    out += A.text()
    out += '.section .rodata,"a"\n.p2align 6\n'
    out += kd("attn_kernel", 256, 72)
    out += ".p2align 6\n" + kd("oproj_kernel", 256, 72)
    out += ".p2align 6\n" + kd("reduce_kernel", 40, 56)
    dst = sys.argv[1] if len(sys.argv) > 1 else os.path.join(os.path.dirname(os.path.abspath(__file__)), "..", "cdna_kernels", NAME + ".s")
    open(dst, "w").write(out)
    print("wrote", dst, A.ninst, "instructions")


if __name__ == "__main__":
    main()
```

```python
import sys, os, struct
sys.path.insert(0, os.path.dirname(os.path.abspath(__file__)))
from asmlib import Asm, VmQ

NAME = "concat_heads__mha_block_cached__mha_block_cached__near_ridge"
O_BRANCH_BYTES = 1152 * 4096 * 2
P_BASE = 2 * O_BRANCH_BYTES
SCALE_C = 1.4426950408889634 / (128.0 ** 0.5)
EXP = os.environ.get("EXP", "")
KVPOL = os.environ.get("KVPOL", "nt ")


def f32bits(x):
    return struct.unpack("<I", struct.pack("<f", x))[0]


def vr(base, n):
    return "v[%d:%d]" % (base, base + n - 1)


def sr(base, n):
    return "s[%d:%d]" % (base, base + n - 1)


def load_kernargs(A):
    A("s_load_dwordx16 s[4:19], s[0:1], 0")
    A("s_load_dwordx8 s[20:27], s[0:1], 64")
    A("s_load_dwordx2 s[28:29], s[0:1], 96")


def make_srd(A, d, lo, hi, off_s, nrec):
    A("s_add_u32 s%d, s%d, %s" % (d, lo, off_s))
    A("s_addc_u32 s%d, s%d, 0" % (d + 1, hi))
    A("s_and_b32 s%d, s%d, 0xffff" % (d + 1, d + 1))
    A("s_mov_b32 s%d, %s" % (d + 2, nrec))
    A("s_mov_b32 s%d, 0x00020000" % (d + 3))


def gemm_phase(A, nk, wstride, mode, sW, sX, sWave, sRot, R, hooks, pre_hooks):
    XD = 8
    vq = VmQ()
    lane, t0, t1, t2, t3 = R["lane"], R["t0"], R["t1"], R["t2"], R["t3"]
    wdma, vx, wrd = R["wdma"], R["vx"], R["wrd"]
    sq0, sq1, swb, sm0, st, sk, sx = R["sq0"], R["sq1"], R["swb"], R["sm0"], R["st"], R["sk"], R["sx"]
    nat = mode == "nat"
    A("v_lshrrev_b32 v%d, 4, v%d" % (t0, lane))
    A("v_and_b32 v%d, 15, v%d" % (t1, lane))
    if nat:
        A("s_and_b32 s%d, s%d, 1" % (st, sWave))
        A("s_lshl_b32 s%d, s%d, 2" % (st, st))
        A("v_or_b32 v%d, s%d, v%d" % (t2, st, t0))
    else:
        A("v_mov_b32 v%d, v%d" % (t2, t0))
    A("v_lshrrev_b32 v%d, 1, v%d" % (t3, t1))
    A("v_xor_b32 v%d, v%d, v%d" % (t2, t2, t3))
    A("v_lshlrev_b32 v%d, 5, v%d" % (t2, t2))
    A("v_and_b32 v%d, 1, v%d" % (t3, lane))
    A("v_lshl_add_u32 v%d, v%d, 4, v%d" % (t2, t3, t2))
    A("v_mul_u32_u24 v%d, %d, v%d" % (t3, wstride, t0))
    A("v_add_u32 v%d, v%d, v%d" % (wdma, t2, t3))
    if nat:
        A("v_mov_b32 v%d, v%d" % (wdma + 1, wdma))
        A("v_lshlrev_b32 v%d, 10, v%d" % (t2, t1))
        A("v_lshl_add_u32 v%d, v%d, 4, v%d" % (vx, t0, t2))
        A("v_bfe_u32 v%d, v%d, 2, 2" % (t1, lane))
        A("v_and_b32 v%d, 1, v%d" % (t2, t0))
        A("v_lshl_add_u32 v%d, v%d, 2, v%d" % (t2, t2, t1))
        A("v_lshl_add_u32 v%d, v%d, 3, v%d" % (t3, t0, t1))
        hoff = 1024
    else:
        A("v_xor_b32 v%d, 0x80, v%d" % (wdma + 1, wdma))
        A("v_lshlrev_b32 v%d, 4, v%d" % (vx, lane))
        A("v_lshrrev_b32 v%d, 2, v%d" % (t3, lane))
        A("v_and_b32 v%d, 7, v%d" % (t2, t3))
        hoff = 4096
    A("s_lshl_b32 s%d, s%d, 1" % (st, sWave))
    A("v_xor_b32 v%d, s%d, v%d" % (t2, st, t2))
    A("v_lshlrev_b32 v%d, 5, v%d" % (t2, t2))
    A("v_lshl_add_u32 v%d, v%d, 8, v%d" % (t2, t3, t2))
    A("v_and_b32 v%d, 3, v%d" % (t3, lane))
    A("v_lshl_add_u32 v%d, v%d, 3, v%d" % (wrd, t3, t2))
    for dl in range(1, 8):
        A("v_xor_b32 v%d, %d, v%d" % (wrd + dl, dl << 5, wrd))
    tstride = 16384 if nat else 4096
    A("s_mul_i32 s%d, s%d, %d" % (sq0, sWave, 2 * tstride))
    A("s_mul_i32 s%d, s%d, %d" % (swb, sWave, 8 * wstride))
    A("s_lshl_b32 s%d, s%d, 11" % (sm0, sWave))

    def kidx(ks):
        A("s_add_u32 s%d, s%d, %d" % (sk, sRot, ks))
        A("s_and_b32 s%d, s%d, %d" % (sk, sk, nk - 1))

    def dma_chunk(ks):
        slot = ks % 8
        A("s_mul_i32 s%d, s%d, %d" % (st, sk, 32 * wstride))
        A("s_add_u32 s%d, s%d, s%d" % (st, st, swb))
        for mm in range(2):
            A("s_add_u32 m0, s%d, %d" % (sm0, slot * 8192 + mm * 1024))
            if mm:
                A("s_add_u32 s%d, s%d, %d" % (st, st, 4 * wstride))
            A("buffer_load_dwordx4 v%d, %s, s%d offen lds" % (wdma + mm, sr(sW, 4), st))
            vq.issue(("w", ks))

    def xload(ks):
        base = R["xr"] + (ks % XD) * 12
        if nat:
            A("s_lshl_b32 s%d, s%d, 6" % (sx, sk))
        else:
            A("s_lshr_b32 s%d, s%d, 2" % (sx, sk))
            A("s_mul_i32 s%d, s%d, 36864" % (sx, sx))
            A("s_and_b32 s%d, s%d, 3" % (st, sk))
            A("s_lshl_b32 s%d, s%d, 10" % (st, st))
            A("s_add_u32 s%d, s%d, s%d" % (sx, sx, st))
        A("s_add_u32 s%d, s%d, s%d" % (st, sx, sq0))
        A("buffer_load_dwordx4 %s, v%d, %s, s%d offen" % (vr(base, 4), vx, sr(sX, 4), st))
        A("s_add_u32 s%d, s%d, %d" % (st, st, tstride))
        A("buffer_load_dwordx4 %s, v%d, %s, s%d offen" % (vr(base + 4, 4), vx, sr(sX, 4), st))
        A("s_add_u32 s%d, s%d, %d" % (st, sx, 8 * tstride))
        A("buffer_load_dwordx4 %s, v%d, %s, s%d offen" % (vr(base + 8, 4), vx, sr(sX, 4), st))
        for _ in range(3):
            vq.issue(("x", ks))

    for i in range(8):
        kidx(i)
        dma_chunk(i)
        if i < XD - 1:
            xload(i)
    if pre_hooks:
        pre_hooks(A, vq)
    acc, fr = R["acc"], R["fr"]
    for ks in range(nk):
        n = vq.wait_for({("w", ks), ("x", ks)})
        A("s_waitcnt vmcnt(%d)" % n)
        A("s_barrier")
        if ks + 7 < nk:
            kidx(ks + 7)
            if ks >= 1:
                dma_chunk(ks + 7)
            xload(ks + 7)
        if ks in hooks:
            hooks[ks](A, vq)
        slot = ks % 8
        for dl in range(8):
            for h in range(2):
                A("ds_read_b64_tr_b16 %s, v%d offset:%d" % (vr(fr + dl * 4 + h * 2, 2), wrd + dl, slot * 8192 + h * hoff))
        xb = R["xr"] + (ks % XD) * 12
        for dl in range(8):
            A("s_waitcnt lgkmcnt(%d)" % (2 * (7 - dl)))
            for t in range(3):
                if t == 2 and dl >= 2:
                    continue
                a = acc + (t * 8 + dl) * 4 if t < 2 else acc + 64 + dl * 4
                c = "0" if ks == 0 else vr(a, 4)
                A("v_mfma_f32_16x16x32_bf16 %s, %s, %s, %s" % (vr(a, 4), vr(fr + dl * 4, 4), vr(xb + t * 4, 4), c))
    return vq


def cross_lane(A, op, v, tmp):
    A("v_mov_b32 v%d, v%d" % (tmp, v))
    A("v_permlane32_swap_b32 v%d, v%d" % (v, tmp))
    A("%s v%d, v%d, v%d" % (op, v, v, tmp))
    A("v_mov_b32 v%d, v%d" % (tmp, v))
    A("v_permlane16_swap_b32 v%d, v%d" % (v, tmp))
    A("%s v%d, v%d, v%d" % (op, v, v, tmp))


def kernel_attn(A):
    K1 = "attn_kernel"
    A.raw(".globl %s\n.p2align 8\n.type %s,@function\n%s:" % (K1, K1, K1))
    A("s_cmp_ge_u32 s2, 512")
    A("s_cbranch_scc1 L1_done")
    load_kernargs(A)
    sBr, sH, sB, sWv = 30, 31, 32, 33
    A("s_and_b32 s34, s2, 7")
    A("s_lshr_b32 s35, s2, 3")
    A("s_lshr_b32 s%d, s34, 2" % sBr)
    A("s_and_b32 s34, s34, 3")
    A("s_lshl_b32 s34, s34, 3")
    A("s_and_b32 s%d, s35, 7" % sH)
    A("s_add_u32 s%d, s%d, s34" % (sH, sH))
    A("s_lshr_b32 s%d, s35, 3" % sB)
    O, QF, S, P, F = 0, 96, 144, 180, 200
    M, L = 232, 235
    T0, T1, T2, T3, T4, T5 = 238, 239, 240, 241, 242, 243
    VKB, VVB, VKD, VVD, VKJ, VVJ = 244, 245, 246, 247, 248, 249
    TA = 250
    LANE = 254
    A("v_and_b32 v%d, 63, v0" % LANE)
    A("v_lshrrev_b32 v%d, 6, v0" % T0)
    A("v_readfirstlane_b32 s%d, v%d" % (sWv, T0))
    A("s_waitcnt lgkmcnt(0)")
    A("s_cmp_eq_u32 s%d, 0" % sBr)
    A("s_cselect_b64 s[4:5], s[4:5], s[14:15]")
    A("s_cselect_b64 s[6:7], s[6:7], s[16:17]")
    A("s_cselect_b64 s[8:9], s[8:9], s[18:19]")
    A("s_cselect_b64 s[10:11], s[10:11], s[20:21]")
    sK, sV, sW, sX, sO = 36, 40, 44, 48, 52
    A("s_lshl_b32 s34, s%d, 5" % sB)
    A("s_add_u32 s34, s34, s%d" % sH)
    A("s_lshl_b32 s34, s34, 17")
    make_srd(A, sK, 6, 7, "s34", "131072")
    make_srd(A, sV, 8, 9, "s34", "131072")
    A("s_lshl_b32 s34, s%d, 8" % sH)
    A("s_sub_u32 s35, %d, s34" % (512 * 8192))
    make_srd(A, sW, 10, 11, "s34", "s35")
    A("s_mul_i32 s35, s%d, 147456" % sB)
    make_srd(A, sX, 4, 5, "s35", "147456")
    A("s_mul_i32 s35, s%d, %d" % (sBr, O_BRANCH_BYTES))
    A("s_lshl_b32 s56, s%d, 5" % sB)
    A("s_add_u32 s56, s56, s%d" % sH)
    A("s_mul_i32 s56, s56, 36864")
    A("s_add_u32 s35, s35, s56")
    make_srd(A, sO, 28, 29, "s35", "36864")
    sRot = 68
    A("s_lshr_b32 s%d, s2, 3" % sRot)
    A("s_add_u32 s%d, s%d, s%d" % (sRot, sRot, sB))
    A("s_and_b32 s%d, s%d, 15" % (sRot, sRot))
    sC = 56
    A("s_mov_b32 s%d, 0x%08x" % (sC, f32bits(SCALE_C)))
    sW1k, sT, sT2 = 57, 58, 59
    A("s_lshl_b32 s%d, s%d, 10" % (sW1k, sWv))

    g, lo = T0, T1
    A("v_lshrrev_b32 v%d, 4, v%d" % (g, LANE))
    A("v_and_b32 v%d, 15, v%d" % (lo, LANE))
    A("s_lshl_b32 s%d, s%d, 2" % (sT, sWv))
    A("v_add_u32 v%d, s%d, v%d" % (T2, sT, g))
    A("v_xor_b32 v%d, v%d, v%d" % (T3, lo, T2))
    A("v_lshlrev_b32 v%d, 4, v%d" % (T3, T3))
    A("v_lshl_add_u32 v%d, v%d, 8, v%d" % (VKD, T2, T3))
    A("v_and_b32 v%d, 7, v%d" % (T3, T2))
    A("v_lshlrev_b32 v%d, 1, v%d" % (T3, T3))
    A("v_xor_b32 v%d, v%d, v%d" % (T3, lo, T3))
    A("v_lshlrev_b32 v%d, 4, v%d" % (T3, T3))
    A("v_lshl_add_u32 v%d, v%d, 8, v%d" % (VVD, T2, T3))
    if "noswz" in EXP:
        A("v_lshlrev_b32 v%d, 4, v%d" % (T3, lo))
        A("v_lshl_add_u32 v%d, v%d, 8, v%d" % (VKD, T2, T3))
        A("v_mov_b32 v%d, v%d" % (VVD, VKD))
    A("s_lshl_b32 s%d, s%d, 12" % (sT, sWv))
    A("v_xor_b32 v%d, v%d, v%d" % (T2, g, lo))
    A("v_lshlrev_b32 v%d, 4, v%d" % (T2, T2))
    A("v_lshl_add_u32 v%d, v%d, 8, v%d" % (T2, lo, T2))
    A("v_add_u32 v%d, s%d, v%d" % (VKB, sT, T2))
    A("v_lshrrev_b32 v%d, 2, v%d" % (T2, LANE))
    A("v_and_b32 v%d, 7, v%d" % (T3, T2))
    A("v_lshlrev_b32 v%d, 5, v%d" % (T3, T3))
    A("v_lshl_add_u32 v%d, v%d, 8, v%d" % (T3, T2, T3))
    A("v_and_b32 v%d, 3, v%d" % (T2, LANE))
    A("v_lshl_add_u32 v%d, v%d, 3, v%d" % (T3, T2, T3))
    A("v_add_u32 v%d, s%d, v%d" % (VVB, sT, T3))

    def kv_item_static(n):
        def fn(A, vq):
            srd, vd = (sK, VKD) if n % 2 == 0 else (sV, VVD)
            slot = (n + 4) % 5
            for i in range(4):
                A("s_add_u32 m0, s%d, %d" % (sW1k, slot * 16384 + i * 4096))
                if i == 0:
                    A("s_add_u32 s%d, s%d, %d" % (sT2, sRot, n // 2))
                    A("s_and_b32 s%d, s%d, 7" % (sT2, sT2))
                    A("s_lshl_b32 s%d, s%d, 14" % (sT2, sT2))
                else:
                    A("s_add_u32 s%d, s%d, 4096" % (sT2, sT2))
                A("buffer_load_dwordx4 v%d, %s, s%d offen %slds" % (vd, sr(srd, 4), sT2, KVPOL))
                vq.issue(("kv", n))
        return fn

    R = dict(acc=0, xr=96, fr=200, wrd=72, wdma=80, vx=82, lane=LANE, t0=T0, t1=T1, t2=T2, t3=T3,
             sq0=60, sq1=61, swb=62, sm0=63, st=64, sk=65, sx=66)
    hooks = {10: kv_item_static(1), 12: kv_item_static(2), 14: kv_item_static(3)}
    if "nop1" in EXP:
        vq = VmQ()
        for n in range(4):
            kv_item_static(n)(A, vq)
    else:
        vq = gemm_phase(A, 16, 8192, "nat", sW, sX, sWv, sRot, R, hooks, kv_item_static(0))
        assert vq.q == [("kv", 1)] * 4 + [("kv", 2)] * 4 + [("kv", 3)] * 4, vq.q
    if "p1only" in EXP:
        A("s_waitcnt vmcnt(0)")
        A("s_branch L1_done")

    A("s_barrier")
    SCR = 49152
    A("v_lshrrev_b32 v%d, 4, v%d" % (g, LANE))
    A("v_and_b32 v%d, 15, v%d" % (lo, LANE))
    A("s_lshl_b32 s%d, s%d, 2" % (sT, sWv))
    A("v_lshrrev_b32 v%d, 1, v%d" % (T2, g))
    A("v_or_b32 v%d, s%d, v%d" % (T2, sT, T2))
    A("v_xor_b32 v%d, v%d, v%d" % (T2, T2, lo))
    A("v_lshlrev_b32 v%d, 4, v%d" % (T2, T2))
    A("v_lshl_add_u32 v%d, v%d, 8, v%d" % (T2, lo, T2))
    A("v_and_b32 v%d, 1, v%d" % (T3, g))
    A("v_lshl_add_u32 v%d, v%d, 3, v%d" % (T2, T3, T2))
    A("s_lshl_b32 s%d, s%d, 12" % (sT, sWv))
    A("v_add_u32 v%d, s%d, v%d" % (T3, sT, T2))
    A("v_xor_b32 v%d, v%d, v%d" % (T4, g, lo))
    A("v_lshlrev_b32 v%d, 4, v%d" % (T4, T4))
    A("v_lshl_add_u32 v%d, v%d, 8, v%d" % (T4, lo, T4))
    A("v_add_u32 v%d, s%d, v%d" % (T5, sT, T4))
    PK = 200
    for t in range(2):
        for dl in range(8):
            a = (t * 8 + dl) * 4
            A("v_cvt_pk_bf16_f32 v%d, v%d, v%d" % (PK + dl * 2, a, a + 1))
            A("v_cvt_pk_bf16_f32 v%d, v%d, v%d" % (PK + dl * 2 + 1, a + 2, a + 3))
            A("v_xor_b32 v%d, %d, v%d" % (TA + (dl & 3), dl << 5, T3))
            A("ds_write_b64 v%d, %s offset:%d" % (TA + (dl & 3), vr(PK + dl * 2, 2), SCR))
        for ds in range(4):
            A("v_xor_b32 v%d, %d, v%d" % (TA + ds, ds << 6, T5))
            A("ds_read_b128 %s, v%d offset:%d" % (vr(QF + t * 16 + ds * 4, 4), TA + ds, SCR))
        A("s_waitcnt lgkmcnt(0)")
    A("s_barrier")
    for dl in range(2):
        a = 64 + dl * 4
        A("v_cvt_pk_bf16_f32 v%d, v%d, v%d" % (PK + dl * 2, a, a + 1))
        A("v_cvt_pk_bf16_f32 v%d, v%d, v%d" % (PK + dl * 2 + 1, a + 2, a + 3))
        A("v_xor_b32 v%d, %d, v%d" % (TA + dl, dl << 5, T2))
        A("ds_write_b64 v%d, %s offset:%d" % (TA + dl, vr(PK + dl * 2, 2), SCR))
    A("s_waitcnt lgkmcnt(0)")
    A("s_barrier")
    for ds in range(4):
        A("v_xor_b32 v%d, %d, v%d" % (TA + ds, ds << 6, T4))
        A("ds_read_b128 %s, v%d offset:%d" % (vr(QF + 32 + ds * 4, 4), TA + ds, SCR))
    for i in range(96):
        A("v_mov_b32 v%d, 0" % (O + i))
    for t in range(3):
        A("v_mov_b32 v%d, 0xf149f2ca" % (M + t))
        A("v_mov_b32 v%d, 0" % (L + t))
    A("s_waitcnt lgkmcnt(0)")
    sJ, sA_, sB_, sC_, sG = 60, 61, 62, 63, 64
    A("s_mov_b32 s%d, 0" % sJ)
    A("s_mov_b32 s%d, %d" % (sA_, 4 * 16384))
    A("s_mov_b32 s%d, %d" % (sB_, 0))
    A("s_mov_b32 s%d, %d" % (sC_, 3 * 16384))

    def kv_dma(srd, vd, sslot, goff):
        if "nomem" in EXP:
            return
        A("s_add_u32 s%d, s%d, s%d" % (sT, sslot, sW1k))
        for i in range(4):
            A("s_add_u32 m0, s%d, %d" % (sT, i * 4096))
            A("s_add_u32 s%d, s%d, %d" % (sT2, sG, i * 4096))
            A("buffer_load_dwordx4 v%d, %s, s%d offen %slds" % (vd, sr(srd, 4), sT2, KVPOL))

    A.label("L1_loop")
    A("s_add_u32 s%d, s%d, s%d" % (sG, sJ, sRot))
    A("s_add_u32 s%d, s%d, 2" % (sG, sG))
    A("s_and_b32 s%d, s%d, 7" % (sG, sG))
    A("s_lshl_b32 s%d, s%d, 14" % (sG, sG))
    A("s_cmp_lt_u32 s%d, 6" % sJ)
    A("s_cselect_b32 s%d, s%d, 131072" % (sG, sG))
    A("s_waitcnt vmcnt(12)")
    A("s_barrier")
    kv_dma(sK, VKD, sC_, 32768)
    A("v_add_u32 v%d, s%d, v%d" % (VKJ, sA_, VKB))

    def kreads(l):
        for ds in range(4):
            x = (l << 12) | (ds << 6)
            if x:
                A("v_xor_b32 v%d, 0x%x, v%d" % (TA + ds, x, VKJ))
                ad = TA + ds
            else:
                ad = VKJ
            A("ds_read_b128 %s, v%d" % (vr(F + (l & 1) * 16 + ds * 4, 4), ad))

    if "nocomp" not in EXP:
      kreads(0)
      kreads(1)
    for l in range(4 if "nocomp" not in EXP else 0):
        A("s_waitcnt lgkmcnt(%d)" % (4 if l < 3 else 0))
        for ds in range(4):
            fa = vr(F + (l & 1) * 16 + ds * 4, 4)
            for t in range(3):
                if t == 2 and l != 0:
                    continue
                d = S + t * 16 + l * 4 if t < 2 else S + 32
                c = "0" if ds == 0 else vr(d, 4)
                A("v_mfma_f32_16x16x32_bf16 %s, %s, %s, %s" % (vr(d, 4), fa, vr(QF + t * 16 + ds * 4, 4), c))
        if l + 2 < 4:
            kreads(l + 2)
    for t in range(3 if ("nocomp" not in EXP and "nosm" not in EXP) else 0):
        nv = 16 if t < 2 else 4
        s0 = S + t * 16
        mx, tmp, al = T0, T1, T2
        if nv == 16:
            A("v_max3_f32 v%d, v%d, v%d, v%d" % (mx, s0, s0 + 1, s0 + 2))
            for i in range(3, 15, 2):
                A("v_max3_f32 v%d, v%d, v%d, v%d" % (mx, mx, s0 + i, s0 + i + 1))
            A("v_max_f32 v%d, v%d, v%d" % (mx, mx, s0 + 15))
        else:
            A("v_max3_f32 v%d, v%d, v%d, v%d" % (mx, s0, s0 + 1, s0 + 2))
            A("v_max_f32 v%d, v%d, v%d" % (mx, mx, s0 + 3))
        cross_lane(A, "v_max_f32", mx, tmp)
        A("v_mul_f32 v%d, s%d, v%d" % (mx, sC, mx))
        A("v_max_f32 v%d, v%d, v%d" % (mx, mx, M + t))
        A("v_sub_f32 v%d, v%d, v%d" % (al, M + t, mx))
        A("v_exp_f32 v%d, v%d" % (al, al))
        A("v_mov_b32 v%d, v%d" % (M + t, mx))
        for i in range(nv):
            A("v_fma_f32 v%d, v%d, s%d, -v%d" % (s0 + i, s0 + i, sC, mx))
        for i in range(nv):
            A("v_exp_f32 v%d, v%d" % (s0 + i, s0 + i))
        A("v_mul_f32 v%d, v%d, v%d" % (L + t, L + t, al))
        for i in range(nv):
            A("v_add_f32 v%d, v%d, v%d" % (L + t, L + t, s0 + i))
        p0 = P + t * 8
        for i in range(0, nv, 2):
            A("v_cvt_pk_bf16_f32 v%d, v%d, v%d" % (p0 + i // 2, s0 + i, s0 + i + 1))
        for i in range(32):
            A("v_mul_f32 v%d, v%d, v%d" % (O + t * 32 + i, O + t * 32 + i, al))
    A("s_waitcnt vmcnt(12)")
    A("s_barrier")
    kv_dma(sV, VVD, sA_, 32768)
    A("v_add_u32 v%d, s%d, v%d" % (VVJ, sB_, VVB))

    def vreads(f):
        u, dt = f // 8, f % 8
        for hh in range(2):
            l = 2 * u + hh
            x = (l << 12) | (dt << 5)
            ta = TA + ((2 * f + hh) & 3)
            if x:
                A("v_xor_b32 v%d, 0x%x, v%d" % (ta, x, VVJ))
                ad = ta
            else:
                ad = VVJ
            A("ds_read_b64_tr_b16 %s, v%d" % (vr(F + (f % 8) * 4 + hh * 2, 2), ad))

    PD = 6
    for f in range(PD if "nocomp" not in EXP else 0):
        vreads(f)
    for f in range(16 if "nocomp" not in EXP else 0):
        u, dt = f // 8, f % 8
        rem = min(16, f + PD) - (f + 1)
        A("s_waitcnt lgkmcnt(%d)" % (2 * rem))
        fa = F + (f % 8) * 4
        for t in range(2):
            d = vr(O + t * 32 + dt * 4, 4)
            A("v_mfma_f32_16x16x32_bf16 %s, %s, %s, %s" % (d, vr(fa, 4), vr(P + t * 8 + u * 4, 4), d))
        if u == 0:
            d = vr(O + 64 + dt * 4, 4)
            A("v_mfma_f32_16x16x16_bf16 %s, %s, %s, %s" % (d, vr(fa, 2), vr(P + 16, 2), d))
        if f + PD < 16:
            vreads(f + PD)
    A("s_mov_b32 s%d, s%d" % (sC_, sB_))
    for s in (sA_, sB_):
        A("s_add_u32 s%d, s%d, 32768" % (s, s))
        A("s_sub_u32 s%d, s%d, 81920" % (sT, s))
        A("s_cmp_ge_u32 s%d, 81920" % s)
        A("s_cselect_b32 s%d, s%d, s%d" % (s, sT, s))
    A("s_add_u32 s%d, s%d, 1" % (sJ, sJ))
    A("s_cmp_lt_u32 s%d, 8" % sJ)
    A.flush()
    A("s_cbranch_scc1 L1_loop")

    A("s_waitcnt vmcnt(0)")
    A("s_barrier")
    for t in range(3):
        cross_lane(A, "v_add_f32", L + t, T1)
    A("v_lshlrev_b32 v%d, 4, v%d" % (T2, LANE))
    A("s_lshl_b32 s%d, s%d, 13" % (sT, sWv))
    A("v_add_u32 v%d, s%d, v%d" % (T3, sT, T2))
    for dt in range(8):
        A("ds_write_b128 v%d, %s offset:%d" % (T3, vr(O + 64 + dt * 4, 4), dt * 1024))
    A("v_and_b32 v%d, 15, v%d" % (T4, LANE))
    A("v_lshlrev_b32 v%d, 3, v%d" % (T4, T4))
    A("s_lshl_b32 s%d, s%d, 7" % (sT, sWv))
    A("v_add_u32 v%d, s%d, v%d" % (T5, sT, T4))
    A("v_mov_b32 v%d, v%d" % (TA, M + 2))
    A("v_mov_b32 v%d, v%d" % (TA + 1, L + 2))
    A("ds_write_b64 v%d, %s offset:32768" % (T5, vr(TA, 2)))
    VO = T2
    A("s_lshl_b32 s%d, s%d, 13" % (sT, sWv))
    for t in range(2):
        A("v_rcp_f32 v%d, v%d" % (T1, L + t))
        for i in range(32):
            A("v_mul_f32 v%d, v%d, v%d" % (O + t * 32 + i, O + t * 32 + i, T1))
        for ds in range(4):
            a = O + t * 32 + ds * 8
            pk = F + t * 16 + ds * 4
            for i in range(4):
                A("v_cvt_pk_bf16_f32 v%d, v%d, v%d" % (pk + i, a + 2 * i, a + 2 * i + 1))
            A("buffer_store_dwordx4 %s, v%d, %s, s%d offen offset:%d" % (vr(pk, 4), VO, sr(sO, 4), sT, 1024 * ds))
        if t == 0:
            A("s_add_u32 s%d, s%d, 4096" % (sT, sT))
    A("s_waitcnt lgkmcnt(0)")
    A("s_barrier")
    ML = S
    OP = S + 8
    for w2 in range(4):
        A("ds_read_b64 %s, v%d offset:%d" % (vr(ML + 2 * w2, 2), T4, 32768 + w2 * 128))
    A("s_lshl_b32 s%d, s%d, 11" % (sT, sWv))
    A("v_add_u32 v%d, s%d, v%d" % (T3, sT, T2))
    for w2 in range(4):
        for dd in range(2):
            A("ds_read_b128 %s, v%d offset:%d" % (vr(OP + (w2 * 2 + dd) * 4, 4), T3, w2 * 8192 + dd * 1024))
    A("s_waitcnt lgkmcnt(0)")
    A("v_max3_f32 v%d, v%d, v%d, v%d" % (T1, ML, ML + 2, ML + 4))
    A("v_max_f32 v%d, v%d, v%d" % (T1, T1, ML + 6))
    for w2 in range(4):
        A("v_sub_f32 v%d, v%d, v%d" % (ML + 2 * w2, ML + 2 * w2, T1))
        A("v_exp_f32 v%d, v%d" % (ML + 2 * w2, ML + 2 * w2))
    A("v_mul_f32 v%d, v%d, v%d" % (T5, ML, ML + 1))
    for w2 in range(1, 4):
        A("v_fma_f32 v%d, v%d, v%d, v%d" % (T5, ML + 2 * w2, ML + 2 * w2 + 1, T5))
    A("v_rcp_f32 v%d, v%d" % (T5, T5))
    for w2 in range(4):
        A("v_mul_f32 v%d, v%d, v%d" % (ML + 2 * w2, ML + 2 * w2, T5))
    for dd in range(2):
        for r in range(4):
            d = O + dd * 4 + r
            A("v_mul_f32 v%d, v%d, v%d" % (d, OP + dd * 4 + r, ML))
            for w2 in range(1, 4):
                A("v_fma_f32 v%d, v%d, v%d, v%d" % (d, OP + (w2 * 2 + dd) * 4 + r, ML + 2 * w2, d))
    A("s_lshl_b32 s%d, s%d, 10" % (sT, sWv))
    A("s_add_u32 s%d, s%d, %d" % (sT, sT, 8 * 4096))
    for i in range(4):
        A("v_cvt_pk_bf16_f32 v%d, v%d, v%d" % (QF + i, O + 2 * i, O + 2 * i + 1))
    A("buffer_store_dwordx4 %s, v%d, %s, s%d offen" % (vr(QF, 4), VO, sr(sO, 4), sT))
    A.label("L1_done")
    A("s_endpgm")


def kernel_oproj(A):
    K2 = "oproj_kernel"
    A.raw(".globl %s\n.p2align 8\n.type %s,@function\n%s:" % (K2, K2, K2))
    A("s_cmp_ge_u32 s2, 256")
    A("s_cbranch_scc1 L2_done")
    load_kernargs(A)
    sBr, sKq, sB, sNb, sWv = 30, 31, 32, 33, 34
    A("s_and_b32 s35, s2, 7")
    A("s_lshr_b32 s%d, s35, 2" % sBr)
    A("s_and_b32 s%d, s35, 3" % sKq)
    A("s_lshr_b32 s35, s2, 3")
    A("s_lshr_b32 s%d, s35, 2" % sB)
    A("s_and_b32 s%d, s35, 3" % sNb)
    LANE, T0, T1, T2, T3 = 254, 238, 239, 240, 241
    A("v_and_b32 v%d, 63, v0" % LANE)
    A("v_lshrrev_b32 v%d, 6, v0" % T0)
    A("v_readfirstlane_b32 s%d, v%d" % (sWv, T0))
    A("s_waitcnt lgkmcnt(0)")
    A("s_cmp_eq_u32 s%d, 0" % sBr)
    A("s_cselect_b64 s[12:13], s[12:13], s[22:23]")
    sW, sX, sO = 44, 48, 52
    A("s_lshl_b32 s35, s%d, 20" % sKq)
    A("s_lshl_b32 s36, s%d, 8" % sNb)
    A("s_add_u32 s35, s35, s36")
    A("s_sub_u32 s37, %d, s36" % (1024 * 1024))
    make_srd(A, sW, 12, 13, "s35", "s37")
    A("s_mul_i32 s35, s%d, %d" % (sBr, O_BRANCH_BYTES))
    A("s_lshl_b32 s36, s%d, 2" % sB)
    A("s_add_u32 s36, s36, s%d" % sKq)
    A("s_mul_i32 s36, s36, %d" % (8 * 36864))
    A("s_add_u32 s35, s35, s36")
    make_srd(A, sX, 28, 29, "s35", "%d" % (8 * 36864))
    sRot = 68
    A("s_lshr_b32 s%d, s2, 3" % sRot)
    A("s_lshl_b32 s35, s%d, 1" % sKq)
    A("s_add_u32 s35, s35, s%d" % sBr)
    A("s_mul_i32 s35, s35, 1152")
    A("s_mul_i32 s36, s%d, 144" % sB)
    A("s_add_u32 s35, s35, s36")
    A("s_lshl_b32 s35, s35, 11")
    A("s_lshl_b32 s36, s%d, 9" % sNb)
    A("s_add_u32 s35, s35, s36")
    A("s_add_u32 s35, s35, %d" % P_BASE)
    A("s_sub_u32 s37, %d, s36" % (144 * 2048))
    make_srd(A, sO, 28, 29, "s35", "s37")
    R = dict(acc=0, xr=96, fr=200, wrd=72, wdma=80, vx=82, lane=LANE, t0=T0, t1=T1, t2=T2, t3=T3,
             sq0=60, sq1=61, swb=62, sm0=63, st=64, sk=65, sx=66)
    gemm_phase(A, 32, 1024, "perm", sW, sX, sWv, sRot, R, {}, None)
    A("v_and_b32 v%d, 15, v%d" % (T0, LANE))
    A("v_lshlrev_b32 v%d, 11, v%d" % (T0, T0))
    A("v_lshrrev_b32 v%d, 4, v%d" % (T1, LANE))
    A("v_lshl_add_u32 v%d, v%d, 4, v%d" % (T0, T1, T0))
    A("s_lshl_b32 s35, s%d, 7" % sWv)
    A("v_add_u32 v%d, s35, v%d" % (T0, T0))
    A("s_lshl_b32 s36, s%d, 16" % sWv)
    A("s_add_u32 s37, s36, 32768")
    A("s_mov_b32 s38, %d" % (8 * 32768))
    for t in range(3):
        for dl in range(8 if t < 2 else 2):
            a = (t * 8 + dl) * 4 if t < 2 else 64 + dl * 4
            ta = 242 + (dl & 3)
            if dl:
                A("v_xor_b32 v%d, %d, v%d" % (ta, dl << 6, T0))
            else:
                ta = T0
            A("buffer_store_dwordx4 %s, v%d, %s, s%d offen" % (vr(a, 4), ta, sr(sO, 4), 36 + t))
    A.label("L2_done")
    A("s_endpgm")


def kernel_reduce(A):
    K3 = "reduce_kernel"
    A.raw(".globl %s\n.p2align 8\n.type %s,@function\n%s:" % (K3, K3, K3))
    A("s_cmp_ge_u32 s2, 576")
    A("s_cbranch_scc1 L3_done")
    A("s_load_dwordx2 s[24:25], s[0:1], 80")
    A("s_load_dwordx2 s[28:29], s[0:1], 96")
    A("s_cmp_ge_u32 s2, 288")
    A("s_cselect_b32 s30, 1, 0")
    A("s_mul_i32 s31, s30, 288")
    A("s_sub_u32 s31, s2, s31")
    A("s_waitcnt lgkmcnt(0)")
    A("s_mul_i32 s32, s30, 1152")
    A("s_lshl_b32 s33, s31, 2")
    A("s_add_u32 s32, s32, s33")
    A("s_lshl_b32 s32, s32, 11")
    A("s_add_u32 s32, s32, %d" % P_BASE)
    make_srd(A, 36, 28, 29, "s32", "%d" % (3 * 2 * 1152 * 2048 + 4 * 2048))
    A("s_lshl_b32 s32, s31, 13")
    A("s_lshl_b32 s33, s30, 10")
    A("s_add_u32 s32, s32, s33")
    A("s_sub_u32 s34, 8192, s33")
    make_srd(A, 40, 24, 25, "s32", "s34")
    A("v_lshlrev_b32 v1, 5, v0")
    for kq in range(4):
        A("s_mov_b32 s%d, %d" % (44 + kq, kq * 2 * 1152 * 2048))
        A("buffer_load_dwordx4 %s, v1, s[36:39], s%d offen" % (vr(4 + kq * 8, 4), 44 + kq))
        A("buffer_load_dwordx4 %s, v1, s[36:39], s%d offen offset:16" % (vr(8 + kq * 8, 4), 44 + kq))
    A("v_lshrrev_b32 v2, 6, v0")
    A("v_lshlrev_b32 v2, 11, v2")
    A("v_and_b32 v3, 63, v0")
    A("v_lshl_add_u32 v2, v3, 4, v2")
    A("s_waitcnt vmcnt(0)")
    for i in range(8):
        A("v_add_f32 v%d, v%d, v%d" % (4 + i, 4 + i, 12 + i))
        A("v_add_f32 v%d, v%d, v%d" % (20 + i, 20 + i, 28 + i))
    for i in range(8):
        A("v_add_f32 v%d, v%d, v%d" % (4 + i, 4 + i, 20 + i))
    for i in range(4):
        A("v_cvt_pk_bf16_f32 v%d, v%d, v%d" % (36 + i, 4 + 2 * i, 5 + 2 * i))
    A("buffer_store_dwordx4 v[36:39], v2, s[40:43], 0 offen")
    A.label("L3_done")
    A("s_endpgm")


def kd(name, vgpr, sgpr=102):
    return """.amdhsa_kernel %s
  .amdhsa_next_free_vgpr %d
  .amdhsa_next_free_sgpr %d
  .amdhsa_accum_offset %d
  .amdhsa_group_segment_fixed_size 0
  .amdhsa_kernarg_size 104
  .amdhsa_user_sgpr_count 2
  .amdhsa_user_sgpr_kernarg_segment_ptr 1
  .amdhsa_system_sgpr_workgroup_id_x 1
.end_amdhsa_kernel
""" % (name, vgpr, sgpr, (vgpr + 3) // 4 * 4)


def main():
    A = Asm()
    hdr = open(os.path.join(os.path.dirname(os.path.abspath(__file__)), "..", "cdna_kernels", NAME + ".s.ref")).read().split("\n")
    head = [l for l in hdr if l.startswith(";") and "@launch" not in l and "Override launch" not in l and "grid=ceil" not in l]
    out = "\n".join(head) + "\n"
    out += "; @launch kernel=attn_kernel grid=(512,1,1) block=(256,1,1) lds=81920\n"
    out += "; @launch kernel=oproj_kernel grid=(256,1,1) block=(256,1,1) lds=65536\n"
    out += "; @launch kernel=reduce_kernel grid=(576,1,1) block=(256,1,1) lds=0\n"
    out += '.amdgcn_target "amdgcn-amd-amdhsa--gfx950"\n.text\n'
    kernel_attn(A)
    kernel_oproj(A)
    kernel_reduce(A)
    out += A.text()
    out += '.section .rodata,"a"\n.p2align 6\n'
    out += kd("attn_kernel", 256, 72)
    out += ".p2align 6\n" + kd("oproj_kernel", 256, 72)
    out += ".p2align 6\n" + kd("reduce_kernel", 40, 56)
    dst = sys.argv[1] if len(sys.argv) > 1 else os.path.join(os.path.dirname(os.path.abspath(__file__)), "..", "cdna_kernels", NAME + ".s")
    open(dst, "w").write(out)
    print("wrote", dst, A.ninst, "instructions")


if __name__ == "__main__":
    main()
```

```python
import sys, os, struct
sys.path.insert(0, os.path.dirname(os.path.abspath(__file__)))
from asmlib import Asm, VmQ

NAME = "concat_heads__mha_block_cached__mha_block_cached__near_ridge"
O_BRANCH_BYTES = 1152 * 4096 * 2
P_BASE = 2 * O_BRANCH_BYTES
SCALE_C = 1.4426950408889634 / (128.0 ** 0.5)
EXP = os.environ.get("EXP", "")
KVPOL = os.environ.get("KVPOL", "nt ")


def f32bits(x):
    return struct.unpack("<I", struct.pack("<f", x))[0]


def vr(base, n):
    return "v[%d:%d]" % (base, base + n - 1)


def sr(base, n):
    return "s[%d:%d]" % (base, base + n - 1)


def load_kernargs(A):
    A("s_load_dwordx16 s[4:19], s[0:1], 0")
    A("s_load_dwordx8 s[20:27], s[0:1], 64")
    A("s_load_dwordx2 s[28:29], s[0:1], 96")


def make_srd(A, d, lo, hi, off_s, nrec):
    A("s_add_u32 s%d, s%d, %s" % (d, lo, off_s))
    A("s_addc_u32 s%d, s%d, 0" % (d + 1, hi))
    A("s_and_b32 s%d, s%d, 0xffff" % (d + 1, d + 1))
    A("s_mov_b32 s%d, %s" % (d + 2, nrec))
    A("s_mov_b32 s%d, 0x00020000" % (d + 3))


def gemm_phase(A, nk, wstride, mode, sW, sX, sWave, sRot, R, hooks):
    vq = VmQ()
    lane, t0, t1, t2, t3 = R["lane"], R["t0"], R["t1"], R["t2"], R["t3"]
    wdma, vx, wrd = R["wdma"], R["vx"], R["wrd"]
    sq0, swb, sm0, st, sk, sx, sw1k = R["sq0"], R["swb"], R["sm0"], R["st"], R["sk"], R["sx"], R["sw1k"]
    nat = mode == "nat"
    NW = 5 if nat else 8
    XD = 4 if nat else 7
    XB = 40960
    wslot = (lambda c: (c + 4) % 5) if nat else (lambda c: c % 8)
    xslot = lambda c: (c + 1) & 1
    A("v_lshrrev_b32 v%d, 4, v%d" % (t0, lane))
    A("v_and_b32 v%d, 15, v%d" % (t1, lane))
    if nat:
        A("s_and_b32 s%d, s%d, 1" % (st, sWave))
        A("s_lshl_b32 s%d, s%d, 2" % (st, st))
        A("v_or_b32 v%d, s%d, v%d" % (t2, st, t0))
    else:
        A("v_mov_b32 v%d, v%d" % (t2, t0))
    A("v_lshrrev_b32 v%d, 1, v%d" % (t3, t1))
    A("v_xor_b32 v%d, v%d, v%d" % (t2, t2, t3))
    A("v_lshlrev_b32 v%d, 5, v%d" % (t2, t2))
    A("v_and_b32 v%d, 1, v%d" % (t3, lane))
    A("v_lshl_add_u32 v%d, v%d, 4, v%d" % (t2, t3, t2))
    A("v_mul_u32_u24 v%d, %d, v%d" % (t3, wstride, t0))
    A("v_add_u32 v%d, v%d, v%d" % (wdma, t2, t3))
    if nat:
        A("v_mov_b32 v%d, v%d" % (wdma + 1, wdma))
        A("s_lshl_b32 s%d, s%d, 2" % (st, sWave))
        A("v_add_u32 v%d, s%d, v%d" % (t2, st, t0))
        A("v_xor_b32 v%d, v%d, v%d" % (t2, t2, lane))
        A("v_and_b32 v%d, 7, v%d" % (t2, t2))
        A("v_lshlrev_b32 v%d, 4, v%d" % (t2, t2))
        A("v_lshrrev_b32 v%d, 3, v%d" % (t3, lane))
        A("s_lshl_b32 s%d, s%d, 3" % (st, sWave))
        A("v_add_u32 v%d, s%d, v%d" % (t3, st, t3))
        A("v_lshl_add_u32 v%d, v%d, 10, v%d" % (vx, t3, t2))
        A("v_lshrrev_b32 v%d, 1, v%d" % (t2, t1))
        A("v_xor_b32 v%d, v%d, v%d" % (t2, t2, t0))
        A("v_lshlrev_b32 v%d, 4, v%d" % (t2, t2))
        A("v_lshl_add_u32 v%d, v%d, 7, v%d" % (t2, t1, t2))
        A("v_add_u32 v%d, %d, v%d" % (vx + 1, XB, t2))
        A("v_xor_b32 v%d, 64, v%d" % (vx + 2, vx + 1))
        A("s_lshl_b32 s%d, s%d, 12" % (st, sWave))
        A("v_add_u32 v%d, s%d, v%d" % (vx + 3, st, vx + 1))
        A("v_add_u32 v%d, s%d, v%d" % (vx + 4, st, vx + 2))
        A("v_bfe_u32 v%d, v%d, 2, 2" % (t1, lane))
        A("v_and_b32 v%d, 1, v%d" % (t2, t0))
        A("v_lshl_add_u32 v%d, v%d, 2, v%d" % (t2, t2, t1))
        A("v_lshl_add_u32 v%d, v%d, 3, v%d" % (t3, t0, t1))
        hoff = 1024
    else:
        A("v_xor_b32 v%d, 0x80, v%d" % (wdma + 1, wdma))
        A("v_lshlrev_b32 v%d, 4, v%d" % (vx, lane))
        A("v_lshrrev_b32 v%d, 2, v%d" % (t3, lane))
        A("v_and_b32 v%d, 7, v%d" % (t2, t3))
        hoff = 4096
    A("s_lshl_b32 s%d, s%d, 1" % (st, sWave))
    A("v_xor_b32 v%d, s%d, v%d" % (t2, st, t2))
    A("v_lshlrev_b32 v%d, 5, v%d" % (t2, t2))
    A("v_lshl_add_u32 v%d, v%d, 8, v%d" % (t2, t3, t2))
    A("v_and_b32 v%d, 3, v%d" % (t3, lane))
    A("v_lshl_add_u32 v%d, v%d, 3, v%d" % (wrd, t3, t2))
    for dl in range(1, 8):
        A("v_xor_b32 v%d, %d, v%d" % (wrd + dl, dl << 5, wrd))
    A("s_lshl_b32 s%d, s%d, 13" % (sq0, sWave))
    A("s_mul_i32 s%d, s%d, %d" % (swb, sWave, 8 * wstride))
    A("s_lshl_b32 s%d, s%d, 11" % (sm0, sWave))
    A("s_lshl_b32 s%d, s%d, 10" % (sw1k, sWave))

    def kidx(ks):
        A("s_add_u32 s%d, s%d, %d" % (sk, sRot, ks))
        A("s_and_b32 s%d, s%d, %d" % (sk, sk, nk - 1))

    def dma_w(ks):
        kidx(ks)
        A("s_mul_i32 s%d, s%d, %d" % (st, sk, 32 * wstride))
        A("s_add_u32 s%d, s%d, s%d" % (st, st, swb))
        for mm in range(2):
            A("s_add_u32 m0, s%d, %d" % (sm0, wslot(ks) * 8192 + mm * 1024))
            if mm:
                A("s_add_u32 s%d, s%d, %d" % (st, st, 4 * wstride))
            A("buffer_load_dwordx4 v%d, %s, s%d offen lds" % (wdma + mm, sr(sW, 4), st))
            vq.issue(("w", ks))

    def dma_x(c):
        kidx(2 * c)
        A("s_lshl_b32 s%d, s%d, 6" % (sx, sk))
        for i in range(5):
            A("s_add_u32 m0, s%d, %d" % (sw1k, XB + xslot(c) * 20480 + i * 4096))
            if i:
                A("s_add_u32 s%d, s%d, 32768" % (sx, sx))
            A("buffer_load_dwordx4 v%d, %s, s%d offen lds" % (vx, sr(sX, 4), sx))
            vq.issue(("x", c))

    def xreads(c):
        out = []
        for p in range(2):
            base = R["xr"] + ((2 * c + p) % XD) * 12
            so = xslot(c) * 20480
            out.append("ds_read_b128 %s, v%d offset:%d" % (vr(base, 4), vx + 3 + p, so))
            out.append("ds_read_b128 %s, v%d offset:%d" % (vr(base + 4, 4), vx + 3 + p, so + 2048))
            out.append("ds_read_b128 %s, v%d offset:%d" % (vr(base + 8, 4), vx + 1 + p, so + 16384))
        return out

    def xload(ks):
        base = R["xr"] + (ks % XD) * 12
        kidx(ks)
        A("s_lshr_b32 s%d, s%d, 2" % (sx, sk))
        A("s_mul_i32 s%d, s%d, 36864" % (sx, sx))
        A("s_and_b32 s%d, s%d, 3" % (st, sk))
        A("s_lshl_b32 s%d, s%d, 10" % (st, st))
        A("s_add_u32 s%d, s%d, s%d" % (sx, sx, st))
        A("s_add_u32 s%d, s%d, s%d" % (st, sx, sq0))
        A("buffer_load_dwordx4 %s, v%d, %s, s%d offen" % (vr(base, 4), vx, sr(sX, 4), st))
        A("s_add_u32 s%d, s%d, %d" % (st, st, 4096))
        A("buffer_load_dwordx4 %s, v%d, %s, s%d offen" % (vr(base + 4, 4), vx, sr(sX, 4), st))
        A("s_add_u32 s%d, s%d, %d" % (st, sx, 8 * 4096))
        A("buffer_load_dwordx4 %s, v%d, %s, s%d offen" % (vr(base + 8, 4), vx, sr(sX, 4), st))
        for _ in range(3):
            vq.issue(("x", ks))

    acc, fr = R["acc"], R["fr"]

    def wreads(ks, dl):
        return ["ds_read_b64_tr_b16 %s, v%d offset:%d" % (vr(fr + (ks & 1) * 32 + dl * 4 + h * 2, 2), wrd + dl, wslot(ks) * 8192 + h * hoff)
                for h in range(2)]

    if nat:
        dma_w(0)
        dma_x(0)
        dma_w(1)
        dma_x(1)
        for i in range(2, NW):
            dma_w(i)
    else:
        for i in range(NW):
            dma_w(i)
            if i < XD - 1:
                xload(i)
    A("s_waitcnt vmcnt(%d)" % vq.wait_for({("w", 0)} | ({("x", 0)} if nat else set())))
    A("s_barrier")
    for dl in range(8):
        for r in wreads(0, dl):
            A(r)
    if nat:
        for r in xreads(0):
            A(r)
    for i in range(nk):
        need = set()
        if i + 1 < nk:
            need.add(("w", i + 1))
        if nat:
            if i % 2 == 1 and i + 1 < nk:
                need.add(("x", (i + 1) // 2))
        else:
            need.add(("x", i))
        n = vq.wait_for(need)
        A("s_waitcnt vmcnt(%d) lgkmcnt(0)" % n)
        A("s_barrier")
        if i + NW < nk:
            dma_w(i + NW)
        if nat:
            if i % 2 == 0 and i // 2 + 2 < nk // 2:
                dma_x(i // 2 + 2)
        elif i + XD - 1 < nk:
            xload(i + XD - 1)
        if i in hooks:
            hooks[i](A, vq)
        xr = xreads((i + 1) // 2) if (nat and i % 2 == 1 and i + 1 < nk) else []
        xb = R["xr"] + (i % XD) * 12
        for dl in range(8):
            if i + 1 < nk:
                for r in wreads(i + 1, dl):
                    A(r)
            if dl < len(xr):
                A(xr[dl])
            for t in range(3):
                if t == 2 and dl >= 2:
                    continue
                a = acc + (t * 8 + dl) * 4 if t < 2 else acc + 64 + dl * 4
                c = "0" if i == 0 else vr(a, 4)
                A("v_mfma_f32_16x16x32_bf16 %s, %s, %s, %s" % (vr(a, 4), vr(fr + (i & 1) * 32 + dl * 4, 4), vr(xb + t * 4, 4), c))
    return vq


def cross_lane(A, op, v, tmp):
    A("v_mov_b32 v%d, v%d" % (tmp, v))
    A("v_permlane32_swap_b32 v%d, v%d" % (v, tmp))
    A("%s v%d, v%d, v%d" % (op, v, v, tmp))
    A("v_mov_b32 v%d, v%d" % (tmp, v))
    A("v_permlane16_swap_b32 v%d, v%d" % (v, tmp))
    A("%s v%d, v%d, v%d" % (op, v, v, tmp))


def kernel_attn(A):
    K1 = "attn_kernel"
    A.raw(".globl %s\n.p2align 8\n.type %s,@function\n%s:" % (K1, K1, K1))
    A("s_cmp_ge_u32 s2, 512")
    A("s_cbranch_scc1 L1_done")
    load_kernargs(A)
    sBr, sH, sB, sWv = 30, 31, 32, 33
    A("s_and_b32 s34, s2, 7")
    A("s_lshr_b32 s35, s2, 3")
    A("s_lshr_b32 s%d, s34, 2" % sBr)
    A("s_and_b32 s34, s34, 3")
    A("s_lshl_b32 s34, s34, 3")
    A("s_and_b32 s%d, s35, 7" % sH)
    A("s_add_u32 s%d, s%d, s34" % (sH, sH))
    A("s_lshr_b32 s%d, s35, 3" % sB)
    O, QF, S, P, F = 0, 96, 144, 180, 200
    M, L = 232, 235
    T0, T1, T2, T3, T4, T5 = 238, 239, 240, 241, 242, 243
    VKB, VVB, VKD, VVD, VKJ, VVJ = 244, 245, 246, 247, 248, 249
    TA = 250
    LANE = 254
    A("v_and_b32 v%d, 63, v0" % LANE)
    A("v_lshrrev_b32 v%d, 6, v0" % T0)
    A("v_readfirstlane_b32 s%d, v%d" % (sWv, T0))
    A("s_waitcnt lgkmcnt(0)")
    A("s_cmp_eq_u32 s%d, 0" % sBr)
    A("s_cselect_b64 s[4:5], s[4:5], s[14:15]")
    A("s_cselect_b64 s[6:7], s[6:7], s[16:17]")
    A("s_cselect_b64 s[8:9], s[8:9], s[18:19]")
    A("s_cselect_b64 s[10:11], s[10:11], s[20:21]")
    sK, sV, sW, sX, sO = 36, 40, 44, 48, 52
    A("s_lshl_b32 s34, s%d, 5" % sB)
    A("s_add_u32 s34, s34, s%d" % sH)
    A("s_lshl_b32 s34, s34, 17")
    make_srd(A, sK, 6, 7, "s34", "131072")
    make_srd(A, sV, 8, 9, "s34", "131072")
    A("s_lshl_b32 s34, s%d, 8" % sH)
    A("s_sub_u32 s35, %d, s34" % (512 * 8192))
    make_srd(A, sW, 10, 11, "s34", "s35")
    A("s_mul_i32 s35, s%d, 147456" % sB)
    make_srd(A, sX, 4, 5, "s35", "147456")
    A("s_mul_i32 s35, s%d, %d" % (sBr, O_BRANCH_BYTES))
    A("s_lshl_b32 s56, s%d, 5" % sB)
    A("s_add_u32 s56, s56, s%d" % sH)
    A("s_mul_i32 s56, s56, 36864")
    A("s_add_u32 s35, s35, s56")
    make_srd(A, sO, 28, 29, "s35", "36864")
    sRot = 68
    A("s_lshr_b32 s%d, s2, 3" % sRot)
    A("s_add_u32 s%d, s%d, s%d" % (sRot, sRot, sB))
    A("s_lshl_b32 s%d, s%d, 1" % (sRot, sRot))
    A("s_and_b32 s%d, s%d, 15" % (sRot, sRot))
    sRotK = 69
    A("s_lshr_b32 s%d, s%d, 1" % (sRotK, sRot))
    sC = 56
    A("s_mov_b32 s%d, 0x%08x" % (sC, f32bits(SCALE_C)))
    sW1k, sT, sT2 = 57, 58, 59
    A("s_lshl_b32 s%d, s%d, 10" % (sW1k, sWv))

    g, lo = T0, T1
    A("v_lshrrev_b32 v%d, 4, v%d" % (g, LANE))
    A("v_and_b32 v%d, 15, v%d" % (lo, LANE))
    A("s_lshl_b32 s%d, s%d, 2" % (sT, sWv))
    A("v_add_u32 v%d, s%d, v%d" % (T2, sT, g))
    A("v_xor_b32 v%d, v%d, v%d" % (T3, lo, T2))
    A("v_lshlrev_b32 v%d, 4, v%d" % (T3, T3))
    A("v_lshl_add_u32 v%d, v%d, 8, v%d" % (VKD, T2, T3))
    A("v_and_b32 v%d, 7, v%d" % (T3, T2))
    A("v_lshlrev_b32 v%d, 1, v%d" % (T3, T3))
    A("v_xor_b32 v%d, v%d, v%d" % (T3, lo, T3))
    A("v_lshlrev_b32 v%d, 4, v%d" % (T3, T3))
    A("v_lshl_add_u32 v%d, v%d, 8, v%d" % (VVD, T2, T3))
    if "noswz" in EXP:
        A("v_lshlrev_b32 v%d, 4, v%d" % (T3, lo))
        A("v_lshl_add_u32 v%d, v%d, 8, v%d" % (VKD, T2, T3))
        A("v_mov_b32 v%d, v%d" % (VVD, VKD))
    A("s_lshl_b32 s%d, s%d, 12" % (sT, sWv))
    A("v_xor_b32 v%d, v%d, v%d" % (T2, g, lo))
    A("v_lshlrev_b32 v%d, 4, v%d" % (T2, T2))
    A("v_lshl_add_u32 v%d, v%d, 8, v%d" % (T2, lo, T2))
    A("v_add_u32 v%d, s%d, v%d" % (VKB, sT, T2))
    A("v_lshrrev_b32 v%d, 2, v%d" % (T2, LANE))
    A("v_and_b32 v%d, 7, v%d" % (T3, T2))
    A("v_lshlrev_b32 v%d, 5, v%d" % (T3, T3))
    A("v_lshl_add_u32 v%d, v%d, 8, v%d" % (T3, T2, T3))
    A("v_and_b32 v%d, 3, v%d" % (T2, LANE))
    A("v_lshl_add_u32 v%d, v%d, 3, v%d" % (T3, T2, T3))
    A("v_add_u32 v%d, s%d, v%d" % (VVB, sT, T3))

    def kv_item_static(n):
        def fn(A, vq):
            srd, vd = (sK, VKD) if n % 2 == 0 else (sV, VVD)
            slot = (n + 4) % 5
            for i in range(4):
                A("s_add_u32 m0, s%d, %d" % (sW1k, slot * 16384 + i * 4096))
                if i == 0:
                    A("s_add_u32 s%d, s%d, %d" % (sT2, sRotK, n // 2))
                    A("s_and_b32 s%d, s%d, 7" % (sT2, sT2))
                    A("s_lshl_b32 s%d, s%d, 14" % (sT2, sT2))
                else:
                    A("s_add_u32 s%d, s%d, 4096" % (sT2, sT2))
                A("buffer_load_dwordx4 v%d, %s, s%d offen %slds" % (vd, sr(srd, 4), sT2, KVPOL))
                vq.issue(("kv", n))
        return fn

    R = dict(acc=0, xr=96, fr=144, wrd=72, wdma=80, vx=82, lane=LANE, t0=T0, t1=T1, t2=T2, t3=T3,
             sq0=60, swb=62, sm0=63, st=64, sk=65, sx=66, sw1k=67)

    def two(a, b):
        def fn(A, vq):
            a(A, vq)
            b(A, vq)
        return fn
    hooks = {12: two(kv_item_static(0), kv_item_static(1)), 14: kv_item_static(2), 15: kv_item_static(3)}
    if "nop1" in EXP:
        vq = VmQ()
        for n in range(4):
            kv_item_static(n)(A, vq)
    else:
        vq = gemm_phase(A, 16, 8192, "nat", sW, sX, sWv, sRot, R, hooks)
        assert EXP or vq.q[-12:] == [("kv", 1)] * 4 + [("kv", 2)] * 4 + [("kv", 3)] * 4, vq.q
    if "p1only" in EXP:
        A("s_waitcnt vmcnt(0)")
        A("s_branch L1_done")

    A("s_barrier")
    SCR = 49152
    A("v_lshrrev_b32 v%d, 4, v%d" % (g, LANE))
    A("v_and_b32 v%d, 15, v%d" % (lo, LANE))
    A("s_lshl_b32 s%d, s%d, 2" % (sT, sWv))
    A("v_lshrrev_b32 v%d, 1, v%d" % (T2, g))
    A("v_or_b32 v%d, s%d, v%d" % (T2, sT, T2))
    A("v_xor_b32 v%d, v%d, v%d" % (T2, T2, lo))
    A("v_lshlrev_b32 v%d, 4, v%d" % (T2, T2))
    A("v_lshl_add_u32 v%d, v%d, 8, v%d" % (T2, lo, T2))
    A("v_and_b32 v%d, 1, v%d" % (T3, g))
    A("v_lshl_add_u32 v%d, v%d, 3, v%d" % (T2, T3, T2))
    A("s_lshl_b32 s%d, s%d, 12" % (sT, sWv))
    A("v_add_u32 v%d, s%d, v%d" % (T3, sT, T2))
    A("v_xor_b32 v%d, v%d, v%d" % (T4, g, lo))
    A("v_lshlrev_b32 v%d, 4, v%d" % (T4, T4))
    A("v_lshl_add_u32 v%d, v%d, 8, v%d" % (T4, lo, T4))
    A("v_add_u32 v%d, s%d, v%d" % (T5, sT, T4))
    PK = 200
    for t in range(2):
        for dl in range(8):
            a = (t * 8 + dl) * 4
            A("v_cvt_pk_bf16_f32 v%d, v%d, v%d" % (PK + dl * 2, a, a + 1))
            A("v_cvt_pk_bf16_f32 v%d, v%d, v%d" % (PK + dl * 2 + 1, a + 2, a + 3))
            A("v_xor_b32 v%d, %d, v%d" % (TA + (dl & 3), dl << 5, T3))
            A("ds_write_b64 v%d, %s offset:%d" % (TA + (dl & 3), vr(PK + dl * 2, 2), SCR))
        for ds in range(4):
            A("v_xor_b32 v%d, %d, v%d" % (TA + ds, ds << 6, T5))
            A("ds_read_b128 %s, v%d offset:%d" % (vr(QF + t * 16 + ds * 4, 4), TA + ds, SCR))
        A("s_waitcnt lgkmcnt(0)")
    A("s_barrier")
    for dl in range(2):
        a = 64 + dl * 4
        A("v_cvt_pk_bf16_f32 v%d, v%d, v%d" % (PK + dl * 2, a, a + 1))
        A("v_cvt_pk_bf16_f32 v%d, v%d, v%d" % (PK + dl * 2 + 1, a + 2, a + 3))
        A("v_xor_b32 v%d, %d, v%d" % (TA + dl, dl << 5, T2))
        A("ds_write_b64 v%d, %s offset:%d" % (TA + dl, vr(PK + dl * 2, 2), SCR))
    A("s_waitcnt lgkmcnt(0)")
    A("s_barrier")
    for ds in range(4):
        A("v_xor_b32 v%d, %d, v%d" % (TA + ds, ds << 6, T4))
        A("ds_read_b128 %s, v%d offset:%d" % (vr(QF + 32 + ds * 4, 4), TA + ds, SCR))
    for i in range(96):
        A("v_mov_b32 v%d, 0" % (O + i))
    for t in range(3):
        A("v_mov_b32 v%d, 0xf149f2ca" % (M + t))
        A("v_mov_b32 v%d, 0" % (L + t))
    A("s_waitcnt lgkmcnt(0)")
    sJ, sA_, sB_, sC_, sG = 60, 61, 62, 63, 64
    A("s_mov_b32 s%d, 0" % sJ)
    A("s_mov_b32 s%d, %d" % (sA_, 4 * 16384))
    A("s_mov_b32 s%d, %d" % (sB_, 0))
    A("s_mov_b32 s%d, %d" % (sC_, 3 * 16384))

    def kv_dma(srd, vd, sslot, goff):
        if "nomem" in EXP:
            return
        A("s_add_u32 s%d, s%d, s%d" % (sT, sslot, sW1k))
        for i in range(4):
            A("s_add_u32 m0, s%d, %d" % (sT, i * 4096))
            A("s_add_u32 s%d, s%d, %d" % (sT2, sG, i * 4096))
            A("buffer_load_dwordx4 v%d, %s, s%d offen %slds" % (vd, sr(srd, 4), sT2, KVPOL))

    A.label("L1_loop")
    A("s_add_u32 s%d, s%d, s%d" % (sG, sJ, sRotK))
    A("s_add_u32 s%d, s%d, 2" % (sG, sG))
    A("s_and_b32 s%d, s%d, 7" % (sG, sG))
    A("s_lshl_b32 s%d, s%d, 14" % (sG, sG))
    A("s_cmp_lt_u32 s%d, 6" % sJ)
    A("s_cselect_b32 s%d, s%d, 131072" % (sG, sG))
    A("s_waitcnt vmcnt(12)")
    A("s_barrier")
    kv_dma(sK, VKD, sC_, 32768)
    A("v_add_u32 v%d, s%d, v%d" % (VKJ, sA_, VKB))

    def kreads(l):
        for ds in range(4):
            x = (l << 12) | (ds << 6)
            if x:
                A("v_xor_b32 v%d, 0x%x, v%d" % (TA + ds, x, VKJ))
                ad = TA + ds
            else:
                ad = VKJ
            A("ds_read_b128 %s, v%d" % (vr(F + (l & 1) * 16 + ds * 4, 4), ad))

    if "nocomp" not in EXP:
      kreads(0)
      kreads(1)
    for l in range(4 if "nocomp" not in EXP else 0):
        A("s_waitcnt lgkmcnt(%d)" % (4 if l < 3 else 0))
        for ds in range(4):
            fa = vr(F + (l & 1) * 16 + ds * 4, 4)
            for t in range(3):
                if t == 2 and l != 0:
                    continue
                d = S + t * 16 + l * 4 if t < 2 else S + 32
                c = "0" if ds == 0 else vr(d, 4)
                A("v_mfma_f32_16x16x32_bf16 %s, %s, %s, %s" % (vr(d, 4), fa, vr(QF + t * 16 + ds * 4, 4), c))
        if l + 2 < 4:
            kreads(l + 2)
    for t in range(3 if ("nocomp" not in EXP and "nosm" not in EXP) else 0):
        nv = 16 if t < 2 else 4
        s0 = S + t * 16
        mx, tmp, al = T0, T1, T2
        if nv == 16:
            A("v_max3_f32 v%d, v%d, v%d, v%d" % (mx, s0, s0 + 1, s0 + 2))
            for i in range(3, 15, 2):
                A("v_max3_f32 v%d, v%d, v%d, v%d" % (mx, mx, s0 + i, s0 + i + 1))
            A("v_max_f32 v%d, v%d, v%d" % (mx, mx, s0 + 15))
        else:
            A("v_max3_f32 v%d, v%d, v%d, v%d" % (mx, s0, s0 + 1, s0 + 2))
            A("v_max_f32 v%d, v%d, v%d" % (mx, mx, s0 + 3))
        cross_lane(A, "v_max_f32", mx, tmp)
        A("v_mul_f32 v%d, s%d, v%d" % (mx, sC, mx))
        A("v_max_f32 v%d, v%d, v%d" % (mx, mx, M + t))
        A("v_sub_f32 v%d, v%d, v%d" % (al, M + t, mx))
        A("v_exp_f32 v%d, v%d" % (al, al))
        A("v_mov_b32 v%d, v%d" % (M + t, mx))
        for i in range(nv):
            A("v_fma_f32 v%d, v%d, s%d, -v%d" % (s0 + i, s0 + i, sC, mx))
        for i in range(nv):
            A("v_exp_f32 v%d, v%d" % (s0 + i, s0 + i))
        A("v_mul_f32 v%d, v%d, v%d" % (L + t, L + t, al))
        for i in range(nv):
            A("v_add_f32 v%d, v%d, v%d" % (L + t, L + t, s0 + i))
        p0 = P + t * 8
        for i in range(0, nv, 2):
            A("v_cvt_pk_bf16_f32 v%d, v%d, v%d" % (p0 + i // 2, s0 + i, s0 + i + 1))
        for i in range(32):
            A("v_mul_f32 v%d, v%d, v%d" % (O + t * 32 + i, O + t * 32 + i, al))
    A("s_waitcnt vmcnt(12)")
    A("s_barrier")
    kv_dma(sV, VVD, sA_, 32768)
    A("v_add_u32 v%d, s%d, v%d" % (VVJ, sB_, VVB))

    def vreads(f):
        u, dt = f // 8, f % 8
        for hh in range(2):
            l = 2 * u + hh
            x = (l << 12) | (dt << 5)
            ta = TA + ((2 * f + hh) & 3)
            if x:
                A("v_xor_b32 v%d, 0x%x, v%d" % (ta, x, VVJ))
                ad = ta
            else:
                ad = VVJ
            A("ds_read_b64_tr_b16 %s, v%d" % (vr(F + (f % 8) * 4 + hh * 2, 2), ad))

    PD = 6
    for f in range(PD if "nocomp" not in EXP else 0):
        vreads(f)
    for f in range(16 if "nocomp" not in EXP else 0):
        u, dt = f // 8, f % 8
        rem = min(16, f + PD) - (f + 1)
        A("s_waitcnt lgkmcnt(%d)" % (2 * rem))
        fa = F + (f % 8) * 4
        for t in range(2):
            d = vr(O + t * 32 + dt * 4, 4)
            A("v_mfma_f32_16x16x32_bf16 %s, %s, %s, %s" % (d, vr(fa, 4), vr(P + t * 8 + u * 4, 4), d))
        if u == 0:
            d = vr(O + 64 + dt * 4, 4)
            A("v_mfma_f32_16x16x16_bf16 %s, %s, %s, %s" % (d, vr(fa, 2), vr(P + 16, 2), d))
        if f + PD < 16:
            vreads(f + PD)
    A("s_mov_b32 s%d, s%d" % (sC_, sB_))
    for s in (sA_, sB_):
        A("s_add_u32 s%d, s%d, 32768" % (s, s))
        A("s_sub_u32 s%d, s%d, 81920" % (sT, s))
        A("s_cmp_ge_u32 s%d, 81920" % s)
        A("s_cselect_b32 s%d, s%d, s%d" % (s, sT, s))
    A("s_add_u32 s%d, s%d, 1" % (sJ, sJ))
    A("s_cmp_lt_u32 s%d, 8" % sJ)
    A.flush()
    A("s_cbranch_scc1 L1_loop")

    A("s_waitcnt vmcnt(0)")
    A("s_barrier")
    for t in range(3):
        cross_lane(A, "v_add_f32", L + t, T1)
    A("v_lshlrev_b32 v%d, 4, v%d" % (T2, LANE))
    A("s_lshl_b32 s%d, s%d, 13" % (sT, sWv))
    A("v_add_u32 v%d, s%d, v%d" % (T3, sT, T2))
    for dt in range(8):
        A("ds_write_b128 v%d, %s offset:%d" % (T3, vr(O + 64 + dt * 4, 4), dt * 1024))
    A("v_and_b32 v%d, 15, v%d" % (T4, LANE))
    A("v_lshlrev_b32 v%d, 3, v%d" % (T4, T4))
    A("s_lshl_b32 s%d, s%d, 7" % (sT, sWv))
    A("v_add_u32 v%d, s%d, v%d" % (T5, sT, T4))
    A("v_mov_b32 v%d, v%d" % (TA, M + 2))
    A("v_mov_b32 v%d, v%d" % (TA + 1, L + 2))
    A("ds_write_b64 v%d, %s offset:32768" % (T5, vr(TA, 2)))
    VO = T2
    A("s_lshl_b32 s%d, s%d, 13" % (sT, sWv))
    for t in range(2):
        A("v_rcp_f32 v%d, v%d" % (T1, L + t))
        for i in range(32):
            A("v_mul_f32 v%d, v%d, v%d" % (O + t * 32 + i, O + t * 32 + i, T1))
        for ds in range(4):
            a = O + t * 32 + ds * 8
            pk = F + t * 16 + ds * 4
            for i in range(4):
                A("v_cvt_pk_bf16_f32 v%d, v%d, v%d" % (pk + i, a + 2 * i, a + 2 * i + 1))
            A("buffer_store_dwordx4 %s, v%d, %s, s%d offen offset:%d" % (vr(pk, 4), VO, sr(sO, 4), sT, 1024 * ds))
        if t == 0:
            A("s_add_u32 s%d, s%d, 4096" % (sT, sT))
    A("s_waitcnt lgkmcnt(0)")
    A("s_barrier")
    ML = S
    OP = S + 8
    for w2 in range(4):
        A("ds_read_b64 %s, v%d offset:%d" % (vr(ML + 2 * w2, 2), T4, 32768 + w2 * 128))
    A("s_lshl_b32 s%d, s%d, 11" % (sT, sWv))
    A("v_add_u32 v%d, s%d, v%d" % (T3, sT, T2))
    for w2 in range(4):
        for dd in range(2):
            A("ds_read_b128 %s, v%d offset:%d" % (vr(OP + (w2 * 2 + dd) * 4, 4), T3, w2 * 8192 + dd * 1024))
    A("s_waitcnt lgkmcnt(0)")
    A("v_max3_f32 v%d, v%d, v%d, v%d" % (T1, ML, ML + 2, ML + 4))
    A("v_max_f32 v%d, v%d, v%d" % (T1, T1, ML + 6))
    for w2 in range(4):
        A("v_sub_f32 v%d, v%d, v%d" % (ML + 2 * w2, ML + 2 * w2, T1))
        A("v_exp_f32 v%d, v%d" % (ML + 2 * w2, ML + 2 * w2))
    A("v_mul_f32 v%d, v%d, v%d" % (T5, ML, ML + 1))
    for w2 in range(1, 4):
        A("v_fma_f32 v%d, v%d, v%d, v%d" % (T5, ML + 2 * w2, ML + 2 * w2 + 1, T5))
    A("v_rcp_f32 v%d, v%d" % (T5, T5))
    for w2 in range(4):
        A("v_mul_f32 v%d, v%d, v%d" % (ML + 2 * w2, ML + 2 * w2, T5))
    for dd in range(2):
        for r in range(4):
            d = O + dd * 4 + r
            A("v_mul_f32 v%d, v%d, v%d" % (d, OP + dd * 4 + r, ML))
            for w2 in range(1, 4):
                A("v_fma_f32 v%d, v%d, v%d, v%d" % (d, OP + (w2 * 2 + dd) * 4 + r, ML + 2 * w2, d))
    A("s_lshl_b32 s%d, s%d, 10" % (sT, sWv))
    A("s_add_u32 s%d, s%d, %d" % (sT, sT, 8 * 4096))
    for i in range(4):
        A("v_cvt_pk_bf16_f32 v%d, v%d, v%d" % (QF + i, O + 2 * i, O + 2 * i + 1))
    A("buffer_store_dwordx4 %s, v%d, %s, s%d offen" % (vr(QF, 4), VO, sr(sO, 4), sT))
    A.label("L1_done")
    A("s_endpgm")


def kernel_oproj(A):
    K2 = "oproj_kernel"
    A.raw(".globl %s\n.p2align 8\n.type %s,@function\n%s:" % (K2, K2, K2))
    A("s_cmp_ge_u32 s2, 256")
    A("s_cbranch_scc1 L2_done")
    load_kernargs(A)
    sBr, sKq, sB, sNb, sWv = 30, 31, 32, 33, 34
    A("s_and_b32 s35, s2, 7")
    A("s_lshr_b32 s%d, s35, 2" % sBr)
    A("s_and_b32 s%d, s35, 3" % sKq)
    A("s_lshr_b32 s35, s2, 3")
    A("s_lshr_b32 s%d, s35, 2" % sB)
    A("s_and_b32 s%d, s35, 3" % sNb)
    LANE, T0, T1, T2, T3 = 254, 238, 239, 240, 241
    A("v_and_b32 v%d, 63, v0" % LANE)
    A("v_lshrrev_b32 v%d, 6, v0" % T0)
    A("v_readfirstlane_b32 s%d, v%d" % (sWv, T0))
    A("s_waitcnt lgkmcnt(0)")
    A("s_cmp_eq_u32 s%d, 0" % sBr)
    A("s_cselect_b64 s[12:13], s[12:13], s[22:23]")
    sW, sX, sO = 44, 48, 52
    A("s_lshl_b32 s35, s%d, 20" % sKq)
    A("s_lshl_b32 s36, s%d, 8" % sNb)
    A("s_add_u32 s35, s35, s36")
    A("s_sub_u32 s37, %d, s36" % (1024 * 1024))
    make_srd(A, sW, 12, 13, "s35", "s37")
    A("s_mul_i32 s35, s%d, %d" % (sBr, O_BRANCH_BYTES))
    A("s_lshl_b32 s36, s%d, 2" % sB)
    A("s_add_u32 s36, s36, s%d" % sKq)
    A("s_mul_i32 s36, s36, %d" % (8 * 36864))
    A("s_add_u32 s35, s35, s36")
    make_srd(A, sX, 28, 29, "s35", "%d" % (8 * 36864))
    sRot = 68
    A("s_lshr_b32 s%d, s2, 3" % sRot)
    A("s_lshl_b32 s35, s%d, 1" % sKq)
    A("s_add_u32 s35, s35, s%d" % sBr)
    A("s_mul_i32 s35, s35, 1152")
    A("s_mul_i32 s36, s%d, 144" % sB)
    A("s_add_u32 s35, s35, s36")
    A("s_lshl_b32 s35, s35, 11")
    A("s_lshl_b32 s36, s%d, 9" % sNb)
    A("s_add_u32 s35, s35, s36")
    A("s_add_u32 s35, s35, %d" % P_BASE)
    A("s_sub_u32 s37, %d, s36" % (144 * 2048))
    make_srd(A, sO, 28, 29, "s35", "s37")
    R = dict(acc=0, xr=88, fr=172, wrd=72, wdma=80, vx=82, lane=LANE, t0=T0, t1=T1, t2=T2, t3=T3,
             sq0=60, swb=62, sm0=63, st=64, sk=65, sx=66, sw1k=67)
    gemm_phase(A, 32, 1024, "perm", sW, sX, sWv, sRot, R, {})
    A("v_and_b32 v%d, 15, v%d" % (T0, LANE))
    A("v_lshlrev_b32 v%d, 11, v%d" % (T0, T0))
    A("v_lshrrev_b32 v%d, 4, v%d" % (T1, LANE))
    A("v_lshl_add_u32 v%d, v%d, 4, v%d" % (T0, T1, T0))
    A("s_lshl_b32 s35, s%d, 7" % sWv)
    A("v_add_u32 v%d, s35, v%d" % (T0, T0))
    A("s_lshl_b32 s36, s%d, 16" % sWv)
    A("s_add_u32 s37, s36, 32768")
    A("s_mov_b32 s38, %d" % (8 * 32768))
    for t in range(3):
        for dl in range(8 if t < 2 else 2):
            a = (t * 8 + dl) * 4 if t < 2 else 64 + dl * 4
            ta = 242 + (dl & 3)
            if dl:
                A("v_xor_b32 v%d, %d, v%d" % (ta, dl << 6, T0))
            else:
                ta = T0
            A("buffer_store_dwordx4 %s, v%d, %s, s%d offen" % (vr(a, 4), ta, sr(sO, 4), 36 + t))
    A.label("L2_done")
    A("s_endpgm")


def kernel_reduce(A):
    K3 = "reduce_kernel"
    A.raw(".globl %s\n.p2align 8\n.type %s,@function\n%s:" % (K3, K3, K3))
    A("s_cmp_ge_u32 s2, 576")
    A("s_cbranch_scc1 L3_done")
    A("s_load_dwordx2 s[24:25], s[0:1], 80")
    A("s_load_dwordx2 s[28:29], s[0:1], 96")
    A("s_cmp_ge_u32 s2, 288")
    A("s_cselect_b32 s30, 1, 0")
    A("s_mul_i32 s31, s30, 288")
    A("s_sub_u32 s31, s2, s31")
    A("s_waitcnt lgkmcnt(0)")
    A("s_mul_i32 s32, s30, 1152")
    A("s_lshl_b32 s33, s31, 2")
    A("s_add_u32 s32, s32, s33")
    A("s_lshl_b32 s32, s32, 11")
    A("s_add_u32 s32, s32, %d" % P_BASE)
    make_srd(A, 36, 28, 29, "s32", "%d" % (3 * 2 * 1152 * 2048 + 4 * 2048))
    A("s_lshl_b32 s32, s31, 13")
    A("s_lshl_b32 s33, s30, 10")
    A("s_add_u32 s32, s32, s33")
    A("s_sub_u32 s34, 8192, s33")
    make_srd(A, 40, 24, 25, "s32", "s34")
    A("v_lshlrev_b32 v1, 5, v0")
    for kq in range(4):
        A("s_mov_b32 s%d, %d" % (44 + kq, kq * 2 * 1152 * 2048))
        A("buffer_load_dwordx4 %s, v1, s[36:39], s%d offen" % (vr(4 + kq * 8, 4), 44 + kq))
        A("buffer_load_dwordx4 %s, v1, s[36:39], s%d offen offset:16" % (vr(8 + kq * 8, 4), 44 + kq))
    A("v_lshrrev_b32 v2, 6, v0")
    A("v_lshlrev_b32 v2, 11, v2")
    A("v_and_b32 v3, 63, v0")
    A("v_lshl_add_u32 v2, v3, 4, v2")
    A("s_waitcnt vmcnt(0)")
    for i in range(8):
        A("v_add_f32 v%d, v%d, v%d" % (4 + i, 4 + i, 12 + i))
        A("v_add_f32 v%d, v%d, v%d" % (20 + i, 20 + i, 28 + i))
    for i in range(8):
        A("v_add_f32 v%d, v%d, v%d" % (4 + i, 4 + i, 20 + i))
    for i in range(4):
        A("v_cvt_pk_bf16_f32 v%d, v%d, v%d" % (36 + i, 4 + 2 * i, 5 + 2 * i))
    A("buffer_store_dwordx4 v[36:39], v2, s[40:43], 0 offen")
    A.label("L3_done")
    A("s_endpgm")


def kd(name, vgpr, sgpr=102):
    return """.amdhsa_kernel %s
  .amdhsa_next_free_vgpr %d
  .amdhsa_next_free_sgpr %d
  .amdhsa_accum_offset %d
  .amdhsa_group_segment_fixed_size 0
  .amdhsa_kernarg_size 104
  .amdhsa_user_sgpr_count 2
  .amdhsa_user_sgpr_kernarg_segment_ptr 1
  .amdhsa_system_sgpr_workgroup_id_x 1
.end_amdhsa_kernel
""" % (name, vgpr, sgpr, (vgpr + 3) // 4 * 4)


def main():
    A = Asm()
    hdr = open(os.path.join(os.path.dirname(os.path.abspath(__file__)), "..", "cdna_kernels", NAME + ".s.ref")).read().split("\n")
    head = [l for l in hdr if l.startswith(";") and "@launch" not in l and "Override launch" not in l and "grid=ceil" not in l]
    out = "\n".join(head) + "\n"
    out += "; @launch kernel=attn_kernel grid=(512,1,1) block=(256,1,1) lds=81920\n"
    out += "; @launch kernel=oproj_kernel grid=(256,1,1) block=(256,1,1) lds=65536\n"
    out += "; @launch kernel=reduce_kernel grid=(576,1,1) block=(256,1,1) lds=0\n"
    out += '.amdgcn_target "amdgcn-amd-amdhsa--gfx950"\n.text\n'
    kernel_attn(A)
    kernel_oproj(A)
    kernel_reduce(A)
    out += A.text()
    out += '.section .rodata,"a"\n.p2align 6\n'
    out += kd("attn_kernel", 256, 74)
    out += ".p2align 6\n" + kd("oproj_kernel", 256, 72)
    out += ".p2align 6\n" + kd("reduce_kernel", 40, 56)
    dst = sys.argv[1] if len(sys.argv) > 1 else os.path.join(os.path.dirname(os.path.abspath(__file__)), "..", "cdna_kernels", NAME + ".s")
    open(dst, "w").write(out)
    print("wrote", dst, A.ninst, "instructions")


if __name__ == "__main__":
    main()
```

```python
import sys, os, struct
sys.path.insert(0, os.path.dirname(os.path.abspath(__file__)))
from asmlib import Asm, VmQ

NAME = "concat_heads__mha_block_cached__mha_block_cached__near_ridge"
O_BRANCH_BYTES = 1152 * 4096 * 2
P_BASE = 2 * O_BRANCH_BYTES
SCALE_C = 1.4426950408889634 / (128.0 ** 0.5)
EXP = os.environ.get("EXP", "")
KVPOL = os.environ.get("KVPOL", "nt ")
WPOL = os.environ.get("WPOL", "")
XPOL = os.environ.get("XPOL", "")


def f32bits(x):
    return struct.unpack("<I", struct.pack("<f", x))[0]


def vr(base, n):
    return "v[%d:%d]" % (base, base + n - 1)


def sr(base, n):
    return "s[%d:%d]" % (base, base + n - 1)


def load_kernargs(A):
    A("s_load_dwordx16 s[4:19], s[0:1], 0")
    A("s_load_dwordx8 s[20:27], s[0:1], 64")
    A("s_load_dwordx2 s[28:29], s[0:1], 96")


def make_srd(A, d, lo, hi, off_s, nrec):
    A("s_add_u32 s%d, s%d, %s" % (d, lo, off_s))
    A("s_addc_u32 s%d, s%d, 0" % (d + 1, hi))
    A("s_and_b32 s%d, s%d, 0xffff" % (d + 1, d + 1))
    A("s_mov_b32 s%d, %s" % (d + 2, nrec))
    A("s_mov_b32 s%d, 0x00020000" % (d + 3))


STAMP = "stamp" in EXP


def stamp(A, i):
    if STAMP:
        A("s_memtime s[%d:%d]" % (80 + 2 * i, 81 + 2 * i))


def dump_stamps(A, n, kidx, sWv, vt):
    if not STAMP:
        return
    A("s_waitcnt lgkmcnt(0)")
    A("s_lshl_b32 s96, s2, 8")
    A("s_lshl_b32 s97, s%d, 6" % sWv)
    A("s_add_u32 s96, s96, s97")
    A("s_add_u32 s96, s96, %d" % (200 * 1024 * 1024 + kidx * 1024 * 1024))
    A("s_add_u32 s76, s28, s96")
    A("s_addc_u32 s77, s29, 0")
    A("s_and_b32 s77, s77, 0xffff")
    A("s_mov_b32 s78, 64")
    A("s_mov_b32 s79, 0x00020000")
    A("v_mov_b32 v%d, 0" % vt)
    for i in range(n):
        A("v_mov_b32 v%d, s%d" % (vt + 1, 80 + 2 * i))
        A("buffer_store_dword v%d, v%d, s[76:79], 0 offen offset:%d" % (vt + 1, vt, 4 * i))
    A("s_waitcnt vmcnt(0)")


def gemm_phase(A, nk, wstride, mode, sW, sX, sWave, sRot, R, hooks):
    vq = VmQ()
    lane, t0, t1, t2, t3 = R["lane"], R["t0"], R["t1"], R["t2"], R["t3"]
    wdma, vx, wrd = R["wdma"], R["vx"], R["wrd"]
    sq0, swb, sm0, st, sk, sx, sw1k = R["sq0"], R["swb"], R["sm0"], R["st"], R["sk"], R["sx"], R["sw1k"]
    nat = mode == "nat"
    NW = 5 if nat else 8
    XD = 4 if nat else 7
    XB = 40960
    wslot = (lambda c: (c + 4) % 5) if nat else (lambda c: c % 8)
    xslot = lambda c: (c + 1) & 1
    A("v_lshrrev_b32 v%d, 4, v%d" % (t0, lane))
    A("v_and_b32 v%d, 15, v%d" % (t1, lane))
    if nat:
        A("s_and_b32 s%d, s%d, 1" % (st, sWave))
        A("s_lshl_b32 s%d, s%d, 2" % (st, st))
        A("v_or_b32 v%d, s%d, v%d" % (t2, st, t0))
    else:
        A("v_mov_b32 v%d, v%d" % (t2, t0))
    A("v_lshrrev_b32 v%d, 1, v%d" % (t3, t1))
    A("v_xor_b32 v%d, v%d, v%d" % (t2, t2, t3))
    A("v_lshlrev_b32 v%d, 5, v%d" % (t2, t2))
    A("v_and_b32 v%d, 1, v%d" % (t3, lane))
    A("v_lshl_add_u32 v%d, v%d, 4, v%d" % (t2, t3, t2))
    A("v_mul_u32_u24 v%d, %d, v%d" % (t3, wstride, t0))
    A("v_add_u32 v%d, v%d, v%d" % (wdma, t2, t3))
    if nat:
        A("v_mov_b32 v%d, v%d" % (wdma + 1, wdma))
        A("s_lshl_b32 s%d, s%d, 2" % (st, sWave))
        A("v_add_u32 v%d, s%d, v%d" % (t2, st, t0))
        A("v_xor_b32 v%d, v%d, v%d" % (t2, t2, lane))
        A("v_and_b32 v%d, 7, v%d" % (t2, t2))
        A("v_lshlrev_b32 v%d, 4, v%d" % (t2, t2))
        A("v_lshrrev_b32 v%d, 3, v%d" % (t3, lane))
        A("s_lshl_b32 s%d, s%d, 3" % (st, sWave))
        A("v_add_u32 v%d, s%d, v%d" % (t3, st, t3))
        A("v_lshl_add_u32 v%d, v%d, 10, v%d" % (vx, t3, t2))
        A("v_lshrrev_b32 v%d, 1, v%d" % (t2, t1))
        A("v_xor_b32 v%d, v%d, v%d" % (t2, t2, t0))
        A("v_lshlrev_b32 v%d, 4, v%d" % (t2, t2))
        A("v_lshl_add_u32 v%d, v%d, 7, v%d" % (t2, t1, t2))
        A("v_add_u32 v%d, %d, v%d" % (vx + 1, XB, t2))
        A("v_xor_b32 v%d, 64, v%d" % (vx + 2, vx + 1))
        A("s_lshl_b32 s%d, s%d, 12" % (st, sWave))
        A("v_add_u32 v%d, s%d, v%d" % (vx + 3, st, vx + 1))
        A("v_add_u32 v%d, s%d, v%d" % (vx + 4, st, vx + 2))
        A("v_bfe_u32 v%d, v%d, 2, 2" % (t1, lane))
        A("v_and_b32 v%d, 1, v%d" % (t2, t0))
        A("v_lshl_add_u32 v%d, v%d, 2, v%d" % (t2, t2, t1))
        A("v_lshl_add_u32 v%d, v%d, 3, v%d" % (t3, t0, t1))
        hoff = 1024
    else:
        A("v_xor_b32 v%d, 0x80, v%d" % (wdma + 1, wdma))
        A("v_lshlrev_b32 v%d, 4, v%d" % (vx, lane))
        A("v_lshrrev_b32 v%d, 2, v%d" % (t3, lane))
        A("v_and_b32 v%d, 7, v%d" % (t2, t3))
        hoff = 4096
    A("s_lshl_b32 s%d, s%d, 1" % (st, sWave))
    A("v_xor_b32 v%d, s%d, v%d" % (t2, st, t2))
    A("v_lshlrev_b32 v%d, 5, v%d" % (t2, t2))
    A("v_lshl_add_u32 v%d, v%d, 8, v%d" % (t2, t3, t2))
    A("v_and_b32 v%d, 3, v%d" % (t3, lane))
    A("v_lshl_add_u32 v%d, v%d, 3, v%d" % (wrd, t3, t2))
    if "slds" in R:
        A("v_add_u32 v%d, s%d, v%d" % (wrd, R["slds"], wrd))
    for dl in range(1, 8):
        A("v_xor_b32 v%d, %d, v%d" % (wrd + dl, dl << 5, wrd))
    A("s_lshl_b32 s%d, s%d, 13" % (sq0, sWave))
    A("s_mul_i32 s%d, s%d, %d" % (swb, sWave, 8 * wstride))
    A("s_lshl_b32 s%d, s%d, 11" % (sm0, sWave))
    if "slds" in R:
        A("s_add_u32 s%d, s%d, s%d" % (sm0, sm0, R["slds"]))
    A("s_lshl_b32 s%d, s%d, 10" % (sw1k, sWave))

    def kidx(ks):
        A("s_add_u32 s%d, s%d, %d" % (sk, sRot, ks))
        A("s_and_b32 s%d, s%d, %d" % (sk, sk, nk - 1))

    def dma_w(ks):
        kidx(ks)
        A("s_mul_i32 s%d, s%d, %d" % (st, sk, 32 * wstride))
        A("s_add_u32 s%d, s%d, s%d" % (st, st, swb))
        for mm in range(2):
            A("s_add_u32 m0, s%d, %d" % (sm0, wslot(ks) * 8192 + mm * 1024))
            if mm:
                A("s_add_u32 s%d, s%d, %d" % (st, st, 4 * wstride))
            A("buffer_load_dwordx4 v%d, %s, s%d offen %slds" % (wdma + mm, sr(sW, 4), st, WPOL))
            vq.issue(("w", ks))

    def dma_x(c):
        kidx(2 * c)
        A("s_lshl_b32 s%d, s%d, 6" % (sx, sk))
        for i in range(5):
            A("s_add_u32 m0, s%d, %d" % (sw1k, XB + xslot(c) * 20480 + i * 4096))
            if i:
                A("s_add_u32 s%d, s%d, 32768" % (sx, sx))
            A("buffer_load_dwordx4 v%d, %s, s%d offen %slds" % (vx, sr(sX, 4), sx, XPOL))
            vq.issue(("x", c))

    def xreads(c):
        out = []
        for p in range(2):
            base = R["xr"] + ((2 * c + p) % XD) * 12
            so = xslot(c) * 20480
            out.append("ds_read_b128 %s, v%d offset:%d" % (vr(base, 4), vx + 3 + p, so))
            out.append("ds_read_b128 %s, v%d offset:%d" % (vr(base + 4, 4), vx + 3 + p, so + 2048))
            out.append("ds_read_b128 %s, v%d offset:%d" % (vr(base + 8, 4), vx + 1 + p, so + 16384))
        return out

    def xload(ks):
        base = R["xr"] + (ks % XD) * 12
        kidx(ks)
        A("s_lshr_b32 s%d, s%d, 2" % (sx, sk))
        A("s_mul_i32 s%d, s%d, 36864" % (sx, sx))
        A("s_and_b32 s%d, s%d, 3" % (st, sk))
        A("s_lshl_b32 s%d, s%d, 10" % (st, st))
        A("s_add_u32 s%d, s%d, s%d" % (sx, sx, st))
        A("s_add_u32 s%d, s%d, s%d" % (st, sx, sq0))
        A("buffer_load_dwordx4 %s, v%d, %s, s%d offen" % (vr(base, 4), vx, sr(sX, 4), st) + " " + XPOL)
        A("s_add_u32 s%d, s%d, %d" % (st, st, 4096))
        A("buffer_load_dwordx4 %s, v%d, %s, s%d offen" % (vr(base + 4, 4), vx, sr(sX, 4), st) + " " + XPOL)
        A("s_add_u32 s%d, s%d, %d" % (st, sx, 8 * 4096))
        A("buffer_load_dwordx4 %s, v%d, %s, s%d offen" % (vr(base + 8, 4), vx, sr(sX, 4), st) + " " + XPOL)
        for _ in range(3):
            vq.issue(("x", ks))

    acc, fr = R["acc"], R["fr"]

    def wreads(ks, dl):
        return ["ds_read_b64_tr_b16 %s, v%d offset:%d" % (vr(fr + (ks & 1) * 32 + dl * 4 + h * 2, 2), wrd + dl, wslot(ks) * 8192 + h * hoff)
                for h in range(2)]

    nw = [0]
    nx = [0]

    def fill(i, maxw, maxx):
        k = 0
        while nw[0] < min(nk, i + 1 + NW - (0 if i >= 0 else 0)) and nw[0] <= i + NW and k < maxw:
            if nw[0] >= NW and nw[0] - NW > i:
                break
            dma_w(nw[0])
            nw[0] += 1
            k += 1
        k = 0
        if nat:
            while nx[0] < nk // 2 and (nx[0] < 2 or 2 * (nx[0] - 2) <= i) and k < maxx:
                dma_x(nx[0])
                nx[0] += 1
                k += 1
        else:
            while nx[0] < nk and nx[0] <= i + XD - 1 and k < maxx:
                xload(nx[0])
                nx[0] += 1
                k += 1

    PW, PX = int(os.environ.get("PW", "2")), int(os.environ.get("PX", "1" if nat else "2"))
    if nat:
        dma_w(0)
        dma_x(0)
        dma_w(1)
        nw[0], nx[0] = 2, 1
    else:
        dma_w(0)
        xload(0)
        dma_w(1)
        xload(1)
        nw[0], nx[0] = 2, 2
    stamp(A, 1)
    A("s_waitcnt vmcnt(%d)" % vq.wait_for({("w", 0)} | ({("x", 0)} if nat else set())))
    A("s_barrier")
    stamp(A, 2)
    fill(-1, PW, PX)
    for dl in range(8):
        for r in wreads(0, dl):
            A(r)
    if nat:
        for r in xreads(0):
            A(r)
    for i in range(nk):
        need = set()
        if i + 1 < nk:
            need.add(("w", i + 1))
        if nat:
            if i % 2 == 1 and i + 1 < nk:
                need.add(("x", (i + 1) // 2))
        else:
            need.add(("x", i))
        n = vq.wait_for(need)
        A("s_waitcnt vmcnt(%d) lgkmcnt(0)" % n)
        A("s_barrier")
        if i == nk // 2:
            stamp(A, 3)
        fill(i, PW, PX)
        if i in hooks:
            hooks[i](A, vq)
        xr = xreads((i + 1) // 2) if (nat and i % 2 == 1 and i + 1 < nk) else []
        xb = R["xr"] + (i % XD) * 12
        for dl in range(8):
            if i + 1 < nk:
                for r in wreads(i + 1, dl):
                    A(r)
            if dl < len(xr):
                A(xr[dl])
            for t in range(3):
                if t == 2 and dl >= 2:
                    continue
                a = acc + (t * 8 + dl) * 4 if t < 2 else acc + 64 + dl * 4
                c = "0" if i == 0 else vr(a, 4)
                A("v_mfma_f32_16x16x32_bf16 %s, %s, %s, %s" % (vr(a, 4), vr(fr + (i & 1) * 32 + dl * 4, 4), vr(xb + t * 4, 4), c))
    return vq


def cross_lane(A, op, v, tmp):
    A("v_mov_b32 v%d, v%d" % (tmp, v))
    A("v_permlane32_swap_b32 v%d, v%d" % (v, tmp))
    A("%s v%d, v%d, v%d" % (op, v, v, tmp))
    A("v_mov_b32 v%d, v%d" % (tmp, v))
    A("v_permlane16_swap_b32 v%d, v%d" % (v, tmp))
    A("%s v%d, v%d, v%d" % (op, v, v, tmp))


def kernel_attn(A):
    K1 = "attn_kernel"
    A.raw(".globl %s\n.p2align 8\n.type %s,@function\n%s:" % (K1, K1, K1))
    A("s_cmp_ge_u32 s2, 512")
    A("s_cbranch_scc1 L1_done")
    stamp(A, 0)
    load_kernargs(A)
    sBr, sH, sB, sWv = 30, 31, 32, 33
    A("s_and_b32 s34, s2, 7")
    A("s_lshr_b32 s35, s2, 3")
    A("s_lshr_b32 s%d, s34, 2" % sBr)
    A("s_and_b32 s34, s34, 3")
    A("s_lshl_b32 s34, s34, 3")
    A("s_and_b32 s%d, s35, 7" % sH)
    A("s_add_u32 s%d, s%d, s34" % (sH, sH))
    A("s_lshr_b32 s%d, s35, 3" % sB)
    O, QF, S, P, F = 0, 96, 144, 180, 200
    M, L = 232, 235
    T0, T1, T2, T3, T4, T5 = 238, 239, 240, 241, 242, 243
    VKB, VVB, VKD, VVD, VKJ, VVJ = 244, 245, 246, 247, 248, 249
    TA = 250
    LANE = 254
    A("v_and_b32 v%d, 63, v0" % LANE)
    A("v_lshrrev_b32 v%d, 6, v0" % T0)
    A("v_readfirstlane_b32 s%d, v%d" % (sWv, T0))
    A("s_waitcnt lgkmcnt(0)")
    A("s_cmp_eq_u32 s%d, 0" % sBr)
    A("s_cselect_b64 s[4:5], s[4:5], s[14:15]")
    A("s_cselect_b64 s[6:7], s[6:7], s[16:17]")
    A("s_cselect_b64 s[8:9], s[8:9], s[18:19]")
    A("s_cselect_b64 s[10:11], s[10:11], s[20:21]")
    sK, sV, sW, sX, sO = 36, 40, 44, 48, 52
    A("s_lshl_b32 s34, s%d, 5" % sB)
    A("s_add_u32 s34, s34, s%d" % sH)
    A("s_lshl_b32 s34, s34, 17")
    make_srd(A, sK, 6, 7, "s34", "131072")
    make_srd(A, sV, 8, 9, "s34", "131072")
    A("s_lshl_b32 s34, s%d, 8" % sH)
    A("s_sub_u32 s35, %d, s34" % (512 * 8192))
    make_srd(A, sW, 10, 11, "s34", "s35")
    A("s_mul_i32 s35, s%d, 147456" % sB)
    make_srd(A, sX, 4, 5, "s35", "147456")
    A("s_mul_i32 s35, s%d, %d" % (sBr, O_BRANCH_BYTES))
    A("s_lshl_b32 s56, s%d, 5" % sB)
    A("s_add_u32 s56, s56, s%d" % sH)
    A("s_mul_i32 s56, s56, 36864")
    A("s_add_u32 s35, s35, s56")
    make_srd(A, sO, 28, 29, "s35", "36864")
    sRot = 68
    A("s_lshr_b32 s%d, s2, 3" % sRot)
    A("s_add_u32 s%d, s%d, s%d" % (sRot, sRot, sB))
    A("s_lshl_b32 s%d, s%d, 1" % (sRot, sRot))
    A("s_and_b32 s%d, s%d, 15" % (sRot, sRot))
    if "norot" in EXP:
        A("s_mov_b32 s%d, 0" % sRot)
    sRotK = 69
    A("s_lshr_b32 s%d, s%d, 1" % (sRotK, sRot))
    sC = 56
    A("s_mov_b32 s%d, 0x%08x" % (sC, f32bits(SCALE_C)))
    sW1k, sT, sT2 = 57, 58, 59
    A("s_lshl_b32 s%d, s%d, 10" % (sW1k, sWv))

    g, lo = T0, T1
    A("v_lshrrev_b32 v%d, 4, v%d" % (g, LANE))
    A("v_and_b32 v%d, 15, v%d" % (lo, LANE))
    A("s_lshl_b32 s%d, s%d, 2" % (sT, sWv))
    A("v_add_u32 v%d, s%d, v%d" % (T2, sT, g))
    A("v_xor_b32 v%d, v%d, v%d" % (T3, lo, T2))
    A("v_lshlrev_b32 v%d, 4, v%d" % (T3, T3))
    A("v_lshl_add_u32 v%d, v%d, 8, v%d" % (VKD, T2, T3))
    A("v_and_b32 v%d, 7, v%d" % (T3, T2))
    A("v_lshlrev_b32 v%d, 1, v%d" % (T3, T3))
    A("v_xor_b32 v%d, v%d, v%d" % (T3, lo, T3))
    A("v_lshlrev_b32 v%d, 4, v%d" % (T3, T3))
    A("v_lshl_add_u32 v%d, v%d, 8, v%d" % (VVD, T2, T3))
    if "noswz" in EXP:
        A("v_lshlrev_b32 v%d, 4, v%d" % (T3, lo))
        A("v_lshl_add_u32 v%d, v%d, 8, v%d" % (VKD, T2, T3))
        A("v_mov_b32 v%d, v%d" % (VVD, VKD))
    A("s_lshl_b32 s%d, s%d, 12" % (sT, sWv))
    A("v_xor_b32 v%d, v%d, v%d" % (T2, g, lo))
    A("v_lshlrev_b32 v%d, 4, v%d" % (T2, T2))
    A("v_lshl_add_u32 v%d, v%d, 8, v%d" % (T2, lo, T2))
    A("v_add_u32 v%d, s%d, v%d" % (VKB, sT, T2))
    A("v_lshrrev_b32 v%d, 2, v%d" % (T2, LANE))
    A("v_and_b32 v%d, 7, v%d" % (T3, T2))
    A("v_lshlrev_b32 v%d, 5, v%d" % (T3, T3))
    A("v_lshl_add_u32 v%d, v%d, 8, v%d" % (T3, T2, T3))
    A("v_and_b32 v%d, 3, v%d" % (T2, LANE))
    A("v_lshl_add_u32 v%d, v%d, 3, v%d" % (T3, T2, T3))
    A("v_add_u32 v%d, s%d, v%d" % (VVB, sT, T3))

    def kv_item_static(n):
        def fn(A, vq):
            srd, vd = (sK, VKD) if n % 2 == 0 else (sV, VVD)
            slot = (n + 4) % 5
            for i in range(4):
                A("s_add_u32 m0, s%d, %d" % (sW1k, slot * 16384 + i * 4096))
                if i == 0:
                    A("s_add_u32 s%d, s%d, %d" % (sT2, sRotK, n // 2))
                    A("s_and_b32 s%d, s%d, 7" % (sT2, sT2))
                    A("s_lshl_b32 s%d, s%d, 14" % (sT2, sT2))
                else:
                    A("s_add_u32 s%d, s%d, 4096" % (sT2, sT2))
                A("buffer_load_dwordx4 v%d, %s, s%d offen %slds" % (vd, sr(srd, 4), sT2, KVPOL))
                vq.issue(("kv", n))
        return fn

    R = dict(acc=0, xr=96, fr=144, wrd=72, wdma=80, vx=82, lane=LANE, t0=T0, t1=T1, t2=T2, t3=T3,
             sq0=60, swb=62, sm0=63, st=64, sk=65, sx=66, sw1k=67)

    def two(a, b):
        def fn(A, vq):
            a(A, vq)
            b(A, vq)
        return fn
    hooks = {12: two(kv_item_static(0), kv_item_static(1)), 14: kv_item_static(2), 15: kv_item_static(3)}
    if "nop1" in EXP:
        vq = VmQ()
        for n in range(4):
            kv_item_static(n)(A, vq)
    else:
        vq = gemm_phase(A, 16, 8192, "nat", sW, sX, sWv, sRot, R, hooks)
        assert EXP or vq.q[-12:] == [("kv", 1)] * 4 + [("kv", 2)] * 4 + [("kv", 3)] * 4, vq.q
    if "p1only" in EXP:
        A("s_waitcnt vmcnt(0)")
        A("s_branch L1_done")

    stamp(A, 4)
    A("s_barrier")
    SCR = 49152
    A("v_lshrrev_b32 v%d, 4, v%d" % (g, LANE))
    A("v_and_b32 v%d, 15, v%d" % (lo, LANE))
    A("s_lshl_b32 s%d, s%d, 2" % (sT, sWv))
    A("v_lshrrev_b32 v%d, 1, v%d" % (T2, g))
    A("v_or_b32 v%d, s%d, v%d" % (T2, sT, T2))
    A("v_xor_b32 v%d, v%d, v%d" % (T2, T2, lo))
    A("v_lshlrev_b32 v%d, 4, v%d" % (T2, T2))
    A("v_lshl_add_u32 v%d, v%d, 8, v%d" % (T2, lo, T2))
    A("v_and_b32 v%d, 1, v%d" % (T3, g))
    A("v_lshl_add_u32 v%d, v%d, 3, v%d" % (T2, T3, T2))
    A("s_lshl_b32 s%d, s%d, 12" % (sT, sWv))
    A("v_add_u32 v%d, s%d, v%d" % (T3, sT, T2))
    A("v_xor_b32 v%d, v%d, v%d" % (T4, g, lo))
    A("v_lshlrev_b32 v%d, 4, v%d" % (T4, T4))
    A("v_lshl_add_u32 v%d, v%d, 8, v%d" % (T4, lo, T4))
    A("v_add_u32 v%d, s%d, v%d" % (T5, sT, T4))
    PK = 200
    for t in range(2):
        for dl in range(8):
            a = (t * 8 + dl) * 4
            A("v_cvt_pk_bf16_f32 v%d, v%d, v%d" % (PK + dl * 2, a, a + 1))
            A("v_cvt_pk_bf16_f32 v%d, v%d, v%d" % (PK + dl * 2 + 1, a + 2, a + 3))
            A("v_xor_b32 v%d, %d, v%d" % (TA + (dl & 3), dl << 5, T3))
            A("ds_write_b64 v%d, %s offset:%d" % (TA + (dl & 3), vr(PK + dl * 2, 2), SCR))
        for ds in range(4):
            A("v_xor_b32 v%d, %d, v%d" % (TA + ds, ds << 6, T5))
            A("ds_read_b128 %s, v%d offset:%d" % (vr(QF + t * 16 + ds * 4, 4), TA + ds, SCR))
        A("s_waitcnt lgkmcnt(0)")
    A("s_barrier")
    for dl in range(2):
        a = 64 + dl * 4
        A("v_cvt_pk_bf16_f32 v%d, v%d, v%d" % (PK + dl * 2, a, a + 1))
        A("v_cvt_pk_bf16_f32 v%d, v%d, v%d" % (PK + dl * 2 + 1, a + 2, a + 3))
        A("v_xor_b32 v%d, %d, v%d" % (TA + dl, dl << 5, T2))
        A("ds_write_b64 v%d, %s offset:%d" % (TA + dl, vr(PK + dl * 2, 2), SCR))
    A("s_waitcnt lgkmcnt(0)")
    A("s_barrier")
    for ds in range(4):
        A("v_xor_b32 v%d, %d, v%d" % (TA + ds, ds << 6, T4))
        A("ds_read_b128 %s, v%d offset:%d" % (vr(QF + 32 + ds * 4, 4), TA + ds, SCR))
    for i in range(96):
        A("v_mov_b32 v%d, 0" % (O + i))
    for t in range(3):
        A("v_mov_b32 v%d, 0xf149f2ca" % (M + t))
        A("v_mov_b32 v%d, 0" % (L + t))
    A("s_waitcnt lgkmcnt(0)")
    sJ, sA_, sB_, sC_, sG = 60, 61, 62, 63, 64
    A("s_mov_b32 s%d, 0" % sJ)
    A("s_mov_b32 s%d, %d" % (sA_, 4 * 16384))
    A("s_mov_b32 s%d, %d" % (sB_, 0))
    A("s_mov_b32 s%d, %d" % (sC_, 3 * 16384))

    def kv_dma(srd, vd, sslot, goff):
        if "nomem" in EXP:
            return
        A("s_add_u32 s%d, s%d, s%d" % (sT, sslot, sW1k))
        for i in range(4):
            A("s_add_u32 m0, s%d, %d" % (sT, i * 4096))
            A("s_add_u32 s%d, s%d, %d" % (sT2, sG, i * 4096))
            A("buffer_load_dwordx4 v%d, %s, s%d offen %slds" % (vd, sr(srd, 4), sT2, KVPOL))

    stamp(A, 5)
    A.label("L1_loop")
    A("s_add_u32 s%d, s%d, s%d" % (sG, sJ, sRotK))
    A("s_add_u32 s%d, s%d, 2" % (sG, sG))
    A("s_and_b32 s%d, s%d, 7" % (sG, sG))
    A("s_lshl_b32 s%d, s%d, 14" % (sG, sG))
    A("s_cmp_lt_u32 s%d, 6" % sJ)
    A("s_cselect_b32 s%d, s%d, 131072" % (sG, sG))
    A("s_waitcnt vmcnt(12)")
    A("s_barrier")
    kv_dma(sK, VKD, sC_, 32768)
    A("v_add_u32 v%d, s%d, v%d" % (VKJ, sA_, VKB))

    def kreads(l):
        for ds in range(4):
            x = (l << 12) | (ds << 6)
            if x:
                A("v_xor_b32 v%d, 0x%x, v%d" % (TA + ds, x, VKJ))
                ad = TA + ds
            else:
                ad = VKJ
            A("ds_read_b128 %s, v%d" % (vr(F + (l & 1) * 16 + ds * 4, 4), ad))

    if "nocomp" not in EXP:
      kreads(0)
      kreads(1)
    for l in range(4 if "nocomp" not in EXP else 0):
        A("s_waitcnt lgkmcnt(%d)" % (4 if l < 3 else 0))
        for ds in range(4):
            fa = vr(F + (l & 1) * 16 + ds * 4, 4)
            for t in range(3):
                if t == 2 and l != 0:
                    continue
                d = S + t * 16 + l * 4 if t < 2 else S + 32
                c = "0" if ds == 0 else vr(d, 4)
                A("v_mfma_f32_16x16x32_bf16 %s, %s, %s, %s" % (vr(d, 4), fa, vr(QF + t * 16 + ds * 4, 4), c))
        if l + 2 < 4:
            kreads(l + 2)
    for t in range(3 if ("nocomp" not in EXP and "nosm" not in EXP) else 0):
        nv = 16 if t < 2 else 4
        s0 = S + t * 16
        mx, tmp, al = T0, T1, T2
        if nv == 16:
            A("v_max3_f32 v%d, v%d, v%d, v%d" % (mx, s0, s0 + 1, s0 + 2))
            for i in range(3, 15, 2):
                A("v_max3_f32 v%d, v%d, v%d, v%d" % (mx, mx, s0 + i, s0 + i + 1))
            A("v_max_f32 v%d, v%d, v%d" % (mx, mx, s0 + 15))
        else:
            A("v_max3_f32 v%d, v%d, v%d, v%d" % (mx, s0, s0 + 1, s0 + 2))
            A("v_max_f32 v%d, v%d, v%d" % (mx, mx, s0 + 3))
        cross_lane(A, "v_max_f32", mx, tmp)
        A("v_mul_f32 v%d, s%d, v%d" % (mx, sC, mx))
        A("v_max_f32 v%d, v%d, v%d" % (mx, mx, M + t))
        A("v_sub_f32 v%d, v%d, v%d" % (al, M + t, mx))
        A("v_exp_f32 v%d, v%d" % (al, al))
        A("v_mov_b32 v%d, v%d" % (M + t, mx))
        for i in range(nv):
            A("v_fma_f32 v%d, v%d, s%d, -v%d" % (s0 + i, s0 + i, sC, mx))
        for i in range(nv):
            A("v_exp_f32 v%d, v%d" % (s0 + i, s0 + i))
        A("v_mul_f32 v%d, v%d, v%d" % (L + t, L + t, al))
        for i in range(nv):
            A("v_add_f32 v%d, v%d, v%d" % (L + t, L + t, s0 + i))
        p0 = P + t * 8
        for i in range(0, nv, 2):
            A("v_cvt_pk_bf16_f32 v%d, v%d, v%d" % (p0 + i // 2, s0 + i, s0 + i + 1))
        for i in range(32):
            A("v_mul_f32 v%d, v%d, v%d" % (O + t * 32 + i, O + t * 32 + i, al))
    A("s_waitcnt vmcnt(12)")
    A("s_barrier")
    kv_dma(sV, VVD, sA_, 32768)
    A("v_add_u32 v%d, s%d, v%d" % (VVJ, sB_, VVB))

    def vreads(f):
        u, dt = f // 8, f % 8
        for hh in range(2):
            l = 2 * u + hh
            x = (l << 12) | (dt << 5)
            ta = TA + ((2 * f + hh) & 3)
            if x:
                A("v_xor_b32 v%d, 0x%x, v%d" % (ta, x, VVJ))
                ad = ta
            else:
                ad = VVJ
            A("ds_read_b64_tr_b16 %s, v%d" % (vr(F + (f % 8) * 4 + hh * 2, 2), ad))

    PD = 6
    for f in range(PD if "nocomp" not in EXP else 0):
        vreads(f)
    for f in range(16 if "nocomp" not in EXP else 0):
        u, dt = f // 8, f % 8
        rem = min(16, f + PD) - (f + 1)
        A("s_waitcnt lgkmcnt(%d)" % (2 * rem))
        fa = F + (f % 8) * 4
        for t in range(2):
            d = vr(O + t * 32 + dt * 4, 4)
            A("v_mfma_f32_16x16x32_bf16 %s, %s, %s, %s" % (d, vr(fa, 4), vr(P + t * 8 + u * 4, 4), d))
        if u == 0:
            d = vr(O + 64 + dt * 4, 4)
            A("v_mfma_f32_16x16x16_bf16 %s, %s, %s, %s" % (d, vr(fa, 2), vr(P + 16, 2), d))
        if f + PD < 16:
            vreads(f + PD)
    A("s_mov_b32 s%d, s%d" % (sC_, sB_))
    for s in (sA_, sB_):
        A("s_add_u32 s%d, s%d, 32768" % (s, s))
        A("s_sub_u32 s%d, s%d, 81920" % (sT, s))
        A("s_cmp_ge_u32 s%d, 81920" % s)
        A("s_cselect_b32 s%d, s%d, s%d" % (s, sT, s))
    A("s_add_u32 s%d, s%d, 1" % (sJ, sJ))
    A("s_cmp_lt_u32 s%d, 8" % sJ)
    A.flush()
    A("s_cbranch_scc1 L1_loop")

    stamp(A, 6)
    A("s_waitcnt vmcnt(0)")
    A("s_barrier")
    for t in range(3):
        cross_lane(A, "v_add_f32", L + t, T1)
    A("v_lshlrev_b32 v%d, 4, v%d" % (T2, LANE))
    A("s_lshl_b32 s%d, s%d, 13" % (sT, sWv))
    A("v_add_u32 v%d, s%d, v%d" % (T3, sT, T2))
    for dt in range(8):
        A("ds_write_b128 v%d, %s offset:%d" % (T3, vr(O + 64 + dt * 4, 4), dt * 1024))
    A("v_and_b32 v%d, 15, v%d" % (T4, LANE))
    A("v_lshlrev_b32 v%d, 3, v%d" % (T4, T4))
    A("s_lshl_b32 s%d, s%d, 7" % (sT, sWv))
    A("v_add_u32 v%d, s%d, v%d" % (T5, sT, T4))
    A("v_mov_b32 v%d, v%d" % (TA, M + 2))
    A("v_mov_b32 v%d, v%d" % (TA + 1, L + 2))
    A("ds_write_b64 v%d, %s offset:32768" % (T5, vr(TA, 2)))
    VO = T2
    A("s_lshl_b32 s%d, s%d, 13" % (sT, sWv))
    for t in range(2):
        A("v_rcp_f32 v%d, v%d" % (T1, L + t))
        for i in range(32):
            A("v_mul_f32 v%d, v%d, v%d" % (O + t * 32 + i, O + t * 32 + i, T1))
        for ds in range(4):
            a = O + t * 32 + ds * 8
            pk = F + t * 16 + ds * 4
            for i in range(4):
                A("v_cvt_pk_bf16_f32 v%d, v%d, v%d" % (pk + i, a + 2 * i, a + 2 * i + 1))
            A("buffer_store_dwordx4 %s, v%d, %s, s%d offen offset:%d" % (vr(pk, 4), VO, sr(sO, 4), sT, 1024 * ds))
        if t == 0:
            A("s_add_u32 s%d, s%d, 4096" % (sT, sT))
    A("s_waitcnt lgkmcnt(0)")
    A("s_barrier")
    ML = S
    OP = S + 8
    for w2 in range(4):
        A("ds_read_b64 %s, v%d offset:%d" % (vr(ML + 2 * w2, 2), T4, 32768 + w2 * 128))
    A("s_lshl_b32 s%d, s%d, 11" % (sT, sWv))
    A("v_add_u32 v%d, s%d, v%d" % (T3, sT, T2))
    for w2 in range(4):
        for dd in range(2):
            A("ds_read_b128 %s, v%d offset:%d" % (vr(OP + (w2 * 2 + dd) * 4, 4), T3, w2 * 8192 + dd * 1024))
    A("s_waitcnt lgkmcnt(0)")
    A("v_max3_f32 v%d, v%d, v%d, v%d" % (T1, ML, ML + 2, ML + 4))
    A("v_max_f32 v%d, v%d, v%d" % (T1, T1, ML + 6))
    for w2 in range(4):
        A("v_sub_f32 v%d, v%d, v%d" % (ML + 2 * w2, ML + 2 * w2, T1))
        A("v_exp_f32 v%d, v%d" % (ML + 2 * w2, ML + 2 * w2))
    A("v_mul_f32 v%d, v%d, v%d" % (T5, ML, ML + 1))
    for w2 in range(1, 4):
        A("v_fma_f32 v%d, v%d, v%d, v%d" % (T5, ML + 2 * w2, ML + 2 * w2 + 1, T5))
    A("v_rcp_f32 v%d, v%d" % (T5, T5))
    for w2 in range(4):
        A("v_mul_f32 v%d, v%d, v%d" % (ML + 2 * w2, ML + 2 * w2, T5))
    for dd in range(2):
        for r in range(4):
            d = O + dd * 4 + r
            A("v_mul_f32 v%d, v%d, v%d" % (d, OP + dd * 4 + r, ML))
            for w2 in range(1, 4):
                A("v_fma_f32 v%d, v%d, v%d, v%d" % (d, OP + (w2 * 2 + dd) * 4 + r, ML + 2 * w2, d))
    A("s_lshl_b32 s%d, s%d, 10" % (sT, sWv))
    A("s_add_u32 s%d, s%d, %d" % (sT, sT, 8 * 4096))
    for i in range(4):
        A("v_cvt_pk_bf16_f32 v%d, v%d, v%d" % (QF + i, O + 2 * i, O + 2 * i + 1))
    A("buffer_store_dwordx4 %s, v%d, %s, s%d offen" % (vr(QF, 4), VO, sr(sO, 4), sT))
    if STAMP:
        A("s_waitcnt vmcnt(0)")
    stamp(A, 7)
    dump_stamps(A, 8, 0, sWv, 240)
    A.label("L1_done")
    A("s_endpgm")


def kernel_oproj(A):
    K2 = "oproj_kernel"
    A.raw(".globl %s\n.p2align 8\n.type %s,@function\n%s:" % (K2, K2, K2))
    A("s_cmp_ge_u32 s2, 256")
    A("s_cbranch_scc1 L2_done")
    stamp(A, 0)
    load_kernargs(A)
    sBr, sKq, sB, sNb, sWv, sGr, sW8 = 30, 31, 32, 33, 34, 39, 40
    A("s_and_b32 s35, s2, 7")
    A("s_lshr_b32 s%d, s35, 2" % sBr)
    A("s_and_b32 s%d, s35, 3" % sKq)
    A("s_lshr_b32 s35, s2, 3")
    A("s_lshr_b32 s%d, s35, 2" % sB)
    A("s_and_b32 s%d, s35, 3" % sNb)
    LANE, T0, T1, T2, T3 = 254, 238, 239, 240, 241
    A("v_and_b32 v%d, 63, v0" % LANE)
    A("v_lshrrev_b32 v%d, 6, v0" % T0)
    A("v_readfirstlane_b32 s%d, v%d" % (sW8, T0))
    A("s_and_b32 s%d, s%d, 3" % (sWv, sW8))
    A("s_lshr_b32 s%d, s%d, 2" % (sGr, sW8))
    A("s_waitcnt lgkmcnt(0)")
    stamp(A, 6)
    A("s_cmp_eq_u32 s%d, 0" % sBr)
    A("s_cselect_b64 s[12:13], s[12:13], s[22:23]")
    sW, sX, sP, sO = 44, 48, 52, 56
    A("s_lshl_b32 s35, s%d, 1" % sKq)
    A("s_add_u32 s38, s35, s%d" % sGr)
    A("s_lshl_b32 s35, s38, 19")
    A("s_lshl_b32 s36, s%d, 8" % sNb)
    A("s_add_u32 s35, s35, s36")
    A("s_sub_u32 s37, %d, s36" % (512 * 1024))
    make_srd(A, sW, 12, 13, "s35", "s37")
    A("s_mul_i32 s35, s%d, %d" % (sBr, O_BRANCH_BYTES))
    A("s_lshl_b32 s36, s%d, 3" % sB)
    A("s_add_u32 s36, s36, s38")
    A("s_mul_i32 s36, s36, %d" % (4 * 36864))
    A("s_add_u32 s35, s35, s36")
    make_srd(A, sX, 28, 29, "s35", "%d" % (4 * 36864))
    sRot = 68
    A("s_lshr_b32 s%d, s2, 3" % sRot)
    sTile = 41
    A("s_lshl_b32 s%d, s%d, 5" % (sTile, sBr))
    A("s_lshl_b32 s35, s%d, 2" % sB)
    A("s_add_u32 s%d, s%d, s35" % (sTile, sTile))
    A("s_add_u32 s%d, s%d, s%d" % (sTile, sTile, sNb))
    A("s_mul_i32 s35, s%d, %d" % (sTile, 4 * 73728))
    A("s_mul_i32 s36, s%d, 9216" % sW8)
    A("s_add_u32 s35, s35, s36")
    A("s_add_u32 s35, s35, %d" % P_BASE)
    make_srd(A, sP, 28, 29, "s35", "%d" % (3 * 73728 + 9216))
    A("s_mul_i32 s35, s%d, %d" % (sB, 144 * 2048))
    A("s_lshl_b32 s36, s%d, 10" % sBr)
    A("s_lshl_b32 s37, s%d, 8" % sNb)
    A("s_add_u32 s36, s36, s37")
    A("s_add_u32 s35, s35, s36")
    A("s_sub_u32 s37, %d, s36" % (144 * 2048))
    make_srd(A, sO, 24, 25, "s35", "s37")
    A("s_lshl_b32 s69, s%d, 16" % sGr)
    R = dict(acc=0, xr=88, fr=172, wrd=72, wdma=80, vx=82, lane=LANE, t0=T0, t1=T1, t2=T2, t3=T3,
             sq0=60, swb=62, sm0=63, st=64, sk=65, sx=66, sw1k=67, slds=69)
    gemm_phase(A, 16, 1024, "perm", sW, sX, sWv, sRot, R, {})
    stamp(A, 4)
    A("s_barrier")
    A("v_lshlrev_b32 v%d, 4, v%d" % (T0, LANE))
    A("s_mul_i32 s35, s%d, 9216" % sW8)
    A("v_add_u32 v%d, s35, v%d" % (T1, T0))
    A("s_xor_b32 s36, s%d, 4" % sW8)
    A("s_mul_i32 s36, s36, 9216")
    A("v_add_u32 v%d, s36, v%d" % (T2, T0))
    X = 96
    A("s_cmp_eq_u32 s%d, 0" % sGr)
    A("s_cbranch_scc0 L2_grB")
    for grp in range(2):
        keep = range(0, 9) if grp == 0 else range(9, 18)
        give = range(9, 18) if grp == 0 else range(0, 9)
        for i, f in enumerate(give):
            A("ds_write_b128 v%d, %s offset:%d" % (T1, vr(f * 4, 4), i * 1024))
        A("s_waitcnt lgkmcnt(0)")
        A("s_barrier")
        for i in range(9):
            A("ds_read_b128 %s, v%d offset:%d" % (vr(X + i * 4, 4), T2, i * 1024))
        A("s_waitcnt lgkmcnt(0)")
        for i, f in enumerate(keep):
            for r in range(4):
                A("v_add_f32 v%d, v%d, v%d" % (X + i * 4 + r, X + i * 4 + r, f * 4 + r))
        A("v_and_b32 v%d, 15, v%d" % (T3, LANE))
        A("v_lshlrev_b32 v%d, 11, v%d" % (T3, T3))
        A("v_lshrrev_b32 v%d, 4, v%d" % (T1, LANE))
        A("v_lshl_add_u32 v%d, v%d, 3, v%d" % (T3, T1, T3))
        A("s_lshl_b32 s35, s%d, 6" % sWv)
        A("v_add_u32 v%d, s35, v%d" % (T3, T3))
        A("s_lshl_b32 s36, s%d, 16" % sWv)
        for i, f in enumerate(keep):
            t, dl = (f // 8, f % 8) if f < 16 else (2, f - 16)
            A("v_xor_b32 v%d, %d, v%d" % (140 + i, dl << 5, T3))
            if t < 2:
                A("v_add_u32 v%d, s36, v%d" % (140 + i, 140 + i))
                if t == 1:
                    A("v_add_u32 v%d, 0x8000, v%d" % (140 + i, 140 + i))
            else:
                A("v_add_u32 v%d, 0x40000, v%d" % (140 + i, 140 + i))
        if grp == 0:
            A.flush()
            A("s_branch L2_join")
            A.label("L2_grB")
    A.label("L2_join")
    A("s_mul_i32 s35, s%d, 73728" % sKq)
    for i in range(9):
        if i % 4 == 0 and i:
            A("s_add_u32 s35, s35, 4096")
        A("buffer_store_dwordx4 %s, v%d, %s, s35 offen offset:%d sc0 sc1" % (vr(X + i * 4, 4), T0, sr(sP, 4), (i % 4) * 1024))
    A("s_waitcnt vmcnt(0)")
    A("s_barrier")
    stamp(A, 5)
    A("s_cmp_eq_u32 s%d, 0" % sW8)
    A("s_cbranch_scc0 L2_noadd")
    A("s_mov_b64 s[70:71], exec")
    A("s_mov_b64 exec, 1")
    A("s_lshl_b32 s35, s%d, 2" % sTile)
    A("v_mov_b32 v%d, s35" % T1)
    A("v_mov_b32 v%d, 1" % T2)
    A("global_atomic_add v%d, v%d, v%d, s[26:27] sc0 sc1" % (T3, T1, T2))
    A("s_waitcnt vmcnt(0)")
    A("v_mov_b32 v%d, 0" % T1)
    A("ds_write_b32 v%d, v%d" % (T1, T3))
    A("s_waitcnt lgkmcnt(0)")
    A("s_mov_b64 exec, s[70:71]")
    A.label("L2_noadd")
    A("s_barrier")
    A("v_mov_b32 v%d, 0" % T1)
    A("ds_read_b32 v%d, v%d" % (T2, T1))
    A("s_waitcnt lgkmcnt(0)")
    A("v_readfirstlane_b32 s35, v%d" % T2)
    A("s_cmp_eq_u32 s35, 3")
    A("s_cbranch_scc0 L2_fin")
    Y = 0
    for j in range(1, 4):
        A("s_add_u32 s35, s%d, %d" % (sKq, j))
        A("s_and_b32 s35, s35, 3")
        A("s_mul_i32 s35, s35, 73728")
        for i in range(9):
            if i % 4 == 0 and i:
                A("s_add_u32 s35, s35, 4096")
            dst = (Y + (j - 1) * 36 + i * 4) if j < 3 else (152 + i * 4)
            A("buffer_load_dwordx4 %s, v%d, %s, s35 offen offset:%d sc0 sc1" % (vr(dst, 4), T0, sr(sP, 4), (i % 4) * 1024))
    for j in range(1, 4):
        A("s_waitcnt vmcnt(%d)" % (9 * (3 - j)))
        for i in range(36):
            src = (Y + (j - 1) * 36 + i) if j < 3 else (152 + i)
            A("v_add_f32 v%d, v%d, v%d" % (X + i, X + i, src))
    for i in range(9):
        A("v_cvt_pk_bf16_f32 v%d, v%d, v%d" % (190 + 2 * i, X + 4 * i, X + 4 * i + 1))
        A("v_cvt_pk_bf16_f32 v%d, v%d, v%d" % (191 + 2 * i, X + 4 * i + 2, X + 4 * i + 3))
        A("buffer_store_dwordx2 %s, v%d, %s, 0 offen" % (vr(190 + 2 * i, 2), 140 + i, sr(sO, 4)))
    A.label("L2_fin")
    if STAMP:
        A("s_waitcnt vmcnt(0)")
        stamp(A, 7)
        A("s_lshr_b32 s98, s%d, 1" % sW8)
        dump_stamps(A, 8, 1, 98, 240)
    A.label("L2_done")
    A("s_endpgm")


def kd(name, vgpr, sgpr=102):
    return """.amdhsa_kernel %s
  .amdhsa_next_free_vgpr %d
  .amdhsa_next_free_sgpr %d
  .amdhsa_accum_offset %d
  .amdhsa_group_segment_fixed_size 0
  .amdhsa_kernarg_size 104
  .amdhsa_user_sgpr_count 2
  .amdhsa_user_sgpr_kernarg_segment_ptr 1
  .amdhsa_system_sgpr_workgroup_id_x 1
.end_amdhsa_kernel
""" % (name, vgpr, sgpr, (vgpr + 3) // 4 * 4)


def main():
    A = Asm()
    hdr = open(os.path.join(os.path.dirname(os.path.abspath(__file__)), "..", "cdna_kernels", NAME + ".s.ref")).read().split("\n")
    head = [l for l in hdr if l.startswith(";") and "@launch" not in l and "Override launch" not in l and "grid=ceil" not in l]
    out = "\n".join(head) + "\n"
    out += "; @launch kernel=attn_kernel grid=(512,1,1) block=(256,1,1) lds=81920\n"
    out += "; @launch kernel=oproj_kernel grid=(256,1,1) block=(512,1,1) lds=131072\n"
    out += '.amdgcn_target "amdgcn-amd-amdhsa--gfx950"\n.text\n'
    kernel_attn(A)
    kernel_oproj(A)
    out += A.text()
    out += '.section .rodata,"a"\n.p2align 6\n'
    out += kd("attn_kernel", 256, 100 if STAMP else 74)
    out += ".p2align 6\n" + kd("oproj_kernel", 256, 100 if STAMP else 74)
    dst = sys.argv[1] if len(sys.argv) > 1 else os.path.join(os.path.dirname(os.path.abspath(__file__)), "..", "cdna_kernels", NAME + ".s")
    open(dst, "w").write(out)
    print("wrote", dst, A.ninst, "instructions")


if __name__ == "__main__":
    main()
```

```python
import sys, os, struct
sys.path.insert(0, os.path.dirname(os.path.abspath(__file__)))
from asmlib import Asm, VmQ

NAME = "concat_heads__mha_block_cached__mha_block_cached__near_ridge"
O_BRANCH_BYTES = 1152 * 4096 * 2
P_BASE = 2 * O_BRANCH_BYTES
SCALE_C = 1.4426950408889634 / (128.0 ** 0.5)
EXP = os.environ.get("EXP", "")
KVPOL = os.environ.get("KVPOL", "nt ")
WPOL = os.environ.get("WPOL", "")
PPOL = os.environ.get("PPOL", "")
PLPOL = os.environ.get("PLPOL", "sc1")
XPOL = os.environ.get("XPOL", "")


def f32bits(x):
    return struct.unpack("<I", struct.pack("<f", x))[0]


def vr(base, n):
    return "v[%d:%d]" % (base, base + n - 1)


def sr(base, n):
    return "s[%d:%d]" % (base, base + n - 1)


def load_kernargs(A):
    A("s_load_dwordx16 s[4:19], s[0:1], 0")
    A("s_load_dwordx8 s[20:27], s[0:1], 64")
    A("s_load_dwordx2 s[28:29], s[0:1], 96")


def make_srd(A, d, lo, hi, off_s, nrec):
    A("s_add_u32 s%d, s%d, %s" % (d, lo, off_s))
    A("s_addc_u32 s%d, s%d, 0" % (d + 1, hi))
    A("s_and_b32 s%d, s%d, 0xffff" % (d + 1, d + 1))
    A("s_mov_b32 s%d, %s" % (d + 2, nrec))
    A("s_mov_b32 s%d, 0x00020000" % (d + 3))


STAMP = "stamp" in EXP


def stamp(A, i):
    if STAMP:
        A("s_memtime s[%d:%d]" % (80 + 2 * i, 81 + 2 * i))


def dump_stamps(A, n, kidx, sWv, vt):
    if not STAMP:
        return
    A("s_waitcnt lgkmcnt(0)")
    A("s_lshl_b32 s96, s2, 8")
    A("s_lshl_b32 s97, s%d, 6" % sWv)
    A("s_add_u32 s96, s96, s97")
    A("s_add_u32 s96, s96, %d" % (200 * 1024 * 1024 + kidx * 1024 * 1024))
    A("s_add_u32 s76, s28, s96")
    A("s_addc_u32 s77, s29, 0")
    A("s_and_b32 s77, s77, 0xffff")
    A("s_mov_b32 s78, 64")
    A("s_mov_b32 s79, 0x00020000")
    A("v_mov_b32 v%d, 0" % vt)
    for i in range(n):
        A("v_mov_b32 v%d, s%d" % (vt + 1, 80 + 2 * i))
        A("buffer_store_dword v%d, v%d, s[76:79], 0 offen offset:%d" % (vt + 1, vt, 4 * i))
    A("s_waitcnt vmcnt(0)")


def gemm_phase(A, nk, wstride, mode, sW, sX, sWave, sRot, R, hooks):
    vq = VmQ()
    lane, t0, t1, t2, t3 = R["lane"], R["t0"], R["t1"], R["t2"], R["t3"]
    wdma, vx, wrd = R["wdma"], R["vx"], R["wrd"]
    sq0, swb, sm0, st, sk, sx, sw1k = R["sq0"], R["swb"], R["sm0"], R["st"], R["sk"], R["sx"], R["sw1k"]
    nat = mode == "nat"
    NW = 5 if nat else 8
    XD = 4 if nat else 7
    XB = 40960
    wslot = (lambda c: (c + 4) % 5) if nat else (lambda c: c % 8)
    xslot = lambda c: (c + 1) & 1
    A("v_lshrrev_b32 v%d, 4, v%d" % (t0, lane))
    A("v_and_b32 v%d, 15, v%d" % (t1, lane))
    if nat:
        A("s_and_b32 s%d, s%d, 1" % (st, sWave))
        A("s_lshl_b32 s%d, s%d, 2" % (st, st))
        A("v_or_b32 v%d, s%d, v%d" % (t2, st, t0))
    else:
        A("v_mov_b32 v%d, v%d" % (t2, t0))
    A("v_lshrrev_b32 v%d, 1, v%d" % (t3, t1))
    A("v_xor_b32 v%d, v%d, v%d" % (t2, t2, t3))
    A("v_lshlrev_b32 v%d, 5, v%d" % (t2, t2))
    A("v_and_b32 v%d, 1, v%d" % (t3, lane))
    A("v_lshl_add_u32 v%d, v%d, 4, v%d" % (t2, t3, t2))
    A("v_mul_u32_u24 v%d, %d, v%d" % (t3, wstride, t0))
    A("v_add_u32 v%d, v%d, v%d" % (wdma, t2, t3))
    if nat:
        A("v_mov_b32 v%d, v%d" % (wdma + 1, wdma))
        A("s_lshl_b32 s%d, s%d, 2" % (st, sWave))
        A("v_add_u32 v%d, s%d, v%d" % (t2, st, t0))
        A("v_xor_b32 v%d, v%d, v%d" % (t2, t2, lane))
        A("v_and_b32 v%d, 7, v%d" % (t2, t2))
        A("v_lshlrev_b32 v%d, 4, v%d" % (t2, t2))
        A("v_lshrrev_b32 v%d, 3, v%d" % (t3, lane))
        A("s_lshl_b32 s%d, s%d, 3" % (st, sWave))
        A("v_add_u32 v%d, s%d, v%d" % (t3, st, t3))
        A("v_lshl_add_u32 v%d, v%d, 10, v%d" % (vx, t3, t2))
        A("v_lshrrev_b32 v%d, 1, v%d" % (t2, t1))
        A("v_xor_b32 v%d, v%d, v%d" % (t2, t2, t0))
        A("v_lshlrev_b32 v%d, 4, v%d" % (t2, t2))
        A("v_lshl_add_u32 v%d, v%d, 7, v%d" % (t2, t1, t2))
        A("v_add_u32 v%d, %d, v%d" % (vx + 1, XB, t2))
        A("v_xor_b32 v%d, 64, v%d" % (vx + 2, vx + 1))
        A("s_lshl_b32 s%d, s%d, 12" % (st, sWave))
        A("v_add_u32 v%d, s%d, v%d" % (vx + 3, st, vx + 1))
        A("v_add_u32 v%d, s%d, v%d" % (vx + 4, st, vx + 2))
        A("v_bfe_u32 v%d, v%d, 2, 2" % (t1, lane))
        A("v_and_b32 v%d, 1, v%d" % (t2, t0))
        A("v_lshl_add_u32 v%d, v%d, 2, v%d" % (t2, t2, t1))
        A("v_lshl_add_u32 v%d, v%d, 3, v%d" % (t3, t0, t1))
        hoff = 1024
    else:
        A("v_xor_b32 v%d, 0x80, v%d" % (wdma + 1, wdma))
        A("v_lshlrev_b32 v%d, 4, v%d" % (vx, lane))
        A("v_lshrrev_b32 v%d, 2, v%d" % (t3, lane))
        A("v_and_b32 v%d, 7, v%d" % (t2, t3))
        hoff = 4096
    A("s_lshl_b32 s%d, s%d, 1" % (st, sWave))
    A("v_xor_b32 v%d, s%d, v%d" % (t2, st, t2))
    A("v_lshlrev_b32 v%d, 5, v%d" % (t2, t2))
    A("v_lshl_add_u32 v%d, v%d, 8, v%d" % (t2, t3, t2))
    A("v_and_b32 v%d, 3, v%d" % (t3, lane))
    A("v_lshl_add_u32 v%d, v%d, 3, v%d" % (wrd, t3, t2))
    if "slds" in R:
        A("v_add_u32 v%d, s%d, v%d" % (wrd, R["slds"], wrd))
    for dl in range(1, 8):
        A("v_xor_b32 v%d, %d, v%d" % (wrd + dl, dl << 5, wrd))
    A("s_lshl_b32 s%d, s%d, 13" % (sq0, sWave))
    A("s_mul_i32 s%d, s%d, %d" % (swb, sWave, 8 * wstride))
    A("s_lshl_b32 s%d, s%d, 11" % (sm0, sWave))
    if "slds" in R:
        A("s_add_u32 s%d, s%d, s%d" % (sm0, sm0, R["slds"]))
    A("s_lshl_b32 s%d, s%d, 10" % (sw1k, sWave))

    def kidx(ks):
        A("s_add_u32 s%d, s%d, %d" % (sk, sRot, ks))
        A("s_and_b32 s%d, s%d, %d" % (sk, sk, nk - 1))

    def dma_w(ks):
        kidx(ks)
        A("s_mul_i32 s%d, s%d, %d" % (st, sk, 32 * wstride))
        A("s_add_u32 s%d, s%d, s%d" % (st, st, swb))
        for mm in range(2):
            A("s_add_u32 m0, s%d, %d" % (sm0, wslot(ks) * 8192 + mm * 1024))
            if mm:
                A("s_add_u32 s%d, s%d, %d" % (st, st, 4 * wstride))
            A("buffer_load_dwordx4 v%d, %s, s%d offen %slds" % (wdma + mm, sr(sW, 4), st, WPOL))
            vq.issue(("w", ks))

    def dma_x(c):
        kidx(2 * c)
        A("s_lshl_b32 s%d, s%d, 6" % (sx, sk))
        for i in range(5):
            A("s_add_u32 m0, s%d, %d" % (sw1k, XB + xslot(c) * 20480 + i * 4096))
            if i:
                A("s_add_u32 s%d, s%d, 32768" % (sx, sx))
            A("buffer_load_dwordx4 v%d, %s, s%d offen %slds" % (vx, sr(sX, 4), sx, XPOL))
            vq.issue(("x", c))

    def xreads(c):
        out = []
        for p in range(2):
            base = R["xr"] + ((2 * c + p) % XD) * 12
            so = xslot(c) * 20480
            out.append("ds_read_b128 %s, v%d offset:%d" % (vr(base, 4), vx + 3 + p, so))
            out.append("ds_read_b128 %s, v%d offset:%d" % (vr(base + 4, 4), vx + 3 + p, so + 2048))
            out.append("ds_read_b128 %s, v%d offset:%d" % (vr(base + 8, 4), vx + 1 + p, so + 16384))
        return out

    def xload(ks):
        base = R["xr"] + (ks % XD) * 12
        kidx(ks)
        A("s_lshr_b32 s%d, s%d, 2" % (sx, sk))
        A("s_mul_i32 s%d, s%d, 36864" % (sx, sx))
        A("s_and_b32 s%d, s%d, 3" % (st, sk))
        A("s_lshl_b32 s%d, s%d, 10" % (st, st))
        A("s_add_u32 s%d, s%d, s%d" % (sx, sx, st))
        A("s_add_u32 s%d, s%d, s%d" % (st, sx, sq0))
        A("buffer_load_dwordx4 %s, v%d, %s, s%d offen" % (vr(base, 4), vx, sr(sX, 4), st) + " " + XPOL)
        A("s_add_u32 s%d, s%d, %d" % (st, st, 4096))
        A("buffer_load_dwordx4 %s, v%d, %s, s%d offen" % (vr(base + 4, 4), vx, sr(sX, 4), st) + " " + XPOL)
        A("s_add_u32 s%d, s%d, %d" % (st, sx, 8 * 4096))
        A("buffer_load_dwordx4 %s, v%d, %s, s%d offen" % (vr(base + 8, 4), vx, sr(sX, 4), st) + " " + XPOL)
        for _ in range(3):
            vq.issue(("x", ks))

    acc, fr = R["acc"], R["fr"]

    def wreads(ks, dl):
        return ["ds_read_b64_tr_b16 %s, v%d offset:%d" % (vr(fr + (ks & 1) * 32 + dl * 4 + h * 2, 2), wrd + dl, wslot(ks) * 8192 + h * hoff)
                for h in range(2)]

    nw = [0]
    nx = [0]

    def fill(i, maxw, maxx):
        k = 0
        while nw[0] < min(nk, i + 1 + NW - (0 if i >= 0 else 0)) and nw[0] <= i + NW and k < maxw:
            if nw[0] >= NW and nw[0] - NW > i:
                break
            dma_w(nw[0])
            nw[0] += 1
            k += 1
        k = 0
        if nat:
            while nx[0] < nk // 2 and (nx[0] < 2 or 2 * (nx[0] - 2) <= i) and k < maxx:
                dma_x(nx[0])
                nx[0] += 1
                k += 1
        else:
            while nx[0] < nk and nx[0] <= i + XD - 1 and k < maxx:
                xload(nx[0])
                nx[0] += 1
                k += 1

    PW, PX = int(os.environ.get("PW", "2")), int(os.environ.get("PX", "1" if nat else "2"))
    if nat:
        dma_w(0)
        dma_x(0)
        dma_w(1)
        nw[0], nx[0] = 2, 1
    else:
        dma_w(0)
        xload(0)
        dma_w(1)
        xload(1)
        nw[0], nx[0] = 2, 2
    stamp(A, 1)
    A("s_waitcnt vmcnt(%d)" % vq.wait_for({("w", 0)} | ({("x", 0)} if nat else set())))
    A("s_barrier")
    stamp(A, 2)
    fill(-1, PW, PX)
    for dl in range(8):
        for r in wreads(0, dl):
            A(r)
    if nat:
        for r in xreads(0):
            A(r)
    for i in range(nk):
        need = set()
        if i + 1 < nk:
            need.add(("w", i + 1))
        if nat:
            if i % 2 == 1 and i + 1 < nk:
                need.add(("x", (i + 1) // 2))
        else:
            need.add(("x", i))
        n = vq.wait_for(need)
        A("s_waitcnt vmcnt(%d) lgkmcnt(0)" % n)
        A("s_barrier")
        if i == nk // 2:
            stamp(A, 3)
        fill(i, PW, PX)
        if i in hooks:
            hooks[i](A, vq)
        xr = xreads((i + 1) // 2) if (nat and i % 2 == 1 and i + 1 < nk) else []
        xb = R["xr"] + (i % XD) * 12
        for dl in range(8):
            if i + 1 < nk:
                for r in wreads(i + 1, dl):
                    A(r)
            if dl < len(xr):
                A(xr[dl])
            for t in range(3):
                if t == 2 and dl >= 2:
                    continue
                a = acc + (t * 8 + dl) * 4 if t < 2 else acc + 64 + dl * 4
                c = "0" if i == 0 else vr(a, 4)
                A("v_mfma_f32_16x16x32_bf16 %s, %s, %s, %s" % (vr(a, 4), vr(fr + (i & 1) * 32 + dl * 4, 4), vr(xb + t * 4, 4), c))
    return vq


def cross_lane(A, op, v, tmp):
    A("v_mov_b32 v%d, v%d" % (tmp, v))
    A("v_permlane32_swap_b32 v%d, v%d" % (v, tmp))
    A("%s v%d, v%d, v%d" % (op, v, v, tmp))
    A("v_mov_b32 v%d, v%d" % (tmp, v))
    A("v_permlane16_swap_b32 v%d, v%d" % (v, tmp))
    A("%s v%d, v%d, v%d" % (op, v, v, tmp))


def kernel_attn(A):
    K1 = "attn_kernel"
    A.raw(".globl %s\n.p2align 8\n.type %s,@function\n%s:" % (K1, K1, K1))
    A("s_cmp_ge_u32 s2, 512")
    A("s_cbranch_scc1 L1_done")
    stamp(A, 0)
    load_kernargs(A)
    sBr, sH, sB, sWv = 30, 31, 32, 33
    A("s_and_b32 s34, s2, 7")
    A("s_lshr_b32 s35, s2, 3")
    A("s_lshr_b32 s%d, s34, 2" % sBr)
    A("s_and_b32 s34, s34, 3")
    A("s_lshl_b32 s34, s34, 3")
    A("s_and_b32 s%d, s35, 7" % sH)
    A("s_add_u32 s%d, s%d, s34" % (sH, sH))
    A("s_lshr_b32 s%d, s35, 3" % sB)
    O, QF, S, P, F = 0, 96, 144, 180, 200
    M, L = 232, 235
    T0, T1, T2, T3, T4, T5 = 238, 239, 240, 241, 242, 243
    VKB, VVB, VKD, VVD, VKJ, VVJ = 244, 245, 246, 247, 248, 249
    TA = 250
    LANE = 254
    A("v_and_b32 v%d, 63, v0" % LANE)
    A("v_lshrrev_b32 v%d, 6, v0" % T0)
    A("v_readfirstlane_b32 s%d, v%d" % (sWv, T0))
    A("s_waitcnt lgkmcnt(0)")
    A("s_cmp_eq_u32 s%d, 0" % sBr)
    A("s_cselect_b64 s[4:5], s[4:5], s[14:15]")
    A("s_cselect_b64 s[6:7], s[6:7], s[16:17]")
    A("s_cselect_b64 s[8:9], s[8:9], s[18:19]")
    A("s_cselect_b64 s[10:11], s[10:11], s[20:21]")
    sK, sV, sW, sX, sO = 36, 40, 44, 48, 52
    A("s_lshl_b32 s34, s%d, 5" % sB)
    A("s_add_u32 s34, s34, s%d" % sH)
    A("s_lshl_b32 s34, s34, 17")
    make_srd(A, sK, 6, 7, "s34", "131072")
    make_srd(A, sV, 8, 9, "s34", "131072")
    A("s_lshl_b32 s34, s%d, 8" % sH)
    A("s_sub_u32 s35, %d, s34" % (512 * 8192))
    make_srd(A, sW, 10, 11, "s34", "s35")
    A("s_mul_i32 s35, s%d, 147456" % sB)
    make_srd(A, sX, 4, 5, "s35", "147456")
    A("s_mul_i32 s35, s%d, %d" % (sBr, O_BRANCH_BYTES))
    A("s_lshl_b32 s56, s%d, 5" % sB)
    A("s_add_u32 s56, s56, s%d" % sH)
    A("s_mul_i32 s56, s56, 36864")
    A("s_add_u32 s35, s35, s56")
    make_srd(A, sO, 28, 29, "s35", "36864")
    sRot = 68
    A("s_lshr_b32 s%d, s2, 3" % sRot)
    A("s_add_u32 s%d, s%d, s%d" % (sRot, sRot, sB))
    A("s_lshl_b32 s%d, s%d, 1" % (sRot, sRot))
    A("s_and_b32 s%d, s%d, 15" % (sRot, sRot))
    if "norot" in EXP:
        A("s_mov_b32 s%d, 0" % sRot)
    sRotK = 69
    A("s_lshr_b32 s%d, s%d, 1" % (sRotK, sRot))
    sC = 56
    A("s_mov_b32 s%d, 0x%08x" % (sC, f32bits(SCALE_C)))
    sW1k, sT, sT2 = 57, 58, 59
    A("s_lshl_b32 s%d, s%d, 10" % (sW1k, sWv))

    g, lo = T0, T1
    A("v_lshrrev_b32 v%d, 4, v%d" % (g, LANE))
    A("v_and_b32 v%d, 15, v%d" % (lo, LANE))
    A("s_lshl_b32 s%d, s%d, 2" % (sT, sWv))
    A("v_add_u32 v%d, s%d, v%d" % (T2, sT, g))
    A("v_xor_b32 v%d, v%d, v%d" % (T3, lo, T2))
    A("v_lshlrev_b32 v%d, 4, v%d" % (T3, T3))
    A("v_lshl_add_u32 v%d, v%d, 8, v%d" % (VKD, T2, T3))
    A("v_and_b32 v%d, 7, v%d" % (T3, T2))
    A("v_lshlrev_b32 v%d, 1, v%d" % (T3, T3))
    A("v_xor_b32 v%d, v%d, v%d" % (T3, lo, T3))
    A("v_lshlrev_b32 v%d, 4, v%d" % (T3, T3))
    A("v_lshl_add_u32 v%d, v%d, 8, v%d" % (VVD, T2, T3))
    if "noswz" in EXP:
        A("v_lshlrev_b32 v%d, 4, v%d" % (T3, lo))
        A("v_lshl_add_u32 v%d, v%d, 8, v%d" % (VKD, T2, T3))
        A("v_mov_b32 v%d, v%d" % (VVD, VKD))
    A("s_lshl_b32 s%d, s%d, 12" % (sT, sWv))
    A("v_xor_b32 v%d, v%d, v%d" % (T2, g, lo))
    A("v_lshlrev_b32 v%d, 4, v%d" % (T2, T2))
    A("v_lshl_add_u32 v%d, v%d, 8, v%d" % (T2, lo, T2))
    A("v_add_u32 v%d, s%d, v%d" % (VKB, sT, T2))
    A("v_lshrrev_b32 v%d, 2, v%d" % (T2, LANE))
    A("v_and_b32 v%d, 7, v%d" % (T3, T2))
    A("v_lshlrev_b32 v%d, 5, v%d" % (T3, T3))
    A("v_lshl_add_u32 v%d, v%d, 8, v%d" % (T3, T2, T3))
    A("v_and_b32 v%d, 3, v%d" % (T2, LANE))
    A("v_lshl_add_u32 v%d, v%d, 3, v%d" % (T3, T2, T3))
    A("v_add_u32 v%d, s%d, v%d" % (VVB, sT, T3))

    def kv_item_static(n):
        def fn(A, vq):
            srd, vd = (sK, VKD) if n % 2 == 0 else (sV, VVD)
            slot = (n + 4) % 5
            for i in range(4):
                A("s_add_u32 m0, s%d, %d" % (sW1k, slot * 16384 + i * 4096))
                if i == 0:
                    A("s_add_u32 s%d, s%d, %d" % (sT2, sRotK, n // 2))
                    A("s_and_b32 s%d, s%d, 7" % (sT2, sT2))
                    A("s_lshl_b32 s%d, s%d, 14" % (sT2, sT2))
                else:
                    A("s_add_u32 s%d, s%d, 4096" % (sT2, sT2))
                A("buffer_load_dwordx4 v%d, %s, s%d offen %slds" % (vd, sr(srd, 4), sT2, KVPOL))
                vq.issue(("kv", n))
        return fn

    R = dict(acc=0, xr=96, fr=144, wrd=72, wdma=80, vx=82, lane=LANE, t0=T0, t1=T1, t2=T2, t3=T3,
             sq0=60, swb=62, sm0=63, st=64, sk=65, sx=66, sw1k=67)

    def two(a, b):
        def fn(A, vq):
            a(A, vq)
            b(A, vq)
        return fn
    hooks = {12: two(kv_item_static(0), kv_item_static(1)), 14: kv_item_static(2), 15: kv_item_static(3)}
    if "nop1" in EXP:
        vq = VmQ()
        for n in range(4):
            kv_item_static(n)(A, vq)
    else:
        vq = gemm_phase(A, 16, 8192, "nat", sW, sX, sWv, sRot, R, hooks)
        assert EXP or vq.q[-12:] == [("kv", 1)] * 4 + [("kv", 2)] * 4 + [("kv", 3)] * 4, vq.q
    if "p1only" in EXP:
        A("s_waitcnt vmcnt(0)")
        A("s_branch L1_done")

    stamp(A, 4)
    A("s_barrier")
    SCR = 49152
    A("v_lshrrev_b32 v%d, 4, v%d" % (g, LANE))
    A("v_and_b32 v%d, 15, v%d" % (lo, LANE))
    A("s_lshl_b32 s%d, s%d, 2" % (sT, sWv))
    A("v_lshrrev_b32 v%d, 1, v%d" % (T2, g))
    A("v_or_b32 v%d, s%d, v%d" % (T2, sT, T2))
    A("v_xor_b32 v%d, v%d, v%d" % (T2, T2, lo))
    A("v_lshlrev_b32 v%d, 4, v%d" % (T2, T2))
    A("v_lshl_add_u32 v%d, v%d, 8, v%d" % (T2, lo, T2))
    A("v_and_b32 v%d, 1, v%d" % (T3, g))
    A("v_lshl_add_u32 v%d, v%d, 3, v%d" % (T2, T3, T2))
    A("s_lshl_b32 s%d, s%d, 12" % (sT, sWv))
    A("v_add_u32 v%d, s%d, v%d" % (T3, sT, T2))
    A("v_xor_b32 v%d, v%d, v%d" % (T4, g, lo))
    A("v_lshlrev_b32 v%d, 4, v%d" % (T4, T4))
    A("v_lshl_add_u32 v%d, v%d, 8, v%d" % (T4, lo, T4))
    A("v_add_u32 v%d, s%d, v%d" % (T5, sT, T4))
    PK = 200
    for t in range(2):
        for dl in range(8):
            a = (t * 8 + dl) * 4
            A("v_cvt_pk_bf16_f32 v%d, v%d, v%d" % (PK + dl * 2, a, a + 1))
            A("v_cvt_pk_bf16_f32 v%d, v%d, v%d" % (PK + dl * 2 + 1, a + 2, a + 3))
            A("v_xor_b32 v%d, %d, v%d" % (TA + (dl & 3), dl << 5, T3))
            A("ds_write_b64 v%d, %s offset:%d" % (TA + (dl & 3), vr(PK + dl * 2, 2), SCR))
        for ds in range(4):
            A("v_xor_b32 v%d, %d, v%d" % (TA + ds, ds << 6, T5))
            A("ds_read_b128 %s, v%d offset:%d" % (vr(QF + t * 16 + ds * 4, 4), TA + ds, SCR))
        A("s_waitcnt lgkmcnt(0)")
    A("s_barrier")
    for dl in range(2):
        a = 64 + dl * 4
        A("v_cvt_pk_bf16_f32 v%d, v%d, v%d" % (PK + dl * 2, a, a + 1))
        A("v_cvt_pk_bf16_f32 v%d, v%d, v%d" % (PK + dl * 2 + 1, a + 2, a + 3))
        A("v_xor_b32 v%d, %d, v%d" % (TA + dl, dl << 5, T2))
        A("ds_write_b64 v%d, %s offset:%d" % (TA + dl, vr(PK + dl * 2, 2), SCR))
    A("s_waitcnt lgkmcnt(0)")
    A("s_barrier")
    for ds in range(4):
        A("v_xor_b32 v%d, %d, v%d" % (TA + ds, ds << 6, T4))
        A("ds_read_b128 %s, v%d offset:%d" % (vr(QF + 32 + ds * 4, 4), TA + ds, SCR))
    for i in range(96):
        A("v_mov_b32 v%d, 0" % (O + i))
    for t in range(3):
        A("v_mov_b32 v%d, 0xf149f2ca" % (M + t))
        A("v_mov_b32 v%d, 0" % (L + t))
    A("s_waitcnt lgkmcnt(0)")
    sJ, sA_, sB_, sC_, sG = 60, 61, 62, 63, 64
    A("s_mov_b32 s%d, 0" % sJ)
    A("s_mov_b32 s%d, %d" % (sA_, 4 * 16384))
    A("s_mov_b32 s%d, %d" % (sB_, 0))
    A("s_mov_b32 s%d, %d" % (sC_, 3 * 16384))

    def kv_dma(srd, vd, sslot, goff):
        if "nomem" in EXP:
            return
        A("s_add_u32 s%d, s%d, s%d" % (sT, sslot, sW1k))
        for i in range(4):
            A("s_add_u32 m0, s%d, %d" % (sT, i * 4096))
            A("s_add_u32 s%d, s%d, %d" % (sT2, sG, i * 4096))
            A("buffer_load_dwordx4 v%d, %s, s%d offen %slds" % (vd, sr(srd, 4), sT2, KVPOL))

    stamp(A, 5)
    A.label("L1_loop")
    A("s_add_u32 s%d, s%d, s%d" % (sG, sJ, sRotK))
    A("s_add_u32 s%d, s%d, 2" % (sG, sG))
    A("s_and_b32 s%d, s%d, 7" % (sG, sG))
    A("s_lshl_b32 s%d, s%d, 14" % (sG, sG))
    A("s_cmp_lt_u32 s%d, 6" % sJ)
    A("s_cselect_b32 s%d, s%d, 131072" % (sG, sG))
    A("s_waitcnt vmcnt(12)")
    A("s_barrier")
    kv_dma(sK, VKD, sC_, 32768)
    A("v_add_u32 v%d, s%d, v%d" % (VKJ, sA_, VKB))

    def kreads(l):
        for ds in range(4):
            x = (l << 12) | (ds << 6)
            if x:
                A("v_xor_b32 v%d, 0x%x, v%d" % (TA + ds, x, VKJ))
                ad = TA + ds
            else:
                ad = VKJ
            A("ds_read_b128 %s, v%d" % (vr(F + (l & 1) * 16 + ds * 4, 4), ad))

    if "nocomp" not in EXP:
      kreads(0)
      kreads(1)
    for l in range(4 if "nocomp" not in EXP else 0):
        A("s_waitcnt lgkmcnt(%d)" % (4 if l < 3 else 0))
        for ds in range(4):
            fa = vr(F + (l & 1) * 16 + ds * 4, 4)
            for t in range(3):
                if t == 2 and l != 0:
                    continue
                d = S + t * 16 + l * 4 if t < 2 else S + 32
                c = "0" if ds == 0 else vr(d, 4)
                A("v_mfma_f32_16x16x32_bf16 %s, %s, %s, %s" % (vr(d, 4), fa, vr(QF + t * 16 + ds * 4, 4), c))
        if l + 2 < 4:
            kreads(l + 2)
    for t in range(3 if ("nocomp" not in EXP and "nosm" not in EXP) else 0):
        nv = 16 if t < 2 else 4
        s0 = S + t * 16
        mx, tmp, al = T0, T1, T2
        if nv == 16:
            A("v_max3_f32 v%d, v%d, v%d, v%d" % (mx, s0, s0 + 1, s0 + 2))
            for i in range(3, 15, 2):
                A("v_max3_f32 v%d, v%d, v%d, v%d" % (mx, mx, s0 + i, s0 + i + 1))
            A("v_max_f32 v%d, v%d, v%d" % (mx, mx, s0 + 15))
        else:
            A("v_max3_f32 v%d, v%d, v%d, v%d" % (mx, s0, s0 + 1, s0 + 2))
            A("v_max_f32 v%d, v%d, v%d" % (mx, mx, s0 + 3))
        cross_lane(A, "v_max_f32", mx, tmp)
        A("v_mul_f32 v%d, s%d, v%d" % (mx, sC, mx))
        A("v_max_f32 v%d, v%d, v%d" % (mx, mx, M + t))
        A("v_sub_f32 v%d, v%d, v%d" % (al, M + t, mx))
        A("v_exp_f32 v%d, v%d" % (al, al))
        A("v_mov_b32 v%d, v%d" % (M + t, mx))
        for i in range(nv):
            A("v_fma_f32 v%d, v%d, s%d, -v%d" % (s0 + i, s0 + i, sC, mx))
        for i in range(nv):
            A("v_exp_f32 v%d, v%d" % (s0 + i, s0 + i))
        A("v_mul_f32 v%d, v%d, v%d" % (L + t, L + t, al))
        for i in range(nv):
            A("v_add_f32 v%d, v%d, v%d" % (L + t, L + t, s0 + i))
        p0 = P + t * 8
        for i in range(0, nv, 2):
            A("v_cvt_pk_bf16_f32 v%d, v%d, v%d" % (p0 + i // 2, s0 + i, s0 + i + 1))
        for i in range(32):
            A("v_mul_f32 v%d, v%d, v%d" % (O + t * 32 + i, O + t * 32 + i, al))
    A("s_waitcnt vmcnt(12)")
    A("s_barrier")
    kv_dma(sV, VVD, sA_, 32768)
    A("v_add_u32 v%d, s%d, v%d" % (VVJ, sB_, VVB))

    def vreads(f):
        u, dt = f // 8, f % 8
        for hh in range(2):
            l = 2 * u + hh
            x = (l << 12) | (dt << 5)
            ta = TA + ((2 * f + hh) & 3)
            if x:
                A("v_xor_b32 v%d, 0x%x, v%d" % (ta, x, VVJ))
                ad = ta
            else:
                ad = VVJ
            A("ds_read_b64_tr_b16 %s, v%d" % (vr(F + (f % 8) * 4 + hh * 2, 2), ad))

    PD = 6
    for f in range(PD if "nocomp" not in EXP else 0):
        vreads(f)
    for f in range(16 if "nocomp" not in EXP else 0):
        u, dt = f // 8, f % 8
        rem = min(16, f + PD) - (f + 1)
        A("s_waitcnt lgkmcnt(%d)" % (2 * rem))
        fa = F + (f % 8) * 4
        for t in range(2):
            d = vr(O + t * 32 + dt * 4, 4)
            A("v_mfma_f32_16x16x32_bf16 %s, %s, %s, %s" % (d, vr(fa, 4), vr(P + t * 8 + u * 4, 4), d))
        if u == 0:
            d = vr(O + 64 + dt * 4, 4)
            A("v_mfma_f32_16x16x16_bf16 %s, %s, %s, %s" % (d, vr(fa, 2), vr(P + 16, 2), d))
        if f + PD < 16:
            vreads(f + PD)
    A("s_mov_b32 s%d, s%d" % (sC_, sB_))
    for s in (sA_, sB_):
        A("s_add_u32 s%d, s%d, 32768" % (s, s))
        A("s_sub_u32 s%d, s%d, 81920" % (sT, s))
        A("s_cmp_ge_u32 s%d, 81920" % s)
        A("s_cselect_b32 s%d, s%d, s%d" % (s, sT, s))
    A("s_add_u32 s%d, s%d, 1" % (sJ, sJ))
    A("s_cmp_lt_u32 s%d, 8" % sJ)
    A.flush()
    A("s_cbranch_scc1 L1_loop")

    stamp(A, 6)
    A("s_waitcnt vmcnt(0)")
    A("s_barrier")
    for t in range(3):
        cross_lane(A, "v_add_f32", L + t, T1)
    A("v_lshlrev_b32 v%d, 4, v%d" % (T2, LANE))
    A("s_lshl_b32 s%d, s%d, 13" % (sT, sWv))
    A("v_add_u32 v%d, s%d, v%d" % (T3, sT, T2))
    for dt in range(8):
        A("ds_write_b128 v%d, %s offset:%d" % (T3, vr(O + 64 + dt * 4, 4), dt * 1024))
    A("v_and_b32 v%d, 15, v%d" % (T4, LANE))
    A("v_lshlrev_b32 v%d, 3, v%d" % (T4, T4))
    A("s_lshl_b32 s%d, s%d, 7" % (sT, sWv))
    A("v_add_u32 v%d, s%d, v%d" % (T5, sT, T4))
    A("v_mov_b32 v%d, v%d" % (TA, M + 2))
    A("v_mov_b32 v%d, v%d" % (TA + 1, L + 2))
    A("ds_write_b64 v%d, %s offset:32768" % (T5, vr(TA, 2)))
    VO = T2
    A("s_lshl_b32 s%d, s%d, 13" % (sT, sWv))
    for t in range(2):
        A("v_rcp_f32 v%d, v%d" % (T1, L + t))
        for i in range(32):
            A("v_mul_f32 v%d, v%d, v%d" % (O + t * 32 + i, O + t * 32 + i, T1))
        for ds in range(4):
            a = O + t * 32 + ds * 8
            pk = F + t * 16 + ds * 4
            for i in range(4):
                A("v_cvt_pk_bf16_f32 v%d, v%d, v%d" % (pk + i, a + 2 * i, a + 2 * i + 1))
            A("buffer_store_dwordx4 %s, v%d, %s, s%d offen offset:%d" % (vr(pk, 4), VO, sr(sO, 4), sT, 1024 * ds))
        if t == 0:
            A("s_add_u32 s%d, s%d, 4096" % (sT, sT))
    A("s_waitcnt lgkmcnt(0)")
    A("s_barrier")
    ML = S
    OP = S + 8
    for w2 in range(4):
        A("ds_read_b64 %s, v%d offset:%d" % (vr(ML + 2 * w2, 2), T4, 32768 + w2 * 128))
    A("s_lshl_b32 s%d, s%d, 11" % (sT, sWv))
    A("v_add_u32 v%d, s%d, v%d" % (T3, sT, T2))
    for w2 in range(4):
        for dd in range(2):
            A("ds_read_b128 %s, v%d offset:%d" % (vr(OP + (w2 * 2 + dd) * 4, 4), T3, w2 * 8192 + dd * 1024))
    A("s_waitcnt lgkmcnt(0)")
    A("v_max3_f32 v%d, v%d, v%d, v%d" % (T1, ML, ML + 2, ML + 4))
    A("v_max_f32 v%d, v%d, v%d" % (T1, T1, ML + 6))
    for w2 in range(4):
        A("v_sub_f32 v%d, v%d, v%d" % (ML + 2 * w2, ML + 2 * w2, T1))
        A("v_exp_f32 v%d, v%d" % (ML + 2 * w2, ML + 2 * w2))
    A("v_mul_f32 v%d, v%d, v%d" % (T5, ML, ML + 1))
    for w2 in range(1, 4):
        A("v_fma_f32 v%d, v%d, v%d, v%d" % (T5, ML + 2 * w2, ML + 2 * w2 + 1, T5))
    A("v_rcp_f32 v%d, v%d" % (T5, T5))
    for w2 in range(4):
        A("v_mul_f32 v%d, v%d, v%d" % (ML + 2 * w2, ML + 2 * w2, T5))
    for dd in range(2):
        for r in range(4):
            d = O + dd * 4 + r
            A("v_mul_f32 v%d, v%d, v%d" % (d, OP + dd * 4 + r, ML))
            for w2 in range(1, 4):
                A("v_fma_f32 v%d, v%d, v%d, v%d" % (d, OP + (w2 * 2 + dd) * 4 + r, ML + 2 * w2, d))
    A("s_lshl_b32 s%d, s%d, 10" % (sT, sWv))
    A("s_add_u32 s%d, s%d, %d" % (sT, sT, 8 * 4096))
    for i in range(4):
        A("v_cvt_pk_bf16_f32 v%d, v%d, v%d" % (QF + i, O + 2 * i, O + 2 * i + 1))
    A("buffer_store_dwordx4 %s, v%d, %s, s%d offen" % (vr(QF, 4), VO, sr(sO, 4), sT))
    if STAMP:
        A("s_waitcnt vmcnt(0)")
    stamp(A, 7)
    dump_stamps(A, 8, 0, sWv, 240)
    A.label("L1_done")
    A("s_endpgm")


def kernel_oproj(A):
    K2 = "oproj_kernel"
    A.raw(".globl %s\n.p2align 8\n.type %s,@function\n%s:" % (K2, K2, K2))
    A("s_cmp_ge_u32 s2, 256")
    A("s_cbranch_scc1 L2_done")
    stamp(A, 0)
    load_kernargs(A)
    sBr, sKq, sB, sNb, sWv, sGr, sW8 = 30, 31, 32, 33, 34, 39, 40
    A("s_and_b32 s35, s2, 7")
    A("s_lshr_b32 s%d, s35, 2" % sBr)
    A("s_and_b32 s%d, s35, 3" % sKq)
    A("s_lshr_b32 s35, s2, 3")
    A("s_lshr_b32 s%d, s35, 2" % sB)
    A("s_and_b32 s%d, s35, 3" % sNb)
    LANE, T0, T1, T2, T3 = 254, 238, 239, 240, 241
    A("v_and_b32 v%d, 63, v0" % LANE)
    A("v_lshrrev_b32 v%d, 6, v0" % T0)
    A("v_readfirstlane_b32 s%d, v%d" % (sW8, T0))
    A("s_and_b32 s%d, s%d, 3" % (sWv, sW8))
    A("s_lshr_b32 s%d, s%d, 2" % (sGr, sW8))
    A("s_waitcnt lgkmcnt(0)")
    stamp(A, 6)
    A("s_cmp_eq_u32 s%d, 0" % sBr)
    A("s_cselect_b64 s[12:13], s[12:13], s[22:23]")
    sW, sX, sP, sO = 44, 48, 52, 56
    A("s_lshl_b32 s35, s%d, 1" % sKq)
    A("s_add_u32 s38, s35, s%d" % sGr)
    A("s_lshl_b32 s35, s38, 19")
    A("s_lshl_b32 s36, s%d, 8" % sNb)
    A("s_add_u32 s35, s35, s36")
    A("s_sub_u32 s37, %d, s36" % (512 * 1024))
    make_srd(A, sW, 12, 13, "s35", "s37")
    A("s_mul_i32 s35, s%d, %d" % (sBr, O_BRANCH_BYTES))
    A("s_lshl_b32 s36, s%d, 3" % sB)
    A("s_add_u32 s36, s36, s38")
    A("s_mul_i32 s36, s36, %d" % (4 * 36864))
    A("s_add_u32 s35, s35, s36")
    make_srd(A, sX, 28, 29, "s35", "%d" % (4 * 36864))
    sRot = 68
    A("s_lshr_b32 s%d, s2, 3" % sRot)
    sTile = 41
    A("s_lshl_b32 s%d, s%d, 5" % (sTile, sBr))
    A("s_lshl_b32 s35, s%d, 2" % sB)
    A("s_add_u32 s%d, s%d, s35" % (sTile, sTile))
    A("s_add_u32 s%d, s%d, s%d" % (sTile, sTile, sNb))
    A("s_mul_i32 s35, s%d, %d" % (sTile, 4 * 73728))
    A("s_mul_i32 s36, s%d, 9216" % sW8)
    A("s_add_u32 s35, s35, s36")
    A("s_add_u32 s35, s35, %d" % P_BASE)
    make_srd(A, sP, 28, 29, "s35", "%d" % (3 * 73728 + 9216))
    A("s_mul_i32 s35, s%d, %d" % (sB, 144 * 2048))
    A("s_lshl_b32 s36, s%d, 10" % sBr)
    A("s_lshl_b32 s37, s%d, 8" % sNb)
    A("s_add_u32 s36, s36, s37")
    A("s_add_u32 s35, s35, s36")
    A("s_sub_u32 s37, %d, s36" % (144 * 2048))
    make_srd(A, sO, 24, 25, "s35", "s37")
    A("s_lshl_b32 s69, s%d, 16" % sGr)
    R = dict(acc=0, xr=88, fr=172, wrd=72, wdma=80, vx=82, lane=LANE, t0=T0, t1=T1, t2=T2, t3=T3,
             sq0=60, swb=62, sm0=63, st=64, sk=65, sx=66, sw1k=67, slds=69)
    gemm_phase(A, 16, 1024, "perm", sW, sX, sWv, sRot, R, {})
    stamp(A, 4)
    A("s_barrier")
    A("v_lshlrev_b32 v%d, 4, v%d" % (T0, LANE))
    A("s_mul_i32 s35, s%d, 9216" % sW8)
    A("v_add_u32 v%d, s35, v%d" % (T1, T0))
    A("s_xor_b32 s36, s%d, 4" % sW8)
    A("s_mul_i32 s36, s36, 9216")
    A("v_add_u32 v%d, s36, v%d" % (T2, T0))
    X = 96
    A("s_cmp_eq_u32 s%d, 0" % sGr)
    A("s_cbranch_scc0 L2_grB")
    for grp in range(2):
        keep = range(0, 9) if grp == 0 else range(9, 18)
        give = range(9, 18) if grp == 0 else range(0, 9)
        for i, f in enumerate(give):
            A("ds_write_b128 v%d, %s offset:%d" % (T1, vr(f * 4, 4), i * 1024))
        A("s_waitcnt lgkmcnt(0)")
        A("s_barrier")
        for i in range(9):
            A("ds_read_b128 %s, v%d offset:%d" % (vr(X + i * 4, 4), T2, i * 1024))
        A("s_waitcnt lgkmcnt(0)")
        for i, f in enumerate(keep):
            for r in range(4):
                A("v_add_f32 v%d, v%d, v%d" % (X + i * 4 + r, X + i * 4 + r, f * 4 + r))
        if grp == 0:
            A.flush()
            A("s_branch L2_join")
            A.label("L2_grB")
    A.label("L2_join")
    A("s_mul_i32 s35, s%d, 73728" % sKq)
    for i in range(9):
        if i % 4 == 0 and i:
            A("s_add_u32 s35, s35, 4096")
        A("buffer_store_dwordx4 %s, v%d, %s, s35 offen offset:%d %s" % (vr(X + i * 4, 4), T0, sr(sP, 4), (i % 4) * 1024, PPOL))
    if STAMP:
        A("s_waitcnt vmcnt(0)")
        stamp(A, 7)
        A("s_lshr_b32 s98, s%d, 1" % sW8)
        dump_stamps(A, 8, 1, 98, 240)
    A.label("L2_done")
    A("s_endpgm")


def kernel_reduce(A):
    K3 = "reduce_kernel"
    A.raw(".globl %s\n.p2align 8\n.type %s,@function\n%s:" % (K3, K3, K3))
    A("s_cmp_ge_u32 s2, 1152")
    A("s_cbranch_scc1 L3_done")
    A("s_load_dwordx2 s[24:25], s[0:1], 80")
    A("s_load_dwordx2 s[28:29], s[0:1], 96")
    A("v_lshrrev_b32 v1, 6, v0")
    A("v_and_b32 v2, 63, v0")
    A("v_readfirstlane_b32 s30, v1")
    A("s_lshl_b32 s31, s2, 2")
    A("s_add_u32 s30, s30, s31")
    A("s_mul_hi_u32 s31, s30, %d" % ((1 << 32) // 72 + 1))
    A("s_mul_i32 s32, s31, 72")
    A("s_sub_u32 s32, s30, s32")
    A("s_mul_hi_u32 s33, s32, %d" % ((1 << 32) // 9 + 1))
    A("s_mul_i32 s34, s33, 9")
    A("s_sub_u32 s34, s32, s34")
    A("s_mul_i32 s35, s31, %d" % (4 * 73728))
    A("s_lshl_b32 s36, s32, 10")
    A("s_add_u32 s35, s35, s36")
    A("s_add_u32 s35, s35, %d" % P_BASE)
    A("s_waitcnt lgkmcnt(0)")
    make_srd(A, 40, 28, 29, "s35", "%d" % (3 * 73728 + 1024))
    A("v_lshlrev_b32 v3, 4, v2")
    for kq in range(4):
        A("s_mov_b32 s%d, %d" % (48 + kq, kq * 73728))
        A("buffer_load_dwordx4 %s, v3, s[40:43], s%d offen" % (vr(4 + kq * 4, 4), 48 + kq))
    A("s_lshr_b32 s36, s33, 2")
    A("s_mul_i32 s36, s36, 9")
    A("s_add_u32 s36, s36, s34")
    A("s_and_b32 s37, s33, 3")
    A("s_lshl_b32 s37, s37, 1")
    A("s_lshr_b32 s38, s36, 3")
    A("s_add_u32 s39, s37, s38")
    A("s_cmp_ge_u32 s36, 16")
    A("s_cselect_b32 s39, 8, s39")
    A("s_and_b32 s36, s36, 7")
    A("s_xor_b32 s36, s36, s37")
    A("s_lshr_b32 s52, s31, 5")
    A("s_lshr_b32 s53, s31, 2")
    A("s_and_b32 s53, s53, 7")
    A("s_and_b32 s54, s31, 3")
    A("s_mul_i32 s53, s53, 144")
    A("s_lshl_b32 s39, s39, 4")
    A("s_add_u32 s53, s53, s39")
    A("s_lshl_b32 s53, s53, 11")
    A("s_lshl_b32 s52, s52, 10")
    A("s_lshl_b32 s54, s54, 8")
    A("s_lshl_b32 s36, s36, 5")
    A("s_add_u32 s53, s53, s52")
    A("s_add_u32 s53, s53, s54")
    A("s_add_u32 s53, s53, s36")
    A("s_mov_b32 s55, 0")
    make_srd(A, 44, 24, 25, "s55", "%d" % (8 * 144 * 1024 * 2))
    A("v_and_b32 v1, 15, v2")
    A("v_lshlrev_b32 v1, 11, v1")
    A("v_lshrrev_b32 v2, 4, v2")
    A("v_lshl_add_u32 v1, v2, 3, v1")
    A("s_waitcnt vmcnt(0)")
    for i in range(4):
        A("v_add_f32 v%d, v%d, v%d" % (4 + i, 4 + i, 8 + i))
        A("v_add_f32 v%d, v%d, v%d" % (12 + i, 12 + i, 16 + i))
    for i in range(4):
        A("v_add_f32 v%d, v%d, v%d" % (4 + i, 4 + i, 12 + i))
    A("v_cvt_pk_bf16_f32 v20, v4, v5")
    A("v_cvt_pk_bf16_f32 v21, v6, v7")
    A("buffer_store_dwordx2 v[20:21], v1, s[44:47], s53 offen")
    A.label("L3_done")
    A("s_endpgm")


def kd(name, vgpr, sgpr=102):
    return """.amdhsa_kernel %s
  .amdhsa_next_free_vgpr %d
  .amdhsa_next_free_sgpr %d
  .amdhsa_accum_offset %d
  .amdhsa_group_segment_fixed_size 0
  .amdhsa_kernarg_size 104
  .amdhsa_user_sgpr_count 2
  .amdhsa_user_sgpr_kernarg_segment_ptr 1
  .amdhsa_system_sgpr_workgroup_id_x 1
.end_amdhsa_kernel
""" % (name, vgpr, sgpr, (vgpr + 3) // 4 * 4)


def main():
    A = Asm()
    hdr = open(os.path.join(os.path.dirname(os.path.abspath(__file__)), "..", "cdna_kernels", NAME + ".s.ref")).read().split("\n")
    head = [l for l in hdr if l.startswith(";") and "@launch" not in l and "Override launch" not in l and "grid=ceil" not in l]
    out = "\n".join(head) + "\n"
    out += "; @launch kernel=attn_kernel grid=(512,1,1) block=(256,1,1) lds=81920\n"
    out += "; @launch kernel=oproj_kernel grid=(256,1,1) block=(512,1,1) lds=131072\n"
    out += "; @launch kernel=reduce_kernel grid=(1152,1,1) block=(256,1,1) lds=0\n"
    if "twice" in EXP:
        out += "; @launch kernel=oproj_kernel grid=(256,1,1) block=(512,1,1) lds=131072\n"
    out += '.amdgcn_target "amdgcn-amd-amdhsa--gfx950"\n.text\n'
    kernel_attn(A)
    kernel_oproj(A)
    kernel_reduce(A)
    out += A.text()
    out += '.section .rodata,"a"\n.p2align 6\n'
    out += kd("attn_kernel", 256, 100 if STAMP else 74)
    out += ".p2align 6\n" + kd("oproj_kernel", 256, 100 if STAMP else 74)
    out += ".p2align 6\n" + kd("reduce_kernel", 24, 60)
    dst = sys.argv[1] if len(sys.argv) > 1 else os.path.join(os.path.dirname(os.path.abspath(__file__)), "..", "cdna_kernels", NAME + ".s")
    open(dst, "w").write(out)
    print("wrote", dst, A.ninst, "instructions")


if __name__ == "__main__":
    main()
```

```python
import sys, os, struct
sys.path.insert(0, os.path.dirname(os.path.abspath(__file__)))
from asmlib import Asm, VmQ

NAME = "concat_heads__mha_block_cached__mha_block_cached__near_ridge"
O_BRANCH_BYTES = 1152 * 4096 * 2
P_BASE = 2 * O_BRANCH_BYTES
SCALE_C = 1.4426950408889634 / (128.0 ** 0.5)
EXP = os.environ.get("EXP", "")
KVPOL = os.environ.get("KVPOL", "nt ")
WPOL = os.environ.get("WPOL", "")
PPOL = os.environ.get("PPOL", "")
PLPOL = os.environ.get("PLPOL", "sc1")
XPOL = os.environ.get("XPOL", "")


def f32bits(x):
    return struct.unpack("<I", struct.pack("<f", x))[0]


def vr(base, n):
    return "v[%d:%d]" % (base, base + n - 1)


def sr(base, n):
    return "s[%d:%d]" % (base, base + n - 1)


def load_kernargs(A):
    A("s_load_dwordx16 s[4:19], s[0:1], 0")
    A("s_load_dwordx8 s[20:27], s[0:1], 64")
    A("s_load_dwordx2 s[28:29], s[0:1], 96")


def make_srd(A, d, lo, hi, off_s, nrec):
    A("s_add_u32 s%d, s%d, %s" % (d, lo, off_s))
    A("s_addc_u32 s%d, s%d, 0" % (d + 1, hi))
    A("s_and_b32 s%d, s%d, 0xffff" % (d + 1, d + 1))
    A("s_mov_b32 s%d, %s" % (d + 2, nrec))
    A("s_mov_b32 s%d, 0x00020000" % (d + 3))


STAMP = "stamp" in EXP


def stamp(A, i):
    if STAMP:
        A("s_memtime s[%d:%d]" % (80 + 2 * i, 81 + 2 * i))


def dump_stamps(A, n, kidx, sWv, vt):
    if not STAMP:
        return
    A("s_waitcnt lgkmcnt(0)")
    A("s_lshl_b32 s96, s2, 8")
    A("s_lshl_b32 s97, s%d, 6" % sWv)
    A("s_add_u32 s96, s96, s97")
    A("s_add_u32 s96, s96, %d" % (200 * 1024 * 1024 + kidx * 1024 * 1024))
    A("s_add_u32 s76, s28, s96")
    A("s_addc_u32 s77, s29, 0")
    A("s_and_b32 s77, s77, 0xffff")
    A("s_mov_b32 s78, 64")
    A("s_mov_b32 s79, 0x00020000")
    A("v_mov_b32 v%d, 0" % vt)
    for i in range(n):
        A("v_mov_b32 v%d, s%d" % (vt + 1, 80 + 2 * i))
        A("buffer_store_dword v%d, v%d, s[76:79], 0 offen offset:%d" % (vt + 1, vt, 4 * i))
    A("s_waitcnt vmcnt(0)")


def gemm_phase(A, nk, wstride, mode, sW, sX, sWave, sRot, R, hooks):
    vq = VmQ()
    lane, t0, t1, t2, t3 = R["lane"], R["t0"], R["t1"], R["t2"], R["t3"]
    wdma, vx, wrd = R["wdma"], R["vx"], R["wrd"]
    sq0, swb, sm0, st, sk, sx, sw1k = R["sq0"], R["swb"], R["sm0"], R["st"], R["sk"], R["sx"], R["sw1k"]
    nat = mode == "nat"
    NW = 5 if nat else 8
    XD = 4 if nat else 7
    XB = 40960
    wslot = (lambda c: (c + 4) % 5) if nat else (lambda c: c % 8)
    xslot = lambda c: (c + 1) & 1
    A("v_lshrrev_b32 v%d, 4, v%d" % (t0, lane))
    A("v_and_b32 v%d, 15, v%d" % (t1, lane))
    if nat:
        A("s_and_b32 s%d, s%d, 1" % (st, sWave))
        A("s_lshl_b32 s%d, s%d, 2" % (st, st))
        A("v_or_b32 v%d, s%d, v%d" % (t2, st, t0))
    else:
        A("v_mov_b32 v%d, v%d" % (t2, t0))
    A("v_lshrrev_b32 v%d, 1, v%d" % (t3, t1))
    A("v_xor_b32 v%d, v%d, v%d" % (t2, t2, t3))
    A("v_lshlrev_b32 v%d, 5, v%d" % (t2, t2))
    A("v_and_b32 v%d, 1, v%d" % (t3, lane))
    A("v_lshl_add_u32 v%d, v%d, 4, v%d" % (t2, t3, t2))
    A("v_mul_u32_u24 v%d, %d, v%d" % (t3, wstride, t0))
    A("v_add_u32 v%d, v%d, v%d" % (wdma, t2, t3))
    if nat:
        A("v_mov_b32 v%d, v%d" % (wdma + 1, wdma))
        A("s_lshl_b32 s%d, s%d, 2" % (st, sWave))
        A("v_add_u32 v%d, s%d, v%d" % (t2, st, t0))
        A("v_xor_b32 v%d, v%d, v%d" % (t2, t2, lane))
        A("v_and_b32 v%d, 7, v%d" % (t2, t2))
        A("v_lshlrev_b32 v%d, 4, v%d" % (t2, t2))
        A("v_lshrrev_b32 v%d, 3, v%d" % (t3, lane))
        A("s_lshl_b32 s%d, s%d, 3" % (st, sWave))
        A("v_add_u32 v%d, s%d, v%d" % (t3, st, t3))
        A("v_lshl_add_u32 v%d, v%d, 10, v%d" % (vx, t3, t2))
        A("v_lshrrev_b32 v%d, 1, v%d" % (t2, t1))
        A("v_xor_b32 v%d, v%d, v%d" % (t2, t2, t0))
        A("v_lshlrev_b32 v%d, 4, v%d" % (t2, t2))
        A("v_lshl_add_u32 v%d, v%d, 7, v%d" % (t2, t1, t2))
        A("v_add_u32 v%d, %d, v%d" % (vx + 1, XB, t2))
        A("v_xor_b32 v%d, 64, v%d" % (vx + 2, vx + 1))
        A("s_lshl_b32 s%d, s%d, 12" % (st, sWave))
        A("v_add_u32 v%d, s%d, v%d" % (vx + 3, st, vx + 1))
        A("v_add_u32 v%d, s%d, v%d" % (vx + 4, st, vx + 2))
        A("v_bfe_u32 v%d, v%d, 2, 2" % (t1, lane))
        A("v_and_b32 v%d, 1, v%d" % (t2, t0))
        A("v_lshl_add_u32 v%d, v%d, 2, v%d" % (t2, t2, t1))
        A("v_lshl_add_u32 v%d, v%d, 3, v%d" % (t3, t0, t1))
        hoff = 1024
    else:
        A("v_xor_b32 v%d, 0x80, v%d" % (wdma + 1, wdma))
        A("v_lshlrev_b32 v%d, 4, v%d" % (vx, lane))
        A("v_lshrrev_b32 v%d, 2, v%d" % (t3, lane))
        A("v_and_b32 v%d, 7, v%d" % (t2, t3))
        hoff = 4096
    A("s_lshl_b32 s%d, s%d, 1" % (st, sWave))
    A("v_xor_b32 v%d, s%d, v%d" % (t2, st, t2))
    A("v_lshlrev_b32 v%d, 5, v%d" % (t2, t2))
    A("v_lshl_add_u32 v%d, v%d, 8, v%d" % (t2, t3, t2))
    A("v_and_b32 v%d, 3, v%d" % (t3, lane))
    A("v_lshl_add_u32 v%d, v%d, 3, v%d" % (wrd, t3, t2))
    if "slds" in R:
        A("v_add_u32 v%d, s%d, v%d" % (wrd, R["slds"], wrd))
    for dl in range(1, 8):
        A("v_xor_b32 v%d, %d, v%d" % (wrd + dl, dl << 5, wrd))
    A("s_lshl_b32 s%d, s%d, 13" % (sq0, sWave))
    A("s_mul_i32 s%d, s%d, %d" % (swb, sWave, 8 * wstride))
    A("s_lshl_b32 s%d, s%d, 11" % (sm0, sWave))
    if "slds" in R:
        A("s_add_u32 s%d, s%d, s%d" % (sm0, sm0, R["slds"]))
    A("s_lshl_b32 s%d, s%d, 10" % (sw1k, sWave))

    def kidx(ks):
        A("s_add_u32 s%d, s%d, %d" % (sk, sRot, ks))
        A("s_and_b32 s%d, s%d, %d" % (sk, sk, nk - 1))

    def dma_w(ks):
        kidx(ks)
        A("s_mul_i32 s%d, s%d, %d" % (st, sk, 32 * wstride))
        A("s_add_u32 s%d, s%d, s%d" % (st, st, swb))
        for mm in range(2):
            A("s_add_u32 m0, s%d, %d" % (sm0, wslot(ks) * 8192 + mm * 1024))
            if mm:
                A("s_add_u32 s%d, s%d, %d" % (st, st, 4 * wstride))
            A("buffer_load_dwordx4 v%d, %s, s%d offen %slds" % (wdma + mm, sr(sW, 4), st, WPOL))
            vq.issue(("w", ks))

    def dma_x(c):
        kidx(2 * c)
        A("s_lshl_b32 s%d, s%d, 6" % (sx, sk))
        for i in range(5):
            A("s_add_u32 m0, s%d, %d" % (sw1k, XB + xslot(c) * 20480 + i * 4096))
            if i:
                A("s_add_u32 s%d, s%d, 32768" % (sx, sx))
            A("buffer_load_dwordx4 v%d, %s, s%d offen %slds" % (vx, sr(sX, 4), sx, XPOL))
            vq.issue(("x", c))

    def xreads(c):
        out = []
        for p in range(2):
            base = R["xr"] + ((2 * c + p) % XD) * 12
            so = xslot(c) * 20480
            out.append("ds_read_b128 %s, v%d offset:%d" % (vr(base, 4), vx + 3 + p, so))
            out.append("ds_read_b128 %s, v%d offset:%d" % (vr(base + 4, 4), vx + 3 + p, so + 2048))
            out.append("ds_read_b128 %s, v%d offset:%d" % (vr(base + 8, 4), vx + 1 + p, so + 16384))
        return out

    def xload(ks):
        base = R["xr"] + (ks % XD) * 12
        kidx(ks)
        A("s_lshr_b32 s%d, s%d, 2" % (sx, sk))
        A("s_mul_i32 s%d, s%d, 36864" % (sx, sx))
        A("s_and_b32 s%d, s%d, 3" % (st, sk))
        A("s_lshl_b32 s%d, s%d, 10" % (st, st))
        A("s_add_u32 s%d, s%d, s%d" % (sx, sx, st))
        A("s_add_u32 s%d, s%d, s%d" % (st, sx, sq0))
        A("buffer_load_dwordx4 %s, v%d, %s, s%d offen" % (vr(base, 4), vx, sr(sX, 4), st) + " " + XPOL)
        A("s_add_u32 s%d, s%d, %d" % (st, st, 4096))
        A("buffer_load_dwordx4 %s, v%d, %s, s%d offen" % (vr(base + 4, 4), vx, sr(sX, 4), st) + " " + XPOL)
        A("s_add_u32 s%d, s%d, %d" % (st, sx, 8 * 4096))
        A("buffer_load_dwordx4 %s, v%d, %s, s%d offen" % (vr(base + 8, 4), vx, sr(sX, 4), st) + " " + XPOL)
        for _ in range(3):
            vq.issue(("x", ks))

    acc, fr = R["acc"], R["fr"]

    def wreads(ks, dl):
        return ["ds_read_b64_tr_b16 %s, v%d offset:%d" % (vr(fr + (ks & 1) * 32 + dl * 4 + h * 2, 2), wrd + dl, wslot(ks) * 8192 + h * hoff)
                for h in range(2)]

    nw = [0]
    nx = [0]

    def fill(i, maxw, maxx):
        k = 0
        while nw[0] < min(nk, i + 1 + NW - (0 if i >= 0 else 0)) and nw[0] <= i + NW and k < maxw:
            if nw[0] >= NW and nw[0] - NW > i:
                break
            dma_w(nw[0])
            nw[0] += 1
            k += 1
        k = 0
        if nat:
            while nx[0] < nk // 2 and (nx[0] < 2 or 2 * (nx[0] - 2) <= i) and k < maxx:
                dma_x(nx[0])
                nx[0] += 1
                k += 1
        else:
            while nx[0] < nk and nx[0] <= i + XD - 1 and k < maxx:
                xload(nx[0])
                nx[0] += 1
                k += 1

    PW, PX = int(os.environ.get("PW", "2")), int(os.environ.get("PX", "1" if nat else "2"))
    if nat:
        dma_w(0)
        dma_x(0)
        dma_w(1)
        nw[0], nx[0] = 2, 1
    else:
        dma_w(0)
        xload(0)
        dma_w(1)
        xload(1)
        nw[0], nx[0] = 2, 2
    stamp(A, 1)
    A("s_waitcnt vmcnt(%d)" % vq.wait_for({("w", 0)} | ({("x", 0)} if nat else set())))
    A("s_barrier")
    stamp(A, 2)
    fill(-1, PW, PX)
    for dl in range(8):
        for r in wreads(0, dl):
            A(r)
    if nat:
        for r in xreads(0):
            A(r)
    for i in range(nk):
        need = set()
        if i + 1 < nk:
            need.add(("w", i + 1))
        if nat:
            if i % 2 == 1 and i + 1 < nk:
                need.add(("x", (i + 1) // 2))
        else:
            need.add(("x", i))
        n = vq.wait_for(need)
        A("s_waitcnt vmcnt(%d) lgkmcnt(0)" % n)
        A("s_barrier")
        if i == nk // 2:
            stamp(A, 3)
        fill(i, PW, PX)
        if i in hooks:
            hooks[i](A, vq)
        xr = xreads((i + 1) // 2) if (nat and i % 2 == 1 and i + 1 < nk) else []
        xb = R["xr"] + (i % XD) * 12
        for dl in range(8):
            if i + 1 < nk:
                for r in wreads(i + 1, dl):
                    A(r)
            if dl < len(xr):
                A(xr[dl])
            for t in range(3):
                if t == 2 and dl >= 2:
                    continue
                a = acc + (t * 8 + dl) * 4 if t < 2 else acc + 64 + dl * 4
                c = "0" if i == 0 else vr(a, 4)
                A("v_mfma_f32_16x16x32_bf16 %s, %s, %s, %s" % (vr(a, 4), vr(fr + (i & 1) * 32 + dl * 4, 4), vr(xb + t * 4, 4), c))
    return vq


def cross_lane(A, op, v, tmp):
    A("v_mov_b32 v%d, v%d" % (tmp, v))
    A("v_permlane32_swap_b32 v%d, v%d" % (v, tmp))
    A("%s v%d, v%d, v%d" % (op, v, v, tmp))
    A("v_mov_b32 v%d, v%d" % (tmp, v))
    A("v_permlane16_swap_b32 v%d, v%d" % (v, tmp))
    A("%s v%d, v%d, v%d" % (op, v, v, tmp))


def kernel_attn(A):
    K1 = "attn_kernel"
    A.raw(".globl %s\n.p2align 8\n.type %s,@function\n%s:" % (K1, K1, K1))
    A("s_cmp_ge_u32 s2, 512")
    A("s_cbranch_scc1 L1_done")
    stamp(A, 0)
    load_kernargs(A)
    sBr, sH, sB, sWv = 30, 31, 32, 33
    A("s_and_b32 s34, s2, 7")
    A("s_lshr_b32 s35, s2, 3")
    A("s_lshr_b32 s%d, s34, 2" % sBr)
    A("s_and_b32 s34, s34, 3")
    A("s_lshl_b32 s34, s34, 3")
    A("s_and_b32 s%d, s35, 7" % sH)
    A("s_add_u32 s%d, s%d, s34" % (sH, sH))
    A("s_lshr_b32 s%d, s35, 3" % sB)
    O, QF, S, P, F = 0, 96, 144, 180, 200
    M, L = 232, 235
    T0, T1, T2, T3, T4, T5 = 238, 239, 240, 241, 242, 243
    VKB, VVB, VKD, VVD, VKJ, VVJ = 244, 245, 246, 247, 248, 249
    TA = 250
    LANE = 254
    A("v_and_b32 v%d, 63, v0" % LANE)
    A("v_lshrrev_b32 v%d, 6, v0" % T0)
    A("v_readfirstlane_b32 s%d, v%d" % (sWv, T0))
    A("s_waitcnt lgkmcnt(0)")
    A("s_cmp_eq_u32 s%d, 0" % sBr)
    A("s_cselect_b64 s[4:5], s[4:5], s[14:15]")
    A("s_cselect_b64 s[6:7], s[6:7], s[16:17]")
    A("s_cselect_b64 s[8:9], s[8:9], s[18:19]")
    A("s_cselect_b64 s[10:11], s[10:11], s[20:21]")
    sK, sV, sW, sX, sO = 36, 40, 44, 48, 52
    A("s_lshl_b32 s34, s%d, 5" % sB)
    A("s_add_u32 s34, s34, s%d" % sH)
    A("s_lshl_b32 s34, s34, 17")
    make_srd(A, sK, 6, 7, "s34", "131072")
    make_srd(A, sV, 8, 9, "s34", "131072")
    A("s_lshl_b32 s34, s%d, 8" % sH)
    A("s_sub_u32 s35, %d, s34" % (512 * 8192))
    make_srd(A, sW, 10, 11, "s34", "s35")
    A("s_mul_i32 s35, s%d, 147456" % sB)
    make_srd(A, sX, 4, 5, "s35", "147456")
    A("s_mul_i32 s35, s%d, %d" % (sBr, O_BRANCH_BYTES))
    A("s_lshl_b32 s56, s%d, 5" % sB)
    A("s_add_u32 s56, s56, s%d" % sH)
    A("s_mul_i32 s56, s56, 36864")
    A("s_add_u32 s35, s35, s56")
    make_srd(A, sO, 28, 29, "s35", "36864")
    sRot = 68
    A("s_lshr_b32 s%d, s2, 3" % sRot)
    A("s_add_u32 s%d, s%d, s%d" % (sRot, sRot, sB))
    A("s_lshl_b32 s%d, s%d, 1" % (sRot, sRot))
    A("s_and_b32 s%d, s%d, 15" % (sRot, sRot))
    if "norot" in EXP:
        A("s_mov_b32 s%d, 0" % sRot)
    sRotK = 69
    A("s_lshr_b32 s%d, s%d, 1" % (sRotK, sRot))
    sC = 56
    A("s_mov_b32 s%d, 0x%08x" % (sC, f32bits(SCALE_C)))
    sW1k, sT, sT2 = 57, 58, 59
    A("s_lshl_b32 s%d, s%d, 10" % (sW1k, sWv))

    g, lo = T0, T1
    A("v_lshrrev_b32 v%d, 4, v%d" % (g, LANE))
    A("v_and_b32 v%d, 15, v%d" % (lo, LANE))
    A("s_lshl_b32 s%d, s%d, 2" % (sT, sWv))
    A("v_add_u32 v%d, s%d, v%d" % (T2, sT, g))
    A("v_xor_b32 v%d, v%d, v%d" % (T3, lo, T2))
    A("v_lshlrev_b32 v%d, 4, v%d" % (T3, T3))
    A("v_lshl_add_u32 v%d, v%d, 8, v%d" % (VKD, T2, T3))
    A("v_and_b32 v%d, 7, v%d" % (T3, T2))
    A("v_lshlrev_b32 v%d, 1, v%d" % (T3, T3))
    A("v_xor_b32 v%d, v%d, v%d" % (T3, lo, T3))
    A("v_lshlrev_b32 v%d, 4, v%d" % (T3, T3))
    A("v_lshl_add_u32 v%d, v%d, 8, v%d" % (VVD, T2, T3))
    if "noswz" in EXP:
        A("v_lshlrev_b32 v%d, 4, v%d" % (T3, lo))
        A("v_lshl_add_u32 v%d, v%d, 8, v%d" % (VKD, T2, T3))
        A("v_mov_b32 v%d, v%d" % (VVD, VKD))
    A("s_lshl_b32 s%d, s%d, 12" % (sT, sWv))
    A("v_xor_b32 v%d, v%d, v%d" % (T2, g, lo))
    A("v_lshlrev_b32 v%d, 4, v%d" % (T2, T2))
    A("v_lshl_add_u32 v%d, v%d, 8, v%d" % (T2, lo, T2))
    A("v_add_u32 v%d, s%d, v%d" % (VKB, sT, T2))
    A("v_lshrrev_b32 v%d, 2, v%d" % (T2, LANE))
    A("v_and_b32 v%d, 7, v%d" % (T3, T2))
    A("v_lshlrev_b32 v%d, 5, v%d" % (T3, T3))
    A("v_lshl_add_u32 v%d, v%d, 8, v%d" % (T3, T2, T3))
    A("v_and_b32 v%d, 3, v%d" % (T2, LANE))
    A("v_lshl_add_u32 v%d, v%d, 3, v%d" % (T3, T2, T3))
    A("v_add_u32 v%d, s%d, v%d" % (VVB, sT, T3))

    SLOT = lambda n: (n + 2) % 5

    def kv_off(n):
        A("s_add_u32 s%d, s%d, %d" % (sT2, sRotK, n // 2))
        A("s_and_b32 s%d, s%d, 7" % (sT2, sT2))
        A("s_lshl_b32 s%d, s%d, 14" % (sT2, sT2))

    def kv_item_static(n):
        def fn(A, vq):
            srd, vd = (sK, VKD) if n % 2 == 0 else (sV, VVD)
            for i in range(4):
                A("s_add_u32 m0, s%d, %d" % (sW1k, SLOT(n) * 16384 + i * 4096))
                if i == 0:
                    kv_off(n)
                else:
                    A("s_add_u32 s%d, s%d, 4096" % (sT2, sT2))
                A("buffer_load_dwordx4 v%d, %s, s%d offen %slds" % (vd, sr(srd, 4), sT2, KVPOL))
                vq.issue(("kv", n))
        return fn

    PRE = [208, 212, 216, 220, 224, 228, 232, 88]
    A("s_lshl_b32 s%d, s%d, 2" % (sT, sWv))
    A("v_lshrrev_b32 v%d, 4, v%d" % (T2, LANE))
    A("v_add_u32 v%d, s%d, v%d" % (T2, sT, T2))
    A("v_and_b32 v%d, 15, v%d" % (T3, LANE))
    A("v_lshlrev_b32 v%d, 4, v%d" % (T3, T3))
    A("v_lshl_add_u32 v%d, v%d, 8, v%d" % (T2, T2, T3))
    for n in range(2):
        kv_off(n)
        for i in range(4):
            if i:
                A("s_add_u32 s%d, s%d, 4096" % (sT2, sT2))
            A("buffer_load_dwordx4 %s, v%d, %s, s%d offen %s" % (vr(PRE[n * 4 + i], 4), T2, sr(sK if n == 0 else sV, 4), sT2, KVPOL))

    R = dict(acc=0, xr=96, fr=144, wrd=72, wdma=80, vx=82, lane=LANE, t0=T0, t1=T1, t2=T2, t3=T3,
             sq0=60, swb=62, sm0=63, st=64, sk=65, sx=66, sw1k=67)

    def two(a, b):
        def fn(A, vq):
            a(A, vq)
            b(A, vq)
        return fn
    hooks = {12: two(kv_item_static(2), kv_item_static(3)), 14: kv_item_static(4)}
    vq = gemm_phase(A, 16, 8192, "nat", sW, sX, sWv, sRot, R, hooks)
    assert vq.q[-12:] == [("kv", 2)] * 4 + [("kv", 3)] * 4 + [("kv", 4)] * 4, vq.q
    if "p1only" in EXP:
        A("s_waitcnt vmcnt(0)")
        A("s_branch L1_done")

    stamp(A, 4)
    SCR = 32768
    A("v_lshrrev_b32 v%d, 4, v%d" % (g, LANE))
    A("v_and_b32 v%d, 15, v%d" % (lo, LANE))
    A("s_lshl_b32 s%d, s%d, 2" % (sT, sWv))
    A("v_lshrrev_b32 v%d, 1, v%d" % (T2, g))
    A("v_or_b32 v%d, s%d, v%d" % (T2, sT, T2))
    A("v_xor_b32 v%d, v%d, v%d" % (T2, T2, lo))
    A("v_lshlrev_b32 v%d, 4, v%d" % (T2, T2))
    A("v_lshl_add_u32 v%d, v%d, 8, v%d" % (T2, lo, T2))
    A("v_and_b32 v%d, 1, v%d" % (T3, g))
    A("v_lshl_add_u32 v%d, v%d, 3, v%d" % (T2, T3, T2))
    A("s_lshl_b32 s%d, s%d, 12" % (sT, sWv))
    A("v_add_u32 v%d, s%d, v%d" % (T3, sT, T2))
    A("v_xor_b32 v%d, v%d, v%d" % (T4, g, lo))
    A("v_lshlrev_b32 v%d, 4, v%d" % (T4, T4))
    A("v_lshl_add_u32 v%d, v%d, 8, v%d" % (T4, lo, T4))
    A("v_add_u32 v%d, s%d, v%d" % (T5, sT, T4))
    PK = 144
    for dl in range(8):
        A("v_xor_b32 v%d, %d, v%d" % (TA + (dl & 3), dl << 5, T3))
        for t in range(2):
            a = (t * 8 + dl) * 4
            pk = PK + t * 16 + dl * 2
            A("v_cvt_pk_bf16_f32 v%d, v%d, v%d" % (pk, a, a + 1))
            A("v_cvt_pk_bf16_f32 v%d, v%d, v%d" % (pk + 1, a + 2, a + 3))
            A("ds_write_b64 v%d, %s offset:%d" % (TA + (dl & 3), vr(pk, 2), SCR + t * 16384))
    for ds in range(4):
        A("v_xor_b32 v%d, %d, v%d" % (TA + ds, ds << 6, T5))
        for t in range(2):
            A("ds_read_b128 %s, v%d offset:%d" % (vr(QF + t * 16 + ds * 4, 4), TA + ds, SCR + t * 16384))
    for dl in range(2):
        a = 64 + dl * 4
        A("v_cvt_pk_bf16_f32 v%d, v%d, v%d" % (176 + dl * 2, a, a + 1))
        A("v_cvt_pk_bf16_f32 v%d, v%d, v%d" % (176 + dl * 2 + 1, a + 2, a + 3))
        A("v_xor_b32 v%d, %d, v%d" % (T0 + dl, dl << 5, T3))
        A("ds_write_b64 v%d, %s offset:%d" % (T0 + dl, vr(176 + dl * 2, 2), SCR))
    for i in range(88):
        A("v_mov_b32 v%d, 0" % (O + i))
    A("s_waitcnt lgkmcnt(0)")
    A("s_barrier")
    for ds in range(4):
        A("v_xor_b32 v%d, %d, v%d" % (TA + ds, ds << 6, T4))
        A("ds_read_b128 %s, v%d offset:%d" % (vr(QF + 32 + ds * 4, 4), TA + ds, SCR + ds * 4096))
    A("s_waitcnt lgkmcnt(0)")
    A("s_barrier")
    for n in range(2):
        for i in range(4):
            A("ds_write_b128 v%d, %s offset:%d" % (VKD if n == 0 else VVD, vr(PRE[n * 4 + i], 4), SLOT(n) * 16384 + i * 4096))
    A("s_waitcnt lgkmcnt(0)")
    for i in range(88, 96):
        A("v_mov_b32 v%d, 0" % (O + i))
    for t in range(3):
        A("v_mov_b32 v%d, 0xf149f2ca" % (M + t))
        A("v_mov_b32 v%d, 0" % (L + t))
    sJ, sA_, sB_, sC_, sG = 60, 61, 62, 63, 64
    A("s_mov_b32 s%d, 0" % sJ)
    A("s_mov_b32 s%d, %d" % (sA_, SLOT(0) * 16384))
    A("s_mov_b32 s%d, %d" % (sB_, SLOT(1) * 16384))
    A("s_mov_b32 s%d, %d" % (sC_, SLOT(4) * 16384))

    def kv_dma(srd, vd, sslot, goff):
        if "nomem" in EXP:
            return
        A("s_add_u32 s%d, s%d, s%d" % (sT, sslot, sW1k))
        for i in range(4):
            A("s_add_u32 m0, s%d, %d" % (sT, i * 4096))
            A("s_add_u32 s%d, s%d, %d" % (sT2, sG, i * 4096))
            A("buffer_load_dwordx4 v%d, %s, s%d offen %slds" % (vd, sr(srd, 4), sT2, KVPOL))

    stamp(A, 5)
    A.label("L1_loop")
    A("s_add_u32 s%d, s%d, s%d" % (sG, sJ, sRotK))
    A("s_add_u32 s%d, s%d, 2" % (sG, sG))
    A("s_and_b32 s%d, s%d, 7" % (sG, sG))
    A("s_lshl_b32 s%d, s%d, 14" % (sG, sG))
    A("s_cmp_lt_u32 s%d, 6" % sJ)
    A("s_cselect_b32 s%d, s%d, 131072" % (sG, sG))
    A("s_waitcnt vmcnt(12)")
    A("s_barrier")
    A("s_cmp_eq_u32 s%d, 0" % sJ)
    A("s_cbranch_scc1 L1_skipk")
    kv_dma(sK, VKD, sC_, 32768)
    A.label("L1_skipk")
    A("v_add_u32 v%d, s%d, v%d" % (VKJ, sA_, VKB))

    def kreads(l):
        for ds in range(4):
            x = (l << 12) | (ds << 6)
            if x:
                A("v_xor_b32 v%d, 0x%x, v%d" % (TA + ds, x, VKJ))
                ad = TA + ds
            else:
                ad = VKJ
            A("ds_read_b128 %s, v%d" % (vr(F + (l & 1) * 16 + ds * 4, 4), ad))

    if "nocomp" not in EXP:
      kreads(0)
      kreads(1)
    for l in range(4 if "nocomp" not in EXP else 0):
        A("s_waitcnt lgkmcnt(%d)" % (4 if l < 3 else 0))
        for ds in range(4):
            fa = vr(F + (l & 1) * 16 + ds * 4, 4)
            for t in range(3):
                if t == 2 and l != 0:
                    continue
                d = S + t * 16 + l * 4 if t < 2 else S + 32
                c = "0" if ds == 0 else vr(d, 4)
                A("v_mfma_f32_16x16x32_bf16 %s, %s, %s, %s" % (vr(d, 4), fa, vr(QF + t * 16 + ds * 4, 4), c))
        if l + 2 < 4:
            kreads(l + 2)
    for t in range(3 if ("nocomp" not in EXP and "nosm" not in EXP) else 0):
        nv = 16 if t < 2 else 4
        s0 = S + t * 16
        mx, tmp, al = T0, T1, T2
        if nv == 16:
            A("v_max3_f32 v%d, v%d, v%d, v%d" % (mx, s0, s0 + 1, s0 + 2))
            for i in range(3, 15, 2):
                A("v_max3_f32 v%d, v%d, v%d, v%d" % (mx, mx, s0 + i, s0 + i + 1))
            A("v_max_f32 v%d, v%d, v%d" % (mx, mx, s0 + 15))
        else:
            A("v_max3_f32 v%d, v%d, v%d, v%d" % (mx, s0, s0 + 1, s0 + 2))
            A("v_max_f32 v%d, v%d, v%d" % (mx, mx, s0 + 3))
        cross_lane(A, "v_max_f32", mx, tmp)
        A("v_mul_f32 v%d, s%d, v%d" % (mx, sC, mx))
        A("v_max_f32 v%d, v%d, v%d" % (mx, mx, M + t))
        A("v_sub_f32 v%d, v%d, v%d" % (al, M + t, mx))
        A("v_exp_f32 v%d, v%d" % (al, al))
        A("v_mov_b32 v%d, v%d" % (M + t, mx))
        for i in range(nv):
            A("v_fma_f32 v%d, v%d, s%d, -v%d" % (s0 + i, s0 + i, sC, mx))
        for i in range(nv):
            A("v_exp_f32 v%d, v%d" % (s0 + i, s0 + i))
        A("v_mul_f32 v%d, v%d, v%d" % (L + t, L + t, al))
        for i in range(nv):
            A("v_add_f32 v%d, v%d, v%d" % (L + t, L + t, s0 + i))
        p0 = P + t * 8
        for i in range(0, nv, 2):
            A("v_cvt_pk_bf16_f32 v%d, v%d, v%d" % (p0 + i // 2, s0 + i, s0 + i + 1))
        for i in range(32):
            A("v_mul_f32 v%d, v%d, v%d" % (O + t * 32 + i, O + t * 32 + i, al))
    A("s_waitcnt vmcnt(12)")
    A("s_barrier")
    kv_dma(sV, VVD, sA_, 32768)
    A("v_add_u32 v%d, s%d, v%d" % (VVJ, sB_, VVB))

    def vreads(f):
        u, dt = f // 8, f % 8
        for hh in range(2):
            l = 2 * u + hh
            x = (l << 12) | (dt << 5)
            ta = TA + ((2 * f + hh) & 3)
            if x:
                A("v_xor_b32 v%d, 0x%x, v%d" % (ta, x, VVJ))
                ad = ta
            else:
                ad = VVJ
            A("ds_read_b64_tr_b16 %s, v%d" % (vr(F + (f % 8) * 4 + hh * 2, 2), ad))

    PD = 6
    for f in range(PD if "nocomp" not in EXP else 0):
        vreads(f)
    for f in range(16 if "nocomp" not in EXP else 0):
        u, dt = f // 8, f % 8
        rem = min(16, f + PD) - (f + 1)
        A("s_waitcnt lgkmcnt(%d)" % (2 * rem))
        fa = F + (f % 8) * 4
        for t in range(2):
            d = vr(O + t * 32 + dt * 4, 4)
            A("v_mfma_f32_16x16x32_bf16 %s, %s, %s, %s" % (d, vr(fa, 4), vr(P + t * 8 + u * 4, 4), d))
        if u == 0:
            d = vr(O + 64 + dt * 4, 4)
            A("v_mfma_f32_16x16x16_bf16 %s, %s, %s, %s" % (d, vr(fa, 2), vr(P + 16, 2), d))
        if f + PD < 16:
            vreads(f + PD)
    A("s_mov_b32 s%d, s%d" % (sC_, sB_))
    for s in (sA_, sB_):
        A("s_add_u32 s%d, s%d, 32768" % (s, s))
        A("s_sub_u32 s%d, s%d, 81920" % (sT, s))
        A("s_cmp_ge_u32 s%d, 81920" % s)
        A("s_cselect_b32 s%d, s%d, s%d" % (s, sT, s))
    A("s_add_u32 s%d, s%d, 1" % (sJ, sJ))
    A("s_cmp_lt_u32 s%d, 8" % sJ)
    A.flush()
    A("s_cbranch_scc1 L1_loop")

    stamp(A, 6)
    A("s_waitcnt vmcnt(0)")
    A("s_barrier")
    for t in range(3):
        cross_lane(A, "v_add_f32", L + t, T1)
    A("v_lshlrev_b32 v%d, 4, v%d" % (T2, LANE))
    A("s_lshl_b32 s%d, s%d, 13" % (sT, sWv))
    A("v_add_u32 v%d, s%d, v%d" % (T3, sT, T2))
    for dt in range(8):
        A("ds_write_b128 v%d, %s offset:%d" % (T3, vr(O + 64 + dt * 4, 4), dt * 1024))
    A("v_and_b32 v%d, 15, v%d" % (T4, LANE))
    A("v_lshlrev_b32 v%d, 3, v%d" % (T4, T4))
    A("s_lshl_b32 s%d, s%d, 7" % (sT, sWv))
    A("v_add_u32 v%d, s%d, v%d" % (T5, sT, T4))
    A("v_mov_b32 v%d, v%d" % (TA, M + 2))
    A("v_mov_b32 v%d, v%d" % (TA + 1, L + 2))
    A("ds_write_b64 v%d, %s offset:32768" % (T5, vr(TA, 2)))
    VO = T2
    A("s_lshl_b32 s%d, s%d, 13" % (sT, sWv))
    for t in range(2):
        A("v_rcp_f32 v%d, v%d" % (T1, L + t))
        for i in range(32):
            A("v_mul_f32 v%d, v%d, v%d" % (O + t * 32 + i, O + t * 32 + i, T1))
        for ds in range(4):
            a = O + t * 32 + ds * 8
            pk = F + t * 16 + ds * 4
            for i in range(4):
                A("v_cvt_pk_bf16_f32 v%d, v%d, v%d" % (pk + i, a + 2 * i, a + 2 * i + 1))
            A("buffer_store_dwordx4 %s, v%d, %s, s%d offen offset:%d" % (vr(pk, 4), VO, sr(sO, 4), sT, 1024 * ds))
        if t == 0:
            A("s_add_u32 s%d, s%d, 4096" % (sT, sT))
    A("s_waitcnt lgkmcnt(0)")
    A("s_barrier")
    ML = S
    OP = S + 8
    for w2 in range(4):
        A("ds_read_b64 %s, v%d offset:%d" % (vr(ML + 2 * w2, 2), T4, 32768 + w2 * 128))
    A("s_lshl_b32 s%d, s%d, 11" % (sT, sWv))
    A("v_add_u32 v%d, s%d, v%d" % (T3, sT, T2))
    for w2 in range(4):
        for dd in range(2):
            A("ds_read_b128 %s, v%d offset:%d" % (vr(OP + (w2 * 2 + dd) * 4, 4), T3, w2 * 8192 + dd * 1024))
    A("s_waitcnt lgkmcnt(0)")
    A("v_max3_f32 v%d, v%d, v%d, v%d" % (T1, ML, ML + 2, ML + 4))
    A("v_max_f32 v%d, v%d, v%d" % (T1, T1, ML + 6))
    for w2 in range(4):
        A("v_sub_f32 v%d, v%d, v%d" % (ML + 2 * w2, ML + 2 * w2, T1))
        A("v_exp_f32 v%d, v%d" % (ML + 2 * w2, ML + 2 * w2))
    A("v_mul_f32 v%d, v%d, v%d" % (T5, ML, ML + 1))
    for w2 in range(1, 4):
        A("v_fma_f32 v%d, v%d, v%d, v%d" % (T5, ML + 2 * w2, ML + 2 * w2 + 1, T5))
    A("v_rcp_f32 v%d, v%d" % (T5, T5))
    for w2 in range(4):
        A("v_mul_f32 v%d, v%d, v%d" % (ML + 2 * w2, ML + 2 * w2, T5))
    for dd in range(2):
        for r in range(4):
            d = O + dd * 4 + r
            A("v_mul_f32 v%d, v%d, v%d" % (d, OP + dd * 4 + r, ML))
            for w2 in range(1, 4):
                A("v_fma_f32 v%d, v%d, v%d, v%d" % (d, OP + (w2 * 2 + dd) * 4 + r, ML + 2 * w2, d))
    A("s_lshl_b32 s%d, s%d, 10" % (sT, sWv))
    A("s_add_u32 s%d, s%d, %d" % (sT, sT, 8 * 4096))
    for i in range(4):
        A("v_cvt_pk_bf16_f32 v%d, v%d, v%d" % (QF + i, O + 2 * i, O + 2 * i + 1))
    A("buffer_store_dwordx4 %s, v%d, %s, s%d offen" % (vr(QF, 4), VO, sr(sO, 4), sT))
    if STAMP:
        A("s_waitcnt vmcnt(0)")
    stamp(A, 7)
    dump_stamps(A, 8, 0, sWv, 240)
    A.label("L1_done")
    A("s_endpgm")


def kernel_oproj(A):
    K2 = "oproj_kernel"
    A.raw(".globl %s\n.p2align 8\n.type %s,@function\n%s:" % (K2, K2, K2))
    A("s_cmp_ge_u32 s2, 256")
    A("s_cbranch_scc1 L2_done")
    stamp(A, 0)
    load_kernargs(A)
    sBr, sKq, sB, sNb, sWv, sGr, sW8 = 30, 31, 32, 33, 34, 39, 40
    A("s_and_b32 s35, s2, 7")
    A("s_lshr_b32 s%d, s35, 2" % sBr)
    A("s_and_b32 s%d, s35, 3" % sKq)
    A("s_lshr_b32 s35, s2, 3")
    A("s_lshr_b32 s%d, s35, 2" % sB)
    A("s_and_b32 s%d, s35, 3" % sNb)
    LANE, T0, T1, T2, T3 = 254, 238, 239, 240, 241
    A("v_and_b32 v%d, 63, v0" % LANE)
    A("v_lshrrev_b32 v%d, 6, v0" % T0)
    A("v_readfirstlane_b32 s%d, v%d" % (sW8, T0))
    A("s_and_b32 s%d, s%d, 3" % (sWv, sW8))
    A("s_lshr_b32 s%d, s%d, 2" % (sGr, sW8))
    A("s_waitcnt lgkmcnt(0)")
    stamp(A, 6)
    A("s_cmp_eq_u32 s%d, 0" % sBr)
    A("s_cselect_b64 s[12:13], s[12:13], s[22:23]")
    sW, sX, sP, sO = 44, 48, 52, 56
    A("s_lshl_b32 s35, s%d, 1" % sKq)
    A("s_add_u32 s38, s35, s%d" % sGr)
    A("s_lshl_b32 s35, s38, 19")
    A("s_lshl_b32 s36, s%d, 8" % sNb)
    A("s_add_u32 s35, s35, s36")
    A("s_sub_u32 s37, %d, s36" % (512 * 1024))
    make_srd(A, sW, 12, 13, "s35", "s37")
    A("s_mul_i32 s35, s%d, %d" % (sBr, O_BRANCH_BYTES))
    A("s_lshl_b32 s36, s%d, 3" % sB)
    A("s_add_u32 s36, s36, s38")
    A("s_mul_i32 s36, s36, %d" % (4 * 36864))
    A("s_add_u32 s35, s35, s36")
    make_srd(A, sX, 28, 29, "s35", "%d" % (4 * 36864))
    sRot = 68
    A("s_lshl_b32 s%d, s%d, 1" % (sRot, sNb))
    A("s_add_u32 s%d, s%d, s%d" % (sRot, sRot, sB))
    A("s_lshl_b32 s%d, s%d, 1" % (sRot, sRot))
    if "norot2" in EXP:
        A("s_mov_b32 s%d, 0" % sRot)
    sTile = 41
    A("s_lshl_b32 s%d, s%d, 5" % (sTile, sBr))
    A("s_lshl_b32 s35, s%d, 2" % sB)
    A("s_add_u32 s%d, s%d, s35" % (sTile, sTile))
    A("s_add_u32 s%d, s%d, s%d" % (sTile, sTile, sNb))
    A("s_mul_i32 s35, s%d, %d" % (sTile, 4 * 73728))
    A("s_mul_i32 s36, s%d, 9216" % sW8)
    A("s_add_u32 s35, s35, s36")
    A("s_add_u32 s35, s35, %d" % P_BASE)
    make_srd(A, sP, 28, 29, "s35", "%d" % (3 * 73728 + 9216))
    A("s_mul_i32 s35, s%d, %d" % (sB, 144 * 2048))
    A("s_lshl_b32 s36, s%d, 10" % sBr)
    A("s_lshl_b32 s37, s%d, 8" % sNb)
    A("s_add_u32 s36, s36, s37")
    A("s_add_u32 s35, s35, s36")
    A("s_sub_u32 s37, %d, s36" % (144 * 2048))
    make_srd(A, sO, 24, 25, "s35", "s37")
    A("s_lshl_b32 s69, s%d, 16" % sGr)
    R = dict(acc=0, xr=88, fr=172, wrd=72, wdma=80, vx=82, lane=LANE, t0=T0, t1=T1, t2=T2, t3=T3,
             sq0=60, swb=62, sm0=63, st=64, sk=65, sx=66, sw1k=67, slds=69)
    gemm_phase(A, 16, 1024, "perm", sW, sX, sWv, sRot, R, {})
    stamp(A, 4)
    A("s_barrier")
    A("v_lshlrev_b32 v%d, 4, v%d" % (T0, LANE))
    A("s_mul_i32 s35, s%d, 9216" % sW8)
    A("v_add_u32 v%d, s35, v%d" % (T1, T0))
    A("s_xor_b32 s36, s%d, 4" % sW8)
    A("s_mul_i32 s36, s36, 9216")
    A("v_add_u32 v%d, s36, v%d" % (T2, T0))
    X = 96
    A("s_cmp_eq_u32 s%d, 0" % sGr)
    A("s_cbranch_scc0 L2_grB")
    for grp in range(2):
        keep = range(0, 9) if grp == 0 else range(9, 18)
        give = range(9, 18) if grp == 0 else range(0, 9)
        for i, f in enumerate(give):
            A("ds_write_b128 v%d, %s offset:%d" % (T1, vr(f * 4, 4), i * 1024))
        A("s_waitcnt lgkmcnt(0)")
        A("s_barrier")
        for i in range(9):
            A("ds_read_b128 %s, v%d offset:%d" % (vr(X + i * 4, 4), T2, i * 1024))
        A("s_waitcnt lgkmcnt(0)")
        for i, f in enumerate(keep):
            for r in range(4):
                A("v_add_f32 v%d, v%d, v%d" % (X + i * 4 + r, X + i * 4 + r, f * 4 + r))
        if grp == 0:
            A.flush()
            A("s_branch L2_join")
            A.label("L2_grB")
    A.label("L2_join")
    A("s_mul_i32 s35, s%d, 73728" % sKq)
    for i in range(9):
        if i % 4 == 0 and i:
            A("s_add_u32 s35, s35, 4096")
        A("buffer_store_dwordx4 %s, v%d, %s, s35 offen offset:%d %s" % (vr(X + i * 4, 4), T0, sr(sP, 4), (i % 4) * 1024, PPOL))
    if STAMP:
        A("s_waitcnt vmcnt(0)")
        stamp(A, 7)
        A("s_lshr_b32 s98, s%d, 1" % sW8)
        dump_stamps(A, 8, 1, 98, 240)
    A.label("L2_done")
    A("s_endpgm")


def kernel_reduce(A):
    K3 = "reduce_kernel"
    A.raw(".globl %s\n.p2align 8\n.type %s,@function\n%s:" % (K3, K3, K3))
    A("s_cmp_ge_u32 s2, 1152")
    A("s_cbranch_scc1 L3_done")
    A("s_load_dwordx2 s[24:25], s[0:1], 80")
    A("s_load_dwordx2 s[28:29], s[0:1], 96")
    A("v_lshrrev_b32 v1, 6, v0")
    A("v_and_b32 v2, 63, v0")
    A("v_readfirstlane_b32 s30, v1")
    A("s_lshl_b32 s31, s2, 2")
    A("s_add_u32 s30, s30, s31")
    A("s_mul_hi_u32 s31, s30, %d" % ((1 << 32) // 72 + 1))
    A("s_mul_i32 s32, s31, 72")
    A("s_sub_u32 s32, s30, s32")
    A("s_mul_hi_u32 s33, s32, %d" % ((1 << 32) // 9 + 1))
    A("s_mul_i32 s34, s33, 9")
    A("s_sub_u32 s34, s32, s34")
    A("s_mul_i32 s35, s31, %d" % (4 * 73728))
    A("s_lshl_b32 s36, s32, 10")
    A("s_add_u32 s35, s35, s36")
    A("s_add_u32 s35, s35, %d" % P_BASE)
    A("s_waitcnt lgkmcnt(0)")
    make_srd(A, 40, 28, 29, "s35", "%d" % (3 * 73728 + 1024))
    A("v_lshlrev_b32 v3, 4, v2")
    for kq in range(4):
        A("s_mov_b32 s%d, %d" % (48 + kq, kq * 73728))
        A("buffer_load_dwordx4 %s, v3, s[40:43], s%d offen" % (vr(4 + kq * 4, 4), 48 + kq))
    A("s_lshr_b32 s36, s33, 2")
    A("s_mul_i32 s36, s36, 9")
    A("s_add_u32 s36, s36, s34")
    A("s_and_b32 s37, s33, 3")
    A("s_lshl_b32 s37, s37, 1")
    A("s_lshr_b32 s38, s36, 3")
    A("s_add_u32 s39, s37, s38")
    A("s_cmp_ge_u32 s36, 16")
    A("s_cselect_b32 s39, 8, s39")
    A("s_and_b32 s36, s36, 7")
    A("s_xor_b32 s36, s36, s37")
    A("s_lshr_b32 s52, s31, 5")
    A("s_lshr_b32 s53, s31, 2")
    A("s_and_b32 s53, s53, 7")
    A("s_and_b32 s54, s31, 3")
    A("s_mul_i32 s53, s53, 144")
    A("s_lshl_b32 s39, s39, 4")
    A("s_add_u32 s53, s53, s39")
    A("s_lshl_b32 s53, s53, 11")
    A("s_lshl_b32 s52, s52, 10")
    A("s_lshl_b32 s54, s54, 8")
    A("s_lshl_b32 s36, s36, 5")
    A("s_add_u32 s53, s53, s52")
    A("s_add_u32 s53, s53, s54")
    A("s_add_u32 s53, s53, s36")
    A("s_mov_b32 s55, 0")
    make_srd(A, 44, 24, 25, "s55", "%d" % (8 * 144 * 1024 * 2))
    A("v_and_b32 v1, 15, v2")
    A("v_lshlrev_b32 v1, 11, v1")
    A("v_lshrrev_b32 v2, 4, v2")
    A("v_lshl_add_u32 v1, v2, 3, v1")
    A("s_waitcnt vmcnt(0)")
    for i in range(4):
        A("v_add_f32 v%d, v%d, v%d" % (4 + i, 4 + i, 8 + i))
        A("v_add_f32 v%d, v%d, v%d" % (12 + i, 12 + i, 16 + i))
    for i in range(4):
        A("v_add_f32 v%d, v%d, v%d" % (4 + i, 4 + i, 12 + i))
    A("v_cvt_pk_bf16_f32 v20, v4, v5")
    A("v_cvt_pk_bf16_f32 v21, v6, v7")
    A("buffer_store_dwordx2 v[20:21], v1, s[44:47], s53 offen")
    A.label("L3_done")
    A("s_endpgm")


def kd(name, vgpr, sgpr=102):
    return """.amdhsa_kernel %s
  .amdhsa_next_free_vgpr %d
  .amdhsa_next_free_sgpr %d
  .amdhsa_accum_offset %d
  .amdhsa_group_segment_fixed_size 0
  .amdhsa_kernarg_size 104
  .amdhsa_user_sgpr_count 2
  .amdhsa_user_sgpr_kernarg_segment_ptr 1
  .amdhsa_system_sgpr_workgroup_id_x 1
.end_amdhsa_kernel
""" % (name, vgpr, sgpr, (vgpr + 3) // 4 * 4)


def main():
    A = Asm()
    hdr = open(os.path.join(os.path.dirname(os.path.abspath(__file__)), "..", "cdna_kernels", NAME + ".s.ref")).read().split("\n")
    head = [l for l in hdr if l.startswith(";") and "@launch" not in l and "Override launch" not in l and "grid=ceil" not in l]
    out = "\n".join(head) + "\n"
    out += "; @launch kernel=attn_kernel grid=(512,1,1) block=(256,1,1) lds=81920\n"
    out += "; @launch kernel=oproj_kernel grid=(256,1,1) block=(512,1,1) lds=131072\n"
    out += "; @launch kernel=reduce_kernel grid=(1152,1,1) block=(256,1,1) lds=0\n"
    if "twice" in EXP:
        out += "; @launch kernel=oproj_kernel grid=(256,1,1) block=(512,1,1) lds=131072\n"
    out += '.amdgcn_target "amdgcn-amd-amdhsa--gfx950"\n.text\n'
    kernel_attn(A)
    kernel_oproj(A)
    kernel_reduce(A)
    out += A.text()
    out += '.section .rodata,"a"\n.p2align 6\n'
    out += kd("attn_kernel", 256, 100 if STAMP else 74)
    out += ".p2align 6\n" + kd("oproj_kernel", 256, 100 if STAMP else 74)
    out += ".p2align 6\n" + kd("reduce_kernel", 24, 60)
    dst = sys.argv[1] if len(sys.argv) > 1 else os.path.join(os.path.dirname(os.path.abspath(__file__)), "..", "cdna_kernels", NAME + ".s")
    open(dst, "w").write(out)
    print("wrote", dst, A.ninst, "instructions")


if __name__ == "__main__":
    main()
```

```python
import sys, os, struct
sys.path.insert(0, os.path.dirname(os.path.abspath(__file__)))
from asmlib import Asm, VmQ

NAME = "concat_heads__mha_block_cached__mha_block_cached__near_ridge"
O_BRANCH_BYTES = 1152 * 4096 * 2
P_BASE = 2 * O_BRANCH_BYTES
SCALE_C = 1.4426950408889634 / (128.0 ** 0.5)
EXP = os.environ.get("EXP", "")
KVPOL = os.environ.get("KVPOL", "nt ")
WPOL = os.environ.get("WPOL", "")
PPOL = os.environ.get("PPOL", "")
PLPOL = os.environ.get("PLPOL", "sc1")
XPOL = os.environ.get("XPOL", "")


def f32bits(x):
    return struct.unpack("<I", struct.pack("<f", x))[0]


def vr(base, n):
    return "v[%d:%d]" % (base, base + n - 1)


def sr(base, n):
    return "s[%d:%d]" % (base, base + n - 1)


def load_kernargs(A):
    A("s_load_dwordx16 s[4:19], s[0:1], 0")
    A("s_load_dwordx8 s[20:27], s[0:1], 64")
    A("s_load_dwordx2 s[28:29], s[0:1], 96")


def make_srd(A, d, lo, hi, off_s, nrec):
    A("s_add_u32 s%d, s%d, %s" % (d, lo, off_s))
    A("s_addc_u32 s%d, s%d, 0" % (d + 1, hi))
    A("s_and_b32 s%d, s%d, 0xffff" % (d + 1, d + 1))
    A("s_mov_b32 s%d, %s" % (d + 2, nrec))
    A("s_mov_b32 s%d, 0x00020000" % (d + 3))


STAMP = "stamp" in EXP


def stamp(A, i):
    if STAMP:
        A("s_memtime s[%d:%d]" % (80 + 2 * i, 81 + 2 * i))


def dump_stamps(A, n, kidx, sWv, vt):
    if not STAMP:
        return
    A("s_waitcnt lgkmcnt(0)")
    A("s_lshl_b32 s96, s2, 8")
    A("s_lshl_b32 s97, s%d, 6" % sWv)
    A("s_add_u32 s96, s96, s97")
    A("s_add_u32 s96, s96, %d" % (200 * 1024 * 1024 + kidx * 1024 * 1024))
    A("s_add_u32 s76, s28, s96")
    A("s_addc_u32 s77, s29, 0")
    A("s_and_b32 s77, s77, 0xffff")
    A("s_mov_b32 s78, 64")
    A("s_mov_b32 s79, 0x00020000")
    A("v_mov_b32 v%d, 0" % vt)
    for i in range(n):
        A("v_mov_b32 v%d, s%d" % (vt + 1, 80 + 2 * i))
        A("buffer_store_dword v%d, v%d, s[76:79], 0 offen offset:%d" % (vt + 1, vt, 4 * i))
    A("s_waitcnt vmcnt(0)")


def gemm_phase(A, nk, wstride, mode, sW, sX, sWave, sRot, R, hooks):
    vq = VmQ()
    lane, t0, t1, t2, t3 = R["lane"], R["t0"], R["t1"], R["t2"], R["t3"]
    wdma, vx, wrd = R["wdma"], R["vx"], R["wrd"]
    sq0, swb, sm0, st, sk, sx, sw1k = R["sq0"], R["swb"], R["sm0"], R["st"], R["sk"], R["sx"], R["sw1k"]
    nat = mode == "nat"
    NW = 5 if nat else 8
    XD = 4 if nat else 7
    XB = 40960
    wslot = (lambda c: (c + 4) % 5) if nat else (lambda c: c % 8)
    xslot = lambda c: (c + 1) & 1
    A("v_lshrrev_b32 v%d, 4, v%d" % (t0, lane))
    A("v_and_b32 v%d, 15, v%d" % (t1, lane))
    if nat:
        A("s_and_b32 s%d, s%d, 1" % (st, sWave))
        A("s_lshl_b32 s%d, s%d, 2" % (st, st))
        A("v_or_b32 v%d, s%d, v%d" % (t2, st, t0))
    else:
        A("v_mov_b32 v%d, v%d" % (t2, t0))
    A("v_lshrrev_b32 v%d, 1, v%d" % (t3, t1))
    A("v_xor_b32 v%d, v%d, v%d" % (t2, t2, t3))
    A("v_lshlrev_b32 v%d, 5, v%d" % (t2, t2))
    A("v_and_b32 v%d, 1, v%d" % (t3, lane))
    A("v_lshl_add_u32 v%d, v%d, 4, v%d" % (t2, t3, t2))
    A("v_mul_u32_u24 v%d, %d, v%d" % (t3, wstride, t0))
    A("v_add_u32 v%d, v%d, v%d" % (wdma, t2, t3))
    if nat:
        A("v_mov_b32 v%d, v%d" % (wdma + 1, wdma))
        A("s_lshl_b32 s%d, s%d, 2" % (st, sWave))
        A("v_add_u32 v%d, s%d, v%d" % (t2, st, t0))
        A("v_xor_b32 v%d, v%d, v%d" % (t2, t2, lane))
        A("v_and_b32 v%d, 7, v%d" % (t2, t2))
        A("v_lshlrev_b32 v%d, 4, v%d" % (t2, t2))
        A("v_lshrrev_b32 v%d, 3, v%d" % (t3, lane))
        A("s_lshl_b32 s%d, s%d, 3" % (st, sWave))
        A("v_add_u32 v%d, s%d, v%d" % (t3, st, t3))
        A("v_lshl_add_u32 v%d, v%d, 10, v%d" % (vx, t3, t2))
        A("v_lshrrev_b32 v%d, 1, v%d" % (t2, t1))
        A("v_xor_b32 v%d, v%d, v%d" % (t2, t2, t0))
        A("v_lshlrev_b32 v%d, 4, v%d" % (t2, t2))
        A("v_lshl_add_u32 v%d, v%d, 7, v%d" % (t2, t1, t2))
        A("v_add_u32 v%d, %d, v%d" % (vx + 1, XB, t2))
        A("v_xor_b32 v%d, 64, v%d" % (vx + 2, vx + 1))
        A("s_lshl_b32 s%d, s%d, 12" % (st, sWave))
        A("v_add_u32 v%d, s%d, v%d" % (vx + 3, st, vx + 1))
        A("v_add_u32 v%d, s%d, v%d" % (vx + 4, st, vx + 2))
        A("v_bfe_u32 v%d, v%d, 2, 2" % (t1, lane))
        A("v_and_b32 v%d, 1, v%d" % (t2, t0))
        A("v_lshl_add_u32 v%d, v%d, 2, v%d" % (t2, t2, t1))
        A("v_lshl_add_u32 v%d, v%d, 3, v%d" % (t3, t0, t1))
        hoff = 1024
    else:
        A("v_xor_b32 v%d, 0x80, v%d" % (wdma + 1, wdma))
        A("v_lshlrev_b32 v%d, 4, v%d" % (vx, lane))
        A("v_lshrrev_b32 v%d, 2, v%d" % (t3, lane))
        A("v_and_b32 v%d, 7, v%d" % (t2, t3))
        hoff = 4096
    A("s_lshl_b32 s%d, s%d, 1" % (st, sWave))
    A("v_xor_b32 v%d, s%d, v%d" % (t2, st, t2))
    A("v_lshlrev_b32 v%d, 5, v%d" % (t2, t2))
    A("v_lshl_add_u32 v%d, v%d, 8, v%d" % (t2, t3, t2))
    A("v_and_b32 v%d, 3, v%d" % (t3, lane))
    A("v_lshl_add_u32 v%d, v%d, 3, v%d" % (wrd, t3, t2))
    if "slds" in R:
        A("v_add_u32 v%d, s%d, v%d" % (wrd, R["slds"], wrd))
    for dl in range(1, 8):
        A("v_xor_b32 v%d, %d, v%d" % (wrd + dl, dl << 5, wrd))
    A("s_lshl_b32 s%d, s%d, 13" % (sq0, sWave))
    A("s_mul_i32 s%d, s%d, %d" % (swb, sWave, 8 * wstride))
    A("s_lshl_b32 s%d, s%d, 11" % (sm0, sWave))
    if "slds" in R:
        A("s_add_u32 s%d, s%d, s%d" % (sm0, sm0, R["slds"]))
    A("s_lshl_b32 s%d, s%d, 10" % (sw1k, sWave))

    def kidx(ks):
        A("s_add_u32 s%d, s%d, %d" % (sk, sRot, ks))
        A("s_and_b32 s%d, s%d, %d" % (sk, sk, nk - 1))

    def dma_w(ks):
        kidx(ks)
        A("s_mul_i32 s%d, s%d, %d" % (st, sk, 32 * wstride))
        A("s_add_u32 s%d, s%d, s%d" % (st, st, swb))
        for mm in range(2):
            A("s_add_u32 m0, s%d, %d" % (sm0, wslot(ks) * 8192 + mm * 1024))
            if mm:
                A("s_add_u32 s%d, s%d, %d" % (st, st, 4 * wstride))
            A("buffer_load_dwordx4 v%d, %s, s%d offen %slds" % (wdma + mm, sr(sW, 4), st, WPOL))
            vq.issue(("w", ks))

    def dma_x(c):
        kidx(2 * c)
        A("s_lshl_b32 s%d, s%d, 6" % (sx, sk))
        for i in range(5):
            A("s_add_u32 m0, s%d, %d" % (sw1k, XB + xslot(c) * 20480 + i * 4096))
            if i:
                A("s_add_u32 s%d, s%d, 32768" % (sx, sx))
            A("buffer_load_dwordx4 v%d, %s, s%d offen %slds" % (vx, sr(sX, 4), sx, XPOL))
            vq.issue(("x", c))

    def xreads(c):
        out = []
        for p in range(2):
            base = R["xr"] + ((2 * c + p) % XD) * 12
            so = xslot(c) * 20480
            out.append("ds_read_b128 %s, v%d offset:%d" % (vr(base, 4), vx + 3 + p, so))
            out.append("ds_read_b128 %s, v%d offset:%d" % (vr(base + 4, 4), vx + 3 + p, so + 2048))
            out.append("ds_read_b128 %s, v%d offset:%d" % (vr(base + 8, 4), vx + 1 + p, so + 16384))
        return out

    def xload(ks):
        base = R["xr"] + (ks % XD) * 12
        kidx(ks)
        A("s_lshr_b32 s%d, s%d, 2" % (sx, sk))
        A("s_mul_i32 s%d, s%d, 36864" % (sx, sx))
        A("s_and_b32 s%d, s%d, 3" % (st, sk))
        A("s_lshl_b32 s%d, s%d, 10" % (st, st))
        A("s_add_u32 s%d, s%d, s%d" % (sx, sx, st))
        A("s_add_u32 s%d, s%d, s%d" % (st, sx, sq0))
        A("buffer_load_dwordx4 %s, v%d, %s, s%d offen" % (vr(base, 4), vx, sr(sX, 4), st) + " " + XPOL)
        A("s_add_u32 s%d, s%d, %d" % (st, st, 4096))
        A("buffer_load_dwordx4 %s, v%d, %s, s%d offen" % (vr(base + 4, 4), vx, sr(sX, 4), st) + " " + XPOL)
        A("s_add_u32 s%d, s%d, %d" % (st, sx, 8 * 4096))
        A("buffer_load_dwordx4 %s, v%d, %s, s%d offen" % (vr(base + 8, 4), vx, sr(sX, 4), st) + " " + XPOL)
        for _ in range(3):
            vq.issue(("x", ks))

    acc, fr = R["acc"], R["fr"]

    def wreads(ks, dl):
        return ["ds_read_b64_tr_b16 %s, v%d offset:%d" % (vr(fr + (ks & 1) * 32 + dl * 4 + h * 2, 2), wrd + dl, wslot(ks) * 8192 + h * hoff)
                for h in range(2)]

    nw = [0]
    nx = [0]

    def fill(i, maxw, maxx):
        k = 0
        while nw[0] < min(nk, i + 1 + NW - (0 if i >= 0 else 0)) and nw[0] <= i + NW and k < maxw:
            if nw[0] >= NW and nw[0] - NW > i:
                break
            dma_w(nw[0])
            nw[0] += 1
            k += 1
        k = 0
        if nat:
            while nx[0] < nk // 2 and (nx[0] < 2 or 2 * (nx[0] - 2) <= i) and k < maxx:
                dma_x(nx[0])
                nx[0] += 1
                k += 1
        else:
            while nx[0] < nk and nx[0] <= i + XD - 1 and k < maxx:
                xload(nx[0])
                nx[0] += 1
                k += 1

    PW, PX = int(os.environ.get("PW", "2")), int(os.environ.get("PX", "1" if nat else "2"))
    if nat:
        dma_w(0)
        dma_x(0)
        dma_w(1)
        nw[0], nx[0] = 2, 1
    else:
        dma_w(0)
        xload(0)
        dma_w(1)
        xload(1)
        nw[0], nx[0] = 2, 2
    stamp(A, 1)
    A("s_waitcnt vmcnt(%d)" % vq.wait_for({("w", 0)} | ({("x", 0)} if nat else set())))
    A("s_barrier")
    stamp(A, 2)
    fill(-1, PW, PX)
    for dl in range(8):
        for r in wreads(0, dl):
            A(r)
    if nat:
        for r in xreads(0):
            A(r)
    for i in range(nk):
        need = set()
        if i + 1 < nk:
            need.add(("w", i + 1))
        if nat:
            if i % 2 == 1 and i + 1 < nk:
                need.add(("x", (i + 1) // 2))
        else:
            need.add(("x", i))
        n = vq.wait_for(need)
        A("s_waitcnt vmcnt(%d) lgkmcnt(0)" % n)
        A("s_barrier")
        if i == nk // 2:
            stamp(A, 3)
        fill(i, PW, PX)
        if i in hooks:
            hooks[i](A, vq)
        xr = xreads((i + 1) // 2) if (nat and i % 2 == 1 and i + 1 < nk) else []
        xb = R["xr"] + (i % XD) * 12
        for dl in range(8):
            if i + 1 < nk:
                for r in wreads(i + 1, dl):
                    A(r)
            if dl < len(xr):
                A(xr[dl])
            for t in range(3):
                if t == 2 and dl >= 2:
                    continue
                a = acc + (t * 8 + dl) * 4 if t < 2 else acc + 64 + dl * 4
                c = "0" if i == 0 else vr(a, 4)
                A("v_mfma_f32_16x16x32_bf16 %s, %s, %s, %s" % (vr(a, 4), vr(fr + (i & 1) * 32 + dl * 4, 4), vr(xb + t * 4, 4), c))
    return vq


def cross_lane(A, op, v, tmp):
    A("v_mov_b32 v%d, v%d" % (tmp, v))
    A("v_permlane32_swap_b32 v%d, v%d" % (v, tmp))
    A("%s v%d, v%d, v%d" % (op, v, v, tmp))
    A("v_mov_b32 v%d, v%d" % (tmp, v))
    A("v_permlane16_swap_b32 v%d, v%d" % (v, tmp))
    A("%s v%d, v%d, v%d" % (op, v, v, tmp))


THR = float(os.environ.get("THR", "8.0"))


def kernel_attn(A):
    K1 = "attn_kernel"
    A.raw(".globl %s\n.p2align 8\n.type %s,@function\n%s:" % (K1, K1, K1))
    A("s_cmp_ge_u32 s2, 512")
    A("s_cbranch_scc1 L1_done")
    stamp(A, 0)
    load_kernargs(A)
    sBr, sH, sB, sWv = 30, 31, 32, 33
    A("s_and_b32 s34, s2, 7")
    A("s_lshr_b32 s35, s2, 3")
    A("s_lshr_b32 s%d, s34, 2" % sBr)
    A("s_and_b32 s34, s34, 3")
    A("s_lshl_b32 s34, s34, 3")
    A("s_and_b32 s%d, s35, 7" % sH)
    A("s_add_u32 s%d, s%d, s34" % (sH, sH))
    A("s_lshr_b32 s%d, s35, 3" % sB)
    O, QF, S, LACC, ONES, F = 0, 96, 144, 180, 192, 196
    M = 232
    KA, VA = 235, 239
    VKD, VVD = 247, 248
    T0, T1, T2, T3, T4, T5 = 249, 250, 251, 252, 253, 254
    LANE = 255
    A("v_and_b32 v%d, 63, v0" % LANE)
    A("v_lshrrev_b32 v%d, 6, v0" % T0)
    A("v_readfirstlane_b32 s%d, v%d" % (sWv, T0))
    A("s_waitcnt lgkmcnt(0)")
    A("s_cmp_eq_u32 s%d, 0" % sBr)
    A("s_cselect_b64 s[4:5], s[4:5], s[14:15]")
    A("s_cselect_b64 s[6:7], s[6:7], s[16:17]")
    A("s_cselect_b64 s[8:9], s[8:9], s[18:19]")
    A("s_cselect_b64 s[10:11], s[10:11], s[20:21]")
    sK, sV, sW, sX, sO = 36, 40, 44, 48, 52
    A("s_lshl_b32 s34, s%d, 5" % sB)
    A("s_add_u32 s34, s34, s%d" % sH)
    A("s_lshl_b32 s34, s34, 17")
    make_srd(A, sK, 6, 7, "s34", "131072")
    make_srd(A, sV, 8, 9, "s34", "131072")
    A("s_lshl_b32 s34, s%d, 8" % sH)
    A("s_sub_u32 s35, %d, s34" % (512 * 8192))
    make_srd(A, sW, 10, 11, "s34", "s35")
    A("s_mul_i32 s35, s%d, 147456" % sB)
    make_srd(A, sX, 4, 5, "s35", "147456")
    A("s_mul_i32 s35, s%d, %d" % (sBr, O_BRANCH_BYTES))
    A("s_lshl_b32 s56, s%d, 5" % sB)
    A("s_add_u32 s56, s56, s%d" % sH)
    A("s_mul_i32 s56, s56, 36864")
    A("s_add_u32 s35, s35, s56")
    make_srd(A, sO, 28, 29, "s35", "36864")
    sRot, sRotK = 68, 69
    A("s_lshr_b32 s%d, s2, 3" % sRot)
    A("s_add_u32 s%d, s%d, s%d" % (sRot, sRot, sB))
    A("s_lshl_b32 s%d, s%d, 1" % (sRot, sRot))
    A("s_and_b32 s%d, s%d, 15" % (sRot, sRot))
    A("s_lshr_b32 s%d, s%d, 1" % (sRotK, sRot))
    sC, sW1k, sT, sT2, sW4k, sThr = 56, 57, 58, 59, 70, 71
    A("s_mov_b32 s%d, 0x%08x" % (sC, f32bits(SCALE_C)))
    A("s_mov_b32 s%d, 0x%08x" % (sThr, f32bits(THR)))
    A("s_lshl_b32 s%d, s%d, 10" % (sW1k, sWv))
    A("s_lshl_b32 s%d, s%d, 12" % (sW4k, sWv))

    g, lo = T0, T1
    VLIN = 92
    A("v_lshrrev_b32 v%d, 4, v%d" % (g, LANE))
    A("v_and_b32 v%d, 15, v%d" % (lo, LANE))
    A("s_lshl_b32 s%d, s%d, 2" % (sT, sWv))
    A("v_add_u32 v%d, s%d, v%d" % (T2, sT, g))
    A("v_xor_b32 v%d, v%d, v%d" % (T3, lo, T2))
    A("v_lshlrev_b32 v%d, 4, v%d" % (T3, T3))
    A("v_lshl_add_u32 v%d, v%d, 8, v%d" % (VKD, T2, T3))
    A("v_and_b32 v%d, 7, v%d" % (T3, T2))
    A("v_lshlrev_b32 v%d, 1, v%d" % (T3, T3))
    A("v_xor_b32 v%d, v%d, v%d" % (T3, lo, T3))
    A("v_lshlrev_b32 v%d, 4, v%d" % (T3, T3))
    A("v_lshl_add_u32 v%d, v%d, 8, v%d" % (VVD, T2, T3))
    A("v_lshlrev_b32 v%d, 4, v%d" % (T3, lo))
    A("v_lshl_add_u32 v%d, v%d, 8, v%d" % (VLIN, T2, T3))

    KS = lambda j: ((j + 2) % 3) * 16384
    VS = lambda j: 49152 + (j % 2) * 16384

    def blk_off(j, i):
        if i == 0:
            A("s_add_u32 s%d, s%d, %d" % (sT2, sRotK, j))
            A("s_and_b32 s%d, s%d, 7" % (sT2, sT2))
            A("s_lshl_b32 s%d, s%d, 14" % (sT2, sT2))
        else:
            A("s_add_u32 s%d, s%d, 4096" % (sT2, sT2))

    def kv_dma(vq, isv, j):
        srd, vd, base = (sV, VVD, VS(j)) if isv else (sK, VKD, KS(j))
        for i in range(4):
            A("s_add_u32 m0, s%d, %d" % (sW1k, base + i * 4096))
            blk_off(j, i)
            A("buffer_load_dwordx4 v%d, %s, s%d offen %slds" % (vd, sr(srd, 4), sT2, KVPOL))
            vq.issue(("v" if isv else "k", j))

    PRE = 208

    def pre_load(n, half):
        def fn(A, vq):
            for i in range(2 * half, 2 * half + 2):
                A("s_lshl_b32 s%d, s%d, 14" % (sT2, sRotK))
                if i:
                    A("s_add_u32 s%d, s%d, %d" % (sT2, sT2, 4096 * i))
                A("buffer_load_dwordx4 %s, v%d, %s, s%d offen %s" % (vr(PRE + n * 16 + i * 4, 4), VLIN, sr(sK if n == 0 else sV, 4), sT2, KVPOL))
                vq.issue(("pre", 0))
        return fn

    R = dict(acc=0, xr=96, fr=144, wrd=72, wdma=80, vx=82, lane=LANE, t0=T0, t1=T1, t2=T2, t3=T3,
             sq0=60, swb=62, sm0=63, st=64, sk=65, sx=66, sw1k=67)

    def h12(A, vq):
        kv_dma(vq, 0, 1)
        kv_dma(vq, 1, 1)
    hooks = {1: pre_load(0, 0), 3: pre_load(0, 1), 5: pre_load(1, 0), 7: pre_load(1, 1),
             12: h12, 14: lambda A, vq: kv_dma(vq, 0, 2)}
    vq = gemm_phase(A, 16, 8192, "nat", sW, sX, sWv, sRot, R, hooks)
    assert ("pre", 0) not in vq.q
    if "p1only" in EXP:
        A("s_waitcnt vmcnt(0)")
        A("s_branch L1_done")

    stamp(A, 4)
    SCR = 32768
    TA = 240
    A("v_lshrrev_b32 v%d, 4, v%d" % (g, LANE))
    A("v_and_b32 v%d, 15, v%d" % (lo, LANE))
    A("s_lshl_b32 s%d, s%d, 2" % (sT, sWv))
    A("v_lshrrev_b32 v%d, 1, v%d" % (T2, g))
    A("v_or_b32 v%d, s%d, v%d" % (T2, sT, T2))
    A("v_xor_b32 v%d, v%d, v%d" % (T2, T2, lo))
    A("v_lshlrev_b32 v%d, 4, v%d" % (T2, T2))
    A("v_lshl_add_u32 v%d, v%d, 8, v%d" % (T2, lo, T2))
    A("v_and_b32 v%d, 1, v%d" % (T3, g))
    A("v_lshl_add_u32 v%d, v%d, 3, v%d" % (T2, T3, T2))
    A("v_add_u32 v%d, s%d, v%d" % (T3, sW4k, T2))
    A("v_xor_b32 v%d, v%d, v%d" % (T4, g, lo))
    A("v_lshlrev_b32 v%d, 4, v%d" % (T4, T4))
    A("v_lshl_add_u32 v%d, v%d, 8, v%d" % (T4, lo, T4))
    A("v_add_u32 v%d, s%d, v%d" % (T5, sW4k, T4))
    PK = 144
    for dl in range(8):
        A("v_xor_b32 v%d, %d, v%d" % (TA + (dl & 3), dl << 5, T3))
        for t in range(2):
            a = (t * 8 + dl) * 4
            pk = PK + t * 16 + dl * 2
            A("v_cvt_pk_bf16_f32 v%d, v%d, v%d" % (pk, a, a + 1))
            A("v_cvt_pk_bf16_f32 v%d, v%d, v%d" % (pk + 1, a + 2, a + 3))
            A("ds_write_b64 v%d, %s offset:%d" % (TA + (dl & 3), vr(pk, 2), SCR + t * 16384))
    for ds in range(4):
        A("v_xor_b32 v%d, %d, v%d" % (TA + ds, ds << 6, T5))
        for t in range(2):
            A("ds_read_b128 %s, v%d offset:%d" % (vr(QF + t * 16 + ds * 4, 4), TA + ds, SCR + t * 16384))
    for dl in range(2):
        a = 64 + dl * 4
        A("v_cvt_pk_bf16_f32 v%d, v%d, v%d" % (176 + dl * 2, a, a + 1))
        A("v_cvt_pk_bf16_f32 v%d, v%d, v%d" % (176 + dl * 2 + 1, a + 2, a + 3))
        A("v_xor_b32 v%d, %d, v%d" % (T0 + dl, dl << 5, T3))
        A("ds_write_b64 v%d, %s offset:%d" % (T0 + dl, vr(176 + dl * 2, 2), SCR))
    for i in range(96):
        A("v_mov_b32 v%d, 0" % (O + i))
    A("s_waitcnt lgkmcnt(0)")
    A("s_barrier")
    for ds in range(4):
        A("v_xor_b32 v%d, %d, v%d" % (TA + ds, ds << 6, T4))
        A("ds_read_b128 %s, v%d offset:%d" % (vr(QF + 32 + ds * 4, 4), TA + ds, SCR + ds * 4096))
    for i in range(12):
        A("v_mov_b32 v%d, 0" % (LACC + i))
    for i in range(4):
        A("v_mov_b32 v%d, 0x3f803f80" % (ONES + i))
    A("s_waitcnt lgkmcnt(0)")
    A("s_barrier")
    for n in range(2):
        for i in range(4):
            A("ds_write_b128 v%d, %s offset:%d" % (VKD if n == 0 else VVD, vr(PRE + n * 16 + i * 4, 4), (KS(0) if n == 0 else VS(0)) + i * 4096))
    A("s_waitcnt lgkmcnt(0)")
    for ds in range(4):
        A("v_xor_b32 v%d, %d, v%d" % (KA + ds, ds << 6, T4))
    A("v_lshrrev_b32 v%d, 2, v%d" % (T2, LANE))
    A("v_and_b32 v%d, 7, v%d" % (T3, T2))
    A("v_lshlrev_b32 v%d, 5, v%d" % (T3, T3))
    A("v_lshl_add_u32 v%d, v%d, 8, v%d" % (T3, T2, T3))
    A("v_and_b32 v%d, 3, v%d" % (T2, LANE))
    A("v_lshl_add_u32 v%d, v%d, 3, v%d" % (T3, T2, T3))
    A("v_add_u32 v%d, 49152, v%d" % (T3, T3))
    for dt in range(8):
        A("v_xor_b32 v%d, %d, v%d" % (VA + dt, dt << 5, T3))
    for t in range(3):
        A("v_mov_b32 v%d, 0xf149f2ca" % (M + t))
    stamp(A, 5)

    NKF = 2
    for j in range(8):
        n = vq.wait_for({("k", j)})
        A("s_waitcnt vmcnt(%d)" % n)
        A("s_barrier")
        if 1 <= j < 7:
            kv_dma(vq, 1, j + 1)
        kb = KS(j)

        def kreads(l):
            buf = F + (l & 1) * 16
            for ds in range(4):
                if l < 4:
                    A("ds_read_b128 %s, v%d offset:%d" % (vr(buf + ds * 4, 4), KA + ds, kb + l * 4096))
                else:
                    A("v_add_u32 v%d, s%d, v%d" % (T0 + ds, sW4k, KA + ds))
                    A("ds_read_b128 %s, v%d offset:%d" % (vr(buf + ds * 4, 4), T0 + ds, kb))

        kreads(0)
        kreads(1)
        for l in range(5):
            A("s_waitcnt lgkmcnt(%d)" % (4 if l < 4 else 0))
            for ds in range(4):
                fa = vr(F + (l & 1) * 16 + ds * 4, 4)
                for t in ((0, 1) if l < 4 else (2,)):
                    d = S + t * 16 + l * 4 if t < 2 else S + 32
                    c = "0" if ds == 0 else vr(d, 4)
                    A("v_mfma_f32_16x16x32_bf16 %s, %s, %s, %s" % (vr(d, 4), fa, vr(QF + t * 16 + ds * 4, 4), c))
            if l + 2 < 5:
                kreads(l + 2)
        for t in range(3):
            nv = 16 if t < 2 else 4
            s0 = S + t * 16
            mx = T0 + t
            A("v_max3_f32 v%d, v%d, v%d, v%d" % (mx, s0, s0 + 1, s0 + 2))
            for i in range(3, nv - 1, 2):
                A("v_max3_f32 v%d, v%d, v%d, v%d" % (mx, mx, s0 + i, s0 + i + 1))
            A("v_max_f32 v%d, v%d, v%d" % (mx, mx, s0 + nv - 1))
        for t in range(3):
            A("v_mov_b32 v%d, v%d" % (T3 + t, T0 + t))
        for t in range(3):
            A("v_permlane32_swap_b32 v%d, v%d" % (T0 + t, T3 + t))
        for t in range(3):
            A("v_max_f32 v%d, v%d, v%d" % (T0 + t, T0 + t, T3 + t))
        for t in range(3):
            A("v_mov_b32 v%d, v%d" % (T3 + t, T0 + t))
        for t in range(3):
            A("v_permlane16_swap_b32 v%d, v%d" % (T0 + t, T3 + t))
        for t in range(3):
            A("v_max_f32 v%d, v%d, v%d" % (T0 + t, T0 + t, T3 + t))
        for t in range(3):
            A("v_fma_f32 v%d, v%d, s%d, -v%d" % (T3 + t, T0 + t, sC, M + t))
        A("v_max3_f32 v%d, v%d, v%d, v%d" % (T3, T3, T4, T5))
        A("v_cmp_lt_f32 s[72:73], s%d, v%d" % (sThr, T3))
        A("s_nop 1")
        A("s_cmp_lg_u64 s[72:73], 0")
        A("s_cbranch_scc0 L1_nr%d" % j)
        for t in range(3):
            A("v_mul_f32 v%d, s%d, v%d" % (T0 + t, sC, T0 + t))
            A("v_max_f32 v%d, v%d, v%d" % (T0 + t, T0 + t, M + t))
            A("v_sub_f32 v%d, v%d, v%d" % (T3, M + t, T0 + t))
            A("v_exp_f32 v%d, v%d" % (T3, T3))
            A("v_mov_b32 v%d, v%d" % (M + t, T0 + t))
            if j > 0:
                for i in range(32):
                    A("v_mul_f32 v%d, v%d, v%d" % (O + t * 32 + i, O + t * 32 + i, T3))
                for i in range(4):
                    A("v_mul_f32 v%d, v%d, v%d" % (LACC + t * 4 + i, LACC + t * 4 + i, T3))
        A.label("L1_nr%d" % j)
        for t in range(3):
            nv = 16 if t < 2 else 4
            s0 = S + t * 16
            for i in range(nv):
                A("v_fma_f32 v%d, v%d, s%d, -v%d" % (s0 + i, s0 + i, sC, M + t))
            for i in range(nv):
                A("v_exp_f32 v%d, v%d" % (s0 + i, s0 + i))
            for i in range(0, nv, 2):
                A("v_cvt_pk_bf16_f32 v%d, v%d, v%d" % (s0 + (i // 8) * 8 + (i % 8) // 2, s0 + i, s0 + i + 1))
        n = vq.wait_for({("v", j)})
        A("s_waitcnt vmcnt(%d)" % n)
        A("s_barrier")
        if j + 3 < 8:
            kv_dma(vq, 0, j + 3)
        vb = VS(j) - 49152
        NF = 9

        def vreads(f):
            buf = F + (f % NF) * 4
            if f < 16:
                u, dt = f // 8, f % 8
                for hh in range(2):
                    A("ds_read_b64_tr_b16 %s, v%d offset:%d" % (vr(buf + hh * 2, 2), VA + dt, vb + (2 * u + hh) * 4096))
            else:
                for hh in range(2):
                    dt = (f - 16) * 2 + hh
                    A("v_add_u32 v%d, s%d, v%d" % (T0 + hh, sW4k, VA + dt))
                    A("ds_read_b64_tr_b16 %s, v%d offset:%d" % (vr(buf + hh * 2, 2), T0 + hh, vb))

        PD = 6
        for f in range(PD):
            vreads(f)
        for t in range(2):
            for u in range(2):
                d = vr(LACC + t * 4, 4)
                A("v_mfma_f32_16x16x32_bf16 %s, %s, %s, %s" % (d, vr(ONES, 4), vr(S + t * 16 + u * 8, 4), d))
        d = vr(LACC + 8, 4)
        A("v_mfma_f32_16x16x16_bf16 %s, %s, %s, %s" % (d, vr(ONES, 2), vr(S + 32, 2), d))
        for f in range(20):
            rem = min(20, f + PD) - (f + 1)
            A("s_waitcnt lgkmcnt(%d)" % (2 * rem))
            fa = F + (f % NF) * 4
            if f < 16:
                u, dt = f // 8, f % 8
                for t in range(2):
                    d = vr(O + t * 32 + dt * 4, 4)
                    A("v_mfma_f32_16x16x32_bf16 %s, %s, %s, %s" % (d, vr(fa, 4), vr(S + t * 16 + u * 8, 4), d))
            else:
                for hh in range(2):
                    dt = (f - 16) * 2 + hh
                    d = vr(O + 64 + dt * 4, 4)
                    A("v_mfma_f32_16x16x16_bf16 %s, %s, %s, %s" % (d, vr(fa + hh * 2, 2), vr(S + 32, 2), d))
            if f + PD < 20:
                vreads(f + PD)

    stamp(A, 6)
    A("s_barrier")
    A("v_lshlrev_b32 v%d, 4, v%d" % (T2, LANE))
    A("s_lshl_b32 s%d, s%d, 13" % (sT, sWv))
    A("v_add_u32 v%d, s%d, v%d" % (T3, sT, T2))
    for dt in range(8):
        A("ds_write_b128 v%d, %s offset:%d" % (T3, vr(O + 64 + dt * 4, 4), dt * 1024))
    A("v_and_b32 v%d, 15, v%d" % (T4, LANE))
    A("v_lshlrev_b32 v%d, 3, v%d" % (T4, T4))
    A("s_lshl_b32 s%d, s%d, 7" % (sT, sWv))
    A("v_add_u32 v%d, s%d, v%d" % (T5, sT, T4))
    A("v_mov_b32 v%d, v%d" % (KA + 1, M + 2))
    A("v_mov_b32 v%d, v%d" % (KA + 2, LACC + 8))
    A("ds_write_b64 v%d, %s offset:32768" % (T5, vr(KA + 1, 2)))
    VO = T2
    A("s_lshl_b32 s%d, s%d, 13" % (sT, sWv))
    for t in range(2):
        A("v_rcp_f32 v%d, v%d" % (T1, LACC + t * 4))
        for i in range(32):
            A("v_mul_f32 v%d, v%d, v%d" % (O + t * 32 + i, O + t * 32 + i, T1))
        for ds in range(4):
            a = O + t * 32 + ds * 8
            pk = QF + t * 16 + ds * 4
            for i in range(4):
                A("v_cvt_pk_bf16_f32 v%d, v%d, v%d" % (pk + i, a + 2 * i, a + 2 * i + 1))
            A("buffer_store_dwordx4 %s, v%d, %s, s%d offen offset:%d" % (vr(pk, 4), VO, sr(sO, 4), sT, 1024 * ds))
        if t == 0:
            A("s_add_u32 s%d, s%d, 4096" % (sT, sT))
    A("s_waitcnt lgkmcnt(0)")
    A("s_barrier")
    ML = S
    OP = F
    for w2 in range(4):
        A("ds_read_b64 %s, v%d offset:%d" % (vr(ML + 2 * w2, 2), T4, 32768 + w2 * 128))
    A("s_lshl_b32 s%d, s%d, 11" % (sT, sWv))
    A("v_add_u32 v%d, s%d, v%d" % (T3, sT, T2))
    for w2 in range(4):
        for dd in range(2):
            A("ds_read_b128 %s, v%d offset:%d" % (vr(OP + (w2 * 2 + dd) * 4, 4), T3, w2 * 8192 + dd * 1024))
    A("s_waitcnt lgkmcnt(0)")
    A("v_max3_f32 v%d, v%d, v%d, v%d" % (T1, ML, ML + 2, ML + 4))
    A("v_max_f32 v%d, v%d, v%d" % (T1, T1, ML + 6))
    for w2 in range(4):
        A("v_sub_f32 v%d, v%d, v%d" % (ML + 2 * w2, ML + 2 * w2, T1))
        A("v_exp_f32 v%d, v%d" % (ML + 2 * w2, ML + 2 * w2))
    A("v_mul_f32 v%d, v%d, v%d" % (T5, ML, ML + 1))
    for w2 in range(1, 4):
        A("v_fma_f32 v%d, v%d, v%d, v%d" % (T5, ML + 2 * w2, ML + 2 * w2 + 1, T5))
    A("v_rcp_f32 v%d, v%d" % (T5, T5))
    for w2 in range(4):
        A("v_mul_f32 v%d, v%d, v%d" % (ML + 2 * w2, ML + 2 * w2, T5))
    for dd in range(2):
        for r in range(4):
            d = O + dd * 4 + r
            A("v_mul_f32 v%d, v%d, v%d" % (d, OP + dd * 4 + r, ML))
            for w2 in range(1, 4):
                A("v_fma_f32 v%d, v%d, v%d, v%d" % (d, OP + (w2 * 2 + dd) * 4 + r, ML + 2 * w2, d))
    A("s_lshl_b32 s%d, s%d, 10" % (sT, sWv))
    A("s_add_u32 s%d, s%d, %d" % (sT, sT, 8 * 4096))
    for i in range(4):
        A("v_cvt_pk_bf16_f32 v%d, v%d, v%d" % (QF + 32 + i, O + 2 * i, O + 2 * i + 1))
    A("buffer_store_dwordx4 %s, v%d, %s, s%d offen" % (vr(QF + 32, 4), VO, sr(sO, 4), sT))
    if STAMP:
        A("s_waitcnt vmcnt(0)")
    stamp(A, 7)
    dump_stamps(A, 8, 0, sWv, 240)
    A.label("L1_done")
    A("s_endpgm")


def kernel_oproj(A):
    K2 = "oproj_kernel"
    A.raw(".globl %s\n.p2align 8\n.type %s,@function\n%s:" % (K2, K2, K2))
    A("s_cmp_ge_u32 s2, 256")
    A("s_cbranch_scc1 L2_done")
    stamp(A, 0)
    load_kernargs(A)
    sBr, sKq, sB, sNb, sWv, sGr, sW8 = 30, 31, 32, 33, 34, 39, 40
    A("s_and_b32 s35, s2, 7")
    A("s_lshr_b32 s%d, s35, 2" % sBr)
    A("s_and_b32 s%d, s35, 3" % sKq)
    A("s_lshr_b32 s35, s2, 3")
    A("s_lshr_b32 s%d, s35, 2" % sB)
    A("s_and_b32 s%d, s35, 3" % sNb)
    LANE, T0, T1, T2, T3 = 254, 238, 239, 240, 241
    A("v_and_b32 v%d, 63, v0" % LANE)
    A("v_lshrrev_b32 v%d, 6, v0" % T0)
    A("v_readfirstlane_b32 s%d, v%d" % (sW8, T0))
    A("s_and_b32 s%d, s%d, 3" % (sWv, sW8))
    A("s_lshr_b32 s%d, s%d, 2" % (sGr, sW8))
    A("s_waitcnt lgkmcnt(0)")
    stamp(A, 6)
    A("s_cmp_eq_u32 s%d, 0" % sBr)
    A("s_cselect_b64 s[12:13], s[12:13], s[22:23]")
    sW, sX, sP, sO = 44, 48, 52, 56
    A("s_lshl_b32 s35, s%d, 1" % sKq)
    A("s_add_u32 s38, s35, s%d" % sGr)
    A("s_lshl_b32 s35, s38, 19")
    A("s_lshl_b32 s36, s%d, 8" % sNb)
    A("s_add_u32 s35, s35, s36")
    A("s_sub_u32 s37, %d, s36" % (512 * 1024))
    make_srd(A, sW, 12, 13, "s35", "s37")
    A("s_mul_i32 s35, s%d, %d" % (sBr, O_BRANCH_BYTES))
    A("s_lshl_b32 s36, s%d, 3" % sB)
    A("s_add_u32 s36, s36, s38")
    A("s_mul_i32 s36, s36, %d" % (4 * 36864))
    A("s_add_u32 s35, s35, s36")
    make_srd(A, sX, 28, 29, "s35", "%d" % (4 * 36864))
    sRot = 68
    A("s_lshl_b32 s%d, s%d, 1" % (sRot, sNb))
    A("s_add_u32 s%d, s%d, s%d" % (sRot, sRot, sB))
    A("s_lshl_b32 s%d, s%d, 1" % (sRot, sRot))
    if "norot2" in EXP:
        A("s_mov_b32 s%d, 0" % sRot)
    sTile = 41
    A("s_lshl_b32 s%d, s%d, 5" % (sTile, sBr))
    A("s_lshl_b32 s35, s%d, 2" % sB)
    A("s_add_u32 s%d, s%d, s35" % (sTile, sTile))
    A("s_add_u32 s%d, s%d, s%d" % (sTile, sTile, sNb))
    A("s_mul_i32 s35, s%d, %d" % (sTile, 4 * 73728))
    A("s_mul_i32 s36, s%d, 9216" % sW8)
    A("s_add_u32 s35, s35, s36")
    A("s_add_u32 s35, s35, %d" % P_BASE)
    make_srd(A, sP, 28, 29, "s35", "%d" % (3 * 73728 + 9216))
    A("s_mul_i32 s35, s%d, %d" % (sB, 144 * 2048))
    A("s_lshl_b32 s36, s%d, 10" % sBr)
    A("s_lshl_b32 s37, s%d, 8" % sNb)
    A("s_add_u32 s36, s36, s37")
    A("s_add_u32 s35, s35, s36")
    A("s_sub_u32 s37, %d, s36" % (144 * 2048))
    make_srd(A, sO, 24, 25, "s35", "s37")
    A("s_lshl_b32 s69, s%d, 16" % sGr)
    R = dict(acc=0, xr=88, fr=172, wrd=72, wdma=80, vx=82, lane=LANE, t0=T0, t1=T1, t2=T2, t3=T3,
             sq0=60, swb=62, sm0=63, st=64, sk=65, sx=66, sw1k=67, slds=69)
    gemm_phase(A, 16, 1024, "perm", sW, sX, sWv, sRot, R, {})
    stamp(A, 4)
    A("s_barrier")
    A("v_lshlrev_b32 v%d, 4, v%d" % (T0, LANE))
    A("s_mul_i32 s35, s%d, 9216" % sW8)
    A("v_add_u32 v%d, s35, v%d" % (T1, T0))
    A("s_xor_b32 s36, s%d, 4" % sW8)
    A("s_mul_i32 s36, s36, 9216")
    A("v_add_u32 v%d, s36, v%d" % (T2, T0))
    X = 96
    A("s_cmp_eq_u32 s%d, 0" % sGr)
    A("s_cbranch_scc0 L2_grB")
    for grp in range(2):
        keep = range(0, 9) if grp == 0 else range(9, 18)
        give = range(9, 18) if grp == 0 else range(0, 9)
        for i, f in enumerate(give):
            A("ds_write_b128 v%d, %s offset:%d" % (T1, vr(f * 4, 4), i * 1024))
        A("s_waitcnt lgkmcnt(0)")
        A("s_barrier")
        for i in range(9):
            A("ds_read_b128 %s, v%d offset:%d" % (vr(X + i * 4, 4), T2, i * 1024))
        A("s_waitcnt lgkmcnt(0)")
        for i, f in enumerate(keep):
            for r in range(4):
                A("v_add_f32 v%d, v%d, v%d" % (X + i * 4 + r, X + i * 4 + r, f * 4 + r))
        if grp == 0:
            A.flush()
            A("s_branch L2_join")
            A.label("L2_grB")
    A.label("L2_join")
    A("s_mul_i32 s35, s%d, 73728" % sKq)
    for i in range(9):
        if i % 4 == 0 and i:
            A("s_add_u32 s35, s35, 4096")
        A("buffer_store_dwordx4 %s, v%d, %s, s35 offen offset:%d %s" % (vr(X + i * 4, 4), T0, sr(sP, 4), (i % 4) * 1024, PPOL))
    if STAMP:
        A("s_waitcnt vmcnt(0)")
        stamp(A, 7)
        A("s_lshr_b32 s98, s%d, 1" % sW8)
        dump_stamps(A, 8, 1, 98, 240)
    A.label("L2_done")
    A("s_endpgm")


def kernel_reduce(A):
    K3 = "reduce_kernel"
    A.raw(".globl %s\n.p2align 8\n.type %s,@function\n%s:" % (K3, K3, K3))
    A("s_cmp_ge_u32 s2, 1152")
    A("s_cbranch_scc1 L3_done")
    A("s_load_dwordx2 s[24:25], s[0:1], 80")
    A("s_load_dwordx2 s[28:29], s[0:1], 96")
    A("v_lshrrev_b32 v1, 6, v0")
    A("v_and_b32 v2, 63, v0")
    A("v_readfirstlane_b32 s30, v1")
    A("s_lshl_b32 s31, s2, 2")
    A("s_add_u32 s30, s30, s31")
    A("s_mul_hi_u32 s31, s30, %d" % ((1 << 32) // 72 + 1))
    A("s_mul_i32 s32, s31, 72")
    A("s_sub_u32 s32, s30, s32")
    A("s_mul_hi_u32 s33, s32, %d" % ((1 << 32) // 9 + 1))
    A("s_mul_i32 s34, s33, 9")
    A("s_sub_u32 s34, s32, s34")
    A("s_mul_i32 s35, s31, %d" % (4 * 73728))
    A("s_lshl_b32 s36, s32, 10")
    A("s_add_u32 s35, s35, s36")
    A("s_add_u32 s35, s35, %d" % P_BASE)
    A("s_waitcnt lgkmcnt(0)")
    make_srd(A, 40, 28, 29, "s35", "%d" % (3 * 73728 + 1024))
    A("v_lshlrev_b32 v3, 4, v2")
    for kq in range(4):
        A("s_mov_b32 s%d, %d" % (48 + kq, kq * 73728))
        A("buffer_load_dwordx4 %s, v3, s[40:43], s%d offen" % (vr(4 + kq * 4, 4), 48 + kq))
    A("s_lshr_b32 s36, s33, 2")
    A("s_mul_i32 s36, s36, 9")
    A("s_add_u32 s36, s36, s34")
    A("s_and_b32 s37, s33, 3")
    A("s_lshl_b32 s37, s37, 1")
    A("s_lshr_b32 s38, s36, 3")
    A("s_add_u32 s39, s37, s38")
    A("s_cmp_ge_u32 s36, 16")
    A("s_cselect_b32 s39, 8, s39")
    A("s_and_b32 s36, s36, 7")
    A("s_xor_b32 s36, s36, s37")
    A("s_lshr_b32 s52, s31, 5")
    A("s_lshr_b32 s53, s31, 2")
    A("s_and_b32 s53, s53, 7")
    A("s_and_b32 s54, s31, 3")
    A("s_mul_i32 s53, s53, 144")
    A("s_lshl_b32 s39, s39, 4")
    A("s_add_u32 s53, s53, s39")
    A("s_lshl_b32 s53, s53, 11")
    A("s_lshl_b32 s52, s52, 10")
    A("s_lshl_b32 s54, s54, 8")
    A("s_lshl_b32 s36, s36, 5")
    A("s_add_u32 s53, s53, s52")
    A("s_add_u32 s53, s53, s54")
    A("s_add_u32 s53, s53, s36")
    A("s_mov_b32 s55, 0")
    make_srd(A, 44, 24, 25, "s55", "%d" % (8 * 144 * 1024 * 2))
    A("v_and_b32 v1, 15, v2")
    A("v_lshlrev_b32 v1, 11, v1")
    A("v_lshrrev_b32 v2, 4, v2")
    A("v_lshl_add_u32 v1, v2, 3, v1")
    A("s_waitcnt vmcnt(0)")
    for i in range(4):
        A("v_add_f32 v%d, v%d, v%d" % (4 + i, 4 + i, 8 + i))
        A("v_add_f32 v%d, v%d, v%d" % (12 + i, 12 + i, 16 + i))
    for i in range(4):
        A("v_add_f32 v%d, v%d, v%d" % (4 + i, 4 + i, 12 + i))
    A("v_cvt_pk_bf16_f32 v20, v4, v5")
    A("v_cvt_pk_bf16_f32 v21, v6, v7")
    A("buffer_store_dwordx2 v[20:21], v1, s[44:47], s53 offen")
    A.label("L3_done")
    A("s_endpgm")


def kd(name, vgpr, sgpr=102):
    return """.amdhsa_kernel %s
  .amdhsa_next_free_vgpr %d
  .amdhsa_next_free_sgpr %d
  .amdhsa_accum_offset %d
  .amdhsa_group_segment_fixed_size 0
  .amdhsa_kernarg_size 104
  .amdhsa_user_sgpr_count 2
  .amdhsa_user_sgpr_kernarg_segment_ptr 1
  .amdhsa_system_sgpr_workgroup_id_x 1
.end_amdhsa_kernel
""" % (name, vgpr, sgpr, (vgpr + 3) // 4 * 4)


def main():
    A = Asm()
    hdr = open(os.path.join(os.path.dirname(os.path.abspath(__file__)), "..", "cdna_kernels", NAME + ".s.ref")).read().split("\n")
    head = [l for l in hdr if l.startswith(";") and "@launch" not in l and "Override launch" not in l and "grid=ceil" not in l]
    out = "\n".join(head) + "\n"
    out += "; @launch kernel=attn_kernel grid=(512,1,1) block=(256,1,1) lds=81920\n"
    out += "; @launch kernel=oproj_kernel grid=(256,1,1) block=(512,1,1) lds=131072\n"
    out += "; @launch kernel=reduce_kernel grid=(1152,1,1) block=(256,1,1) lds=0\n"
    if "twice" in EXP:
        out += "; @launch kernel=oproj_kernel grid=(256,1,1) block=(512,1,1) lds=131072\n"
    out += '.amdgcn_target "amdgcn-amd-amdhsa--gfx950"\n.text\n'
    kernel_attn(A)
    kernel_oproj(A)
    kernel_reduce(A)
    out += A.text()
    out += '.section .rodata,"a"\n.p2align 6\n'
    out += kd("attn_kernel", 256, 100 if STAMP else 76)
    out += ".p2align 6\n" + kd("oproj_kernel", 256, 100 if STAMP else 74)
    out += ".p2align 6\n" + kd("reduce_kernel", 24, 60)
    dst = sys.argv[1] if len(sys.argv) > 1 else os.path.join(os.path.dirname(os.path.abspath(__file__)), "..", "cdna_kernels", NAME + ".s")
    open(dst, "w").write(out)
    print("wrote", dst, A.ninst, "instructions")


if __name__ == "__main__":
    main()
```

```python
import sys, os, struct
sys.path.insert(0, os.path.dirname(os.path.abspath(__file__)))
from asmlib import Asm, VmQ

NAME = "concat_heads__mha_block_cached__mha_block_cached__near_ridge"
O_BRANCH_BYTES = 1152 * 4096 * 2
P_BASE = 2 * O_BRANCH_BYTES
SCALE_C = 1.4426950408889634 / (128.0 ** 0.5)
EXP = os.environ.get("EXP", "")
KVPOL = os.environ.get("KVPOL", "nt ")
WPOL = os.environ.get("WPOL", "")
PPOL = os.environ.get("PPOL", "")
PLPOL = os.environ.get("PLPOL", "sc1")
XPOL = os.environ.get("XPOL", "")


def f32bits(x):
    return struct.unpack("<I", struct.pack("<f", x))[0]


def vr(base, n):
    return "v[%d:%d]" % (base, base + n - 1)


def sr(base, n):
    return "s[%d:%d]" % (base, base + n - 1)


def load_kernargs(A):
    A("s_load_dwordx16 s[4:19], s[0:1], 0")
    A("s_load_dwordx8 s[20:27], s[0:1], 64")
    A("s_load_dwordx2 s[28:29], s[0:1], 96")


def make_srd(A, d, lo, hi, off_s, nrec):
    A("s_add_u32 s%d, s%d, %s" % (d, lo, off_s))
    A("s_addc_u32 s%d, s%d, 0" % (d + 1, hi))
    A("s_and_b32 s%d, s%d, 0xffff" % (d + 1, d + 1))
    A("s_mov_b32 s%d, %s" % (d + 2, nrec))
    A("s_mov_b32 s%d, 0x00020000" % (d + 3))


STAMP = "stamp" in EXP


def stamp(A, i):
    if STAMP:
        A("s_memtime s[%d:%d]" % (80 + 2 * i, 81 + 2 * i))


def dump_stamps(A, n, kidx, sWv, vt):
    if not STAMP:
        return
    A("s_waitcnt lgkmcnt(0)")
    A("s_lshl_b32 s96, s2, 8")
    A("s_lshl_b32 s97, s%d, 6" % sWv)
    A("s_add_u32 s96, s96, s97")
    A("s_add_u32 s96, s96, %d" % (200 * 1024 * 1024 + kidx * 1024 * 1024))
    A("s_add_u32 s76, s28, s96")
    A("s_addc_u32 s77, s29, 0")
    A("s_and_b32 s77, s77, 0xffff")
    A("s_mov_b32 s78, 64")
    A("s_mov_b32 s79, 0x00020000")
    A("v_mov_b32 v%d, 0" % vt)
    for i in range(n):
        A("v_mov_b32 v%d, s%d" % (vt + 1, 80 + 2 * i))
        A("buffer_store_dword v%d, v%d, s[76:79], 0 offen offset:%d" % (vt + 1, vt, 4 * i))
    A("s_waitcnt vmcnt(0)")


def gemm_phase(A, nk, wstride, mode, sW, sX, sWave, sRot, R, hooks):
    vq = VmQ()
    lane, t0, t1, t2, t3 = R["lane"], R["t0"], R["t1"], R["t2"], R["t3"]
    wdma, vx, wrd = R["wdma"], R["vx"], R["wrd"]
    sq0, swb, sm0, st, sk, sx, sw1k = R["sq0"], R["swb"], R["sm0"], R["st"], R["sk"], R["sx"], R["sw1k"]
    nat = mode == "nat"
    NW = 5 if nat else 8
    XD = 4 if nat else 7
    XB = 40960
    wslot = (lambda c: (c + 4) % 5) if nat else (lambda c: c % 8)
    xslot = lambda c: (c + 1) & 1
    A("v_lshrrev_b32 v%d, 4, v%d" % (t0, lane))
    A("v_and_b32 v%d, 15, v%d" % (t1, lane))
    if nat:
        A("s_and_b32 s%d, s%d, 1" % (st, sWave))
        A("s_lshl_b32 s%d, s%d, 2" % (st, st))
        A("v_or_b32 v%d, s%d, v%d" % (t2, st, t0))
    else:
        A("v_mov_b32 v%d, v%d" % (t2, t0))
    A("v_lshrrev_b32 v%d, 1, v%d" % (t3, t1))
    A("v_xor_b32 v%d, v%d, v%d" % (t2, t2, t3))
    A("v_lshlrev_b32 v%d, 5, v%d" % (t2, t2))
    A("v_and_b32 v%d, 1, v%d" % (t3, lane))
    A("v_lshl_add_u32 v%d, v%d, 4, v%d" % (t2, t3, t2))
    A("v_mul_u32_u24 v%d, %d, v%d" % (t3, wstride, t0))
    A("v_add_u32 v%d, v%d, v%d" % (wdma, t2, t3))
    if nat:
        A("v_mov_b32 v%d, v%d" % (wdma + 1, wdma))
        A("s_lshl_b32 s%d, s%d, 2" % (st, sWave))
        A("v_add_u32 v%d, s%d, v%d" % (t2, st, t0))
        A("v_xor_b32 v%d, v%d, v%d" % (t2, t2, lane))
        A("v_and_b32 v%d, 7, v%d" % (t2, t2))
        A("v_lshlrev_b32 v%d, 4, v%d" % (t2, t2))
        A("v_lshrrev_b32 v%d, 3, v%d" % (t3, lane))
        A("s_lshl_b32 s%d, s%d, 3" % (st, sWave))
        A("v_add_u32 v%d, s%d, v%d" % (t3, st, t3))
        A("v_lshl_add_u32 v%d, v%d, 10, v%d" % (vx, t3, t2))
        A("v_lshrrev_b32 v%d, 1, v%d" % (t2, t1))
        A("v_xor_b32 v%d, v%d, v%d" % (t2, t2, t0))
        A("v_lshlrev_b32 v%d, 4, v%d" % (t2, t2))
        A("v_lshl_add_u32 v%d, v%d, 7, v%d" % (t2, t1, t2))
        A("v_add_u32 v%d, %d, v%d" % (vx + 1, XB, t2))
        A("v_xor_b32 v%d, 64, v%d" % (vx + 2, vx + 1))
        A("s_lshl_b32 s%d, s%d, 12" % (st, sWave))
        A("v_add_u32 v%d, s%d, v%d" % (vx + 3, st, vx + 1))
        A("v_add_u32 v%d, s%d, v%d" % (vx + 4, st, vx + 2))
        A("v_bfe_u32 v%d, v%d, 2, 2" % (t1, lane))
        A("v_and_b32 v%d, 1, v%d" % (t2, t0))
        A("v_lshl_add_u32 v%d, v%d, 2, v%d" % (t2, t2, t1))
        A("v_lshl_add_u32 v%d, v%d, 3, v%d" % (t3, t0, t1))
        hoff = 1024
    else:
        A("v_xor_b32 v%d, 0x80, v%d" % (wdma + 1, wdma))
        A("v_lshlrev_b32 v%d, 4, v%d" % (vx, lane))
        A("v_lshrrev_b32 v%d, 2, v%d" % (t3, lane))
        A("v_and_b32 v%d, 7, v%d" % (t2, t3))
        hoff = 4096
    A("s_lshl_b32 s%d, s%d, 1" % (st, sWave))
    A("v_xor_b32 v%d, s%d, v%d" % (t2, st, t2))
    A("v_lshlrev_b32 v%d, 5, v%d" % (t2, t2))
    A("v_lshl_add_u32 v%d, v%d, 8, v%d" % (t2, t3, t2))
    A("v_and_b32 v%d, 3, v%d" % (t3, lane))
    A("v_lshl_add_u32 v%d, v%d, 3, v%d" % (wrd, t3, t2))
    if "slds" in R:
        A("v_add_u32 v%d, s%d, v%d" % (wrd, R["slds"], wrd))
    for dl in range(1, 8):
        A("v_xor_b32 v%d, %d, v%d" % (wrd + dl, dl << 5, wrd))
    A("s_lshl_b32 s%d, s%d, 13" % (sq0, sWave))
    A("s_mul_i32 s%d, s%d, %d" % (swb, sWave, 8 * wstride))
    A("s_lshl_b32 s%d, s%d, 11" % (sm0, sWave))
    if "slds" in R:
        A("s_add_u32 s%d, s%d, s%d" % (sm0, sm0, R["slds"]))
    A("s_lshl_b32 s%d, s%d, 10" % (sw1k, sWave))

    def kidx(ks):
        A("s_add_u32 s%d, s%d, %d" % (sk, sRot, ks))
        A("s_and_b32 s%d, s%d, %d" % (sk, sk, nk - 1))

    def dma_w(ks):
        kidx(ks)
        A("s_mul_i32 s%d, s%d, %d" % (st, sk, 32 * wstride))
        A("s_add_u32 s%d, s%d, s%d" % (st, st, swb))
        for mm in range(2):
            A("s_add_u32 m0, s%d, %d" % (sm0, wslot(ks) * 8192 + mm * 1024))
            if mm:
                A("s_add_u32 s%d, s%d, %d" % (st, st, 4 * wstride))
            A("buffer_load_dwordx4 v%d, %s, s%d offen %slds" % (wdma + mm, sr(sW, 4), st, WPOL))
            vq.issue(("w", ks))

    def dma_x(c):
        kidx(2 * c)
        A("s_lshl_b32 s%d, s%d, 6" % (sx, sk))
        for i in range(5):
            A("s_add_u32 m0, s%d, %d" % (sw1k, XB + xslot(c) * 20480 + i * 4096))
            if i:
                A("s_add_u32 s%d, s%d, 32768" % (sx, sx))
            A("buffer_load_dwordx4 v%d, %s, s%d offen %slds" % (vx, sr(sX, 4), sx, XPOL))
            vq.issue(("x", c))

    def xreads(c):
        out = []
        for p in range(2):
            base = R["xr"] + ((2 * c + p) % XD) * 12
            so = xslot(c) * 20480
            out.append("ds_read_b128 %s, v%d offset:%d" % (vr(base, 4), vx + 3 + p, so))
            out.append("ds_read_b128 %s, v%d offset:%d" % (vr(base + 4, 4), vx + 3 + p, so + 2048))
            out.append("ds_read_b128 %s, v%d offset:%d" % (vr(base + 8, 4), vx + 1 + p, so + 16384))
        return out

    def xload(ks):
        base = R["xr"] + (ks % XD) * 12
        kidx(ks)
        A("s_lshr_b32 s%d, s%d, 2" % (sx, sk))
        A("s_mul_i32 s%d, s%d, 36864" % (sx, sx))
        A("s_and_b32 s%d, s%d, 3" % (st, sk))
        A("s_lshl_b32 s%d, s%d, 10" % (st, st))
        A("s_add_u32 s%d, s%d, s%d" % (sx, sx, st))
        A("s_add_u32 s%d, s%d, s%d" % (st, sx, sq0))
        A("buffer_load_dwordx4 %s, v%d, %s, s%d offen" % (vr(base, 4), vx, sr(sX, 4), st) + " " + XPOL)
        A("s_add_u32 s%d, s%d, %d" % (st, st, 4096))
        A("buffer_load_dwordx4 %s, v%d, %s, s%d offen" % (vr(base + 4, 4), vx, sr(sX, 4), st) + " " + XPOL)
        A("s_add_u32 s%d, s%d, %d" % (st, sx, 8 * 4096))
        A("buffer_load_dwordx4 %s, v%d, %s, s%d offen" % (vr(base + 8, 4), vx, sr(sX, 4), st) + " " + XPOL)
        for _ in range(3):
            vq.issue(("x", ks))

    acc, fr = R["acc"], R["fr"]

    def wreads(ks, dl):
        return ["ds_read_b64_tr_b16 %s, v%d offset:%d" % (vr(fr + (ks & 1) * 32 + dl * 4 + h * 2, 2), wrd + dl, wslot(ks) * 8192 + h * hoff)
                for h in range(2)]

    nw = [0]
    nx = [0]

    def fill(i, maxw, maxx):
        k = 0
        while nw[0] < min(nk, i + 1 + NW - (0 if i >= 0 else 0)) and nw[0] <= i + NW and k < maxw:
            if nw[0] >= NW and nw[0] - NW > i:
                break
            dma_w(nw[0])
            nw[0] += 1
            k += 1
        k = 0
        if nat:
            while nx[0] < nk // 2 and (nx[0] < 2 or 2 * (nx[0] - 2) <= i) and k < maxx:
                dma_x(nx[0])
                nx[0] += 1
                k += 1
        else:
            while nx[0] < nk and nx[0] <= i + XD - 1 and k < maxx:
                xload(nx[0])
                nx[0] += 1
                k += 1

    PW, PX = int(os.environ.get("PW", "2")), int(os.environ.get("PX", "1" if nat else "2"))
    if nat:
        dma_w(0)
        dma_x(0)
        dma_w(1)
        nw[0], nx[0] = 2, 1
    else:
        dma_w(0)
        xload(0)
        dma_w(1)
        xload(1)
        nw[0], nx[0] = 2, 2
    stamp(A, 1)
    A("s_waitcnt vmcnt(%d)" % vq.wait_for({("w", 0)} | ({("x", 0)} if nat else set())))
    A("s_barrier")
    stamp(A, 2)
    fill(-1, PW, PX)
    for dl in range(8):
        for r in wreads(0, dl):
            A(r)
    if nat:
        for r in xreads(0):
            A(r)
    for i in range(nk):
        need = set()
        if i + 1 < nk:
            need.add(("w", i + 1))
        if nat:
            if i % 2 == 1 and i + 1 < nk:
                need.add(("x", (i + 1) // 2))
        else:
            need.add(("x", i))
        n = vq.wait_for(need)
        A("s_waitcnt vmcnt(%d) lgkmcnt(0)" % n)
        A("s_barrier")
        if i == nk // 2:
            stamp(A, 3)
        fill(i, PW, PX)
        if i in hooks:
            hooks[i](A, vq)
        xr = xreads((i + 1) // 2) if (nat and i % 2 == 1 and i + 1 < nk) else []
        xb = R["xr"] + (i % XD) * 12
        for dl in range(8):
            if i + 1 < nk:
                for r in wreads(i + 1, dl):
                    A(r)
            if dl < len(xr):
                A(xr[dl])
            for t in range(3):
                if t == 2 and dl >= 2:
                    continue
                a = acc + (t * 8 + dl) * 4 if t < 2 else acc + 64 + dl * 4
                c = "0" if i == 0 else vr(a, 4)
                A("v_mfma_f32_16x16x32_bf16 %s, %s, %s, %s" % (vr(a, 4), vr(fr + (i & 1) * 32 + dl * 4, 4), vr(xb + t * 4, 4), c))
    return vq


def cross_lane(A, op, v, tmp):
    A("v_mov_b32 v%d, v%d" % (tmp, v))
    A("v_permlane32_swap_b32 v%d, v%d" % (v, tmp))
    A("%s v%d, v%d, v%d" % (op, v, v, tmp))
    A("v_mov_b32 v%d, v%d" % (tmp, v))
    A("v_permlane16_swap_b32 v%d, v%d" % (v, tmp))
    A("%s v%d, v%d, v%d" % (op, v, v, tmp))


THR = float(os.environ.get("THR", "8.0"))


def kernel_attn(A):
    K1 = "attn_kernel"
    A.raw(".globl %s\n.p2align 8\n.type %s,@function\n%s:" % (K1, K1, K1))
    A("s_cmp_ge_u32 s2, 512")
    A("s_cbranch_scc1 L1_done")
    stamp(A, 0)
    load_kernargs(A)
    sBr, sH, sB, sWv = 30, 31, 32, 33
    A("s_and_b32 s34, s2, 7")
    A("s_lshr_b32 s35, s2, 3")
    A("s_lshr_b32 s%d, s34, 2" % sBr)
    A("s_and_b32 s34, s34, 3")
    A("s_lshl_b32 s34, s34, 3")
    A("s_and_b32 s%d, s35, 7" % sH)
    A("s_add_u32 s%d, s%d, s34" % (sH, sH))
    A("s_lshr_b32 s%d, s35, 3" % sB)
    O, QF, S, LACC, ONES, F = 0, 96, 144, 180, 192, 196
    M = 232
    KA, VA = 235, 239
    VKD, VVD = 247, 248
    T0, T1, T2, T3, T4, T5 = 249, 250, 251, 252, 253, 254
    LANE = 255
    A("v_and_b32 v%d, 63, v0" % LANE)
    A("v_lshrrev_b32 v%d, 6, v0" % T0)
    A("v_readfirstlane_b32 s%d, v%d" % (sWv, T0))
    A("s_waitcnt lgkmcnt(0)")
    A("s_cmp_eq_u32 s%d, 0" % sBr)
    A("s_cselect_b64 s[4:5], s[4:5], s[14:15]")
    A("s_cselect_b64 s[6:7], s[6:7], s[16:17]")
    A("s_cselect_b64 s[8:9], s[8:9], s[18:19]")
    A("s_cselect_b64 s[10:11], s[10:11], s[20:21]")
    sK, sV, sW, sX, sO = 36, 40, 44, 48, 52
    A("s_lshl_b32 s34, s%d, 5" % sB)
    A("s_add_u32 s34, s34, s%d" % sH)
    A("s_lshl_b32 s34, s34, 17")
    make_srd(A, sK, 6, 7, "s34", "131072")
    make_srd(A, sV, 8, 9, "s34", "131072")
    A("s_lshl_b32 s34, s%d, 8" % sH)
    A("s_sub_u32 s35, %d, s34" % (512 * 8192))
    make_srd(A, sW, 10, 11, "s34", "s35")
    A("s_mul_i32 s35, s%d, 147456" % sB)
    make_srd(A, sX, 4, 5, "s35", "147456")
    A("s_mul_i32 s35, s%d, %d" % (sBr, O_BRANCH_BYTES))
    A("s_lshl_b32 s56, s%d, 5" % sB)
    A("s_add_u32 s56, s56, s%d" % sH)
    A("s_mul_i32 s56, s56, 36864")
    A("s_add_u32 s35, s35, s56")
    make_srd(A, sO, 28, 29, "s35", "36864")
    sRot, sRotK = 68, 69
    A("s_lshr_b32 s%d, s2, 3" % sRot)
    A("s_add_u32 s%d, s%d, s%d" % (sRot, sRot, sB))
    A("s_lshl_b32 s%d, s%d, 1" % (sRot, sRot))
    A("s_and_b32 s%d, s%d, 15" % (sRot, sRot))
    A("s_lshr_b32 s%d, s%d, 1" % (sRotK, sRot))
    sC, sW1k, sT, sT2, sW4k, sThr = 56, 57, 58, 59, 70, 71
    A("s_mov_b32 s%d, 0x%08x" % (sC, f32bits(SCALE_C)))
    A("s_mov_b32 s%d, 0x%08x" % (sThr, f32bits(THR)))
    A("s_lshl_b32 s%d, s%d, 10" % (sW1k, sWv))
    A("s_lshl_b32 s%d, s%d, 12" % (sW4k, sWv))

    g, lo = T0, T1
    VLIN = 92
    A("v_lshrrev_b32 v%d, 4, v%d" % (g, LANE))
    A("v_and_b32 v%d, 15, v%d" % (lo, LANE))
    A("s_lshl_b32 s%d, s%d, 2" % (sT, sWv))
    A("v_add_u32 v%d, s%d, v%d" % (T2, sT, g))
    A("v_xor_b32 v%d, v%d, v%d" % (T3, lo, T2))
    A("v_lshlrev_b32 v%d, 4, v%d" % (T3, T3))
    A("v_lshl_add_u32 v%d, v%d, 8, v%d" % (VKD, T2, T3))
    A("v_and_b32 v%d, 7, v%d" % (T3, T2))
    A("v_lshlrev_b32 v%d, 1, v%d" % (T3, T3))
    A("v_xor_b32 v%d, v%d, v%d" % (T3, lo, T3))
    A("v_lshlrev_b32 v%d, 4, v%d" % (T3, T3))
    A("v_lshl_add_u32 v%d, v%d, 8, v%d" % (VVD, T2, T3))
    A("v_lshlrev_b32 v%d, 4, v%d" % (T3, lo))
    A("v_lshl_add_u32 v%d, v%d, 8, v%d" % (VLIN, T2, T3))

    KS = lambda j: ((j + 2) % 3) * 16384
    VS = lambda j: 49152 + (j % 2) * 16384

    def blk_off(j, i):
        if i == 0:
            A("s_add_u32 s%d, s%d, %d" % (sT2, sRotK, j))
            A("s_and_b32 s%d, s%d, 7" % (sT2, sT2))
            A("s_lshl_b32 s%d, s%d, 14" % (sT2, sT2))
        else:
            A("s_add_u32 s%d, s%d, 4096" % (sT2, sT2))

    def kv_dma(vq, isv, j):
        srd, vd, base = (sV, VVD, VS(j)) if isv else (sK, VKD, KS(j))
        for i in range(4):
            A("s_add_u32 m0, s%d, %d" % (sW1k, base + i * 4096))
            blk_off(j, i)
            A("buffer_load_dwordx4 v%d, %s, s%d offen %slds" % (vd, sr(srd, 4), sT2, KVPOL))
            vq.issue(("v" if isv else "k", j))

    PRE = 208

    def pre_load(n, half):
        def fn(A, vq):
            for i in range(2 * half, 2 * half + 2):
                A("s_lshl_b32 s%d, s%d, 14" % (sT2, sRotK))
                if i:
                    A("s_add_u32 s%d, s%d, %d" % (sT2, sT2, 4096 * i))
                A("buffer_load_dwordx4 %s, v%d, %s, s%d offen %s" % (vr(PRE + n * 16 + i * 4, 4), VLIN, sr(sK if n == 0 else sV, 4), sT2, KVPOL))
                vq.issue(("pre", 0))
        return fn

    R = dict(acc=0, xr=96, fr=144, wrd=72, wdma=80, vx=82, lane=LANE, t0=T0, t1=T1, t2=T2, t3=T3,
             sq0=60, swb=62, sm0=63, st=64, sk=65, sx=66, sw1k=67)

    def h12(A, vq):
        kv_dma(vq, 0, 1)
        kv_dma(vq, 1, 1)
    hooks = {1: pre_load(0, 0), 3: pre_load(0, 1), 5: pre_load(1, 0), 7: pre_load(1, 1),
             12: h12, 14: lambda A, vq: kv_dma(vq, 0, 2)}
    vq = gemm_phase(A, 16, 8192, "nat", sW, sX, sWv, sRot, R, hooks)
    assert ("pre", 0) not in vq.q
    if "p1only" in EXP:
        A("s_waitcnt vmcnt(0)")
        A("s_branch L1_done")

    stamp(A, 4)
    SCR = 32768
    TA = 240
    A("v_lshrrev_b32 v%d, 4, v%d" % (g, LANE))
    A("v_and_b32 v%d, 15, v%d" % (lo, LANE))
    A("s_lshl_b32 s%d, s%d, 2" % (sT, sWv))
    A("v_lshrrev_b32 v%d, 1, v%d" % (T2, g))
    A("v_or_b32 v%d, s%d, v%d" % (T2, sT, T2))
    A("v_xor_b32 v%d, v%d, v%d" % (T2, T2, lo))
    A("v_lshlrev_b32 v%d, 4, v%d" % (T2, T2))
    A("v_lshl_add_u32 v%d, v%d, 8, v%d" % (T2, lo, T2))
    A("v_and_b32 v%d, 1, v%d" % (T3, g))
    A("v_lshl_add_u32 v%d, v%d, 3, v%d" % (T2, T3, T2))
    A("v_add_u32 v%d, s%d, v%d" % (T3, sW4k, T2))
    A("v_xor_b32 v%d, v%d, v%d" % (T4, g, lo))
    A("v_lshlrev_b32 v%d, 4, v%d" % (T4, T4))
    A("v_lshl_add_u32 v%d, v%d, 8, v%d" % (T4, lo, T4))
    A("v_add_u32 v%d, s%d, v%d" % (T5, sW4k, T4))
    PK = 144
    for dl in range(8):
        A("v_xor_b32 v%d, %d, v%d" % (TA + (dl & 3), dl << 5, T3))
        for t in range(2):
            a = (t * 8 + dl) * 4
            pk = PK + t * 16 + dl * 2
            A("v_cvt_pk_bf16_f32 v%d, v%d, v%d" % (pk, a, a + 1))
            A("v_cvt_pk_bf16_f32 v%d, v%d, v%d" % (pk + 1, a + 2, a + 3))
            A("ds_write_b64 v%d, %s offset:%d" % (TA + (dl & 3), vr(pk, 2), SCR + t * 16384))
    for ds in range(4):
        A("v_xor_b32 v%d, %d, v%d" % (TA + ds, ds << 6, T5))
        for t in range(2):
            A("ds_read_b128 %s, v%d offset:%d" % (vr(QF + t * 16 + ds * 4, 4), TA + ds, SCR + t * 16384))
    for dl in range(2):
        a = 64 + dl * 4
        A("v_cvt_pk_bf16_f32 v%d, v%d, v%d" % (176 + dl * 2, a, a + 1))
        A("v_cvt_pk_bf16_f32 v%d, v%d, v%d" % (176 + dl * 2 + 1, a + 2, a + 3))
        A("v_xor_b32 v%d, %d, v%d" % (T0 + dl, dl << 5, T3))
        A("ds_write_b64 v%d, %s offset:%d" % (T0 + dl, vr(176 + dl * 2, 2), SCR))
    A("s_waitcnt lgkmcnt(0)")
    A("s_barrier")
    for ds in range(4):
        A("v_xor_b32 v%d, %d, v%d" % (TA + ds, ds << 6, T4))
        A("ds_read_b128 %s, v%d offset:%d" % (vr(QF + 32 + ds * 4, 4), TA + ds, SCR + ds * 4096))
    for i in range(4):
        A("v_mov_b32 v%d, 0x3f803f80" % (ONES + i))
    A("s_waitcnt lgkmcnt(0)")
    A("s_barrier")
    for n in range(2):
        for i in range(4):
            A("ds_write_b128 v%d, %s offset:%d" % (VKD if n == 0 else VVD, vr(PRE + n * 16 + i * 4, 4), (KS(0) if n == 0 else VS(0)) + i * 4096))
    A("s_waitcnt lgkmcnt(0)")
    for ds in range(4):
        A("v_xor_b32 v%d, %d, v%d" % (KA + ds, ds << 6, T4))
    A("v_lshrrev_b32 v%d, 2, v%d" % (T2, LANE))
    A("v_and_b32 v%d, 7, v%d" % (T3, T2))
    A("v_lshlrev_b32 v%d, 5, v%d" % (T3, T3))
    A("v_lshl_add_u32 v%d, v%d, 8, v%d" % (T3, T2, T3))
    A("v_and_b32 v%d, 3, v%d" % (T2, LANE))
    A("v_lshl_add_u32 v%d, v%d, 3, v%d" % (T3, T2, T3))
    A("v_add_u32 v%d, 49152, v%d" % (T3, T3))
    for dt in range(8):
        A("v_xor_b32 v%d, %d, v%d" % (VA + dt, dt << 5, T3))
    for t in range(3):
        A("v_mov_b32 v%d, 0xf149f2ca" % (M + t))
    stamp(A, 5)

    NKF = 2
    for j in range(8):
        n = vq.wait_for({("k", j)})
        A("s_waitcnt vmcnt(%d)" % n)
        A("s_barrier")
        if 1 <= j < 7:
            kv_dma(vq, 1, j + 1)
        kb = KS(j)

        def kreads(l):
            buf = F + (l & 1) * 16
            for ds in range(4):
                if l < 4:
                    A("ds_read_b128 %s, v%d offset:%d" % (vr(buf + ds * 4, 4), KA + ds, kb + l * 4096))
                else:
                    A("v_add_u32 v%d, s%d, v%d" % (T0 + ds, sW4k, KA + ds))
                    A("ds_read_b128 %s, v%d offset:%d" % (vr(buf + ds * 4, 4), T0 + ds, kb))

        kreads(0)
        kreads(1)
        for l in range(5):
            A("s_waitcnt lgkmcnt(%d)" % (4 if l < 4 else 0))
            for ds in range(4):
                fa = vr(F + (l & 1) * 16 + ds * 4, 4)
                for t in ((0, 1) if l < 4 else (2,)):
                    d = S + t * 16 + l * 4 if t < 2 else S + 32
                    c = "0" if ds == 0 else vr(d, 4)
                    A("v_mfma_f32_16x16x32_bf16 %s, %s, %s, %s" % (vr(d, 4), fa, vr(QF + t * 16 + ds * 4, 4), c))
            if l + 2 < 5:
                kreads(l + 2)
        for t in range(3):
            nv = 16 if t < 2 else 4
            s0 = S + t * 16
            mx = T0 + t
            A("v_max3_f32 v%d, v%d, v%d, v%d" % (mx, s0, s0 + 1, s0 + 2))
            for i in range(3, nv - 1, 2):
                A("v_max3_f32 v%d, v%d, v%d, v%d" % (mx, mx, s0 + i, s0 + i + 1))
            A("v_max_f32 v%d, v%d, v%d" % (mx, mx, s0 + nv - 1))
        for t in range(3):
            A("v_mov_b32 v%d, v%d" % (T3 + t, T0 + t))
        for t in range(3):
            A("v_permlane32_swap_b32 v%d, v%d" % (T0 + t, T3 + t))
        for t in range(3):
            A("v_max_f32 v%d, v%d, v%d" % (T0 + t, T0 + t, T3 + t))
        for t in range(3):
            A("v_mov_b32 v%d, v%d" % (T3 + t, T0 + t))
        for t in range(3):
            A("v_permlane16_swap_b32 v%d, v%d" % (T0 + t, T3 + t))
        for t in range(3):
            A("v_max_f32 v%d, v%d, v%d" % (T0 + t, T0 + t, T3 + t))
        for t in range(3):
            A("v_fma_f32 v%d, v%d, s%d, -v%d" % (T3 + t, T0 + t, sC, M + t))
        A("v_max3_f32 v%d, v%d, v%d, v%d" % (T3, T3, T4, T5))
        A("v_cmp_lt_f32 s[72:73], s%d, v%d" % (sThr, T3))
        A("s_nop 1")
        A("s_cmp_lg_u64 s[72:73], 0")
        A("s_cbranch_scc0 L1_nr%d" % j)
        for t in range(3):
            A("v_mul_f32 v%d, s%d, v%d" % (T0 + t, sC, T0 + t))
            A("v_max_f32 v%d, v%d, v%d" % (T0 + t, T0 + t, M + t))
            A("v_sub_f32 v%d, v%d, v%d" % (T3, M + t, T0 + t))
            A("v_exp_f32 v%d, v%d" % (T3, T3))
            A("v_mov_b32 v%d, v%d" % (M + t, T0 + t))
            if j > 0:
                for i in range(32):
                    A("v_mul_f32 v%d, v%d, v%d" % (O + t * 32 + i, O + t * 32 + i, T3))
                for i in range(4):
                    A("v_mul_f32 v%d, v%d, v%d" % (LACC + t * 4 + i, LACC + t * 4 + i, T3))
        A.label("L1_nr%d" % j)
        for t in range(3):
            nv = 16 if t < 2 else 4
            s0 = S + t * 16
            for i in range(nv):
                A("v_fma_f32 v%d, v%d, s%d, -v%d" % (s0 + i, s0 + i, sC, M + t))
            for i in range(nv):
                A("v_exp_f32 v%d, v%d" % (s0 + i, s0 + i))
            for i in range(0, nv, 2):
                A("v_cvt_pk_bf16_f32 v%d, v%d, v%d" % (s0 + (i // 8) * 8 + (i % 8) // 2, s0 + i, s0 + i + 1))
        n = vq.wait_for({("v", j)})
        A("s_waitcnt vmcnt(%d)" % n)
        A("s_barrier")
        if j + 3 < 8:
            kv_dma(vq, 0, j + 3)
        vb = VS(j) - 49152
        NF = 9

        def vreads(f):
            buf = F + (f % NF) * 4
            if f < 16:
                u, dt = f // 8, f % 8
                for hh in range(2):
                    A("ds_read_b64_tr_b16 %s, v%d offset:%d" % (vr(buf + hh * 2, 2), VA + dt, vb + (2 * u + hh) * 4096))
            else:
                for hh in range(2):
                    dt = (f - 16) * 2 + hh
                    A("v_add_u32 v%d, s%d, v%d" % (T0 + hh, sW4k, VA + dt))
                    A("ds_read_b64_tr_b16 %s, v%d offset:%d" % (vr(buf + hh * 2, 2), T0 + hh, vb))

        PD = 6
        for f in range(PD):
            vreads(f)
        for t in range(2):
            for u in range(2):
                d = vr(LACC + t * 4, 4)
                A("v_mfma_f32_16x16x32_bf16 %s, %s, %s, %s" % (d, vr(ONES, 4), vr(S + t * 16 + u * 8, 4), "0" if (j == 0 and u == 0) else d))
        d = vr(LACC + 8, 4)
        A("v_mfma_f32_16x16x16_bf16 %s, %s, %s, %s" % (d, vr(ONES, 2), vr(S + 32, 2), "0" if j == 0 else d))
        for f in range(20):
            rem = min(20, f + PD) - (f + 1)
            A("s_waitcnt lgkmcnt(%d)" % (2 * rem))
            fa = F + (f % NF) * 4
            if f < 16:
                u, dt = f // 8, f % 8
                for t in range(2):
                    d = vr(O + t * 32 + dt * 4, 4)
                    A("v_mfma_f32_16x16x32_bf16 %s, %s, %s, %s" % (d, vr(fa, 4), vr(S + t * 16 + u * 8, 4), "0" if (j == 0 and u == 0) else d))
            else:
                for hh in range(2):
                    dt = (f - 16) * 2 + hh
                    d = vr(O + 64 + dt * 4, 4)
                    A("v_mfma_f32_16x16x16_bf16 %s, %s, %s, %s" % (d, vr(fa + hh * 2, 2), vr(S + 32, 2), "0" if j == 0 else d))
            if f + PD < 20:
                vreads(f + PD)

    stamp(A, 6)
    A("s_barrier")
    A("v_lshlrev_b32 v%d, 4, v%d" % (T2, LANE))
    A("s_lshl_b32 s%d, s%d, 13" % (sT, sWv))
    A("v_add_u32 v%d, s%d, v%d" % (T3, sT, T2))
    for dt in range(8):
        A("ds_write_b128 v%d, %s offset:%d" % (T3, vr(O + 64 + dt * 4, 4), dt * 1024))
    A("v_and_b32 v%d, 15, v%d" % (T4, LANE))
    A("v_lshlrev_b32 v%d, 3, v%d" % (T4, T4))
    A("s_lshl_b32 s%d, s%d, 7" % (sT, sWv))
    A("v_add_u32 v%d, s%d, v%d" % (T5, sT, T4))
    A("v_mov_b32 v%d, v%d" % (KA + 1, M + 2))
    A("v_mov_b32 v%d, v%d" % (KA + 2, LACC + 8))
    A("ds_write_b64 v%d, %s offset:32768" % (T5, vr(KA + 1, 2)))
    VO = T2
    A("s_lshl_b32 s%d, s%d, 13" % (sT, sWv))
    for t in range(2):
        A("v_rcp_f32 v%d, v%d" % (T1, LACC + t * 4))
        for i in range(32):
            A("v_mul_f32 v%d, v%d, v%d" % (O + t * 32 + i, O + t * 32 + i, T1))
        for ds in range(4):
            a = O + t * 32 + ds * 8
            pk = QF + t * 16 + ds * 4
            for i in range(4):
                A("v_cvt_pk_bf16_f32 v%d, v%d, v%d" % (pk + i, a + 2 * i, a + 2 * i + 1))
            A("buffer_store_dwordx4 %s, v%d, %s, s%d offen offset:%d" % (vr(pk, 4), VO, sr(sO, 4), sT, 1024 * ds))
        if t == 0:
            A("s_add_u32 s%d, s%d, 4096" % (sT, sT))
    A("s_waitcnt lgkmcnt(0)")
    A("s_barrier")
    ML = S
    OP = F
    for w2 in range(4):
        A("ds_read_b64 %s, v%d offset:%d" % (vr(ML + 2 * w2, 2), T4, 32768 + w2 * 128))
    A("s_lshl_b32 s%d, s%d, 11" % (sT, sWv))
    A("v_add_u32 v%d, s%d, v%d" % (T3, sT, T2))
    for w2 in range(4):
        for dd in range(2):
            A("ds_read_b128 %s, v%d offset:%d" % (vr(OP + (w2 * 2 + dd) * 4, 4), T3, w2 * 8192 + dd * 1024))
    A("s_waitcnt lgkmcnt(0)")
    A("v_max3_f32 v%d, v%d, v%d, v%d" % (T1, ML, ML + 2, ML + 4))
    A("v_max_f32 v%d, v%d, v%d" % (T1, T1, ML + 6))
    for w2 in range(4):
        A("v_sub_f32 v%d, v%d, v%d" % (ML + 2 * w2, ML + 2 * w2, T1))
        A("v_exp_f32 v%d, v%d" % (ML + 2 * w2, ML + 2 * w2))
    A("v_mul_f32 v%d, v%d, v%d" % (T5, ML, ML + 1))
    for w2 in range(1, 4):
        A("v_fma_f32 v%d, v%d, v%d, v%d" % (T5, ML + 2 * w2, ML + 2 * w2 + 1, T5))
    A("v_rcp_f32 v%d, v%d" % (T5, T5))
    for w2 in range(4):
        A("v_mul_f32 v%d, v%d, v%d" % (ML + 2 * w2, ML + 2 * w2, T5))
    for dd in range(2):
        for r in range(4):
            d = O + dd * 4 + r
            A("v_mul_f32 v%d, v%d, v%d" % (d, OP + dd * 4 + r, ML))
            for w2 in range(1, 4):
                A("v_fma_f32 v%d, v%d, v%d, v%d" % (d, OP + (w2 * 2 + dd) * 4 + r, ML + 2 * w2, d))
    A("s_lshl_b32 s%d, s%d, 10" % (sT, sWv))
    A("s_add_u32 s%d, s%d, %d" % (sT, sT, 8 * 4096))
    for i in range(4):
        A("v_cvt_pk_bf16_f32 v%d, v%d, v%d" % (QF + 32 + i, O + 2 * i, O + 2 * i + 1))
    A("buffer_store_dwordx4 %s, v%d, %s, s%d offen" % (vr(QF + 32, 4), VO, sr(sO, 4), sT))
    if STAMP:
        A("s_waitcnt vmcnt(0)")
    stamp(A, 7)
    dump_stamps(A, 8, 0, sWv, 240)
    A.label("L1_done")
    A("s_endpgm")


def kernel_oproj(A):
    K2 = "oproj_kernel"
    A.raw(".globl %s\n.p2align 8\n.type %s,@function\n%s:" % (K2, K2, K2))
    A("s_cmp_ge_u32 s2, 192")
    A("s_cbranch_scc1 L2_done")
    stamp(A, 0)
    load_kernargs(A)
    sBr, sMt, sNt, sW8 = 30, 31, 32, 33
    A("s_and_b32 s35, s2, 7")
    A("s_lshr_b32 s%d, s35, 2" % sBr)
    A("s_and_b32 s35, s35, 3")
    A("s_mul_i32 s35, s35, 3")
    A("s_lshr_b32 s36, s2, 3")
    A("s_and_b32 s%d, s36, 7" % sNt)
    A("s_lshr_b32 s36, s36, 3")
    A("s_add_u32 s%d, s35, s36" % sMt)
    ACC, XR, FR = 0, 96, 168
    WD, VX, RD = 200, 201, 202
    LANE, T0, T1, T2, T3 = 206, 207, 208, 209, 210
    A("v_and_b32 v%d, 63, v0" % LANE)
    A("v_lshrrev_b32 v%d, 6, v0" % T0)
    A("v_readfirstlane_b32 s%d, v%d" % (sW8, T0))
    A("s_waitcnt lgkmcnt(0)")
    stamp(A, 6)
    A("s_cmp_eq_u32 s%d, 0" % sBr)
    A("s_cselect_b64 s[12:13], s[12:13], s[22:23]")
    sW, sX, sO = 44, 48, 52
    A("s_lshl_b32 s36, s%d, 7" % sNt)
    A("s_sub_u32 s37, %d, s36" % (4096 * 1024))
    make_srd(A, sW, 12, 13, "s36", "s37")
    A("s_mul_i32 s35, s%d, %d" % (sBr, O_BRANCH_BYTES))
    make_srd(A, sX, 28, 29, "s35", "%d" % O_BRANCH_BYTES)
    A("s_mul_i32 s35, s%d, %d" % (sMt, 96 * 2048))
    A("s_lshl_b32 s37, s%d, 10" % sBr)
    A("s_add_u32 s36, s36, s37")
    A("s_add_u32 s35, s35, s36")
    A("s_sub_u32 s37, %d, s36" % (96 * 2048))
    make_srd(A, sO, 24, 25, "s35", "s37")
    sQ = 56
    A("s_mul_i32 s35, s%d, 6" % sMt)
    for i in range(6):
        A("s_add_u32 s36, s35, %d" % i)
        A("s_mul_i32 s37, s36, 57")
        A("s_lshr_b32 s37, s37, 9")
        A("s_mul_i32 s38, s37, 9")
        A("s_sub_u32 s38, s36, s38")
        A("s_mul_i32 s37, s37, %d" % (32 * 36864))
        A("s_lshl_b32 s38, s38, 12")
        A("s_add_u32 s%d, s37, s38" % (sQ + i))
    sRot, sk, st, sx, sL = 62, 63, 64, 65, 66
    A("s_lshl_b32 s%d, s%d, 1" % (sRot, sNt))
    A("s_mul_i32 s35, s%d, 5" % sMt)
    A("s_add_u32 s%d, s%d, s35" % (sRot, sRot))
    A("s_lshl_b32 s%d, s%d, 14" % (sL, sW8))
    A("v_bfe_u32 v%d, v%d, 1, 2" % (T0, LANE))
    A("v_lshrrev_b32 v%d, 4, v%d" % (T1, LANE))
    A("v_xor_b32 v%d, v%d, v%d" % (T0, T0, T1))
    A("v_lshlrev_b32 v%d, 5, v%d" % (T0, T0))
    A("v_and_b32 v%d, 1, v%d" % (T1, LANE))
    A("v_lshl_add_u32 v%d, v%d, 4, v%d" % (T0, T1, T0))
    A("v_lshrrev_b32 v%d, 3, v%d" % (T1, LANE))
    A("v_lshl_add_u32 v%d, v%d, 10, v%d" % (WD, T1, T0))
    A("v_lshlrev_b32 v%d, 4, v%d" % (VX, LANE))
    A("v_lshrrev_b32 v%d, 2, v%d" % (T0, LANE))
    A("v_bfe_u32 v%d, v%d, 3, 2" % (T1, LANE))
    A("v_lshlrev_b32 v%d, 5, v%d" % (T1, T1))
    A("v_lshl_add_u32 v%d, v%d, 7, v%d" % (T1, T0, T1))
    A("v_and_b32 v%d, 3, v%d" % (T0, LANE))
    A("v_lshl_add_u32 v%d, v%d, 3, v%d" % (T1, T0, T1))
    A("v_add_u32 v%d, s%d, v%d" % (RD, sL, T1))
    for nt in range(1, 4):
        A("v_xor_b32 v%d, %d, v%d" % (RD + nt, nt << 5, RD))
    vq = VmQ()
    NS, XD, NK = 4, 3, 16

    def kidx(i):
        A("s_add_u32 s%d, s%d, %d" % (sk, sRot, i))
        A("s_and_b32 s%d, s%d, 15" % (sk, sk))
        A("s_lshl_b32 s%d, s%d, 3" % (sk, sk))
        A("s_add_u32 s%d, s%d, s%d" % (sk, sk, sW8))

    def dma_w(i):
        A("s_lshl_b32 s%d, s%d, 15" % (st, sk))
        for m in range(4):
            A("s_add_u32 m0, s%d, %d" % (sL, (i % NS) * 4096 + m * 1024))
            if m:
                A("s_add_u32 s%d, s%d, 8192" % (st, st))
            A("buffer_load_dwordx4 v%d, %s, s%d offen lds" % (WD, sr(sW, 4), st))
            vq.issue(("w", i))

    def xload(i):
        A("s_lshr_b32 s%d, s%d, 2" % (sx, sk))
        A("s_mul_i32 s%d, s%d, 36864" % (sx, sx))
        A("s_and_b32 s%d, s%d, 3" % (st, sk))
        A("s_lshl_b32 s%d, s%d, 10" % (st, st))
        A("s_add_u32 s%d, s%d, s%d" % (sx, sx, st))
        for q in range(6):
            A("s_add_u32 s%d, s%d, s%d" % (st, sx, sQ + q))
            A("buffer_load_dwordx4 %s, v%d, %s, s%d offen" % (vr(XR + (i % XD) * 24 + q * 4, 4), VX, sr(sX, 4), st))
            vq.issue(("x", i))

    def wreads(i):
        for nt in range(4):
            for hh in range(2):
                A("ds_read_b64_tr_b16 %s, v%d offset:%d" % (vr(FR + (i & 1) * 16 + nt * 4 + hh * 2, 2), RD + nt, (i % NS) * 4096 + hh * 2048))

    for i in range(2):
        kidx(i)
        dma_w(i)
        xload(i)
    kidx(2)
    dma_w(2)
    stamp(A, 1)
    A("s_waitcnt vmcnt(%d)" % vq.wait_for({("w", 0)}))
    stamp(A, 2)
    wreads(0)
    for i in range(NK):
        need = {("x", i)}
        if i + 1 < NK:
            need.add(("w", i + 1))
        A("s_waitcnt vmcnt(%d) lgkmcnt(0)" % vq.wait_for(need))
        if i == NK // 2:
            stamp(A, 3)
        if i + 1 < NK:
            wreads(i + 1)
        if i + 3 < NK:
            kidx(i + 3)
            dma_w(i + 3)
        if i + 2 < NK:
            kidx(i + 2)
            xload(i + 2)
        for nt in range(4):
            for q in range(6):
                a = ACC + (nt * 6 + q) * 4
                c = "0" if i == 0 else vr(a, 4)
                A("v_mfma_f32_16x16x32_bf16 %s, %s, %s, %s" % (vr(a, 4), vr(FR + (i & 1) * 16 + nt * 4, 4), vr(XR + (i % XD) * 24 + q * 4, 4), c))
    stamp(A, 4)
    A("s_lshl_b32 s35, s%d, 13" % sW8)
    A("v_add_u32 v%d, s35, v%d" % (T0, VX))
    A("s_lshl_b32 s35, s%d, 10" % sW8)
    A("v_add_u32 v%d, s35, v%d" % (T1, VX))
    Y = 96
    for rnd in range(3):
        A("s_barrier")
        for f in range(8):
            A("ds_write_b128 v%d, %s offset:%d" % (T0, vr(ACC + (rnd * 8 + f) * 4, 4), f * 1024))
        A("s_waitcnt lgkmcnt(0)")
        A("s_barrier")
        for w2 in range(8):
            A("ds_read_b128 %s, v%d offset:%d" % (vr(Y + rnd * 32 + w2 * 4, 4), T1, w2 * 8192))
        A("s_waitcnt lgkmcnt(0)")
    A("v_and_b32 v%d, 15, v%d" % (T0, LANE))
    A("v_lshlrev_b32 v%d, 11, v%d" % (T0, T0))
    A("v_lshrrev_b32 v%d, 4, v%d" % (T1, LANE))
    A("v_lshl_add_u32 v%d, v%d, 3, v%d" % (T0, T1, T0))
    for rnd in range(3):
        y = Y + rnd * 32
        for step in (16, 8, 4):
            for i in range(step):
                A("v_add_f32 v%d, v%d, v%d" % (y + i, y + i, y + step + i))
        A("s_add_u32 s35, s%d, %d" % (sW8, 8 * rnd))
        A("s_mul_i32 s36, s35, 43")
        A("s_lshr_b32 s36, s36, 8")
        A("s_mul_i32 s37, s36, 6")
        A("s_sub_u32 s37, s35, s37")
        A("s_lshl_b32 s37, s37, 15")
        A("s_lshl_b32 s36, s36, 5")
        A("s_add_u32 s36, s36, s37")
        A("v_cvt_pk_bf16_f32 v%d, v%d, v%d" % (y + 8, y, y + 1))
        A("v_cvt_pk_bf16_f32 v%d, v%d, v%d" % (y + 9, y + 2, y + 3))
        A("buffer_store_dwordx2 %s, v%d, %s, s36 offen" % (vr(y + 8, 2), T0, sr(sO, 4)))
    if STAMP:
        A("s_waitcnt vmcnt(0)")
        stamp(A, 7)
        A("s_lshr_b32 s98, s%d, 1" % sW8)
        dump_stamps(A, 8, 1, 98, 212)
    A.label("L2_done")
    A("s_endpgm")


def kd(name, vgpr, sgpr=102):
    return """.amdhsa_kernel %s
  .amdhsa_next_free_vgpr %d
  .amdhsa_next_free_sgpr %d
  .amdhsa_accum_offset %d
  .amdhsa_group_segment_fixed_size 0
  .amdhsa_kernarg_size 104
  .amdhsa_user_sgpr_count 2
  .amdhsa_user_sgpr_kernarg_segment_ptr 1
  .amdhsa_system_sgpr_workgroup_id_x 1
.end_amdhsa_kernel
""" % (name, vgpr, sgpr, (vgpr + 3) // 4 * 4)


def main():
    A = Asm()
    hdr = open(os.path.join(os.path.dirname(os.path.abspath(__file__)), "..", "cdna_kernels", NAME + ".s.ref")).read().split("\n")
    head = [l for l in hdr if l.startswith(";") and "@launch" not in l and "Override launch" not in l and "grid=ceil" not in l]
    out = "\n".join(head) + "\n"
    out += "; @launch kernel=attn_kernel grid=(512,1,1) block=(256,1,1) lds=81920\n"
    out += "; @launch kernel=oproj_kernel grid=(192,1,1) block=(512,1,1) lds=131072\n"
    if "twice" in EXP:
        out += "; @launch kernel=oproj_kernel grid=(256,1,1) block=(512,1,1) lds=131072\n"
    out += '.amdgcn_target "amdgcn-amd-amdhsa--gfx950"\n.text\n'
    kernel_attn(A)
    kernel_oproj(A)
    out += A.text()
    out += '.section .rodata,"a"\n.p2align 6\n'
    out += kd("attn_kernel", 256, 100 if STAMP else 76)
    out += ".p2align 6\n" + kd("oproj_kernel", 216, 100 if STAMP else 74)
    dst = sys.argv[1] if len(sys.argv) > 1 else os.path.join(os.path.dirname(os.path.abspath(__file__)), "..", "cdna_kernels", NAME + ".s")
    open(dst, "w").write(out)
    print("wrote", dst, A.ninst, "instructions")


if __name__ == "__main__":
    main()
```

```python
import sys, os, struct
sys.path.insert(0, os.path.dirname(os.path.abspath(__file__)))
from asmlib import Asm, VmQ

NAME = "concat_heads__mha_block_cached__mha_block_cached__near_ridge"
O_BRANCH_BYTES = 1152 * 4096 * 2
P_BASE = 2 * O_BRANCH_BYTES
SCALE_C = 1.4426950408889634 / (128.0 ** 0.5)
EXP = os.environ.get("EXP", "")
KVPOL = os.environ.get("KVPOL", "nt ")
WPOL = os.environ.get("WPOL", "")
PBF = os.environ.get("PBF", "0") == "1"
PPOL = os.environ.get("PPOL", "")
PLPOL = os.environ.get("PLPOL", "sc1")
XPOL = os.environ.get("XPOL", "")


def f32bits(x):
    return struct.unpack("<I", struct.pack("<f", x))[0]


def vr(base, n):
    return "v[%d:%d]" % (base, base + n - 1)


def sr(base, n):
    return "s[%d:%d]" % (base, base + n - 1)


def load_kernargs(A):
    A("s_load_dwordx16 s[4:19], s[0:1], 0")
    A("s_load_dwordx8 s[20:27], s[0:1], 64")
    A("s_load_dwordx2 s[28:29], s[0:1], 96")


def make_srd(A, d, lo, hi, off_s, nrec):
    A("s_add_u32 s%d, s%d, %s" % (d, lo, off_s))
    A("s_addc_u32 s%d, s%d, 0" % (d + 1, hi))
    A("s_and_b32 s%d, s%d, 0xffff" % (d + 1, d + 1))
    A("s_mov_b32 s%d, %s" % (d + 2, nrec))
    A("s_mov_b32 s%d, 0x00020000" % (d + 3))


STAMP = "stamp" in EXP


def stamp(A, i):
    if STAMP:
        A("s_memtime s[%d:%d]" % (80 + 2 * i, 81 + 2 * i))


def dump_stamps(A, n, kidx, sWv, vt):
    if not STAMP:
        return
    A("s_waitcnt lgkmcnt(0)")
    A("s_lshl_b32 s96, s2, 8")
    A("s_lshl_b32 s97, s%d, 6" % sWv)
    A("s_add_u32 s96, s96, s97")
    A("s_add_u32 s96, s96, %d" % (200 * 1024 * 1024 + kidx * 1024 * 1024))
    A("s_add_u32 s76, s28, s96")
    A("s_addc_u32 s77, s29, 0")
    A("s_and_b32 s77, s77, 0xffff")
    A("s_mov_b32 s78, 64")
    A("s_mov_b32 s79, 0x00020000")
    A("v_mov_b32 v%d, 0" % vt)
    for i in range(n):
        A("v_mov_b32 v%d, s%d" % (vt + 1, 80 + 2 * i))
        A("buffer_store_dword v%d, v%d, s[76:79], 0 offen offset:%d" % (vt + 1, vt, 4 * i))
    A("s_waitcnt vmcnt(0)")


def gemm_phase(A, nk, wstride, mode, sW, sX, sWave, sRot, R, hooks):
    vq = VmQ()
    lane, t0, t1, t2, t3 = R["lane"], R["t0"], R["t1"], R["t2"], R["t3"]
    wdma, vx, wrd = R["wdma"], R["vx"], R["wrd"]
    sq0, swb, sm0, st, sk, sx, sw1k = R["sq0"], R["swb"], R["sm0"], R["st"], R["sk"], R["sx"], R["sw1k"]
    nat = mode == "nat"
    NW = 5 if nat else 8
    XD = 4 if nat else 7
    XB = 40960
    wslot = (lambda c: (c + 4) % 5) if nat else (lambda c: c % 8)
    xslot = lambda c: (c + 1) & 1
    A("v_lshrrev_b32 v%d, 4, v%d" % (t0, lane))
    A("v_and_b32 v%d, 15, v%d" % (t1, lane))
    if nat:
        A("s_and_b32 s%d, s%d, 1" % (st, sWave))
        A("s_lshl_b32 s%d, s%d, 2" % (st, st))
        A("v_or_b32 v%d, s%d, v%d" % (t2, st, t0))
    else:
        A("v_mov_b32 v%d, v%d" % (t2, t0))
    A("v_lshrrev_b32 v%d, 1, v%d" % (t3, t1))
    A("v_xor_b32 v%d, v%d, v%d" % (t2, t2, t3))
    A("v_lshlrev_b32 v%d, 5, v%d" % (t2, t2))
    A("v_and_b32 v%d, 1, v%d" % (t3, lane))
    A("v_lshl_add_u32 v%d, v%d, 4, v%d" % (t2, t3, t2))
    A("v_mul_u32_u24 v%d, %d, v%d" % (t3, wstride, t0))
    A("v_add_u32 v%d, v%d, v%d" % (wdma, t2, t3))
    if nat:
        A("v_mov_b32 v%d, v%d" % (wdma + 1, wdma))
        A("s_lshl_b32 s%d, s%d, 2" % (st, sWave))
        A("v_add_u32 v%d, s%d, v%d" % (t2, st, t0))
        A("v_xor_b32 v%d, v%d, v%d" % (t2, t2, lane))
        A("v_and_b32 v%d, 7, v%d" % (t2, t2))
        A("v_lshlrev_b32 v%d, 4, v%d" % (t2, t2))
        A("v_lshrrev_b32 v%d, 3, v%d" % (t3, lane))
        A("s_lshl_b32 s%d, s%d, 3" % (st, sWave))
        A("v_add_u32 v%d, s%d, v%d" % (t3, st, t3))
        A("v_lshl_add_u32 v%d, v%d, 10, v%d" % (vx, t3, t2))
        A("v_lshrrev_b32 v%d, 1, v%d" % (t2, t1))
        A("v_xor_b32 v%d, v%d, v%d" % (t2, t2, t0))
        A("v_lshlrev_b32 v%d, 4, v%d" % (t2, t2))
        A("v_lshl_add_u32 v%d, v%d, 7, v%d" % (t2, t1, t2))
        A("v_add_u32 v%d, %d, v%d" % (vx + 1, XB, t2))
        A("v_xor_b32 v%d, 64, v%d" % (vx + 2, vx + 1))
        A("s_lshl_b32 s%d, s%d, 12" % (st, sWave))
        A("v_add_u32 v%d, s%d, v%d" % (vx + 3, st, vx + 1))
        A("v_add_u32 v%d, s%d, v%d" % (vx + 4, st, vx + 2))
        A("v_bfe_u32 v%d, v%d, 2, 2" % (t1, lane))
        A("v_and_b32 v%d, 1, v%d" % (t2, t0))
        A("v_lshl_add_u32 v%d, v%d, 2, v%d" % (t2, t2, t1))
        A("v_lshl_add_u32 v%d, v%d, 3, v%d" % (t3, t0, t1))
        hoff = 1024
    else:
        A("v_xor_b32 v%d, 0x80, v%d" % (wdma + 1, wdma))
        A("v_lshlrev_b32 v%d, 4, v%d" % (vx, lane))
        A("v_lshrrev_b32 v%d, 2, v%d" % (t3, lane))
        A("v_and_b32 v%d, 7, v%d" % (t2, t3))
        hoff = 4096
    A("s_lshl_b32 s%d, s%d, 1" % (st, sWave))
    A("v_xor_b32 v%d, s%d, v%d" % (t2, st, t2))
    A("v_lshlrev_b32 v%d, 5, v%d" % (t2, t2))
    A("v_lshl_add_u32 v%d, v%d, 8, v%d" % (t2, t3, t2))
    A("v_and_b32 v%d, 3, v%d" % (t3, lane))
    A("v_lshl_add_u32 v%d, v%d, 3, v%d" % (wrd, t3, t2))
    if "slds" in R:
        A("v_add_u32 v%d, s%d, v%d" % (wrd, R["slds"], wrd))
    for dl in range(1, 8):
        A("v_xor_b32 v%d, %d, v%d" % (wrd + dl, dl << 5, wrd))
    A("s_lshl_b32 s%d, s%d, 13" % (sq0, sWave))
    A("s_mul_i32 s%d, s%d, %d" % (swb, sWave, 8 * wstride))
    A("s_lshl_b32 s%d, s%d, 11" % (sm0, sWave))
    if "slds" in R:
        A("s_add_u32 s%d, s%d, s%d" % (sm0, sm0, R["slds"]))
    A("s_lshl_b32 s%d, s%d, 10" % (sw1k, sWave))

    def kidx(ks):
        A("s_add_u32 s%d, s%d, %d" % (sk, sRot, ks))
        A("s_and_b32 s%d, s%d, %d" % (sk, sk, nk - 1))

    def dma_w(ks):
        kidx(ks)
        A("s_mul_i32 s%d, s%d, %d" % (st, sk, 32 * wstride))
        A("s_add_u32 s%d, s%d, s%d" % (st, st, swb))
        for mm in range(2):
            A("s_add_u32 m0, s%d, %d" % (sm0, wslot(ks) * 8192 + mm * 1024))
            if mm:
                A("s_add_u32 s%d, s%d, %d" % (st, st, 4 * wstride))
            A("buffer_load_dwordx4 v%d, %s, s%d offen %slds" % (wdma + mm, sr(sW, 4), st, WPOL))
            vq.issue(("w", ks))

    def dma_x(c):
        kidx(2 * c)
        A("s_lshl_b32 s%d, s%d, 6" % (sx, sk))
        for i in range(5):
            A("s_add_u32 m0, s%d, %d" % (sw1k, XB + xslot(c) * 20480 + i * 4096))
            if i:
                A("s_add_u32 s%d, s%d, 32768" % (sx, sx))
            A("buffer_load_dwordx4 v%d, %s, s%d offen %slds" % (vx, sr(sX, 4), sx, XPOL))
            vq.issue(("x", c))

    def xreads(c):
        out = []
        for p in range(2):
            base = R["xr"] + ((2 * c + p) % XD) * 12
            so = xslot(c) * 20480
            out.append("ds_read_b128 %s, v%d offset:%d" % (vr(base, 4), vx + 3 + p, so))
            out.append("ds_read_b128 %s, v%d offset:%d" % (vr(base + 4, 4), vx + 3 + p, so + 2048))
            out.append("ds_read_b128 %s, v%d offset:%d" % (vr(base + 8, 4), vx + 1 + p, so + 16384))
        return out

    def xload(ks):
        base = R["xr"] + (ks % XD) * 12
        kidx(ks)
        A("s_lshr_b32 s%d, s%d, 2" % (sx, sk))
        A("s_mul_i32 s%d, s%d, 36864" % (sx, sx))
        A("s_and_b32 s%d, s%d, 3" % (st, sk))
        A("s_lshl_b32 s%d, s%d, 10" % (st, st))
        A("s_add_u32 s%d, s%d, s%d" % (sx, sx, st))
        A("s_add_u32 s%d, s%d, s%d" % (st, sx, sq0))
        A("buffer_load_dwordx4 %s, v%d, %s, s%d offen" % (vr(base, 4), vx, sr(sX, 4), st) + " " + XPOL)
        A("s_add_u32 s%d, s%d, %d" % (st, st, 4096))
        A("buffer_load_dwordx4 %s, v%d, %s, s%d offen" % (vr(base + 4, 4), vx, sr(sX, 4), st) + " " + XPOL)
        A("s_add_u32 s%d, s%d, %d" % (st, sx, 8 * 4096))
        A("buffer_load_dwordx4 %s, v%d, %s, s%d offen" % (vr(base + 8, 4), vx, sr(sX, 4), st) + " " + XPOL)
        for _ in range(3):
            vq.issue(("x", ks))

    acc, fr = R["acc"], R["fr"]

    def wreads(ks, dl):
        return ["ds_read_b64_tr_b16 %s, v%d offset:%d" % (vr(fr + (ks & 1) * 32 + dl * 4 + h * 2, 2), wrd + dl, wslot(ks) * 8192 + h * hoff)
                for h in range(2)]

    nw = [0]
    nx = [0]

    def fill(i, maxw, maxx):
        k = 0
        while nw[0] < min(nk, i + 1 + NW - (0 if i >= 0 else 0)) and nw[0] <= i + NW and k < maxw:
            if nw[0] >= NW and nw[0] - NW > i:
                break
            dma_w(nw[0])
            nw[0] += 1
            k += 1
        k = 0
        if nat:
            while nx[0] < nk // 2 and (nx[0] < 2 or 2 * (nx[0] - 2) <= i) and k < maxx:
                dma_x(nx[0])
                nx[0] += 1
                k += 1
        else:
            while nx[0] < nk and nx[0] <= i + XD - 1 and k < maxx:
                xload(nx[0])
                nx[0] += 1
                k += 1

    PW, PX = int(os.environ.get("PW", "2")), int(os.environ.get("PX", "1" if nat else "2"))
    if nat:
        dma_w(0)
        dma_x(0)
        dma_w(1)
        nw[0], nx[0] = 2, 1
    else:
        dma_w(0)
        xload(0)
        dma_w(1)
        xload(1)
        nw[0], nx[0] = 2, 2
    stamp(A, 1)
    A("s_waitcnt vmcnt(%d)" % vq.wait_for({("w", 0)} | ({("x", 0)} if nat else set())))
    A("s_barrier")
    stamp(A, 2)
    fill(-1, PW, PX)
    for dl in range(8):
        for r in wreads(0, dl):
            A(r)
    if nat:
        for r in xreads(0):
            A(r)
    for i in range(nk):
        need = set()
        if i + 1 < nk:
            need.add(("w", i + 1))
        if nat:
            if i % 2 == 1 and i + 1 < nk:
                need.add(("x", (i + 1) // 2))
        else:
            need.add(("x", i))
        n = vq.wait_for(need)
        A("s_waitcnt vmcnt(%d) lgkmcnt(0)" % n)
        A("s_barrier")
        if i == nk // 2:
            stamp(A, 3)
        fill(i, PW, PX)
        if i in hooks:
            hooks[i](A, vq)
        xr = xreads((i + 1) // 2) if (nat and i % 2 == 1 and i + 1 < nk) else []
        xb = R["xr"] + (i % XD) * 12
        for dl in range(8):
            if i + 1 < nk:
                for r in wreads(i + 1, dl):
                    A(r)
            if dl < len(xr):
                A(xr[dl])
            for t in range(3):
                if t == 2 and dl >= 2:
                    continue
                a = acc + (t * 8 + dl) * 4 if t < 2 else acc + 64 + dl * 4
                c = "0" if i == 0 else vr(a, 4)
                A("v_mfma_f32_16x16x32_bf16 %s, %s, %s, %s" % (vr(a, 4), vr(fr + (i & 1) * 32 + dl * 4, 4), vr(xb + t * 4, 4), c))
    return vq


def cross_lane(A, op, v, tmp):
    A("v_mov_b32 v%d, v%d" % (tmp, v))
    A("v_permlane32_swap_b32 v%d, v%d" % (v, tmp))
    A("%s v%d, v%d, v%d" % (op, v, v, tmp))
    A("v_mov_b32 v%d, v%d" % (tmp, v))
    A("v_permlane16_swap_b32 v%d, v%d" % (v, tmp))
    A("%s v%d, v%d, v%d" % (op, v, v, tmp))


THR = float(os.environ.get("THR", "8.0"))


def kernel_attn(A):
    K1 = "attn_kernel"
    A.raw(".globl %s\n.p2align 8\n.type %s,@function\n%s:" % (K1, K1, K1))
    A("s_cmp_ge_u32 s2, 512")
    A("s_cbranch_scc1 L1_done")
    stamp(A, 0)
    load_kernargs(A)
    sBr, sH, sB, sWv = 30, 31, 32, 33
    A("s_and_b32 s34, s2, 7")
    A("s_lshr_b32 s35, s2, 3")
    A("s_lshr_b32 s%d, s34, 2" % sBr)
    A("s_and_b32 s34, s34, 3")
    A("s_lshl_b32 s34, s34, 3")
    A("s_and_b32 s%d, s35, 7" % sH)
    A("s_add_u32 s%d, s%d, s34" % (sH, sH))
    A("s_lshr_b32 s%d, s35, 3" % sB)
    O, QF, S, LACC, ONES, F = 0, 96, 144, 180, 192, 196
    M = 232
    KA, VA = 235, 239
    VKD, VVD = 247, 248
    T0, T1, T2, T3, T4, T5 = 249, 250, 251, 252, 253, 254
    LANE = 255
    A("v_and_b32 v%d, 63, v0" % LANE)
    A("v_lshrrev_b32 v%d, 6, v0" % T0)
    A("v_readfirstlane_b32 s%d, v%d" % (sWv, T0))
    A("s_waitcnt lgkmcnt(0)")
    A("s_cmp_eq_u32 s%d, 0" % sBr)
    A("s_cselect_b64 s[4:5], s[4:5], s[14:15]")
    A("s_cselect_b64 s[6:7], s[6:7], s[16:17]")
    A("s_cselect_b64 s[8:9], s[8:9], s[18:19]")
    A("s_cselect_b64 s[10:11], s[10:11], s[20:21]")
    sK, sV, sW, sX, sO = 36, 40, 44, 48, 52
    A("s_lshl_b32 s34, s%d, 5" % sB)
    A("s_add_u32 s34, s34, s%d" % sH)
    A("s_lshl_b32 s34, s34, 17")
    make_srd(A, sK, 6, 7, "s34", "131072")
    make_srd(A, sV, 8, 9, "s34", "131072")
    A("s_lshl_b32 s34, s%d, 8" % sH)
    A("s_sub_u32 s35, %d, s34" % (512 * 8192))
    make_srd(A, sW, 10, 11, "s34", "s35")
    A("s_mul_i32 s35, s%d, 147456" % sB)
    make_srd(A, sX, 4, 5, "s35", "147456")
    A("s_mul_i32 s35, s%d, %d" % (sBr, O_BRANCH_BYTES))
    A("s_lshl_b32 s56, s%d, 5" % sB)
    A("s_add_u32 s56, s56, s%d" % sH)
    A("s_mul_i32 s56, s56, 36864")
    A("s_add_u32 s35, s35, s56")
    make_srd(A, sO, 28, 29, "s35", "36864")
    sRot, sRotK = 68, 69
    A("s_lshr_b32 s%d, s2, 3" % sRot)
    A("s_add_u32 s%d, s%d, s%d" % (sRot, sRot, sB))
    A("s_lshl_b32 s%d, s%d, 1" % (sRot, sRot))
    A("s_and_b32 s%d, s%d, 15" % (sRot, sRot))
    A("s_lshr_b32 s%d, s%d, 1" % (sRotK, sRot))
    sC, sW1k, sT, sT2, sW4k, sThr = 56, 57, 58, 59, 70, 71
    A("s_mov_b32 s%d, 0x%08x" % (sC, f32bits(SCALE_C)))
    A("s_mov_b32 s%d, 0x%08x" % (sThr, f32bits(THR)))
    A("s_lshl_b32 s%d, s%d, 10" % (sW1k, sWv))
    A("s_lshl_b32 s%d, s%d, 12" % (sW4k, sWv))

    g, lo = T0, T1
    VLIN = 92
    A("v_lshrrev_b32 v%d, 4, v%d" % (g, LANE))
    A("v_and_b32 v%d, 15, v%d" % (lo, LANE))
    A("s_lshl_b32 s%d, s%d, 2" % (sT, sWv))
    A("v_add_u32 v%d, s%d, v%d" % (T2, sT, g))
    A("v_xor_b32 v%d, v%d, v%d" % (T3, lo, T2))
    A("v_lshlrev_b32 v%d, 4, v%d" % (T3, T3))
    A("v_lshl_add_u32 v%d, v%d, 8, v%d" % (VKD, T2, T3))
    A("v_and_b32 v%d, 7, v%d" % (T3, T2))
    A("v_lshlrev_b32 v%d, 1, v%d" % (T3, T3))
    A("v_xor_b32 v%d, v%d, v%d" % (T3, lo, T3))
    A("v_lshlrev_b32 v%d, 4, v%d" % (T3, T3))
    A("v_lshl_add_u32 v%d, v%d, 8, v%d" % (VVD, T2, T3))
    A("v_lshlrev_b32 v%d, 4, v%d" % (T3, lo))
    A("v_lshl_add_u32 v%d, v%d, 8, v%d" % (VLIN, T2, T3))

    KS = lambda j: ((j + 2) % 3) * 16384
    VS = lambda j: 49152 + (j % 2) * 16384

    def blk_off(j, i):
        if i == 0:
            A("s_add_u32 s%d, s%d, %d" % (sT2, sRotK, j))
            A("s_and_b32 s%d, s%d, 7" % (sT2, sT2))
            A("s_lshl_b32 s%d, s%d, 14" % (sT2, sT2))
        else:
            A("s_add_u32 s%d, s%d, 4096" % (sT2, sT2))

    def kv_dma(vq, isv, j):
        srd, vd, base = (sV, VVD, VS(j)) if isv else (sK, VKD, KS(j))
        for i in range(4):
            A("s_add_u32 m0, s%d, %d" % (sW1k, base + i * 4096))
            blk_off(j, i)
            A("buffer_load_dwordx4 v%d, %s, s%d offen %slds" % (vd, sr(srd, 4), sT2, KVPOL))
            vq.issue(("v" if isv else "k", j))

    PRE = 208

    def pre_load(n, half):
        def fn(A, vq):
            for i in range(2 * half, 2 * half + 2):
                A("s_lshl_b32 s%d, s%d, 14" % (sT2, sRotK))
                if i:
                    A("s_add_u32 s%d, s%d, %d" % (sT2, sT2, 4096 * i))
                A("buffer_load_dwordx4 %s, v%d, %s, s%d offen %s" % (vr(PRE + n * 16 + i * 4, 4), VLIN, sr(sK if n == 0 else sV, 4), sT2, KVPOL))
                vq.issue(("pre", 0))
        return fn

    R = dict(acc=0, xr=96, fr=144, wrd=72, wdma=80, vx=82, lane=LANE, t0=T0, t1=T1, t2=T2, t3=T3,
             sq0=60, swb=62, sm0=63, st=64, sk=65, sx=66, sw1k=67)

    def h12(A, vq):
        kv_dma(vq, 0, 1)
        kv_dma(vq, 1, 1)
    hooks = {1: pre_load(0, 0), 3: pre_load(0, 1), 5: pre_load(1, 0), 7: pre_load(1, 1),
             12: h12, 14: lambda A, vq: kv_dma(vq, 0, 2)}
    vq = gemm_phase(A, 16, 8192, "nat", sW, sX, sWv, sRot, R, hooks)
    assert ("pre", 0) not in vq.q
    if "p1only" in EXP:
        A("s_waitcnt vmcnt(0)")
        A("s_branch L1_done")

    stamp(A, 4)
    SCR = 32768
    TA = 240
    A("v_lshrrev_b32 v%d, 4, v%d" % (g, LANE))
    A("v_and_b32 v%d, 15, v%d" % (lo, LANE))
    A("s_lshl_b32 s%d, s%d, 2" % (sT, sWv))
    A("v_lshrrev_b32 v%d, 1, v%d" % (T2, g))
    A("v_or_b32 v%d, s%d, v%d" % (T2, sT, T2))
    A("v_xor_b32 v%d, v%d, v%d" % (T2, T2, lo))
    A("v_lshlrev_b32 v%d, 4, v%d" % (T2, T2))
    A("v_lshl_add_u32 v%d, v%d, 8, v%d" % (T2, lo, T2))
    A("v_and_b32 v%d, 1, v%d" % (T3, g))
    A("v_lshl_add_u32 v%d, v%d, 3, v%d" % (T2, T3, T2))
    A("v_add_u32 v%d, s%d, v%d" % (T3, sW4k, T2))
    A("v_xor_b32 v%d, v%d, v%d" % (T4, g, lo))
    A("v_lshlrev_b32 v%d, 4, v%d" % (T4, T4))
    A("v_lshl_add_u32 v%d, v%d, 8, v%d" % (T4, lo, T4))
    A("v_add_u32 v%d, s%d, v%d" % (T5, sW4k, T4))
    PK = 144
    for dl in range(8):
        A("v_xor_b32 v%d, %d, v%d" % (TA + (dl & 3), dl << 5, T3))
        for t in range(2):
            a = (t * 8 + dl) * 4
            pk = PK + t * 16 + dl * 2
            A("v_cvt_pk_bf16_f32 v%d, v%d, v%d" % (pk, a, a + 1))
            A("v_cvt_pk_bf16_f32 v%d, v%d, v%d" % (pk + 1, a + 2, a + 3))
            A("ds_write_b64 v%d, %s offset:%d" % (TA + (dl & 3), vr(pk, 2), SCR + t * 16384))
    for ds in range(4):
        A("v_xor_b32 v%d, %d, v%d" % (TA + ds, ds << 6, T5))
        for t in range(2):
            A("ds_read_b128 %s, v%d offset:%d" % (vr(QF + t * 16 + ds * 4, 4), TA + ds, SCR + t * 16384))
    for dl in range(2):
        a = 64 + dl * 4
        A("v_cvt_pk_bf16_f32 v%d, v%d, v%d" % (176 + dl * 2, a, a + 1))
        A("v_cvt_pk_bf16_f32 v%d, v%d, v%d" % (176 + dl * 2 + 1, a + 2, a + 3))
        A("v_xor_b32 v%d, %d, v%d" % (T0 + dl, dl << 5, T3))
        A("ds_write_b64 v%d, %s offset:%d" % (T0 + dl, vr(176 + dl * 2, 2), SCR))
    A("s_waitcnt lgkmcnt(0)")
    A("s_barrier")
    for ds in range(4):
        A("v_xor_b32 v%d, %d, v%d" % (TA + ds, ds << 6, T4))
        A("ds_read_b128 %s, v%d offset:%d" % (vr(QF + 32 + ds * 4, 4), TA + ds, SCR + ds * 4096))
    for i in range(4):
        A("v_mov_b32 v%d, 0x3f803f80" % (ONES + i))
    A("s_waitcnt lgkmcnt(0)")
    A("s_barrier")
    for n in range(2):
        for i in range(4):
            A("ds_write_b128 v%d, %s offset:%d" % (VKD if n == 0 else VVD, vr(PRE + n * 16 + i * 4, 4), (KS(0) if n == 0 else VS(0)) + i * 4096))
    A("s_waitcnt lgkmcnt(0)")
    for ds in range(4):
        A("v_xor_b32 v%d, %d, v%d" % (KA + ds, ds << 6, T4))
    A("v_lshrrev_b32 v%d, 2, v%d" % (T2, LANE))
    A("v_and_b32 v%d, 7, v%d" % (T3, T2))
    A("v_lshlrev_b32 v%d, 5, v%d" % (T3, T3))
    A("v_lshl_add_u32 v%d, v%d, 8, v%d" % (T3, T2, T3))
    A("v_and_b32 v%d, 3, v%d" % (T2, LANE))
    A("v_lshl_add_u32 v%d, v%d, 3, v%d" % (T3, T2, T3))
    A("v_add_u32 v%d, 49152, v%d" % (T3, T3))
    for dt in range(8):
        A("v_xor_b32 v%d, %d, v%d" % (VA + dt, dt << 5, T3))
    for t in range(3):
        A("v_mov_b32 v%d, 0xf149f2ca" % (M + t))
    stamp(A, 5)

    NKF = 2
    for j in range(8):
        n = vq.wait_for({("k", j)})
        A("s_waitcnt vmcnt(%d)" % n)
        A("s_barrier")
        if 1 <= j < 7:
            kv_dma(vq, 1, j + 1)
        kb = KS(j)

        def kreads(l):
            buf = F + (l & 1) * 16
            for ds in range(4):
                if l < 4:
                    A("ds_read_b128 %s, v%d offset:%d" % (vr(buf + ds * 4, 4), KA + ds, kb + l * 4096))
                else:
                    A("v_add_u32 v%d, s%d, v%d" % (T0 + ds, sW4k, KA + ds))
                    A("ds_read_b128 %s, v%d offset:%d" % (vr(buf + ds * 4, 4), T0 + ds, kb))

        kreads(0)
        kreads(1)
        for l in range(5):
            A("s_waitcnt lgkmcnt(%d)" % (4 if l < 4 else 0))
            for ds in range(4):
                fa = vr(F + (l & 1) * 16 + ds * 4, 4)
                for t in ((0, 1) if l < 4 else (2,)):
                    d = S + t * 16 + l * 4 if t < 2 else S + 32
                    c = "0" if ds == 0 else vr(d, 4)
                    A("v_mfma_f32_16x16x32_bf16 %s, %s, %s, %s" % (vr(d, 4), fa, vr(QF + t * 16 + ds * 4, 4), c))
            if l + 2 < 5:
                kreads(l + 2)
        for t in range(3):
            nv = 16 if t < 2 else 4
            s0 = S + t * 16
            mx = T0 + t
            A("v_max3_f32 v%d, v%d, v%d, v%d" % (mx, s0, s0 + 1, s0 + 2))
            for i in range(3, nv - 1, 2):
                A("v_max3_f32 v%d, v%d, v%d, v%d" % (mx, mx, s0 + i, s0 + i + 1))
            A("v_max_f32 v%d, v%d, v%d" % (mx, mx, s0 + nv - 1))
        for t in range(3):
            A("v_mov_b32 v%d, v%d" % (T3 + t, T0 + t))
        for t in range(3):
            A("v_permlane32_swap_b32 v%d, v%d" % (T0 + t, T3 + t))
        for t in range(3):
            A("v_max_f32 v%d, v%d, v%d" % (T0 + t, T0 + t, T3 + t))
        for t in range(3):
            A("v_mov_b32 v%d, v%d" % (T3 + t, T0 + t))
        for t in range(3):
            A("v_permlane16_swap_b32 v%d, v%d" % (T0 + t, T3 + t))
        for t in range(3):
            A("v_max_f32 v%d, v%d, v%d" % (T0 + t, T0 + t, T3 + t))
        for t in range(3):
            A("v_fma_f32 v%d, v%d, s%d, -v%d" % (T3 + t, T0 + t, sC, M + t))
        A("v_max3_f32 v%d, v%d, v%d, v%d" % (T3, T3, T4, T5))
        A("v_cmp_lt_f32 s[72:73], s%d, v%d" % (sThr, T3))
        A("s_nop 1")
        A("s_cmp_lg_u64 s[72:73], 0")
        A("s_cbranch_scc0 L1_nr%d" % j)
        for t in range(3):
            A("v_mul_f32 v%d, s%d, v%d" % (T0 + t, sC, T0 + t))
            A("v_max_f32 v%d, v%d, v%d" % (T0 + t, T0 + t, M + t))
            A("v_sub_f32 v%d, v%d, v%d" % (T3, M + t, T0 + t))
            A("v_exp_f32 v%d, v%d" % (T3, T3))
            A("v_mov_b32 v%d, v%d" % (M + t, T0 + t))
            if j > 0:
                for i in range(32):
                    A("v_mul_f32 v%d, v%d, v%d" % (O + t * 32 + i, O + t * 32 + i, T3))
                for i in range(4):
                    A("v_mul_f32 v%d, v%d, v%d" % (LACC + t * 4 + i, LACC + t * 4 + i, T3))
        A.label("L1_nr%d" % j)
        for t in range(3):
            nv = 16 if t < 2 else 4
            s0 = S + t * 16
            for i in range(nv):
                A("v_fma_f32 v%d, v%d, s%d, -v%d" % (s0 + i, s0 + i, sC, M + t))
            for i in range(nv):
                A("v_exp_f32 v%d, v%d" % (s0 + i, s0 + i))
            for i in range(0, nv, 2):
                A("v_cvt_pk_bf16_f32 v%d, v%d, v%d" % (s0 + (i // 8) * 8 + (i % 8) // 2, s0 + i, s0 + i + 1))
        n = vq.wait_for({("v", j)})
        A("s_waitcnt vmcnt(%d)" % n)
        A("s_barrier")
        if j + 3 < 8:
            kv_dma(vq, 0, j + 3)
        vb = VS(j) - 49152
        NF = 9

        def vreads(f):
            buf = F + (f % NF) * 4
            if f < 16:
                u, dt = f // 8, f % 8
                for hh in range(2):
                    A("ds_read_b64_tr_b16 %s, v%d offset:%d" % (vr(buf + hh * 2, 2), VA + dt, vb + (2 * u + hh) * 4096))
            else:
                for hh in range(2):
                    dt = (f - 16) * 2 + hh
                    A("v_add_u32 v%d, s%d, v%d" % (T0 + hh, sW4k, VA + dt))
                    A("ds_read_b64_tr_b16 %s, v%d offset:%d" % (vr(buf + hh * 2, 2), T0 + hh, vb))

        PD = 6
        for f in range(PD):
            vreads(f)
        for t in range(2):
            for u in range(2):
                d = vr(LACC + t * 4, 4)
                A("v_mfma_f32_16x16x32_bf16 %s, %s, %s, %s" % (d, vr(ONES, 4), vr(S + t * 16 + u * 8, 4), "0" if (j == 0 and u == 0) else d))
        d = vr(LACC + 8, 4)
        A("v_mfma_f32_16x16x16_bf16 %s, %s, %s, %s" % (d, vr(ONES, 2), vr(S + 32, 2), "0" if j == 0 else d))
        for f in range(20):
            rem = min(20, f + PD) - (f + 1)
            A("s_waitcnt lgkmcnt(%d)" % (2 * rem))
            fa = F + (f % NF) * 4
            if f < 16:
                u, dt = f // 8, f % 8
                for t in range(2):
                    d = vr(O + t * 32 + dt * 4, 4)
                    A("v_mfma_f32_16x16x32_bf16 %s, %s, %s, %s" % (d, vr(fa, 4), vr(S + t * 16 + u * 8, 4), "0" if (j == 0 and u == 0) else d))
            else:
                for hh in range(2):
                    dt = (f - 16) * 2 + hh
                    d = vr(O + 64 + dt * 4, 4)
                    A("v_mfma_f32_16x16x16_bf16 %s, %s, %s, %s" % (d, vr(fa + hh * 2, 2), vr(S + 32, 2), "0" if j == 0 else d))
            if f + PD < 20:
                vreads(f + PD)

    stamp(A, 6)
    A("s_barrier")
    A("v_lshlrev_b32 v%d, 4, v%d" % (T2, LANE))
    A("s_lshl_b32 s%d, s%d, 13" % (sT, sWv))
    A("v_add_u32 v%d, s%d, v%d" % (T3, sT, T2))
    for dt in range(8):
        A("ds_write_b128 v%d, %s offset:%d" % (T3, vr(O + 64 + dt * 4, 4), dt * 1024))
    A("v_and_b32 v%d, 15, v%d" % (T4, LANE))
    A("v_lshlrev_b32 v%d, 3, v%d" % (T4, T4))
    A("s_lshl_b32 s%d, s%d, 7" % (sT, sWv))
    A("v_add_u32 v%d, s%d, v%d" % (T5, sT, T4))
    A("v_mov_b32 v%d, v%d" % (KA + 1, M + 2))
    A("v_mov_b32 v%d, v%d" % (KA + 2, LACC + 8))
    A("ds_write_b64 v%d, %s offset:32768" % (T5, vr(KA + 1, 2)))
    VO = T2
    A("s_lshl_b32 s%d, s%d, 13" % (sT, sWv))
    for t in range(2):
        A("v_rcp_f32 v%d, v%d" % (T1, LACC + t * 4))
        for i in range(32):
            A("v_mul_f32 v%d, v%d, v%d" % (O + t * 32 + i, O + t * 32 + i, T1))
        for ds in range(4):
            a = O + t * 32 + ds * 8
            pk = QF + t * 16 + ds * 4
            for i in range(4):
                A("v_cvt_pk_bf16_f32 v%d, v%d, v%d" % (pk + i, a + 2 * i, a + 2 * i + 1))
            A("buffer_store_dwordx4 %s, v%d, %s, s%d offen offset:%d" % (vr(pk, 4), VO, sr(sO, 4), sT, 1024 * ds))
        if t == 0:
            A("s_add_u32 s%d, s%d, 4096" % (sT, sT))
    A("s_waitcnt lgkmcnt(0)")
    A("s_barrier")
    ML = S
    OP = F
    for w2 in range(4):
        A("ds_read_b64 %s, v%d offset:%d" % (vr(ML + 2 * w2, 2), T4, 32768 + w2 * 128))
    A("s_lshl_b32 s%d, s%d, 11" % (sT, sWv))
    A("v_add_u32 v%d, s%d, v%d" % (T3, sT, T2))
    for w2 in range(4):
        for dd in range(2):
            A("ds_read_b128 %s, v%d offset:%d" % (vr(OP + (w2 * 2 + dd) * 4, 4), T3, w2 * 8192 + dd * 1024))
    A("s_waitcnt lgkmcnt(0)")
    A("v_max3_f32 v%d, v%d, v%d, v%d" % (T1, ML, ML + 2, ML + 4))
    A("v_max_f32 v%d, v%d, v%d" % (T1, T1, ML + 6))
    for w2 in range(4):
        A("v_sub_f32 v%d, v%d, v%d" % (ML + 2 * w2, ML + 2 * w2, T1))
        A("v_exp_f32 v%d, v%d" % (ML + 2 * w2, ML + 2 * w2))
    A("v_mul_f32 v%d, v%d, v%d" % (T5, ML, ML + 1))
    for w2 in range(1, 4):
        A("v_fma_f32 v%d, v%d, v%d, v%d" % (T5, ML + 2 * w2, ML + 2 * w2 + 1, T5))
    A("v_rcp_f32 v%d, v%d" % (T5, T5))
    for w2 in range(4):
        A("v_mul_f32 v%d, v%d, v%d" % (ML + 2 * w2, ML + 2 * w2, T5))
    for dd in range(2):
        for r in range(4):
            d = O + dd * 4 + r
            A("v_mul_f32 v%d, v%d, v%d" % (d, OP + dd * 4 + r, ML))
            for w2 in range(1, 4):
                A("v_fma_f32 v%d, v%d, v%d, v%d" % (d, OP + (w2 * 2 + dd) * 4 + r, ML + 2 * w2, d))
    A("s_lshl_b32 s%d, s%d, 10" % (sT, sWv))
    A("s_add_u32 s%d, s%d, %d" % (sT, sT, 8 * 4096))
    for i in range(4):
        A("v_cvt_pk_bf16_f32 v%d, v%d, v%d" % (QF + 32 + i, O + 2 * i, O + 2 * i + 1))
    A("buffer_store_dwordx4 %s, v%d, %s, s%d offen" % (vr(QF + 32, 4), VO, sr(sO, 4), sT))
    if STAMP:
        A("s_waitcnt vmcnt(0)")
    stamp(A, 7)
    dump_stamps(A, 8, 0, sWv, 240)
    A.label("L1_done")
    A("s_endpgm")


def kernel_oproj3(A):
    K2 = "oproj_kernel"
    A.raw(".globl %s\n.p2align 8\n.type %s,@function\n%s:" % (K2, K2, K2))
    A("s_cmp_ge_u32 s2, 192")
    A("s_cbranch_scc1 L2_done")
    stamp(A, 0)
    load_kernargs(A)
    sBr, sMt, sNt, sW8 = 30, 31, 32, 33
    A("s_and_b32 s35, s2, 7")
    A("s_lshr_b32 s%d, s35, 2" % sBr)
    A("s_and_b32 s35, s35, 3")
    A("s_mul_i32 s35, s35, 3")
    A("s_lshr_b32 s36, s2, 3")
    A("s_and_b32 s%d, s36, 7" % sNt)
    A("s_lshr_b32 s36, s36, 3")
    A("s_add_u32 s%d, s35, s36" % sMt)
    ACC, XR, FR = 0, 96, 168
    WD, VX, RD = 200, 201, 202
    LANE, T0, T1, T2, T3 = 206, 207, 208, 209, 210
    A("v_and_b32 v%d, 63, v0" % LANE)
    A("v_lshrrev_b32 v%d, 6, v0" % T0)
    A("v_readfirstlane_b32 s%d, v%d" % (sW8, T0))
    A("s_waitcnt lgkmcnt(0)")
    stamp(A, 6)
    A("s_cmp_eq_u32 s%d, 0" % sBr)
    A("s_cselect_b64 s[12:13], s[12:13], s[22:23]")
    sW, sX, sO = 44, 48, 52
    A("s_lshl_b32 s36, s%d, 7" % sNt)
    A("s_sub_u32 s37, %d, s36" % (4096 * 1024))
    make_srd(A, sW, 12, 13, "s36", "s37")
    A("s_mul_i32 s35, s%d, %d" % (sBr, O_BRANCH_BYTES))
    make_srd(A, sX, 28, 29, "s35", "%d" % O_BRANCH_BYTES)
    A("s_mul_i32 s35, s%d, %d" % (sMt, 96 * 2048))
    A("s_lshl_b32 s37, s%d, 10" % sBr)
    A("s_add_u32 s36, s36, s37")
    A("s_add_u32 s35, s35, s36")
    A("s_sub_u32 s37, %d, s36" % (96 * 2048))
    make_srd(A, sO, 24, 25, "s35", "s37")
    sQ = 56
    A("s_mul_i32 s35, s%d, 6" % sMt)
    for i in range(6):
        A("s_add_u32 s36, s35, %d" % i)
        A("s_mul_i32 s37, s36, 57")
        A("s_lshr_b32 s37, s37, 9")
        A("s_mul_i32 s38, s37, 9")
        A("s_sub_u32 s38, s36, s38")
        A("s_mul_i32 s37, s37, %d" % (32 * 36864))
        A("s_lshl_b32 s38, s38, 12")
        A("s_add_u32 s%d, s37, s38" % (sQ + i))
    sRot, sk, st, sx, sL = 62, 63, 64, 65, 66
    A("s_lshl_b32 s%d, s%d, 1" % (sRot, sNt))
    A("s_mul_i32 s35, s%d, 5" % sMt)
    A("s_add_u32 s%d, s%d, s35" % (sRot, sRot))
    if os.environ.get("ROTM"):
        A("s_mul_i32 s35, s%d, 3" % sMt)
        A("s_add_u32 s%d, s%d, s35" % (sRot, sNt))
        A("s_and_b32 s%d, s%d, %s" % (sRot, sRot, os.environ.get("ROTM")))
    A("s_lshl_b32 s%d, s%d, 14" % (sL, sW8))
    A("v_bfe_u32 v%d, v%d, 1, 2" % (T0, LANE))
    A("v_lshrrev_b32 v%d, 4, v%d" % (T1, LANE))
    A("v_xor_b32 v%d, v%d, v%d" % (T0, T0, T1))
    A("v_lshlrev_b32 v%d, 5, v%d" % (T0, T0))
    A("v_and_b32 v%d, 1, v%d" % (T1, LANE))
    A("v_lshl_add_u32 v%d, v%d, 4, v%d" % (T0, T1, T0))
    A("v_lshrrev_b32 v%d, 3, v%d" % (T1, LANE))
    A("v_lshl_add_u32 v%d, v%d, 10, v%d" % (WD, T1, T0))
    A("v_lshlrev_b32 v%d, 4, v%d" % (VX, LANE))
    A("v_lshrrev_b32 v%d, 2, v%d" % (T0, LANE))
    A("v_bfe_u32 v%d, v%d, 3, 2" % (T1, LANE))
    A("v_lshlrev_b32 v%d, 5, v%d" % (T1, T1))
    A("v_lshl_add_u32 v%d, v%d, 7, v%d" % (T1, T0, T1))
    A("v_and_b32 v%d, 3, v%d" % (T0, LANE))
    A("v_lshl_add_u32 v%d, v%d, 3, v%d" % (T1, T0, T1))
    A("v_add_u32 v%d, s%d, v%d" % (RD, sL, T1))
    for nt in range(1, 4):
        A("v_xor_b32 v%d, %d, v%d" % (RD + nt, nt << 5, RD))
    vq = VmQ()
    NS, XD, NK = 4, 3, 16

    def kidx(i):
        A("s_add_u32 s%d, s%d, %d" % (sk, sRot, i))
        A("s_and_b32 s%d, s%d, 15" % (sk, sk))
        A("s_lshl_b32 s%d, s%d, 3" % (sk, sk))
        A("s_add_u32 s%d, s%d, s%d" % (sk, sk, sW8))

    def dma_w(i):
        A("s_lshl_b32 s%d, s%d, 15" % (st, sk))
        for m in range(4):
            A("s_add_u32 m0, s%d, %d" % (sL, (i % NS) * 4096 + m * 1024))
            if m:
                A("s_add_u32 s%d, s%d, 8192" % (st, st))
            A("buffer_load_dwordx4 v%d, %s, s%d offen lds" % (WD, sr(sW, 4), st))
            vq.issue(("w", i))

    def xload(i):
        A("s_lshr_b32 s%d, s%d, 2" % (sx, sk))
        A("s_mul_i32 s%d, s%d, 36864" % (sx, sx))
        A("s_and_b32 s%d, s%d, 3" % (st, sk))
        A("s_lshl_b32 s%d, s%d, 10" % (st, st))
        A("s_add_u32 s%d, s%d, s%d" % (sx, sx, st))
        for q in range(6):
            A("s_add_u32 s%d, s%d, s%d" % (st, sx, sQ + q))
            A("buffer_load_dwordx4 %s, v%d, %s, s%d offen" % (vr(XR + (i % XD) * 24 + q * 4, 4), VX, sr(sX, 4), st))
            vq.issue(("x", i))

    def wreads(i):
        for nt in range(4):
            for hh in range(2):
                A("ds_read_b64_tr_b16 %s, v%d offset:%d" % (vr(FR + (i & 1) * 16 + nt * 4 + hh * 2, 2), RD + nt, (i % NS) * 4096 + hh * 2048))

    for i in range(2):
        kidx(i)
        dma_w(i)
        xload(i)
    kidx(2)
    dma_w(2)
    stamp(A, 1)
    A("s_waitcnt vmcnt(%d)" % vq.wait_for({("w", 0)}))
    stamp(A, 2)
    wreads(0)
    for i in range(NK):
        need = {("x", i)}
        if i + 1 < NK:
            need.add(("w", i + 1))
        A("s_waitcnt vmcnt(%d) lgkmcnt(0)" % vq.wait_for(need))
        if i == NK // 2:
            stamp(A, 3)
        if i + 1 < NK:
            wreads(i + 1)
        if i + 3 < NK:
            kidx(i + 3)
            dma_w(i + 3)
        if i + 2 < NK:
            kidx(i + 2)
            xload(i + 2)
        for nt in range(4):
            for q in range(6):
                a = ACC + (nt * 6 + q) * 4
                c = "0" if i == 0 else vr(a, 4)
                A("v_mfma_f32_16x16x32_bf16 %s, %s, %s, %s" % (vr(a, 4), vr(FR + (i & 1) * 16 + nt * 4, 4), vr(XR + (i % XD) * 24 + q * 4, 4), c))
    stamp(A, 4)
    A("s_lshl_b32 s35, s%d, 13" % sW8)
    A("v_add_u32 v%d, s35, v%d" % (T0, VX))
    A("s_lshl_b32 s35, s%d, 10" % sW8)
    A("v_add_u32 v%d, s35, v%d" % (T1, VX))
    Y = 96
    for rnd in range(3):
        A("s_barrier")
        for f in range(8):
            A("ds_write_b128 v%d, %s offset:%d" % (T0, vr(ACC + (rnd * 8 + f) * 4, 4), f * 1024))
        A("s_waitcnt lgkmcnt(0)")
        A("s_barrier")
        for w2 in range(8):
            A("ds_read_b128 %s, v%d offset:%d" % (vr(Y + rnd * 32 + w2 * 4, 4), T1, w2 * 8192))
        A("s_waitcnt lgkmcnt(0)")
    A("v_and_b32 v%d, 15, v%d" % (T0, LANE))
    A("v_lshlrev_b32 v%d, 11, v%d" % (T0, T0))
    A("v_lshrrev_b32 v%d, 4, v%d" % (T1, LANE))
    A("v_lshl_add_u32 v%d, v%d, 3, v%d" % (T0, T1, T0))
    for rnd in range(3):
        y = Y + rnd * 32
        for step in (16, 8, 4):
            for i in range(step):
                A("v_add_f32 v%d, v%d, v%d" % (y + i, y + i, y + step + i))
        A("s_add_u32 s35, s%d, %d" % (sW8, 8 * rnd))
        A("s_mul_i32 s36, s35, 43")
        A("s_lshr_b32 s36, s36, 8")
        A("s_mul_i32 s37, s36, 6")
        A("s_sub_u32 s37, s35, s37")
        A("s_lshl_b32 s37, s37, 15")
        A("s_lshl_b32 s36, s36, 5")
        A("s_add_u32 s36, s36, s37")
        A("v_cvt_pk_bf16_f32 v%d, v%d, v%d" % (y + 8, y, y + 1))
        A("v_cvt_pk_bf16_f32 v%d, v%d, v%d" % (y + 9, y + 2, y + 3))
        A("buffer_store_dwordx2 %s, v%d, %s, s36 offen" % (vr(y + 8, 2), T0, sr(sO, 4)))
    if STAMP:
        A("s_waitcnt vmcnt(0)")
        stamp(A, 7)
        A("s_lshr_b32 s98, s%d, 1" % sW8)
        dump_stamps(A, 8, 1, 98, 212)
    A.label("L2_done")
    A("s_endpgm")


def kernel_oproj(A):
    K2 = "oproj_kernel"
    A.raw(".globl %s\n.p2align 8\n.type %s,@function\n%s:" % (K2, K2, K2))
    A("s_cmp_ge_u32 s2, 256")
    A("s_cbranch_scc1 L2_done")
    stamp(A, 0)
    load_kernargs(A)
    sBr, sKq, sB, sNb, sWv, sGr, sW8 = 30, 31, 32, 33, 34, 39, 40
    A("s_and_b32 s35, s2, 7")
    A("s_lshr_b32 s%d, s35, 2" % sBr)
    A("s_and_b32 s%d, s35, 3" % sKq)
    A("s_lshr_b32 s35, s2, 3")
    A("s_lshr_b32 s%d, s35, 2" % sB)
    A("s_and_b32 s%d, s35, 3" % sNb)
    LANE, T0, T1, T2, T3 = 254, 238, 239, 240, 241
    A("v_and_b32 v%d, 63, v0" % LANE)
    A("v_lshrrev_b32 v%d, 6, v0" % T0)
    A("v_readfirstlane_b32 s%d, v%d" % (sW8, T0))
    A("s_and_b32 s%d, s%d, 3" % (sWv, sW8))
    A("s_lshr_b32 s%d, s%d, 2" % (sGr, sW8))
    A("s_waitcnt lgkmcnt(0)")
    stamp(A, 6)
    A("s_cmp_eq_u32 s%d, 0" % sBr)
    A("s_cselect_b64 s[12:13], s[12:13], s[22:23]")
    sW, sX, sP = 44, 48, 52
    A("s_lshl_b32 s35, s%d, 1" % sKq)
    A("s_add_u32 s38, s35, s%d" % sGr)
    A("s_lshl_b32 s35, s38, 19")
    A("s_lshl_b32 s36, s%d, 8" % sNb)
    A("s_add_u32 s35, s35, s36")
    A("s_sub_u32 s37, %d, s36" % (512 * 1024))
    make_srd(A, sW, 12, 13, "s35", "s37")
    A("s_mul_i32 s35, s%d, %d" % (sBr, O_BRANCH_BYTES))
    A("s_lshl_b32 s36, s%d, 3" % sB)
    A("s_add_u32 s36, s36, s38")
    A("s_mul_i32 s36, s36, %d" % (4 * 36864))
    A("s_add_u32 s35, s35, s36")
    make_srd(A, sX, 28, 29, "s35", "%d" % (4 * 36864))
    sRot = 68
    A("s_lshl_b32 s%d, s%d, 1" % (sRot, sNb))
    A("s_add_u32 s%d, s%d, s%d" % (sRot, sRot, sB))
    A("s_lshl_b32 s%d, s%d, 1" % (sRot, sRot))
    PW_ = 9 * 1024 // (2 if PBF else 1)
    PT = 8 * PW_
    sTile = 41
    A("s_lshl_b32 s%d, s%d, 5" % (sTile, sBr))
    A("s_lshl_b32 s35, s%d, 2" % sB)
    A("s_add_u32 s%d, s%d, s35" % (sTile, sTile))
    A("s_add_u32 s%d, s%d, s%d" % (sTile, sTile, sNb))
    A("s_lshl_b32 s35, s%d, 2" % sTile)
    A("s_add_u32 s35, s35, s%d" % sKq)
    A("s_mul_i32 s35, s35, %d" % PT)
    A("s_mul_i32 s36, s%d, %d" % (sW8, PW_))
    A("s_add_u32 s35, s35, s36")
    A("s_add_u32 s35, s35, %d" % P_BASE)
    make_srd(A, sP, 28, 29, "s35", "%d" % PW_)
    A("s_lshl_b32 s69, s%d, 16" % sGr)
    R = dict(acc=0, xr=88, fr=172, wrd=72, wdma=80, vx=82, lane=LANE, t0=T0, t1=T1, t2=T2, t3=T3,
             sq0=60, swb=62, sm0=63, st=64, sk=65, sx=66, sw1k=67, slds=69)
    gemm_phase(A, 16, 1024, "perm", sW, sX, sWv, sRot, R, {})
    stamp(A, 4)
    A("s_barrier")
    A("v_lshlrev_b32 v%d, 4, v%d" % (T0, LANE))
    A("s_mul_i32 s35, s%d, 9216" % sW8)
    A("v_add_u32 v%d, s35, v%d" % (T1, T0))
    A("s_xor_b32 s36, s%d, 4" % sW8)
    A("s_mul_i32 s36, s36, 9216")
    A("v_add_u32 v%d, s36, v%d" % (T2, T0))
    X = 96
    A("s_cmp_eq_u32 s%d, 0" % sGr)
    A("s_cbranch_scc0 L2_grB")
    for grp in range(2):
        keep = range(0, 9) if grp == 0 else range(9, 18)
        give = range(9, 18) if grp == 0 else range(0, 9)
        for i, f in enumerate(give):
            A("ds_write_b128 v%d, %s offset:%d" % (T1, vr(f * 4, 4), i * 1024))
        A("s_waitcnt lgkmcnt(0)")
        A("s_barrier")
        for i in range(9):
            A("ds_read_b128 %s, v%d offset:%d" % (vr(X + i * 4, 4), T2, i * 1024))
        A("s_waitcnt lgkmcnt(0)")
        for i, f in enumerate(keep):
            for r in range(4):
                A("v_add_f32 v%d, v%d, v%d" % (X + i * 4 + r, X + i * 4 + r, f * 4 + r))
        if grp == 0:
            A.flush()
            A("s_branch L2_join")
            A.label("L2_grB")
    A.label("L2_join")
    A("s_mov_b32 s35, 0")
    if PBF:
        A("v_lshlrev_b32 v%d, 3, v%d" % (T1, LANE))
        for i in range(9):
            A("v_cvt_pk_bf16_f32 v%d, v%d, v%d" % (2 * i, X + 4 * i, X + 4 * i + 1))
            A("v_cvt_pk_bf16_f32 v%d, v%d, v%d" % (2 * i + 1, X + 4 * i + 2, X + 4 * i + 3))
            if i == 8:
                A("s_mov_b32 s35, 4096")
            A("buffer_store_dwordx2 %s, v%d, %s, s35 offen offset:%d" % (vr(2 * i, 2), T1, sr(sP, 4), (i % 8) * 512))
    else:
        for i in range(9):
            if i % 4 == 0 and i:
                A("s_add_u32 s35, s35, 4096")
            A("buffer_store_dwordx4 %s, v%d, %s, s35 offen offset:%d" % (vr(X + i * 4, 4), T0, sr(sP, 4), (i % 4) * 1024))
    if STAMP:
        A("s_waitcnt vmcnt(0)")
        stamp(A, 7)
        A("s_lshr_b32 s98, s%d, 1" % sW8)
        dump_stamps(A, 8, 1, 98, 240)
    A.label("L2_done")
    A("s_endpgm")


def kernel_reduce(A):
    K3 = "reduce_kernel"
    FB = 512 if PBF else 1024
    PT = 72 * FB
    A.raw(".globl %s\n.p2align 8\n.type %s,@function\n%s:" % (K3, K3, K3))
    A("s_cmp_ge_u32 s2, 1152")
    A("s_cbranch_scc1 L3_done")
    A("s_load_dwordx2 s[24:25], s[0:1], 80")
    A("s_load_dwordx2 s[28:29], s[0:1], 96")
    A("v_lshrrev_b32 v1, 6, v0")
    A("v_and_b32 v2, 63, v0")
    A("v_readfirstlane_b32 s30, v1")
    A("s_lshl_b32 s31, s2, 2")
    A("s_add_u32 s30, s30, s31")
    A("s_mul_hi_u32 s31, s30, %d" % ((1 << 32) // 72 + 1))
    A("s_mul_i32 s32, s31, 72")
    A("s_sub_u32 s32, s30, s32")
    A("s_mul_hi_u32 s33, s32, %d" % ((1 << 32) // 9 + 1))
    A("s_mul_i32 s34, s33, 9")
    A("s_sub_u32 s34, s32, s34")
    A("s_mul_i32 s35, s31, %d" % (4 * PT))
    A("s_mul_i32 s36, s32, %d" % FB)
    A("s_add_u32 s35, s35, s36")
    A("s_add_u32 s35, s35, %d" % P_BASE)
    A("s_waitcnt lgkmcnt(0)")
    make_srd(A, 40, 28, 29, "s35", "%d" % (3 * PT + FB))
    A("v_lshlrev_b32 v3, %d, v2" % (3 if PBF else 4))
    for kq in range(4):
        A("s_mov_b32 s%d, %d" % (48 + kq, kq * PT))
        if PBF:
            A("buffer_load_dwordx2 %s, v3, s[40:43], s%d offen" % (vr(24 + kq * 2, 2), 48 + kq))
        else:
            A("buffer_load_dwordx4 %s, v3, s[40:43], s%d offen" % (vr(4 + kq * 4, 4), 48 + kq))
    A("s_lshr_b32 s36, s33, 2")
    A("s_mul_i32 s36, s36, 9")
    A("s_add_u32 s36, s36, s34")
    A("s_and_b32 s37, s33, 3")
    A("s_lshl_b32 s37, s37, 1")
    A("s_lshr_b32 s38, s36, 3")
    A("s_add_u32 s39, s37, s38")
    A("s_cmp_ge_u32 s36, 16")
    A("s_cselect_b32 s39, 8, s39")
    A("s_and_b32 s36, s36, 7")
    A("s_xor_b32 s36, s36, s37")
    A("s_lshr_b32 s52, s31, 5")
    A("s_lshr_b32 s53, s31, 2")
    A("s_and_b32 s53, s53, 7")
    A("s_and_b32 s54, s31, 3")
    A("s_mul_i32 s53, s53, 144")
    A("s_lshl_b32 s39, s39, 4")
    A("s_add_u32 s53, s53, s39")
    A("s_lshl_b32 s53, s53, 11")
    A("s_lshl_b32 s52, s52, 10")
    A("s_lshl_b32 s54, s54, 8")
    A("s_lshl_b32 s36, s36, 5")
    A("s_add_u32 s53, s53, s52")
    A("s_add_u32 s53, s53, s54")
    A("s_add_u32 s53, s53, s36")
    A("s_mov_b32 s55, 0")
    make_srd(A, 44, 24, 25, "s55", "%d" % (8 * 144 * 1024 * 2))
    A("v_and_b32 v1, 15, v2")
    A("v_lshlrev_b32 v1, 11, v1")
    A("v_lshrrev_b32 v2, 4, v2")
    A("v_lshl_add_u32 v1, v2, 3, v1")
    A("s_waitcnt vmcnt(0)")
    if PBF:
        for kq in range(4):
            for h in range(2):
                A("v_lshlrev_b32 v%d, 16, v%d" % (4 + kq * 4 + 2 * h, 24 + kq * 2 + h))
                A("v_and_b32 v%d, 0xffff0000, v%d" % (5 + kq * 4 + 2 * h, 24 + kq * 2 + h))
    for i in range(4):
        A("v_add_f32 v%d, v%d, v%d" % (4 + i, 4 + i, 8 + i))
        A("v_add_f32 v%d, v%d, v%d" % (12 + i, 12 + i, 16 + i))
    for i in range(4):
        A("v_add_f32 v%d, v%d, v%d" % (4 + i, 4 + i, 12 + i))
    A("v_cvt_pk_bf16_f32 v20, v4, v5")
    A("v_cvt_pk_bf16_f32 v21, v6, v7")
    A("buffer_store_dwordx2 v[20:21], v1, s[44:47], s53 offen")
    A.label("L3_done")
    A("s_endpgm")


def kd(name, vgpr, sgpr=102):
    return """.amdhsa_kernel %s
  .amdhsa_next_free_vgpr %d
  .amdhsa_next_free_sgpr %d
  .amdhsa_accum_offset %d
  .amdhsa_group_segment_fixed_size 0
  .amdhsa_kernarg_size 104
  .amdhsa_user_sgpr_count 2
  .amdhsa_user_sgpr_kernarg_segment_ptr 1
  .amdhsa_system_sgpr_workgroup_id_x 1
.end_amdhsa_kernel
""" % (name, vgpr, sgpr, (vgpr + 3) // 4 * 4)


def main():
    A = Asm()
    hdr = open(os.path.join(os.path.dirname(os.path.abspath(__file__)), "..", "cdna_kernels", NAME + ".s.ref")).read().split("\n")
    head = [l for l in hdr if l.startswith(";") and "@launch" not in l and "Override launch" not in l and "grid=ceil" not in l]
    out = "\n".join(head) + "\n"
    out += "; @launch kernel=attn_kernel grid=(512,1,1) block=(256,1,1) lds=81920\n"
    out += "; @launch kernel=oproj_kernel grid=(256,1,1) block=(512,1,1) lds=131072\n"
    out += "; @launch kernel=reduce_kernel grid=(1152,1,1) block=(256,1,1) lds=0\n"
    if "twice" in EXP:
        out += "; @launch kernel=oproj_kernel grid=(256,1,1) block=(512,1,1) lds=131072\n"
    out += '.amdgcn_target "amdgcn-amd-amdhsa--gfx950"\n.text\n'
    kernel_attn(A)
    kernel_oproj(A)
    kernel_reduce(A)
    out += A.text()
    out += '.section .rodata,"a"\n.p2align 6\n'
    out += kd("attn_kernel", 256, 100 if STAMP else 76)
    out += ".p2align 6\n" + kd("oproj_kernel", 256, 100 if STAMP else 74)
    out += ".p2align 6\n" + kd("reduce_kernel", 32, 60)
    dst = sys.argv[1] if len(sys.argv) > 1 else os.path.join(os.path.dirname(os.path.abspath(__file__)), "..", "cdna_kernels", NAME + ".s")
    open(dst, "w").write(out)
    print("wrote", dst, A.ninst, "instructions")


if __name__ == "__main__":
    main()
```

```python
import sys, os, struct
sys.path.insert(0, os.path.dirname(os.path.abspath(__file__)))
from asmlib import Asm, VmQ

NAME = "concat_heads__mha_block_cached__mha_block_cached__near_ridge"
O_BRANCH_BYTES = 1152 * 4096 * 2
P_BASE = 2 * O_BRANCH_BYTES
SCALE_C = 1.4426950408889634 / (128.0 ** 0.5)
EXP = os.environ.get("EXP", "")
KVPOL = os.environ.get("KVPOL", "nt ")
WPOL = os.environ.get("WPOL", "")
FUSED = os.environ.get("FUSED", "1") == "1"
PBF = os.environ.get("PBF", "0") == "1"
PPOL = os.environ.get("PPOL", "")
PLPOL = os.environ.get("PLPOL", "sc1")
XPOL = os.environ.get("XPOL", "")


def f32bits(x):
    return struct.unpack("<I", struct.pack("<f", x))[0]


def vr(base, n):
    return "v[%d:%d]" % (base, base + n - 1)


def sr(base, n):
    return "s[%d:%d]" % (base, base + n - 1)


def load_kernargs(A):
    A("s_load_dwordx16 s[4:19], s[0:1], 0")
    A("s_load_dwordx8 s[20:27], s[0:1], 64")
    A("s_load_dwordx2 s[28:29], s[0:1], 96")


def make_srd(A, d, lo, hi, off_s, nrec):
    A("s_add_u32 s%d, s%d, %s" % (d, lo, off_s))
    A("s_addc_u32 s%d, s%d, 0" % (d + 1, hi))
    A("s_and_b32 s%d, s%d, 0xffff" % (d + 1, d + 1))
    A("s_mov_b32 s%d, %s" % (d + 2, nrec))
    A("s_mov_b32 s%d, 0x00020000" % (d + 3))


STAMP = "stamp" in EXP


def stamp(A, i):
    if STAMP:
        if "real" in EXP:
            A("s_memrealtime s[%d:%d]" % (80 + 2 * i, 81 + 2 * i))
        else:
            A("s_memtime s[%d:%d]" % (80 + 2 * i, 81 + 2 * i))


def dump_stamps(A, n, kidx, sWv, vt):
    if not STAMP:
        return
    A("s_waitcnt lgkmcnt(0)")
    A("s_lshl_b32 s96, s2, 8")
    A("s_lshl_b32 s97, s%d, 6" % sWv)
    A("s_add_u32 s96, s96, s97")
    A("s_add_u32 s96, s96, %d" % (200 * 1024 * 1024 + kidx * 1024 * 1024))
    A("s_add_u32 s76, s28, s96")
    A("s_addc_u32 s77, s29, 0")
    A("s_and_b32 s77, s77, 0xffff")
    A("s_mov_b32 s78, 64")
    A("s_mov_b32 s79, 0x00020000")
    A("v_mov_b32 v%d, 0" % vt)
    for i in range(n):
        A("v_mov_b32 v%d, s%d" % (vt + 1, 80 + 2 * i))
        A("buffer_store_dword v%d, v%d, s[76:79], 0 offen offset:%d" % (vt + 1, vt, 4 * i))
    A("s_waitcnt vmcnt(0)")


def gemm_phase(A, nk, wstride, mode, sW, sX, sWave, sRot, R, hooks):
    vq = VmQ()
    lane, t0, t1, t2, t3 = R["lane"], R["t0"], R["t1"], R["t2"], R["t3"]
    wdma, vx, wrd = R["wdma"], R["vx"], R["wrd"]
    sq0, swb, sm0, st, sk, sx, sw1k = R["sq0"], R["swb"], R["sm0"], R["st"], R["sk"], R["sx"], R["sw1k"]
    nat = mode == "nat"
    NW = 5 if nat else 8
    XD = 4 if nat else 7
    XB = 40960
    wslot = (lambda c: (c + 4) % 5) if nat else (lambda c: c % 8)
    xslot = lambda c: (c + 1) & 1
    A("v_lshrrev_b32 v%d, 4, v%d" % (t0, lane))
    A("v_and_b32 v%d, 15, v%d" % (t1, lane))
    if nat:
        A("s_and_b32 s%d, s%d, 1" % (st, sWave))
        A("s_lshl_b32 s%d, s%d, 2" % (st, st))
        A("v_or_b32 v%d, s%d, v%d" % (t2, st, t0))
    else:
        A("v_mov_b32 v%d, v%d" % (t2, t0))
    A("v_lshrrev_b32 v%d, 1, v%d" % (t3, t1))
    A("v_xor_b32 v%d, v%d, v%d" % (t2, t2, t3))
    A("v_lshlrev_b32 v%d, 5, v%d" % (t2, t2))
    A("v_and_b32 v%d, 1, v%d" % (t3, lane))
    A("v_lshl_add_u32 v%d, v%d, 4, v%d" % (t2, t3, t2))
    A("v_mul_u32_u24 v%d, %d, v%d" % (t3, wstride, t0))
    A("v_add_u32 v%d, v%d, v%d" % (wdma, t2, t3))
    if nat:
        A("v_mov_b32 v%d, v%d" % (wdma + 1, wdma))
        A("s_lshl_b32 s%d, s%d, 2" % (st, sWave))
        A("v_add_u32 v%d, s%d, v%d" % (t2, st, t0))
        A("v_xor_b32 v%d, v%d, v%d" % (t2, t2, lane))
        A("v_and_b32 v%d, 7, v%d" % (t2, t2))
        A("v_lshlrev_b32 v%d, 4, v%d" % (t2, t2))
        A("v_lshrrev_b32 v%d, 3, v%d" % (t3, lane))
        A("s_lshl_b32 s%d, s%d, 3" % (st, sWave))
        A("v_add_u32 v%d, s%d, v%d" % (t3, st, t3))
        A("v_lshl_add_u32 v%d, v%d, 10, v%d" % (vx, t3, t2))
        A("v_lshrrev_b32 v%d, 1, v%d" % (t2, t1))
        A("v_xor_b32 v%d, v%d, v%d" % (t2, t2, t0))
        A("v_lshlrev_b32 v%d, 4, v%d" % (t2, t2))
        A("v_lshl_add_u32 v%d, v%d, 7, v%d" % (t2, t1, t2))
        A("v_add_u32 v%d, %d, v%d" % (vx + 1, XB, t2))
        A("v_xor_b32 v%d, 64, v%d" % (vx + 2, vx + 1))
        A("s_lshl_b32 s%d, s%d, 12" % (st, sWave))
        A("v_add_u32 v%d, s%d, v%d" % (vx + 3, st, vx + 1))
        A("v_add_u32 v%d, s%d, v%d" % (vx + 4, st, vx + 2))
        A("v_bfe_u32 v%d, v%d, 2, 2" % (t1, lane))
        A("v_and_b32 v%d, 1, v%d" % (t2, t0))
        A("v_lshl_add_u32 v%d, v%d, 2, v%d" % (t2, t2, t1))
        A("v_lshl_add_u32 v%d, v%d, 3, v%d" % (t3, t0, t1))
        hoff = 1024
    else:
        A("v_xor_b32 v%d, 0x80, v%d" % (wdma + 1, wdma))
        A("v_lshlrev_b32 v%d, 4, v%d" % (vx, lane))
        A("v_lshrrev_b32 v%d, 2, v%d" % (t3, lane))
        A("v_and_b32 v%d, 7, v%d" % (t2, t3))
        hoff = 4096
    A("s_lshl_b32 s%d, s%d, 1" % (st, sWave))
    A("v_xor_b32 v%d, s%d, v%d" % (t2, st, t2))
    A("v_lshlrev_b32 v%d, 5, v%d" % (t2, t2))
    A("v_lshl_add_u32 v%d, v%d, 8, v%d" % (t2, t3, t2))
    A("v_and_b32 v%d, 3, v%d" % (t3, lane))
    A("v_lshl_add_u32 v%d, v%d, 3, v%d" % (wrd, t3, t2))
    if "slds" in R:
        A("v_add_u32 v%d, s%d, v%d" % (wrd, R["slds"], wrd))
    for dl in range(1, 8):
        A("v_xor_b32 v%d, %d, v%d" % (wrd + dl, dl << 5, wrd))
    A("s_lshl_b32 s%d, s%d, 13" % (sq0, sWave))
    A("s_mul_i32 s%d, s%d, %d" % (swb, sWave, 8 * wstride))
    A("s_lshl_b32 s%d, s%d, 11" % (sm0, sWave))
    if "slds" in R:
        A("s_add_u32 s%d, s%d, s%d" % (sm0, sm0, R["slds"]))
    A("s_lshl_b32 s%d, s%d, 10" % (sw1k, sWave))

    def kidx(ks):
        A("s_add_u32 s%d, s%d, %d" % (sk, sRot, ks))
        A("s_and_b32 s%d, s%d, %d" % (sk, sk, nk - 1))

    def dma_w(ks):
        kidx(ks)
        A("s_mul_i32 s%d, s%d, %d" % (st, sk, 32 * wstride))
        A("s_add_u32 s%d, s%d, s%d" % (st, st, swb))
        for mm in range(2):
            A("s_add_u32 m0, s%d, %d" % (sm0, wslot(ks) * 8192 + mm * 1024))
            if mm:
                A("s_add_u32 s%d, s%d, %d" % (st, st, 4 * wstride))
            A("buffer_load_dwordx4 v%d, %s, s%d offen %slds" % (wdma + mm, sr(sW, 4), st, WPOL))
            vq.issue(("w", ks))

    def dma_x(c):
        kidx(2 * c)
        A("s_lshl_b32 s%d, s%d, 6" % (sx, sk))
        for i in range(5):
            A("s_add_u32 m0, s%d, %d" % (sw1k, XB + xslot(c) * 20480 + i * 4096))
            if i:
                A("s_add_u32 s%d, s%d, 32768" % (sx, sx))
            A("buffer_load_dwordx4 v%d, %s, s%d offen %slds" % (vx, sr(sX, 4), sx, XPOL))
            vq.issue(("x", c))

    def xreads(c):
        out = []
        for p in range(2):
            base = R["xr"] + ((2 * c + p) % XD) * 12
            so = xslot(c) * 20480
            out.append("ds_read_b128 %s, v%d offset:%d" % (vr(base, 4), vx + 3 + p, so))
            out.append("ds_read_b128 %s, v%d offset:%d" % (vr(base + 4, 4), vx + 3 + p, so + 2048))
            out.append("ds_read_b128 %s, v%d offset:%d" % (vr(base + 8, 4), vx + 1 + p, so + 16384))
        return out

    def xload(ks):
        base = R["xr"] + (ks % XD) * 12
        kidx(ks)
        A("s_lshr_b32 s%d, s%d, 2" % (sx, sk))
        A("s_mul_i32 s%d, s%d, 36864" % (sx, sx))
        A("s_and_b32 s%d, s%d, 3" % (st, sk))
        A("s_lshl_b32 s%d, s%d, 10" % (st, st))
        A("s_add_u32 s%d, s%d, s%d" % (sx, sx, st))
        A("s_add_u32 s%d, s%d, s%d" % (st, sx, sq0))
        A("buffer_load_dwordx4 %s, v%d, %s, s%d offen" % (vr(base, 4), vx, sr(sX, 4), st) + " " + R.get("xpol", XPOL))
        A("s_add_u32 s%d, s%d, %d" % (st, st, 4096))
        A("buffer_load_dwordx4 %s, v%d, %s, s%d offen" % (vr(base + 4, 4), vx, sr(sX, 4), st) + " " + R.get("xpol", XPOL))
        A("s_add_u32 s%d, s%d, %d" % (st, sx, 8 * 4096))
        A("buffer_load_dwordx4 %s, v%d, %s, s%d offen" % (vr(base + 8, 4), vx, sr(sX, 4), st) + " " + R.get("xpol", XPOL))
        for _ in range(3):
            vq.issue(("x", ks))

    acc, fr = R["acc"], R["fr"]

    def wreads(ks, dl):
        return ["ds_read_b64_tr_b16 %s, v%d offset:%d" % (vr(fr + (ks & 1) * 32 + dl * 4 + h * 2, 2), wrd + dl, wslot(ks) * 8192 + h * hoff)
                for h in range(2)]

    nw = [0]
    nx = [0]

    def fill(i, maxw, maxx):
        k = 0
        while nw[0] < min(nk, i + 1 + NW - (0 if i >= 0 else 0)) and nw[0] <= i + NW and k < maxw:
            if nw[0] >= NW and nw[0] - NW > i:
                break
            dma_w(nw[0])
            nw[0] += 1
            k += 1
        k = 0
        if nat:
            while nx[0] < nk // 2 and (nx[0] < 2 or 2 * (nx[0] - 2) <= i) and k < maxx:
                dma_x(nx[0])
                nx[0] += 1
                k += 1
        else:
            while nx[0] < nk and nx[0] <= i + XD - 1 and k < maxx:
                xload(nx[0])
                nx[0] += 1
                k += 1

    PW, PX = int(os.environ.get("PW", "2")), int(os.environ.get("PX", "1" if nat else "2"))
    if nat:
        dma_w(0)
        dma_x(0)
        dma_w(1)
        nw[0], nx[0] = 2, 1
    elif "prex" in R:
        for i in range(NW):
            dma_w(i)
        R["prex"](A)
        xload(0)
        xload(1)
        nw[0], nx[0] = NW, 2
    else:
        dma_w(0)
        xload(0)
        dma_w(1)
        xload(1)
        nw[0], nx[0] = 2, 2
    stamp(A, 1)
    A("s_waitcnt vmcnt(%d)" % vq.wait_for({("w", 0)} | ({("x", 0)} if nat else set())))
    A("s_barrier")
    stamp(A, 2)
    fill(-1, PW, PX)
    for dl in range(8):
        for r in wreads(0, dl):
            A(r)
    if nat:
        for r in xreads(0):
            A(r)
    for i in range(nk):
        need = set()
        if i + 1 < nk:
            need.add(("w", i + 1))
        if nat:
            if i % 2 == 1 and i + 1 < nk:
                need.add(("x", (i + 1) // 2))
        else:
            need.add(("x", i))
        n = vq.wait_for(need)
        A("s_waitcnt vmcnt(%d) lgkmcnt(0)" % n)
        A("s_barrier")
        if i == nk // 2:
            stamp(A, 3)
        fill(i, PW, PX)
        if i in hooks:
            hooks[i](A, vq)
        xr = xreads((i + 1) // 2) if (nat and i % 2 == 1 and i + 1 < nk) else []
        xb = R["xr"] + (i % XD) * 12
        for dl in range(8):
            if i + 1 < nk:
                for r in wreads(i + 1, dl):
                    A(r)
            if dl < len(xr):
                A(xr[dl])
            for t in range(3):
                if t == 2 and dl >= 2:
                    continue
                a = acc + (t * 8 + dl) * 4 if t < 2 else acc + 64 + dl * 4
                c = "0" if i == 0 else vr(a, 4)
                A("v_mfma_f32_16x16x32_bf16 %s, %s, %s, %s" % (vr(a, 4), vr(fr + (i & 1) * 32 + dl * 4, 4), vr(xb + t * 4, 4), c))
    return vq


def cross_lane(A, op, v, tmp):
    A("v_mov_b32 v%d, v%d" % (tmp, v))
    A("v_permlane32_swap_b32 v%d, v%d" % (v, tmp))
    A("%s v%d, v%d, v%d" % (op, v, v, tmp))
    A("v_mov_b32 v%d, v%d" % (tmp, v))
    A("v_permlane16_swap_b32 v%d, v%d" % (v, tmp))
    A("%s v%d, v%d, v%d" % (op, v, v, tmp))


THR = float(os.environ.get("THR", "8.0"))


def kernel_attn(A):
    K1 = "attn_kernel"
    A.raw(".globl %s\n.p2align 8\n.type %s,@function\n%s:" % (K1, K1, K1))
    if FUSED:
        A("s_cmp_ge_u32 s2, 768")
        A("s_cbranch_scc1 L1_exit")
        A("s_cmp_ge_u32 s2, 512")
        A("s_cbranch_scc0 L1_go")
        A("s_branch LF_oproj")
        A.label("L1_exit")
        A("s_endpgm")
        A.label("L1_go")
    else:
        A("s_cmp_ge_u32 s2, 512")
        A("s_cbranch_scc1 L1_done")
    stamp(A, 0)
    load_kernargs(A)
    PRIO = os.environ.get("PRIO", "ad")

    def prio(tag, val):
        if tag in PRIO:
            A("s_cmp_ge_u32 s2, 256")
            A("s_cbranch_scc0 L1_pr%s" % tag)
            A("s_setprio %d" % val)
            A.label("L1_pr%s" % tag)
    prio("a", 1)
    sBr, sH, sB, sWv = 30, 31, 32, 33
    A("s_and_b32 s34, s2, 7")
    A("s_lshr_b32 s35, s2, 3")
    A("s_lshr_b32 s%d, s34, 2" % sBr)
    A("s_and_b32 s34, s34, 3")
    A("s_lshl_b32 s34, s34, 3")
    A("s_and_b32 s%d, s35, 7" % sH)
    A("s_add_u32 s%d, s%d, s34" % (sH, sH))
    A("s_lshr_b32 s%d, s35, 3" % sB)
    O, QF, S, LACC, ONES, F = 0, 96, 144, 180, 192, 196
    M = 232
    KA, VA = 235, 239
    VKD, VVD = 247, 248
    T0, T1, T2, T3, T4, T5 = 249, 250, 251, 252, 253, 254
    LANE = 255
    A("v_and_b32 v%d, 63, v0" % LANE)
    A("v_lshrrev_b32 v%d, 6, v0" % T0)
    A("v_readfirstlane_b32 s%d, v%d" % (sWv, T0))
    A("s_waitcnt lgkmcnt(0)")
    A("s_cmp_eq_u32 s%d, 0" % sBr)
    A("s_cselect_b64 s[4:5], s[4:5], s[14:15]")
    A("s_cselect_b64 s[6:7], s[6:7], s[16:17]")
    A("s_cselect_b64 s[8:9], s[8:9], s[18:19]")
    A("s_cselect_b64 s[10:11], s[10:11], s[20:21]")
    sK, sV, sW, sX, sO = 36, 40, 44, 48, 52
    A("s_lshl_b32 s34, s%d, 5" % sB)
    A("s_add_u32 s34, s34, s%d" % sH)
    A("s_lshl_b32 s34, s34, 17")
    make_srd(A, sK, 6, 7, "s34", "131072")
    make_srd(A, sV, 8, 9, "s34", "131072")
    A("s_lshl_b32 s34, s%d, 8" % sH)
    A("s_sub_u32 s35, %d, s34" % (512 * 8192))
    make_srd(A, sW, 10, 11, "s34", "s35")
    A("s_mul_i32 s35, s%d, 147456" % sB)
    make_srd(A, sX, 4, 5, "s35", "147456")
    A("s_mul_i32 s35, s%d, %d" % (sBr, O_BRANCH_BYTES))
    A("s_lshl_b32 s56, s%d, 5" % sB)
    A("s_add_u32 s56, s56, s%d" % sH)
    A("s_mul_i32 s56, s56, 36864")
    A("s_add_u32 s35, s35, s56")
    make_srd(A, sO, 28, 29, "s35", "36864")
    sRot, sRotK = 68, 69
    A("s_lshr_b32 s%d, s2, 3" % sRot)
    A("s_add_u32 s%d, s%d, s%d" % (sRot, sRot, sB))
    A("s_lshl_b32 s%d, s%d, 1" % (sRot, sRot))
    A("s_and_b32 s%d, s%d, 15" % (sRot, sRot))
    A("s_lshr_b32 s%d, s%d, 1" % (sRotK, sRot))
    sC, sW1k, sT, sT2, sW4k, sThr = 56, 57, 58, 59, 70, 71
    A("s_mov_b32 s%d, 0x%08x" % (sC, f32bits(SCALE_C)))
    A("s_mov_b32 s%d, 0x%08x" % (sThr, f32bits(THR)))
    A("s_lshl_b32 s%d, s%d, 10" % (sW1k, sWv))
    A("s_lshl_b32 s%d, s%d, 12" % (sW4k, sWv))

    g, lo = T0, T1
    VLIN = 92
    A("v_lshrrev_b32 v%d, 4, v%d" % (g, LANE))
    A("v_and_b32 v%d, 15, v%d" % (lo, LANE))
    A("s_lshl_b32 s%d, s%d, 2" % (sT, sWv))
    A("v_add_u32 v%d, s%d, v%d" % (T2, sT, g))
    A("v_xor_b32 v%d, v%d, v%d" % (T3, lo, T2))
    A("v_lshlrev_b32 v%d, 4, v%d" % (T3, T3))
    A("v_lshl_add_u32 v%d, v%d, 8, v%d" % (VKD, T2, T3))
    A("v_and_b32 v%d, 7, v%d" % (T3, T2))
    A("v_lshlrev_b32 v%d, 1, v%d" % (T3, T3))
    A("v_xor_b32 v%d, v%d, v%d" % (T3, lo, T3))
    A("v_lshlrev_b32 v%d, 4, v%d" % (T3, T3))
    A("v_lshl_add_u32 v%d, v%d, 8, v%d" % (VVD, T2, T3))
    A("v_lshlrev_b32 v%d, 4, v%d" % (T3, lo))
    A("v_lshl_add_u32 v%d, v%d, 8, v%d" % (VLIN, T2, T3))

    KS = lambda j: ((j + 2) % 3) * 16384
    VS = lambda j: 49152 + (j % 2) * 16384

    def blk_off(j, i):
        if i == 0:
            A("s_add_u32 s%d, s%d, %d" % (sT2, sRotK, j))
            A("s_and_b32 s%d, s%d, 7" % (sT2, sT2))
            A("s_lshl_b32 s%d, s%d, 14" % (sT2, sT2))
        else:
            A("s_add_u32 s%d, s%d, 4096" % (sT2, sT2))

    def kv_dma(vq, isv, j):
        srd, vd, base = (sV, VVD, VS(j)) if isv else (sK, VKD, KS(j))
        for i in range(4):
            A("s_add_u32 m0, s%d, %d" % (sW1k, base + i * 4096))
            blk_off(j, i)
            A("buffer_load_dwordx4 v%d, %s, s%d offen %slds" % (vd, sr(srd, 4), sT2, KVPOL))
            vq.issue(("v" if isv else "k", j))

    PRE = 208

    def pre_load(n, half):
        def fn(A, vq):
            for i in range(2 * half, 2 * half + 2):
                A("s_lshl_b32 s%d, s%d, 14" % (sT2, sRotK))
                if i:
                    A("s_add_u32 s%d, s%d, %d" % (sT2, sT2, 4096 * i))
                A("buffer_load_dwordx4 %s, v%d, %s, s%d offen %s" % (vr(PRE + n * 16 + i * 4, 4), VLIN, sr(sK if n == 0 else sV, 4), sT2, KVPOL))
                vq.issue(("pre", 0))
        return fn

    R = dict(acc=0, xr=96, fr=144, wrd=72, wdma=80, vx=82, lane=LANE, t0=T0, t1=T1, t2=T2, t3=T3,
             sq0=60, swb=62, sm0=63, st=64, sk=65, sx=66, sw1k=67)

    def h12(A, vq):
        kv_dma(vq, 0, 1)
        kv_dma(vq, 1, 1)
    hooks = {1: pre_load(0, 0), 3: pre_load(0, 1), 5: pre_load(1, 0), 7: pre_load(1, 1),
             12: h12, 14: lambda A, vq: kv_dma(vq, 0, 2)}
    vq = gemm_phase(A, 16, 8192, "nat", sW, sX, sWv, sRot, R, hooks)
    assert ("pre", 0) not in vq.q
    if "p1only" in EXP:
        A("s_waitcnt vmcnt(0)")
        A("s_branch L1_done")

    stamp(A, 4)
    SCR = 32768
    TA = 240
    A("v_lshrrev_b32 v%d, 4, v%d" % (g, LANE))
    A("v_and_b32 v%d, 15, v%d" % (lo, LANE))
    A("s_lshl_b32 s%d, s%d, 2" % (sT, sWv))
    A("v_lshrrev_b32 v%d, 1, v%d" % (T2, g))
    A("v_or_b32 v%d, s%d, v%d" % (T2, sT, T2))
    A("v_xor_b32 v%d, v%d, v%d" % (T2, T2, lo))
    A("v_lshlrev_b32 v%d, 4, v%d" % (T2, T2))
    A("v_lshl_add_u32 v%d, v%d, 8, v%d" % (T2, lo, T2))
    A("v_and_b32 v%d, 1, v%d" % (T3, g))
    A("v_lshl_add_u32 v%d, v%d, 3, v%d" % (T2, T3, T2))
    A("v_add_u32 v%d, s%d, v%d" % (T3, sW4k, T2))
    A("v_xor_b32 v%d, v%d, v%d" % (T4, g, lo))
    A("v_lshlrev_b32 v%d, 4, v%d" % (T4, T4))
    A("v_lshl_add_u32 v%d, v%d, 8, v%d" % (T4, lo, T4))
    A("v_add_u32 v%d, s%d, v%d" % (T5, sW4k, T4))
    PK = 144
    for dl in range(8):
        A("v_xor_b32 v%d, %d, v%d" % (TA + (dl & 3), dl << 5, T3))
        for t in range(2):
            a = (t * 8 + dl) * 4
            pk = PK + t * 16 + dl * 2
            A("v_cvt_pk_bf16_f32 v%d, v%d, v%d" % (pk, a, a + 1))
            A("v_cvt_pk_bf16_f32 v%d, v%d, v%d" % (pk + 1, a + 2, a + 3))
            A("ds_write_b64 v%d, %s offset:%d" % (TA + (dl & 3), vr(pk, 2), SCR + t * 16384))
    for ds in range(4):
        A("v_xor_b32 v%d, %d, v%d" % (TA + ds, ds << 6, T5))
        for t in range(2):
            A("ds_read_b128 %s, v%d offset:%d" % (vr(QF + t * 16 + ds * 4, 4), TA + ds, SCR + t * 16384))
    for dl in range(2):
        a = 64 + dl * 4
        A("v_cvt_pk_bf16_f32 v%d, v%d, v%d" % (176 + dl * 2, a, a + 1))
        A("v_cvt_pk_bf16_f32 v%d, v%d, v%d" % (176 + dl * 2 + 1, a + 2, a + 3))
        A("v_xor_b32 v%d, %d, v%d" % (T0 + dl, dl << 5, T3))
        A("ds_write_b64 v%d, %s offset:%d" % (T0 + dl, vr(176 + dl * 2, 2), SCR))
    A("s_waitcnt lgkmcnt(0)")
    A("s_barrier")
    for ds in range(4):
        A("v_xor_b32 v%d, %d, v%d" % (TA + ds, ds << 6, T4))
        A("ds_read_b128 %s, v%d offset:%d" % (vr(QF + 32 + ds * 4, 4), TA + ds, SCR + ds * 4096))
    for i in range(4):
        A("v_mov_b32 v%d, 0x3f803f80" % (ONES + i))
    A("s_waitcnt lgkmcnt(0)")
    A("s_barrier")
    for n in range(2):
        for i in range(4):
            A("ds_write_b128 v%d, %s offset:%d" % (VKD if n == 0 else VVD, vr(PRE + n * 16 + i * 4, 4), (KS(0) if n == 0 else VS(0)) + i * 4096))
    A("s_waitcnt lgkmcnt(0)")
    for ds in range(4):
        A("v_xor_b32 v%d, %d, v%d" % (KA + ds, ds << 6, T4))
    A("v_lshrrev_b32 v%d, 2, v%d" % (T2, LANE))
    A("v_and_b32 v%d, 7, v%d" % (T3, T2))
    A("v_lshlrev_b32 v%d, 5, v%d" % (T3, T3))
    A("v_lshl_add_u32 v%d, v%d, 8, v%d" % (T3, T2, T3))
    A("v_and_b32 v%d, 3, v%d" % (T2, LANE))
    A("v_lshl_add_u32 v%d, v%d, 3, v%d" % (T3, T2, T3))
    A("v_add_u32 v%d, 49152, v%d" % (T3, T3))
    for dt in range(8):
        A("v_xor_b32 v%d, %d, v%d" % (VA + dt, dt << 5, T3))
    for t in range(3):
        A("v_mov_b32 v%d, 0xf149f2ca" % (M + t))
    stamp(A, 5)
    prio("b", 0)
    prio("c", 1)

    NKF = 2
    for j in range(8):
        if j == int(os.environ.get("PJ", "5")):
            prio("d", 0)
            prio("e", 1)
        n = vq.wait_for({("k", j)})
        A("s_waitcnt vmcnt(%d)" % n)
        A("s_barrier")
        if 1 <= j < 7:
            kv_dma(vq, 1, j + 1)
        kb = KS(j)

        def kreads(l):
            buf = F + (l & 1) * 16
            for ds in range(4):
                if l < 4:
                    A("ds_read_b128 %s, v%d offset:%d" % (vr(buf + ds * 4, 4), KA + ds, kb + l * 4096))
                else:
                    A("v_add_u32 v%d, s%d, v%d" % (T0 + ds, sW4k, KA + ds))
                    A("ds_read_b128 %s, v%d offset:%d" % (vr(buf + ds * 4, 4), T0 + ds, kb))

        kreads(0)
        kreads(1)
        for l in range(5):
            A("s_waitcnt lgkmcnt(%d)" % (4 if l < 4 else 0))
            for ds in range(4):
                fa = vr(F + (l & 1) * 16 + ds * 4, 4)
                for t in ((0, 1) if l < 4 else (2,)):
                    d = S + t * 16 + l * 4 if t < 2 else S + 32
                    c = "0" if ds == 0 else vr(d, 4)
                    A("v_mfma_f32_16x16x32_bf16 %s, %s, %s, %s" % (vr(d, 4), fa, vr(QF + t * 16 + ds * 4, 4), c))
            if l + 2 < 5:
                kreads(l + 2)
        for t in range(3):
            nv = 16 if t < 2 else 4
            s0 = S + t * 16
            mx = T0 + t
            A("v_max3_f32 v%d, v%d, v%d, v%d" % (mx, s0, s0 + 1, s0 + 2))
            for i in range(3, nv - 1, 2):
                A("v_max3_f32 v%d, v%d, v%d, v%d" % (mx, mx, s0 + i, s0 + i + 1))
            A("v_max_f32 v%d, v%d, v%d" % (mx, mx, s0 + nv - 1))
        for t in range(3):
            A("v_mov_b32 v%d, v%d" % (T3 + t, T0 + t))
        for t in range(3):
            A("v_permlane32_swap_b32 v%d, v%d" % (T0 + t, T3 + t))
        for t in range(3):
            A("v_max_f32 v%d, v%d, v%d" % (T0 + t, T0 + t, T3 + t))
        for t in range(3):
            A("v_mov_b32 v%d, v%d" % (T3 + t, T0 + t))
        for t in range(3):
            A("v_permlane16_swap_b32 v%d, v%d" % (T0 + t, T3 + t))
        for t in range(3):
            A("v_max_f32 v%d, v%d, v%d" % (T0 + t, T0 + t, T3 + t))
        for t in range(3):
            A("v_fma_f32 v%d, v%d, s%d, -v%d" % (T3 + t, T0 + t, sC, M + t))
        A("v_max3_f32 v%d, v%d, v%d, v%d" % (T3, T3, T4, T5))
        A("v_cmp_lt_f32 s[72:73], s%d, v%d" % (sThr, T3))
        A("s_nop 1")
        A("s_cmp_lg_u64 s[72:73], 0")
        A("s_cbranch_scc0 L1_nr%d" % j)
        for t in range(3):
            A("v_mul_f32 v%d, s%d, v%d" % (T0 + t, sC, T0 + t))
            A("v_max_f32 v%d, v%d, v%d" % (T0 + t, T0 + t, M + t))
            A("v_sub_f32 v%d, v%d, v%d" % (T3, M + t, T0 + t))
            A("v_exp_f32 v%d, v%d" % (T3, T3))
            A("v_mov_b32 v%d, v%d" % (M + t, T0 + t))
            if j > 0:
                for i in range(32):
                    A("v_mul_f32 v%d, v%d, v%d" % (O + t * 32 + i, O + t * 32 + i, T3))
                for i in range(4):
                    A("v_mul_f32 v%d, v%d, v%d" % (LACC + t * 4 + i, LACC + t * 4 + i, T3))
        A.label("L1_nr%d" % j)
        for t in range(3):
            nv = 16 if t < 2 else 4
            s0 = S + t * 16
            for i in range(nv):
                A("v_fma_f32 v%d, v%d, s%d, -v%d" % (s0 + i, s0 + i, sC, M + t))
            for i in range(nv):
                A("v_exp_f32 v%d, v%d" % (s0 + i, s0 + i))
            for i in range(0, nv, 2):
                A("v_cvt_pk_bf16_f32 v%d, v%d, v%d" % (s0 + (i // 8) * 8 + (i % 8) // 2, s0 + i, s0 + i + 1))
        n = vq.wait_for({("v", j)})
        A("s_waitcnt vmcnt(%d)" % n)
        A("s_barrier")
        if j + 3 < 8:
            kv_dma(vq, 0, j + 3)
        vb = VS(j) - 49152
        NF = 9

        def vreads(f):
            buf = F + (f % NF) * 4
            if f < 16:
                u, dt = f // 8, f % 8
                for hh in range(2):
                    A("ds_read_b64_tr_b16 %s, v%d offset:%d" % (vr(buf + hh * 2, 2), VA + dt, vb + (2 * u + hh) * 4096))
            else:
                for hh in range(2):
                    dt = (f - 16) * 2 + hh
                    A("v_add_u32 v%d, s%d, v%d" % (T0 + hh, sW4k, VA + dt))
                    A("ds_read_b64_tr_b16 %s, v%d offset:%d" % (vr(buf + hh * 2, 2), T0 + hh, vb))

        PD = 6
        for f in range(PD):
            vreads(f)
        for t in range(2):
            for u in range(2):
                d = vr(LACC + t * 4, 4)
                A("v_mfma_f32_16x16x32_bf16 %s, %s, %s, %s" % (d, vr(ONES, 4), vr(S + t * 16 + u * 8, 4), "0" if (j == 0 and u == 0) else d))
        d = vr(LACC + 8, 4)
        A("v_mfma_f32_16x16x16_bf16 %s, %s, %s, %s" % (d, vr(ONES, 2), vr(S + 32, 2), "0" if j == 0 else d))
        for f in range(20):
            rem = min(20, f + PD) - (f + 1)
            A("s_waitcnt lgkmcnt(%d)" % (2 * rem))
            fa = F + (f % NF) * 4
            if f < 16:
                u, dt = f // 8, f % 8
                for t in range(2):
                    d = vr(O + t * 32 + dt * 4, 4)
                    A("v_mfma_f32_16x16x32_bf16 %s, %s, %s, %s" % (d, vr(fa, 4), vr(S + t * 16 + u * 8, 4), "0" if (j == 0 and u == 0) else d))
            else:
                for hh in range(2):
                    dt = (f - 16) * 2 + hh
                    d = vr(O + 64 + dt * 4, 4)
                    A("v_mfma_f32_16x16x16_bf16 %s, %s, %s, %s" % (d, vr(fa + hh * 2, 2), vr(S + 32, 2), "0" if j == 0 else d))
            if f + PD < 20:
                vreads(f + PD)

    stamp(A, 6)
    A("s_barrier")
    A("v_lshlrev_b32 v%d, 4, v%d" % (T2, LANE))
    A("s_lshl_b32 s%d, s%d, 13" % (sT, sWv))
    A("v_add_u32 v%d, s%d, v%d" % (T3, sT, T2))
    for dt in range(8):
        A("ds_write_b128 v%d, %s offset:%d" % (T3, vr(O + 64 + dt * 4, 4), dt * 1024))
    A("v_and_b32 v%d, 15, v%d" % (T4, LANE))
    A("v_lshlrev_b32 v%d, 3, v%d" % (T4, T4))
    A("s_lshl_b32 s%d, s%d, 7" % (sT, sWv))
    A("v_add_u32 v%d, s%d, v%d" % (T5, sT, T4))
    A("v_mov_b32 v%d, v%d" % (KA + 1, M + 2))
    A("v_mov_b32 v%d, v%d" % (KA + 2, LACC + 8))
    A("ds_write_b64 v%d, %s offset:32768" % (T5, vr(KA + 1, 2)))
    VO = T2
    A("s_lshl_b32 s%d, s%d, 13" % (sT, sWv))
    for t in range(2):
        A("v_rcp_f32 v%d, v%d" % (T1, LACC + t * 4))
        for i in range(32):
            A("v_mul_f32 v%d, v%d, v%d" % (O + t * 32 + i, O + t * 32 + i, T1))
        for ds in range(4):
            a = O + t * 32 + ds * 8
            pk = QF + t * 16 + ds * 4
            for i in range(4):
                A("v_cvt_pk_bf16_f32 v%d, v%d, v%d" % (pk + i, a + 2 * i, a + 2 * i + 1))
            A("buffer_store_dwordx4 %s, v%d, %s, s%d offen offset:%d%s" % (vr(pk, 4), VO, sr(sO, 4), sT, 1024 * ds, " sc1" if FUSED else ""))
        if t == 0:
            A("s_add_u32 s%d, s%d, 4096" % (sT, sT))
    A("s_waitcnt lgkmcnt(0)")
    A("s_barrier")
    ML = S
    OP = F
    for w2 in range(4):
        A("ds_read_b64 %s, v%d offset:%d" % (vr(ML + 2 * w2, 2), T4, 32768 + w2 * 128))
    A("s_lshl_b32 s%d, s%d, 11" % (sT, sWv))
    A("v_add_u32 v%d, s%d, v%d" % (T3, sT, T2))
    for w2 in range(4):
        for dd in range(2):
            A("ds_read_b128 %s, v%d offset:%d" % (vr(OP + (w2 * 2 + dd) * 4, 4), T3, w2 * 8192 + dd * 1024))
    A("s_waitcnt lgkmcnt(0)")
    A("v_max3_f32 v%d, v%d, v%d, v%d" % (T1, ML, ML + 2, ML + 4))
    A("v_max_f32 v%d, v%d, v%d" % (T1, T1, ML + 6))
    for w2 in range(4):
        A("v_sub_f32 v%d, v%d, v%d" % (ML + 2 * w2, ML + 2 * w2, T1))
        A("v_exp_f32 v%d, v%d" % (ML + 2 * w2, ML + 2 * w2))
    A("v_mul_f32 v%d, v%d, v%d" % (T5, ML, ML + 1))
    for w2 in range(1, 4):
        A("v_fma_f32 v%d, v%d, v%d, v%d" % (T5, ML + 2 * w2, ML + 2 * w2 + 1, T5))
    A("v_rcp_f32 v%d, v%d" % (T5, T5))
    for w2 in range(4):
        A("v_mul_f32 v%d, v%d, v%d" % (ML + 2 * w2, ML + 2 * w2, T5))
    for dd in range(2):
        for r in range(4):
            d = O + dd * 4 + r
            A("v_mul_f32 v%d, v%d, v%d" % (d, OP + dd * 4 + r, ML))
            for w2 in range(1, 4):
                A("v_fma_f32 v%d, v%d, v%d, v%d" % (d, OP + (w2 * 2 + dd) * 4 + r, ML + 2 * w2, d))
    A("s_lshl_b32 s%d, s%d, 10" % (sT, sWv))
    A("s_add_u32 s%d, s%d, %d" % (sT, sT, 8 * 4096))
    for i in range(4):
        A("v_cvt_pk_bf16_f32 v%d, v%d, v%d" % (QF + 32 + i, O + 2 * i, O + 2 * i + 1))
    A("buffer_store_dwordx4 %s, v%d, %s, s%d offen%s" % (vr(QF + 32, 4), VO, sr(sO, 4), sT, " sc1" if FUSED else ""))
    if FUSED:
        A("s_waitcnt vmcnt(0)")
        A("s_barrier")
        A("s_cmp_eq_u32 s%d, 0" % sWv)
        A("s_cbranch_scc0 L1_nopub")
        A("s_lshl_b32 s%d, s%d, 3" % (sT, sBr))
        A("s_add_u32 s%d, s%d, s%d" % (sT, sT, sB))
        A("s_lshl_b32 s%d, s%d, 2" % (sT, sT))
        A("s_lshr_b32 s%d, s%d, 3" % (sT2, sH))
        A("s_add_u32 s%d, s%d, s%d" % (sT, sT, sT2))
        A("s_lshl_b32 s%d, s%d, 2" % (sT, sT))
        A("s_mov_b64 exec, 1")
        A("v_mov_b32 v%d, s%d" % (T0, sT))
        A("v_mov_b32 v%d, 1" % T1)
        A("global_atomic_add v%d, v%d, s[26:27] sc1" % (T0, T1))
        A("s_waitcnt vmcnt(0)")
        A("s_mov_b64 exec, -1")
        A.label("L1_nopub")
    if STAMP:
        A("s_waitcnt vmcnt(0)")
    stamp(A, 7)
    dump_stamps(A, 8, 0, sWv, 240)
    A.label("L1_done")
    A("s_endpgm")


def kernel_oproj3(A):
    K2 = "oproj_kernel"
    A.raw(".globl %s\n.p2align 8\n.type %s,@function\n%s:" % (K2, K2, K2))
    A("s_cmp_ge_u32 s2, 192")
    A("s_cbranch_scc1 L2_done")
    stamp(A, 0)
    load_kernargs(A)
    sBr, sMt, sNt, sW8 = 30, 31, 32, 33
    A("s_and_b32 s35, s2, 7")
    A("s_lshr_b32 s%d, s35, 2" % sBr)
    A("s_and_b32 s35, s35, 3")
    A("s_mul_i32 s35, s35, 3")
    A("s_lshr_b32 s36, s2, 3")
    A("s_and_b32 s%d, s36, 7" % sNt)
    A("s_lshr_b32 s36, s36, 3")
    A("s_add_u32 s%d, s35, s36" % sMt)
    ACC, XR, FR = 0, 96, 168
    WD, VX, RD = 200, 201, 202
    LANE, T0, T1, T2, T3 = 206, 207, 208, 209, 210
    A("v_and_b32 v%d, 63, v0" % LANE)
    A("v_lshrrev_b32 v%d, 6, v0" % T0)
    A("v_readfirstlane_b32 s%d, v%d" % (sW8, T0))
    A("s_waitcnt lgkmcnt(0)")
    stamp(A, 6)
    A("s_cmp_eq_u32 s%d, 0" % sBr)
    A("s_cselect_b64 s[12:13], s[12:13], s[22:23]")
    sW, sX, sO = 44, 48, 52
    A("s_lshl_b32 s36, s%d, 7" % sNt)
    A("s_sub_u32 s37, %d, s36" % (4096 * 1024))
    make_srd(A, sW, 12, 13, "s36", "s37")
    A("s_mul_i32 s35, s%d, %d" % (sBr, O_BRANCH_BYTES))
    make_srd(A, sX, 28, 29, "s35", "%d" % O_BRANCH_BYTES)
    A("s_mul_i32 s35, s%d, %d" % (sMt, 96 * 2048))
    A("s_lshl_b32 s37, s%d, 10" % sBr)
    A("s_add_u32 s36, s36, s37")
    A("s_add_u32 s35, s35, s36")
    A("s_sub_u32 s37, %d, s36" % (96 * 2048))
    make_srd(A, sO, 24, 25, "s35", "s37")
    sQ = 56
    A("s_mul_i32 s35, s%d, 6" % sMt)
    for i in range(6):
        A("s_add_u32 s36, s35, %d" % i)
        A("s_mul_i32 s37, s36, 57")
        A("s_lshr_b32 s37, s37, 9")
        A("s_mul_i32 s38, s37, 9")
        A("s_sub_u32 s38, s36, s38")
        A("s_mul_i32 s37, s37, %d" % (32 * 36864))
        A("s_lshl_b32 s38, s38, 12")
        A("s_add_u32 s%d, s37, s38" % (sQ + i))
    sRot, sk, st, sx, sL = 62, 63, 64, 65, 66
    A("s_lshl_b32 s%d, s%d, 1" % (sRot, sNt))
    A("s_mul_i32 s35, s%d, 5" % sMt)
    A("s_add_u32 s%d, s%d, s35" % (sRot, sRot))
    if os.environ.get("ROTM"):
        A("s_mul_i32 s35, s%d, 3" % sMt)
        A("s_add_u32 s%d, s%d, s35" % (sRot, sNt))
        A("s_and_b32 s%d, s%d, %s" % (sRot, sRot, os.environ.get("ROTM")))
    A("s_lshl_b32 s%d, s%d, 14" % (sL, sW8))
    A("v_bfe_u32 v%d, v%d, 1, 2" % (T0, LANE))
    A("v_lshrrev_b32 v%d, 4, v%d" % (T1, LANE))
    A("v_xor_b32 v%d, v%d, v%d" % (T0, T0, T1))
    A("v_lshlrev_b32 v%d, 5, v%d" % (T0, T0))
    A("v_and_b32 v%d, 1, v%d" % (T1, LANE))
    A("v_lshl_add_u32 v%d, v%d, 4, v%d" % (T0, T1, T0))
    A("v_lshrrev_b32 v%d, 3, v%d" % (T1, LANE))
    A("v_lshl_add_u32 v%d, v%d, 10, v%d" % (WD, T1, T0))
    A("v_lshlrev_b32 v%d, 4, v%d" % (VX, LANE))
    A("v_lshrrev_b32 v%d, 2, v%d" % (T0, LANE))
    A("v_bfe_u32 v%d, v%d, 3, 2" % (T1, LANE))
    A("v_lshlrev_b32 v%d, 5, v%d" % (T1, T1))
    A("v_lshl_add_u32 v%d, v%d, 7, v%d" % (T1, T0, T1))
    A("v_and_b32 v%d, 3, v%d" % (T0, LANE))
    A("v_lshl_add_u32 v%d, v%d, 3, v%d" % (T1, T0, T1))
    A("v_add_u32 v%d, s%d, v%d" % (RD, sL, T1))
    for nt in range(1, 4):
        A("v_xor_b32 v%d, %d, v%d" % (RD + nt, nt << 5, RD))
    vq = VmQ()
    NS, XD, NK = 4, 3, 16

    def kidx(i):
        A("s_add_u32 s%d, s%d, %d" % (sk, sRot, i))
        A("s_and_b32 s%d, s%d, 15" % (sk, sk))
        A("s_lshl_b32 s%d, s%d, 3" % (sk, sk))
        A("s_add_u32 s%d, s%d, s%d" % (sk, sk, sW8))

    def dma_w(i):
        A("s_lshl_b32 s%d, s%d, 15" % (st, sk))
        for m in range(4):
            A("s_add_u32 m0, s%d, %d" % (sL, (i % NS) * 4096 + m * 1024))
            if m:
                A("s_add_u32 s%d, s%d, 8192" % (st, st))
            A("buffer_load_dwordx4 v%d, %s, s%d offen lds" % (WD, sr(sW, 4), st))
            vq.issue(("w", i))

    def xload(i):
        A("s_lshr_b32 s%d, s%d, 2" % (sx, sk))
        A("s_mul_i32 s%d, s%d, 36864" % (sx, sx))
        A("s_and_b32 s%d, s%d, 3" % (st, sk))
        A("s_lshl_b32 s%d, s%d, 10" % (st, st))
        A("s_add_u32 s%d, s%d, s%d" % (sx, sx, st))
        for q in range(6):
            A("s_add_u32 s%d, s%d, s%d" % (st, sx, sQ + q))
            A("buffer_load_dwordx4 %s, v%d, %s, s%d offen" % (vr(XR + (i % XD) * 24 + q * 4, 4), VX, sr(sX, 4), st))
            vq.issue(("x", i))

    def wreads(i):
        for nt in range(4):
            for hh in range(2):
                A("ds_read_b64_tr_b16 %s, v%d offset:%d" % (vr(FR + (i & 1) * 16 + nt * 4 + hh * 2, 2), RD + nt, (i % NS) * 4096 + hh * 2048))

    for i in range(2):
        kidx(i)
        dma_w(i)
        xload(i)
    kidx(2)
    dma_w(2)
    stamp(A, 1)
    A("s_waitcnt vmcnt(%d)" % vq.wait_for({("w", 0)}))
    stamp(A, 2)
    wreads(0)
    for i in range(NK):
        need = {("x", i)}
        if i + 1 < NK:
            need.add(("w", i + 1))
        A("s_waitcnt vmcnt(%d) lgkmcnt(0)" % vq.wait_for(need))
        if i == NK // 2:
            stamp(A, 3)
        if i + 1 < NK:
            wreads(i + 1)
        if i + 3 < NK:
            kidx(i + 3)
            dma_w(i + 3)
        if i + 2 < NK:
            kidx(i + 2)
            xload(i + 2)
        for nt in range(4):
            for q in range(6):
                a = ACC + (nt * 6 + q) * 4
                c = "0" if i == 0 else vr(a, 4)
                A("v_mfma_f32_16x16x32_bf16 %s, %s, %s, %s" % (vr(a, 4), vr(FR + (i & 1) * 16 + nt * 4, 4), vr(XR + (i % XD) * 24 + q * 4, 4), c))
    stamp(A, 4)
    A("s_lshl_b32 s35, s%d, 13" % sW8)
    A("v_add_u32 v%d, s35, v%d" % (T0, VX))
    A("s_lshl_b32 s35, s%d, 10" % sW8)
    A("v_add_u32 v%d, s35, v%d" % (T1, VX))
    Y = 96
    for rnd in range(3):
        A("s_barrier")
        for f in range(8):
            A("ds_write_b128 v%d, %s offset:%d" % (T0, vr(ACC + (rnd * 8 + f) * 4, 4), f * 1024))
        A("s_waitcnt lgkmcnt(0)")
        A("s_barrier")
        for w2 in range(8):
            A("ds_read_b128 %s, v%d offset:%d" % (vr(Y + rnd * 32 + w2 * 4, 4), T1, w2 * 8192))
        A("s_waitcnt lgkmcnt(0)")
    A("v_and_b32 v%d, 15, v%d" % (T0, LANE))
    A("v_lshlrev_b32 v%d, 11, v%d" % (T0, T0))
    A("v_lshrrev_b32 v%d, 4, v%d" % (T1, LANE))
    A("v_lshl_add_u32 v%d, v%d, 3, v%d" % (T0, T1, T0))
    for rnd in range(3):
        y = Y + rnd * 32
        for step in (16, 8, 4):
            for i in range(step):
                A("v_add_f32 v%d, v%d, v%d" % (y + i, y + i, y + step + i))
        A("s_add_u32 s35, s%d, %d" % (sW8, 8 * rnd))
        A("s_mul_i32 s36, s35, 43")
        A("s_lshr_b32 s36, s36, 8")
        A("s_mul_i32 s37, s36, 6")
        A("s_sub_u32 s37, s35, s37")
        A("s_lshl_b32 s37, s37, 15")
        A("s_lshl_b32 s36, s36, 5")
        A("s_add_u32 s36, s36, s37")
        A("v_cvt_pk_bf16_f32 v%d, v%d, v%d" % (y + 8, y, y + 1))
        A("v_cvt_pk_bf16_f32 v%d, v%d, v%d" % (y + 9, y + 2, y + 3))
        A("buffer_store_dwordx2 %s, v%d, %s, s36 offen" % (vr(y + 8, 2), T0, sr(sO, 4)))
    if STAMP:
        A("s_waitcnt vmcnt(0)")
        stamp(A, 7)
        A("s_lshr_b32 s98, s%d, 1" % sW8)
        dump_stamps(A, 8, 1, 98, 212)
    A.label("L2_done")
    A("s_endpgm")


def kernel_oproj(A):
    K2 = "oproj_kernel"
    A.raw(".globl %s\n.p2align 8\n.type %s,@function\n%s:" % (K2, K2, K2))
    A("s_cmp_ge_u32 s2, 256")
    A("s_cbranch_scc1 L2_done")
    stamp(A, 0)
    load_kernargs(A)
    sBr, sKq, sB, sNb, sWv, sGr, sW8 = 30, 31, 32, 33, 34, 39, 40
    A("s_and_b32 s35, s2, 7")
    A("s_lshr_b32 s%d, s35, 2" % sBr)
    A("s_and_b32 s%d, s35, 3" % sKq)
    A("s_lshr_b32 s35, s2, 3")
    A("s_lshr_b32 s%d, s35, 2" % sB)
    A("s_and_b32 s%d, s35, 3" % sNb)
    LANE, T0, T1, T2, T3 = 254, 238, 239, 240, 241
    A("v_and_b32 v%d, 63, v0" % LANE)
    A("v_lshrrev_b32 v%d, 6, v0" % T0)
    A("v_readfirstlane_b32 s%d, v%d" % (sW8, T0))
    A("s_and_b32 s%d, s%d, 3" % (sWv, sW8))
    A("s_lshr_b32 s%d, s%d, 2" % (sGr, sW8))
    A("s_waitcnt lgkmcnt(0)")
    stamp(A, 6)
    A("s_cmp_eq_u32 s%d, 0" % sBr)
    A("s_cselect_b64 s[12:13], s[12:13], s[22:23]")
    sW, sX, sP = 44, 48, 52
    A("s_lshl_b32 s35, s%d, 1" % sKq)
    A("s_add_u32 s38, s35, s%d" % sGr)
    A("s_lshl_b32 s35, s38, 19")
    A("s_lshl_b32 s36, s%d, 8" % sNb)
    A("s_add_u32 s35, s35, s36")
    A("s_sub_u32 s37, %d, s36" % (512 * 1024))
    make_srd(A, sW, 12, 13, "s35", "s37")
    A("s_mul_i32 s35, s%d, %d" % (sBr, O_BRANCH_BYTES))
    A("s_lshl_b32 s36, s%d, 3" % sB)
    A("s_add_u32 s36, s36, s38")
    A("s_mul_i32 s36, s36, %d" % (4 * 36864))
    A("s_add_u32 s35, s35, s36")
    make_srd(A, sX, 28, 29, "s35", "%d" % (4 * 36864))
    sRot = 68
    A("s_lshl_b32 s%d, s%d, 1" % (sRot, sNb))
    A("s_add_u32 s%d, s%d, s%d" % (sRot, sRot, sB))
    A("s_lshl_b32 s%d, s%d, 1" % (sRot, sRot))
    PW_ = 9 * 1024 // (2 if PBF else 1)
    PT = 8 * PW_
    sTile = 41
    A("s_lshl_b32 s%d, s%d, 5" % (sTile, sBr))
    A("s_lshl_b32 s35, s%d, 2" % sB)
    A("s_add_u32 s%d, s%d, s35" % (sTile, sTile))
    A("s_add_u32 s%d, s%d, s%d" % (sTile, sTile, sNb))
    A("s_lshl_b32 s35, s%d, 2" % sTile)
    A("s_add_u32 s35, s35, s%d" % sKq)
    A("s_mul_i32 s35, s35, %d" % PT)
    A("s_mul_i32 s36, s%d, %d" % (sW8, PW_))
    A("s_add_u32 s35, s35, s36")
    A("s_add_u32 s35, s35, %d" % P_BASE)
    make_srd(A, sP, 28, 29, "s35", "%d" % PW_)
    A("s_lshl_b32 s69, s%d, 16" % sGr)
    R = dict(acc=0, xr=88, fr=172, wrd=72, wdma=80, vx=82, lane=LANE, t0=T0, t1=T1, t2=T2, t3=T3,
             sq0=60, swb=62, sm0=63, st=64, sk=65, sx=66, sw1k=67, slds=69)
    gemm_phase(A, 16, 1024, "perm", sW, sX, sWv, sRot, R, {})
    stamp(A, 4)
    A("s_barrier")
    A("v_lshlrev_b32 v%d, 4, v%d" % (T0, LANE))
    A("s_mul_i32 s35, s%d, 9216" % sW8)
    A("v_add_u32 v%d, s35, v%d" % (T1, T0))
    A("s_xor_b32 s36, s%d, 4" % sW8)
    A("s_mul_i32 s36, s36, 9216")
    A("v_add_u32 v%d, s36, v%d" % (T2, T0))
    X = 96
    A("s_cmp_eq_u32 s%d, 0" % sGr)
    A("s_cbranch_scc0 L2_grB")
    for grp in range(2):
        keep = range(0, 9) if grp == 0 else range(9, 18)
        give = range(9, 18) if grp == 0 else range(0, 9)
        for i, f in enumerate(give):
            A("ds_write_b128 v%d, %s offset:%d" % (T1, vr(f * 4, 4), i * 1024))
        A("s_waitcnt lgkmcnt(0)")
        A("s_barrier")
        for i in range(9):
            A("ds_read_b128 %s, v%d offset:%d" % (vr(X + i * 4, 4), T2, i * 1024))
        A("s_waitcnt lgkmcnt(0)")
        for i, f in enumerate(keep):
            for r in range(4):
                A("v_add_f32 v%d, v%d, v%d" % (X + i * 4 + r, X + i * 4 + r, f * 4 + r))
        if grp == 0:
            A.flush()
            A("s_branch L2_join")
            A.label("L2_grB")
    A.label("L2_join")
    A("s_mov_b32 s35, 0")
    if PBF:
        A("v_lshlrev_b32 v%d, 3, v%d" % (T1, LANE))
        for i in range(9):
            A("v_cvt_pk_bf16_f32 v%d, v%d, v%d" % (2 * i, X + 4 * i, X + 4 * i + 1))
            A("v_cvt_pk_bf16_f32 v%d, v%d, v%d" % (2 * i + 1, X + 4 * i + 2, X + 4 * i + 3))
            if i == 8:
                A("s_mov_b32 s35, 4096")
            A("buffer_store_dwordx2 %s, v%d, %s, s35 offen offset:%d" % (vr(2 * i, 2), T1, sr(sP, 4), (i % 8) * 512))
    else:
        for i in range(9):
            if i % 4 == 0 and i:
                A("s_add_u32 s35, s35, 4096")
            A("buffer_store_dwordx4 %s, v%d, %s, s35 offen offset:%d" % (vr(X + i * 4, 4), T0, sr(sP, 4), (i % 4) * 1024))
    if STAMP:
        A("s_waitcnt vmcnt(0)")
        stamp(A, 7)
        A("s_lshr_b32 s98, s%d, 1" % sW8)
        dump_stamps(A, 8, 1, 98, 240)
    A.label("L2_done")
    A("s_endpgm")


def role_oproj(A):
    A.label("LF_oproj")
    stamp(A, 0)
    load_kernargs(A)
    sBr, sKq, sB, sNb, sWv = 30, 31, 32, 33, 34
    A("s_sub_u32 s39, s2, 512")
    A("s_and_b32 s35, s39, 7")
    A("s_lshr_b32 s%d, s35, 2" % sBr)
    A("s_and_b32 s%d, s35, 3" % sKq)
    A("s_lshr_b32 s35, s39, 3")
    A("s_lshr_b32 s%d, s35, 2" % sB)
    A("s_and_b32 s%d, s35, 3" % sNb)
    LANE, T0, T1, T2, T3 = 254, 238, 239, 240, 241
    A("v_and_b32 v%d, 63, v0" % LANE)
    A("v_lshrrev_b32 v%d, 6, v0" % T0)
    A("v_readfirstlane_b32 s%d, v%d" % (sWv, T0))
    A("s_waitcnt lgkmcnt(0)")
    A("s_cmp_eq_u32 s%d, 0" % sBr)
    A("s_cselect_b64 s[12:13], s[12:13], s[22:23]")
    sW, sX, sP = 44, 48, 52
    A("s_lshl_b32 s35, s%d, 20" % sKq)
    A("s_lshl_b32 s36, s%d, 8" % sNb)
    A("s_add_u32 s35, s35, s36")
    A("s_sub_u32 s37, %d, s36" % (1024 * 1024))
    make_srd(A, sW, 12, 13, "s35", "s37")
    A("s_mul_i32 s35, s%d, %d" % (sBr, O_BRANCH_BYTES))
    A("s_lshl_b32 s36, s%d, 2" % sB)
    A("s_add_u32 s36, s36, s%d" % sKq)
    A("s_mul_i32 s36, s36, %d" % (8 * 36864))
    A("s_add_u32 s35, s35, s36")
    make_srd(A, sX, 28, 29, "s35", "%d" % (8 * 36864))
    sRot = 68
    A("s_lshl_b32 s%d, s%d, 1" % (sRot, sNb))
    A("s_add_u32 s%d, s%d, s%d" % (sRot, sRot, sB))
    A("s_lshl_b32 s%d, s%d, 2" % (sRot, sRot))
    FB = 512 if PBF else 1024
    PW_ = 18 * FB
    PT = 4 * PW_
    sTile = 41
    A("s_lshl_b32 s%d, s%d, 5" % (sTile, sBr))
    A("s_lshl_b32 s35, s%d, 2" % sB)
    A("s_add_u32 s%d, s%d, s35" % (sTile, sTile))
    A("s_add_u32 s%d, s%d, s%d" % (sTile, sTile, sNb))
    A("s_lshl_b32 s35, s%d, 2" % sTile)
    A("s_add_u32 s35, s35, s%d" % sKq)
    A("s_mul_i32 s35, s35, %d" % PT)
    A("s_mul_i32 s36, s%d, %d" % (sWv, PW_))
    A("s_add_u32 s35, s35, s36")
    A("s_add_u32 s35, s35, %d" % P_BASE)
    make_srd(A, sP, 28, 29, "s35", "%d" % PW_)

    def wait_o(A):
        A("s_cmp_eq_u32 s%d, 0" % sWv)
        A("s_cbranch_scc0 LF_waited")
        A("s_lshl_b32 s35, s%d, 3" % sBr)
        A("s_add_u32 s35, s35, s%d" % sB)
        A("s_lshl_b32 s35, s35, 2")
        A("s_add_u32 s35, s35, s%d" % sKq)
        A("s_lshl_b32 s35, s35, 2")
        A("v_mov_b32 v%d, s35" % T0)
        A("s_mov_b32 s36, 200000")
        A.label("LF_poll")
        A("global_load_dword v%d, v%d, s[26:27] sc1" % (T1, T0))
        A("s_waitcnt vmcnt(0)")
        A("v_readfirstlane_b32 s35, v%d" % T1)
        A("s_cmp_ge_u32 s35, 8")
        A("s_cbranch_scc1 LF_waited")
        A("s_sleep 4")
        A("s_sub_u32 s36, s36, 1")
        A("s_cmp_lg_u32 s36, 0")
        A("s_cbranch_scc1 LF_poll")
        A.label("LF_waited")
        A("s_barrier")
        stamp(A, 6)

    R = dict(acc=0, xr=88, fr=172, wrd=72, wdma=80, vx=82, lane=LANE, t0=T0, t1=T1, t2=T2, t3=T3,
             sq0=60, swb=62, sm0=63, st=64, sk=65, sx=66, sw1k=67, prex=wait_o, xpol="sc1")
    gemm_phase(A, 32, 1024, "perm", sW, sX, sWv, sRot, R, {})
    stamp(A, 4)
    A("s_mov_b32 s35, 0")
    if PBF:
        A("v_lshlrev_b32 v%d, 3, v%d" % (T1, LANE))
        for i in range(18):
            A("v_cvt_pk_bf16_f32 v%d, v%d, v%d" % (96 + 2 * i, 4 * i, 4 * i + 1))
            A("v_cvt_pk_bf16_f32 v%d, v%d, v%d" % (97 + 2 * i, 4 * i + 2, 4 * i + 3))
            if i % 8 == 0 and i:
                A("s_add_u32 s35, s35, 4096")
            A("buffer_store_dwordx2 %s, v%d, %s, s35 offen offset:%d" % (vr(96 + 2 * i, 2), T1, sr(sP, 4), (i % 8) * 512))
    else:
        A("v_lshlrev_b32 v%d, 4, v%d" % (T1, LANE))
        for i in range(18):
            if i % 4 == 0 and i:
                A("s_add_u32 s35, s35, 4096")
            A("buffer_store_dwordx4 %s, v%d, %s, s35 offen offset:%d" % (vr(i * 4, 4), T1, sr(sP, 4), (i % 4) * 1024))
    if STAMP:
        A("s_waitcnt vmcnt(0)")
        stamp(A, 7)
        A("s_mov_b32 s99, s2")
        A("s_sub_u32 s2, s2, 512")
        dump_stamps(A, 8, 1, sWv, 240)
    A("s_endpgm")


def kernel_reduce(A):
    K3 = "reduce_kernel"
    FB = 512 if PBF else 1024
    PT = 72 * FB
    A.raw(".globl %s\n.p2align 8\n.type %s,@function\n%s:" % (K3, K3, K3))
    A("s_cmp_ge_u32 s2, 1152")
    A("s_cbranch_scc1 L3_done")
    A("s_load_dwordx2 s[24:25], s[0:1], 80")
    A("s_load_dwordx2 s[28:29], s[0:1], 96")
    A("v_lshrrev_b32 v1, 6, v0")
    A("v_and_b32 v2, 63, v0")
    A("v_readfirstlane_b32 s30, v1")
    A("s_lshl_b32 s31, s2, 2")
    A("s_add_u32 s30, s30, s31")
    A("s_mul_hi_u32 s31, s30, %d" % ((1 << 32) // 72 + 1))
    A("s_mul_i32 s32, s31, 72")
    A("s_sub_u32 s32, s30, s32")
    NFW = 18 if FUSED else 9
    A("s_mul_hi_u32 s33, s32, %d" % ((1 << 32) // NFW + 1))
    A("s_mul_i32 s34, s33, %d" % NFW)
    A("s_sub_u32 s34, s32, s34")
    A("s_mul_i32 s35, s31, %d" % (4 * PT))
    A("s_mul_i32 s36, s32, %d" % FB)
    A("s_add_u32 s35, s35, s36")
    A("s_add_u32 s35, s35, %d" % P_BASE)
    A("s_waitcnt lgkmcnt(0)")
    make_srd(A, 40, 28, 29, "s35", "%d" % (3 * PT + FB))
    A("v_lshlrev_b32 v3, %d, v2" % (3 if PBF else 4))
    for kq in range(4):
        A("s_mov_b32 s%d, %d" % (48 + kq, kq * PT))
        if PBF:
            A("buffer_load_dwordx2 %s, v3, s[40:43], s%d offen" % (vr(24 + kq * 2, 2), 48 + kq))
        else:
            A("buffer_load_dwordx4 %s, v3, s[40:43], s%d offen" % (vr(4 + kq * 4, 4), 48 + kq))
    A("s_lshr_b32 s36, s33, 2")
    A("s_mul_i32 s36, s36, 9")
    A("s_add_u32 s36, s36, s34")
    A("s_and_b32 s37, s33, 3")
    A("s_lshl_b32 s37, s37, 1")
    A("s_lshr_b32 s38, s36, 3")
    A("s_add_u32 s39, s37, s38")
    A("s_cmp_ge_u32 s36, 16")
    A("s_cselect_b32 s39, 8, s39")
    A("s_and_b32 s36, s36, 7")
    A("s_xor_b32 s36, s36, s37")
    A("s_lshr_b32 s52, s31, 5")
    A("s_lshr_b32 s53, s31, 2")
    A("s_and_b32 s53, s53, 7")
    A("s_and_b32 s54, s31, 3")
    A("s_mul_i32 s53, s53, 144")
    A("s_lshl_b32 s39, s39, 4")
    A("s_add_u32 s53, s53, s39")
    A("s_lshl_b32 s53, s53, 11")
    A("s_lshl_b32 s52, s52, 10")
    A("s_lshl_b32 s54, s54, 8")
    A("s_lshl_b32 s36, s36, 5")
    A("s_add_u32 s53, s53, s52")
    A("s_add_u32 s53, s53, s54")
    A("s_add_u32 s53, s53, s36")
    A("s_mov_b32 s55, 0")
    make_srd(A, 44, 24, 25, "s55", "%d" % (8 * 144 * 1024 * 2))
    A("v_and_b32 v1, 15, v2")
    A("v_lshlrev_b32 v1, 11, v1")
    A("v_lshrrev_b32 v2, 4, v2")
    A("v_lshl_add_u32 v1, v2, 3, v1")
    A("s_waitcnt vmcnt(0)")
    if PBF:
        for kq in range(4):
            for h in range(2):
                A("v_lshlrev_b32 v%d, 16, v%d" % (4 + kq * 4 + 2 * h, 24 + kq * 2 + h))
                A("v_and_b32 v%d, 0xffff0000, v%d" % (5 + kq * 4 + 2 * h, 24 + kq * 2 + h))
    for i in range(4):
        A("v_add_f32 v%d, v%d, v%d" % (4 + i, 4 + i, 8 + i))
        A("v_add_f32 v%d, v%d, v%d" % (12 + i, 12 + i, 16 + i))
    for i in range(4):
        A("v_add_f32 v%d, v%d, v%d" % (4 + i, 4 + i, 12 + i))
    A("v_cvt_pk_bf16_f32 v20, v4, v5")
    A("v_cvt_pk_bf16_f32 v21, v6, v7")
    A("buffer_store_dwordx2 v[20:21], v1, s[44:47], s53 offen")
    A.label("L3_done")
    A("s_endpgm")


def kd(name, vgpr, sgpr=102):
    return """.amdhsa_kernel %s
  .amdhsa_next_free_vgpr %d
  .amdhsa_next_free_sgpr %d
  .amdhsa_accum_offset %d
  .amdhsa_group_segment_fixed_size 0
  .amdhsa_kernarg_size 104
  .amdhsa_user_sgpr_count 2
  .amdhsa_user_sgpr_kernarg_segment_ptr 1
  .amdhsa_system_sgpr_workgroup_id_x 1
.end_amdhsa_kernel
""" % (name, vgpr, sgpr, (vgpr + 3) // 4 * 4)


def main():
    A = Asm()
    hdr = open(os.path.join(os.path.dirname(os.path.abspath(__file__)), "..", "cdna_kernels", NAME + ".s.ref")).read().split("\n")
    head = [l for l in hdr if l.startswith(";") and "@launch" not in l and "Override launch" not in l and "grid=ceil" not in l]
    out = "\n".join(head) + "\n"
    if FUSED:
        out += "; @launch kernel=attn_kernel grid=(768,1,1) block=(256,1,1) lds=81920\n"
    else:
        out += "; @launch kernel=attn_kernel grid=(512,1,1) block=(256,1,1) lds=81920\n"
        out += "; @launch kernel=oproj_kernel grid=(256,1,1) block=(512,1,1) lds=131072\n"
    out += "; @launch kernel=reduce_kernel grid=(1152,1,1) block=(256,1,1) lds=0\n"
    if "twice" in EXP:
        out += "; @launch kernel=oproj_kernel grid=(256,1,1) block=(512,1,1) lds=131072\n"
    out += '.amdgcn_target "amdgcn-amd-amdhsa--gfx950"\n.text\n'
    kernel_attn(A)
    if FUSED:
        role_oproj(A)
    else:
        kernel_oproj(A)
    kernel_reduce(A)
    out += A.text()
    out += '.section .rodata,"a"\n.p2align 6\n'
    out += kd("attn_kernel", 256, 100 if STAMP else 76)
    if not FUSED:
        out += ".p2align 6\n" + kd("oproj_kernel", 256, 100 if STAMP else 74)
    out += ".p2align 6\n" + kd("reduce_kernel", 32, 60)
    dst = sys.argv[1] if len(sys.argv) > 1 else os.path.join(os.path.dirname(os.path.abspath(__file__)), "..", "cdna_kernels", NAME + ".s")
    open(dst, "w").write(out)
    print("wrote", dst, A.ninst, "instructions")


if __name__ == "__main__":
    main()
```

```python
import sys, os, struct
sys.path.insert(0, os.path.dirname(os.path.abspath(__file__)))
from asmlib import Asm, VmQ

NAME = "concat_heads__mha_block_cached__mha_block_cached__near_ridge"
O_BRANCH_BYTES = 1152 * 4096 * 2
P_BASE = 2 * O_BRANCH_BYTES
SCALE_C = 1.4426950408889634 / (128.0 ** 0.5)
EXP = os.environ.get("EXP", "")
KVPOL = os.environ.get("KVPOL", "nt ")
WPOL = os.environ.get("WPOL", "")
FUSED = os.environ.get("FUSED", "0") == "1"
OPOL = os.environ.get("OPOL", "")
PBF = os.environ.get("PBF", "1") == "1"
PPOL = os.environ.get("PPOL", "")
PLPOL = os.environ.get("PLPOL", "sc1")
XPOL = os.environ.get("XPOL", "")


def f32bits(x):
    return struct.unpack("<I", struct.pack("<f", x))[0]


def vr(base, n):
    return "v[%d:%d]" % (base, base + n - 1)


def sr(base, n):
    return "s[%d:%d]" % (base, base + n - 1)


def load_kernargs(A):
    A("s_load_dwordx16 s[4:19], s[0:1], 0")
    A("s_load_dwordx8 s[20:27], s[0:1], 64")
    A("s_load_dwordx2 s[28:29], s[0:1], 96")


def make_srd(A, d, lo, hi, off_s, nrec):
    A("s_add_u32 s%d, s%d, %s" % (d, lo, off_s))
    A("s_addc_u32 s%d, s%d, 0" % (d + 1, hi))
    A("s_and_b32 s%d, s%d, 0xffff" % (d + 1, d + 1))
    A("s_mov_b32 s%d, %s" % (d + 2, nrec))
    A("s_mov_b32 s%d, 0x00020000" % (d + 3))


STAMP = "stamp" in EXP


def stamp(A, i):
    if STAMP:
        if "real" in EXP:
            A("s_memrealtime s[%d:%d]" % (80 + 2 * i, 81 + 2 * i))
        else:
            A("s_memtime s[%d:%d]" % (80 + 2 * i, 81 + 2 * i))


def dump_stamps(A, n, kidx, sWv, vt):
    if not STAMP:
        return
    A("s_waitcnt lgkmcnt(0)")
    A("s_lshl_b32 s96, s2, 8")
    A("s_lshl_b32 s97, s%d, 6" % sWv)
    A("s_add_u32 s96, s96, s97")
    A("s_add_u32 s96, s96, %d" % (200 * 1024 * 1024 + kidx * 1024 * 1024))
    A("s_add_u32 s76, s28, s96")
    A("s_addc_u32 s77, s29, 0")
    A("s_and_b32 s77, s77, 0xffff")
    A("s_mov_b32 s78, 64")
    A("s_mov_b32 s79, 0x00020000")
    A("v_mov_b32 v%d, 0" % vt)
    for i in range(n):
        A("v_mov_b32 v%d, s%d" % (vt + 1, 80 + 2 * i))
        A("buffer_store_dword v%d, v%d, s[76:79], 0 offen offset:%d" % (vt + 1, vt, 4 * i))
    A("s_waitcnt vmcnt(0)")


def gemm_phase(A, nk, wstride, mode, sW, sX, sWave, sRot, R, hooks):
    vq = VmQ()
    lane, t0, t1, t2, t3 = R["lane"], R["t0"], R["t1"], R["t2"], R["t3"]
    wdma, vx, wrd = R["wdma"], R["vx"], R["wrd"]
    sq0, swb, sm0, st, sk, sx, sw1k = R["sq0"], R["swb"], R["sm0"], R["st"], R["sk"], R["sx"], R["sw1k"]
    nat = mode == "nat"
    NW = 5 if nat else 8
    XD = 4 if nat else 7
    XB = 40960
    wslot = (lambda c: (c + 4) % 5) if nat else (lambda c: c % 8)
    xslot = lambda c: (c + 1) & 1
    A("v_lshrrev_b32 v%d, 4, v%d" % (t0, lane))
    A("v_and_b32 v%d, 15, v%d" % (t1, lane))
    if nat:
        A("s_and_b32 s%d, s%d, 1" % (st, sWave))
        A("s_lshl_b32 s%d, s%d, 2" % (st, st))
        A("v_or_b32 v%d, s%d, v%d" % (t2, st, t0))
    else:
        A("v_mov_b32 v%d, v%d" % (t2, t0))
    A("v_lshrrev_b32 v%d, 1, v%d" % (t3, t1))
    A("v_xor_b32 v%d, v%d, v%d" % (t2, t2, t3))
    A("v_lshlrev_b32 v%d, 5, v%d" % (t2, t2))
    A("v_and_b32 v%d, 1, v%d" % (t3, lane))
    A("v_lshl_add_u32 v%d, v%d, 4, v%d" % (t2, t3, t2))
    A("v_mul_u32_u24 v%d, %d, v%d" % (t3, wstride, t0))
    A("v_add_u32 v%d, v%d, v%d" % (wdma, t2, t3))
    if nat:
        A("v_mov_b32 v%d, v%d" % (wdma + 1, wdma))
        A("s_lshl_b32 s%d, s%d, 2" % (st, sWave))
        A("v_add_u32 v%d, s%d, v%d" % (t2, st, t0))
        A("v_xor_b32 v%d, v%d, v%d" % (t2, t2, lane))
        A("v_and_b32 v%d, 7, v%d" % (t2, t2))
        A("v_lshlrev_b32 v%d, 4, v%d" % (t2, t2))
        A("v_lshrrev_b32 v%d, 3, v%d" % (t3, lane))
        A("s_lshl_b32 s%d, s%d, 3" % (st, sWave))
        A("v_add_u32 v%d, s%d, v%d" % (t3, st, t3))
        A("v_lshl_add_u32 v%d, v%d, 10, v%d" % (vx, t3, t2))
        A("v_lshrrev_b32 v%d, 1, v%d" % (t2, t1))
        A("v_xor_b32 v%d, v%d, v%d" % (t2, t2, t0))
        A("v_lshlrev_b32 v%d, 4, v%d" % (t2, t2))
        A("v_lshl_add_u32 v%d, v%d, 7, v%d" % (t2, t1, t2))
        A("v_add_u32 v%d, %d, v%d" % (vx + 1, XB, t2))
        A("v_xor_b32 v%d, 64, v%d" % (vx + 2, vx + 1))
        A("s_lshl_b32 s%d, s%d, 12" % (st, sWave))
        A("v_add_u32 v%d, s%d, v%d" % (vx + 3, st, vx + 1))
        A("v_add_u32 v%d, s%d, v%d" % (vx + 4, st, vx + 2))
        A("v_bfe_u32 v%d, v%d, 2, 2" % (t1, lane))
        A("v_and_b32 v%d, 1, v%d" % (t2, t0))
        A("v_lshl_add_u32 v%d, v%d, 2, v%d" % (t2, t2, t1))
        A("v_lshl_add_u32 v%d, v%d, 3, v%d" % (t3, t0, t1))
        hoff = 1024
    else:
        A("v_xor_b32 v%d, 0x80, v%d" % (wdma + 1, wdma))
        A("v_lshlrev_b32 v%d, 4, v%d" % (vx, lane))
        A("v_lshrrev_b32 v%d, 2, v%d" % (t3, lane))
        A("v_and_b32 v%d, 7, v%d" % (t2, t3))
        hoff = 4096
    A("s_lshl_b32 s%d, s%d, 1" % (st, sWave))
    A("v_xor_b32 v%d, s%d, v%d" % (t2, st, t2))
    A("v_lshlrev_b32 v%d, 5, v%d" % (t2, t2))
    A("v_lshl_add_u32 v%d, v%d, 8, v%d" % (t2, t3, t2))
    A("v_and_b32 v%d, 3, v%d" % (t3, lane))
    A("v_lshl_add_u32 v%d, v%d, 3, v%d" % (wrd, t3, t2))
    if "slds" in R:
        A("v_add_u32 v%d, s%d, v%d" % (wrd, R["slds"], wrd))
    for dl in range(1, 8):
        A("v_xor_b32 v%d, %d, v%d" % (wrd + dl, dl << 5, wrd))
    A("s_lshl_b32 s%d, s%d, 13" % (sq0, sWave))
    A("s_mul_i32 s%d, s%d, %d" % (swb, sWave, 8 * wstride))
    A("s_lshl_b32 s%d, s%d, 11" % (sm0, sWave))
    if "slds" in R:
        A("s_add_u32 s%d, s%d, s%d" % (sm0, sm0, R["slds"]))
    A("s_lshl_b32 s%d, s%d, 10" % (sw1k, sWave))

    def kidx(ks):
        A("s_add_u32 s%d, s%d, %d" % (sk, sRot, ks))
        A("s_and_b32 s%d, s%d, %d" % (sk, sk, nk - 1))

    def dma_w(ks):
        kidx(ks)
        A("s_mul_i32 s%d, s%d, %d" % (st, sk, 32 * wstride))
        A("s_add_u32 s%d, s%d, s%d" % (st, st, swb))
        for mm in range(2):
            A("s_add_u32 m0, s%d, %d" % (sm0, wslot(ks) * 8192 + mm * 1024))
            if mm:
                A("s_add_u32 s%d, s%d, %d" % (st, st, 4 * wstride))
            A("buffer_load_dwordx4 v%d, %s, s%d offen %slds" % (wdma + mm, sr(sW, 4), st, WPOL))
            vq.issue(("w", ks))

    def dma_x(c):
        kidx(2 * c)
        A("s_lshl_b32 s%d, s%d, 6" % (sx, sk))
        for i in range(5):
            A("s_add_u32 m0, s%d, %d" % (sw1k, XB + xslot(c) * 20480 + i * 4096))
            if i:
                A("s_add_u32 s%d, s%d, 32768" % (sx, sx))
            A("buffer_load_dwordx4 v%d, %s, s%d offen %slds" % (vx, sr(sX, 4), sx, XPOL))
            vq.issue(("x", c))

    def xreads(c):
        out = []
        for p in range(2):
            base = R["xr"] + ((2 * c + p) % XD) * 12
            so = xslot(c) * 20480
            out.append("ds_read_b128 %s, v%d offset:%d" % (vr(base, 4), vx + 3 + p, so))
            out.append("ds_read_b128 %s, v%d offset:%d" % (vr(base + 4, 4), vx + 3 + p, so + 2048))
            out.append("ds_read_b128 %s, v%d offset:%d" % (vr(base + 8, 4), vx + 1 + p, so + 16384))
        return out

    def xload(ks):
        base = R["xr"] + (ks % XD) * 12
        kidx(ks)
        A("s_lshr_b32 s%d, s%d, 2" % (sx, sk))
        A("s_mul_i32 s%d, s%d, 36864" % (sx, sx))
        A("s_and_b32 s%d, s%d, 3" % (st, sk))
        A("s_lshl_b32 s%d, s%d, 10" % (st, st))
        A("s_add_u32 s%d, s%d, s%d" % (sx, sx, st))
        A("s_add_u32 s%d, s%d, s%d" % (st, sx, sq0))
        A("buffer_load_dwordx4 %s, v%d, %s, s%d offen" % (vr(base, 4), vx, sr(sX, 4), st) + " " + R.get("xpol", XPOL))
        A("s_add_u32 s%d, s%d, %d" % (st, st, 4096))
        A("buffer_load_dwordx4 %s, v%d, %s, s%d offen" % (vr(base + 4, 4), vx, sr(sX, 4), st) + " " + R.get("xpol", XPOL))
        A("s_add_u32 s%d, s%d, %d" % (st, sx, 8 * 4096))
        A("buffer_load_dwordx4 %s, v%d, %s, s%d offen" % (vr(base + 8, 4), vx, sr(sX, 4), st) + " " + R.get("xpol", XPOL))
        for _ in range(3):
            vq.issue(("x", ks))

    acc, fr = R["acc"], R["fr"]

    def wreads(ks, dl):
        return ["ds_read_b64_tr_b16 %s, v%d offset:%d" % (vr(fr + (ks & 1) * 32 + dl * 4 + h * 2, 2), wrd + dl, wslot(ks) * 8192 + h * hoff)
                for h in range(2)]

    nw = [0]
    nx = [0]

    def fill(i, maxw, maxx):
        k = 0
        while nw[0] < min(nk, i + 1 + NW - (0 if i >= 0 else 0)) and nw[0] <= i + NW and k < maxw:
            if nw[0] >= NW and nw[0] - NW > i:
                break
            dma_w(nw[0])
            nw[0] += 1
            k += 1
        k = 0
        if nat:
            while nx[0] < nk // 2 and (nx[0] < 2 or 2 * (nx[0] - 2) <= i) and k < maxx:
                dma_x(nx[0])
                nx[0] += 1
                k += 1
        else:
            while nx[0] < nk and nx[0] <= i + XD - 1 and k < maxx:
                xload(nx[0])
                nx[0] += 1
                k += 1

    PW, PX = int(os.environ.get("PW", "2")), int(os.environ.get("PX", "1" if nat else "2"))
    if nat:
        dma_w(0)
        dma_x(0)
        dma_w(1)
        nw[0], nx[0] = 2, 1
    elif "prex" in R:
        for i in range(NW):
            dma_w(i)
        R["prex"](A)
        xload(0)
        xload(1)
        nw[0], nx[0] = NW, 2
    else:
        dma_w(0)
        xload(0)
        dma_w(1)
        xload(1)
        nw[0], nx[0] = 2, 2
    stamp(A, 1)
    A("s_waitcnt vmcnt(%d)" % vq.wait_for({("w", 0)} | ({("x", 0)} if nat else set())))
    A("s_barrier")
    stamp(A, 2)
    fill(-1, PW, PX)
    for dl in range(8):
        for r in wreads(0, dl):
            A(r)
    if nat:
        for r in xreads(0):
            A(r)
    for i in range(nk):
        need = set()
        if i + 1 < nk:
            need.add(("w", i + 1))
        if nat:
            if i % 2 == 1 and i + 1 < nk:
                need.add(("x", (i + 1) // 2))
        else:
            need.add(("x", i))
        n = vq.wait_for(need)
        A("s_waitcnt vmcnt(%d) lgkmcnt(0)" % n)
        A("s_barrier")
        if i == nk // 2:
            stamp(A, 3)
        fill(i, PW, PX)
        if i in hooks:
            hooks[i](A, vq)
        xr = xreads((i + 1) // 2) if (nat and i % 2 == 1 and i + 1 < nk) else []
        xb = R["xr"] + (i % XD) * 12
        for dl in range(8):
            if i + 1 < nk:
                for r in wreads(i + 1, dl):
                    A(r)
            if dl < len(xr):
                A(xr[dl])
            for t in range(3):
                if t == 2 and dl >= 2:
                    continue
                a = acc + (t * 8 + dl) * 4 if t < 2 else acc + 64 + dl * 4
                c = "0" if i == 0 else vr(a, 4)
                A("v_mfma_f32_16x16x32_bf16 %s, %s, %s, %s" % (vr(a, 4), vr(fr + (i & 1) * 32 + dl * 4, 4), vr(xb + t * 4, 4), c))
    return vq


def cross_lane(A, op, v, tmp):
    A("v_mov_b32 v%d, v%d" % (tmp, v))
    A("v_permlane32_swap_b32 v%d, v%d" % (v, tmp))
    A("%s v%d, v%d, v%d" % (op, v, v, tmp))
    A("v_mov_b32 v%d, v%d" % (tmp, v))
    A("v_permlane16_swap_b32 v%d, v%d" % (v, tmp))
    A("%s v%d, v%d, v%d" % (op, v, v, tmp))


THR = float(os.environ.get("THR", "8.0"))


def kernel_attn(A):
    K1 = "attn_kernel"
    A.raw(".globl %s\n.p2align 8\n.type %s,@function\n%s:" % (K1, K1, K1))
    if FUSED:
        A("s_cmp_ge_u32 s2, 768")
        A("s_cbranch_scc1 L1_exit")
        A("s_cmp_ge_u32 s2, 512")
        A("s_cbranch_scc0 L1_go")
        A("s_branch LF_oproj")
        A.label("L1_exit")
        A("s_endpgm")
        A.label("L1_go")
    else:
        A("s_cmp_ge_u32 s2, 512")
        A("s_cbranch_scc1 L1_done")
    stamp(A, 0)
    load_kernargs(A)
    PRIO = os.environ.get("PRIO", "ad")

    def prio(tag, val):
        if tag in PRIO:
            A("s_cmp_ge_u32 s2, 256")
            A("s_cbranch_scc0 L1_pr%s" % tag)
            A("s_setprio %d" % val)
            A.label("L1_pr%s" % tag)
    prio("a", 1)
    sBr, sH, sB, sWv = 30, 31, 32, 33
    A("s_and_b32 s34, s2, 7")
    A("s_lshr_b32 s35, s2, 3")
    A("s_lshr_b32 s%d, s34, 2" % sBr)
    A("s_and_b32 s34, s34, 3")
    A("s_lshl_b32 s34, s34, 3")
    A("s_and_b32 s%d, s35, 7" % sH)
    A("s_add_u32 s%d, s%d, s34" % (sH, sH))
    A("s_lshr_b32 s%d, s35, 3" % sB)
    O, QF, S, LACC, ONES, F = 0, 96, 144, 180, 192, 196
    M = 232
    KA, VA = 235, 239
    VKD, VVD = 247, 248
    T0, T1, T2, T3, T4, T5 = 249, 250, 251, 252, 253, 254
    LANE = 255
    A("v_and_b32 v%d, 63, v0" % LANE)
    A("v_lshrrev_b32 v%d, 6, v0" % T0)
    A("v_readfirstlane_b32 s%d, v%d" % (sWv, T0))
    A("s_waitcnt lgkmcnt(0)")
    A("s_cmp_eq_u32 s%d, 0" % sBr)
    A("s_cselect_b64 s[4:5], s[4:5], s[14:15]")
    A("s_cselect_b64 s[6:7], s[6:7], s[16:17]")
    A("s_cselect_b64 s[8:9], s[8:9], s[18:19]")
    A("s_cselect_b64 s[10:11], s[10:11], s[20:21]")
    sK, sV, sW, sX, sO = 36, 40, 44, 48, 52
    A("s_lshl_b32 s34, s%d, 5" % sB)
    A("s_add_u32 s34, s34, s%d" % sH)
    A("s_lshl_b32 s34, s34, 17")
    make_srd(A, sK, 6, 7, "s34", "131072")
    make_srd(A, sV, 8, 9, "s34", "131072")
    A("s_lshl_b32 s34, s%d, 8" % sH)
    A("s_sub_u32 s35, %d, s34" % (512 * 8192))
    make_srd(A, sW, 10, 11, "s34", "s35")
    A("s_mul_i32 s35, s%d, 147456" % sB)
    make_srd(A, sX, 4, 5, "s35", "147456")
    A("s_mul_i32 s35, s%d, %d" % (sBr, O_BRANCH_BYTES))
    A("s_lshl_b32 s56, s%d, 5" % sB)
    A("s_add_u32 s56, s56, s%d" % sH)
    A("s_mul_i32 s56, s56, 36864")
    A("s_add_u32 s35, s35, s56")
    make_srd(A, sO, 28, 29, "s35", "36864")
    sRot, sRotK = 68, 69
    A("s_lshr_b32 s%d, s2, 3" % sRot)
    A("s_add_u32 s%d, s%d, s%d" % (sRot, sRot, sB))
    A("s_lshl_b32 s%d, s%d, 1" % (sRot, sRot))
    A("s_and_b32 s%d, s%d, 15" % (sRot, sRot))
    A("s_lshr_b32 s%d, s%d, 1" % (sRotK, sRot))
    sC, sW1k, sT, sT2, sW4k, sThr = 56, 57, 58, 59, 70, 71
    A("s_mov_b32 s%d, 0x%08x" % (sC, f32bits(SCALE_C)))
    A("s_mov_b32 s%d, 0x%08x" % (sThr, f32bits(THR)))
    A("s_lshl_b32 s%d, s%d, 10" % (sW1k, sWv))
    A("s_lshl_b32 s%d, s%d, 12" % (sW4k, sWv))

    g, lo = T0, T1
    VLIN = 92
    A("v_lshrrev_b32 v%d, 4, v%d" % (g, LANE))
    A("v_and_b32 v%d, 15, v%d" % (lo, LANE))
    A("s_lshl_b32 s%d, s%d, 2" % (sT, sWv))
    A("v_add_u32 v%d, s%d, v%d" % (T2, sT, g))
    A("v_xor_b32 v%d, v%d, v%d" % (T3, lo, T2))
    A("v_lshlrev_b32 v%d, 4, v%d" % (T3, T3))
    A("v_lshl_add_u32 v%d, v%d, 8, v%d" % (VKD, T2, T3))
    A("v_and_b32 v%d, 7, v%d" % (T3, T2))
    A("v_lshlrev_b32 v%d, 1, v%d" % (T3, T3))
    A("v_xor_b32 v%d, v%d, v%d" % (T3, lo, T3))
    A("v_lshlrev_b32 v%d, 4, v%d" % (T3, T3))
    A("v_lshl_add_u32 v%d, v%d, 8, v%d" % (VVD, T2, T3))
    A("v_lshlrev_b32 v%d, 4, v%d" % (T3, lo))
    A("v_lshl_add_u32 v%d, v%d, 8, v%d" % (VLIN, T2, T3))

    KS = lambda j: ((j + 2) % 3) * 16384
    VS = lambda j: 49152 + (j % 2) * 16384

    def blk_off(j, i):
        if i == 0:
            A("s_add_u32 s%d, s%d, %d" % (sT2, sRotK, j))
            A("s_and_b32 s%d, s%d, 7" % (sT2, sT2))
            A("s_lshl_b32 s%d, s%d, 14" % (sT2, sT2))
        else:
            A("s_add_u32 s%d, s%d, 4096" % (sT2, sT2))

    def kv_dma(vq, isv, j):
        srd, vd, base = (sV, VVD, VS(j)) if isv else (sK, VKD, KS(j))
        for i in range(4):
            A("s_add_u32 m0, s%d, %d" % (sW1k, base + i * 4096))
            blk_off(j, i)
            A("buffer_load_dwordx4 v%d, %s, s%d offen %slds" % (vd, sr(srd, 4), sT2, KVPOL))
            vq.issue(("v" if isv else "k", j))

    PRE = 208

    def pre_load(n, half):
        def fn(A, vq):
            for i in range(2 * half, 2 * half + 2):
                A("s_lshl_b32 s%d, s%d, 14" % (sT2, sRotK))
                if i:
                    A("s_add_u32 s%d, s%d, %d" % (sT2, sT2, 4096 * i))
                A("buffer_load_dwordx4 %s, v%d, %s, s%d offen %s" % (vr(PRE + n * 16 + i * 4, 4), VLIN, sr(sK if n == 0 else sV, 4), sT2, KVPOL))
                vq.issue(("pre", 0))
        return fn

    R = dict(acc=0, xr=96, fr=144, wrd=72, wdma=80, vx=82, lane=LANE, t0=T0, t1=T1, t2=T2, t3=T3,
             sq0=60, swb=62, sm0=63, st=64, sk=65, sx=66, sw1k=67)

    def h12(A, vq):
        kv_dma(vq, 0, 1)
        kv_dma(vq, 1, 1)
    hooks = {1: pre_load(0, 0), 3: pre_load(0, 1), 5: pre_load(1, 0), 7: pre_load(1, 1),
             12: h12, 14: lambda A, vq: kv_dma(vq, 0, 2)}
    vq = gemm_phase(A, 16, 8192, "nat", sW, sX, sWv, sRot, R, hooks)
    assert ("pre", 0) not in vq.q
    if "p1only" in EXP:
        A("s_waitcnt vmcnt(0)")
        A("s_branch L1_done")

    stamp(A, 4)
    SCR = 32768
    TA = 240
    A("v_lshrrev_b32 v%d, 4, v%d" % (g, LANE))
    A("v_and_b32 v%d, 15, v%d" % (lo, LANE))
    A("s_lshl_b32 s%d, s%d, 2" % (sT, sWv))
    A("v_lshrrev_b32 v%d, 1, v%d" % (T2, g))
    A("v_or_b32 v%d, s%d, v%d" % (T2, sT, T2))
    A("v_xor_b32 v%d, v%d, v%d" % (T2, T2, lo))
    A("v_lshlrev_b32 v%d, 4, v%d" % (T2, T2))
    A("v_lshl_add_u32 v%d, v%d, 8, v%d" % (T2, lo, T2))
    A("v_and_b32 v%d, 1, v%d" % (T3, g))
    A("v_lshl_add_u32 v%d, v%d, 3, v%d" % (T2, T3, T2))
    A("v_add_u32 v%d, s%d, v%d" % (T3, sW4k, T2))
    A("v_xor_b32 v%d, v%d, v%d" % (T4, g, lo))
    A("v_lshlrev_b32 v%d, 4, v%d" % (T4, T4))
    A("v_lshl_add_u32 v%d, v%d, 8, v%d" % (T4, lo, T4))
    A("v_add_u32 v%d, s%d, v%d" % (T5, sW4k, T4))
    PK = 144
    for dl in range(8):
        A("v_xor_b32 v%d, %d, v%d" % (TA + (dl & 3), dl << 5, T3))
        for t in range(2):
            a = (t * 8 + dl) * 4
            pk = PK + t * 16 + dl * 2
            A("v_cvt_pk_bf16_f32 v%d, v%d, v%d" % (pk, a, a + 1))
            A("v_cvt_pk_bf16_f32 v%d, v%d, v%d" % (pk + 1, a + 2, a + 3))
            A("ds_write_b64 v%d, %s offset:%d" % (TA + (dl & 3), vr(pk, 2), SCR + t * 16384))
    for ds in range(4):
        A("v_xor_b32 v%d, %d, v%d" % (TA + ds, ds << 6, T5))
        for t in range(2):
            A("ds_read_b128 %s, v%d offset:%d" % (vr(QF + t * 16 + ds * 4, 4), TA + ds, SCR + t * 16384))
    for dl in range(2):
        a = 64 + dl * 4
        A("v_cvt_pk_bf16_f32 v%d, v%d, v%d" % (176 + dl * 2, a, a + 1))
        A("v_cvt_pk_bf16_f32 v%d, v%d, v%d" % (176 + dl * 2 + 1, a + 2, a + 3))
        A("v_xor_b32 v%d, %d, v%d" % (T0 + dl, dl << 5, T3))
        A("ds_write_b64 v%d, %s offset:%d" % (T0 + dl, vr(176 + dl * 2, 2), SCR))
    A("s_waitcnt lgkmcnt(0)")
    A("s_barrier")
    for ds in range(4):
        A("v_xor_b32 v%d, %d, v%d" % (TA + ds, ds << 6, T4))
        A("ds_read_b128 %s, v%d offset:%d" % (vr(QF + 32 + ds * 4, 4), TA + ds, SCR + ds * 4096))
    for i in range(4):
        A("v_mov_b32 v%d, 0x3f803f80" % (ONES + i))
    A("s_waitcnt lgkmcnt(0)")
    A("s_barrier")
    for n in range(2):
        for i in range(4):
            A("ds_write_b128 v%d, %s offset:%d" % (VKD if n == 0 else VVD, vr(PRE + n * 16 + i * 4, 4), (KS(0) if n == 0 else VS(0)) + i * 4096))
    A("s_waitcnt lgkmcnt(0)")
    for ds in range(4):
        A("v_xor_b32 v%d, %d, v%d" % (KA + ds, ds << 6, T4))
    A("v_lshrrev_b32 v%d, 2, v%d" % (T2, LANE))
    A("v_and_b32 v%d, 7, v%d" % (T3, T2))
    A("v_lshlrev_b32 v%d, 5, v%d" % (T3, T3))
    A("v_lshl_add_u32 v%d, v%d, 8, v%d" % (T3, T2, T3))
    A("v_and_b32 v%d, 3, v%d" % (T2, LANE))
    A("v_lshl_add_u32 v%d, v%d, 3, v%d" % (T3, T2, T3))
    A("v_add_u32 v%d, 49152, v%d" % (T3, T3))
    for dt in range(8):
        A("v_xor_b32 v%d, %d, v%d" % (VA + dt, dt << 5, T3))
    for t in range(3):
        A("v_mov_b32 v%d, 0xf149f2ca" % (M + t))
    stamp(A, 5)
    prio("b", 0)
    prio("c", 1)

    NKF = 2
    for j in range(8):
        if j == int(os.environ.get("PJ", "5")):
            prio("d", 0)
            prio("e", 1)
        n = vq.wait_for({("k", j)})
        A("s_waitcnt vmcnt(%d)" % n)
        A("s_barrier")
        if 1 <= j < 7:
            kv_dma(vq, 1, j + 1)
        kb = KS(j)

        def kreads(l):
            buf = F + (l & 1) * 16
            for ds in range(4):
                if l < 4:
                    A("ds_read_b128 %s, v%d offset:%d" % (vr(buf + ds * 4, 4), KA + ds, kb + l * 4096))
                else:
                    A("v_add_u32 v%d, s%d, v%d" % (T0 + ds, sW4k, KA + ds))
                    A("ds_read_b128 %s, v%d offset:%d" % (vr(buf + ds * 4, 4), T0 + ds, kb))

        kreads(0)
        kreads(1)
        for l in range(5):
            A("s_waitcnt lgkmcnt(%d)" % (4 if l < 4 else 0))
            for ds in range(4):
                fa = vr(F + (l & 1) * 16 + ds * 4, 4)
                for t in ((0, 1) if l < 4 else (2,)):
                    d = S + t * 16 + l * 4 if t < 2 else S + 32
                    c = "0" if ds == 0 else vr(d, 4)
                    A("v_mfma_f32_16x16x32_bf16 %s, %s, %s, %s" % (vr(d, 4), fa, vr(QF + t * 16 + ds * 4, 4), c))
            if l + 2 < 5:
                kreads(l + 2)
        for t in range(3):
            nv = 16 if t < 2 else 4
            s0 = S + t * 16
            mx = T0 + t
            A("v_max3_f32 v%d, v%d, v%d, v%d" % (mx, s0, s0 + 1, s0 + 2))
            for i in range(3, nv - 1, 2):
                A("v_max3_f32 v%d, v%d, v%d, v%d" % (mx, mx, s0 + i, s0 + i + 1))
            A("v_max_f32 v%d, v%d, v%d" % (mx, mx, s0 + nv - 1))
        for t in range(3):
            A("v_mov_b32 v%d, v%d" % (T3 + t, T0 + t))
        for t in range(3):
            A("v_permlane32_swap_b32 v%d, v%d" % (T0 + t, T3 + t))
        for t in range(3):
            A("v_max_f32 v%d, v%d, v%d" % (T0 + t, T0 + t, T3 + t))
        for t in range(3):
            A("v_mov_b32 v%d, v%d" % (T3 + t, T0 + t))
        for t in range(3):
            A("v_permlane16_swap_b32 v%d, v%d" % (T0 + t, T3 + t))
        for t in range(3):
            A("v_max_f32 v%d, v%d, v%d" % (T0 + t, T0 + t, T3 + t))
        for t in range(3):
            A("v_fma_f32 v%d, v%d, s%d, -v%d" % (T3 + t, T0 + t, sC, M + t))
        A("v_max3_f32 v%d, v%d, v%d, v%d" % (T3, T3, T4, T5))
        A("v_cmp_lt_f32 s[72:73], s%d, v%d" % (sThr, T3))
        A("s_nop 1")
        A("s_cmp_lg_u64 s[72:73], 0")
        A("s_cbranch_scc0 L1_nr%d" % j)
        for t in range(3):
            A("v_mul_f32 v%d, s%d, v%d" % (T0 + t, sC, T0 + t))
            A("v_max_f32 v%d, v%d, v%d" % (T0 + t, T0 + t, M + t))
            A("v_sub_f32 v%d, v%d, v%d" % (T3, M + t, T0 + t))
            A("v_exp_f32 v%d, v%d" % (T3, T3))
            A("v_mov_b32 v%d, v%d" % (M + t, T0 + t))
            if j > 0:
                for i in range(32):
                    A("v_mul_f32 v%d, v%d, v%d" % (O + t * 32 + i, O + t * 32 + i, T3))
                for i in range(4):
                    A("v_mul_f32 v%d, v%d, v%d" % (LACC + t * 4 + i, LACC + t * 4 + i, T3))
        A.label("L1_nr%d" % j)
        for t in range(3):
            nv = 16 if t < 2 else 4
            s0 = S + t * 16
            for i in range(nv):
                A("v_fma_f32 v%d, v%d, s%d, -v%d" % (s0 + i, s0 + i, sC, M + t))
            for i in range(nv):
                A("v_exp_f32 v%d, v%d" % (s0 + i, s0 + i))
            for i in range(0, nv, 2):
                A("v_cvt_pk_bf16_f32 v%d, v%d, v%d" % (s0 + (i // 8) * 8 + (i % 8) // 2, s0 + i, s0 + i + 1))
        n = vq.wait_for({("v", j)})
        A("s_waitcnt vmcnt(%d)" % n)
        A("s_barrier")
        if j + 3 < 8:
            kv_dma(vq, 0, j + 3)
        vb = VS(j) - 49152
        NF = 9

        def vreads(f):
            buf = F + (f % NF) * 4
            if f < 16:
                u, dt = f // 8, f % 8
                for hh in range(2):
                    A("ds_read_b64_tr_b16 %s, v%d offset:%d" % (vr(buf + hh * 2, 2), VA + dt, vb + (2 * u + hh) * 4096))
            else:
                for hh in range(2):
                    dt = (f - 16) * 2 + hh
                    A("v_add_u32 v%d, s%d, v%d" % (T0 + hh, sW4k, VA + dt))
                    A("ds_read_b64_tr_b16 %s, v%d offset:%d" % (vr(buf + hh * 2, 2), T0 + hh, vb))

        PD = 6
        for f in range(PD):
            vreads(f)
        for t in range(2):
            for u in range(2):
                d = vr(LACC + t * 4, 4)
                A("v_mfma_f32_16x16x32_bf16 %s, %s, %s, %s" % (d, vr(ONES, 4), vr(S + t * 16 + u * 8, 4), "0" if (j == 0 and u == 0) else d))
        d = vr(LACC + 8, 4)
        A("v_mfma_f32_16x16x16_bf16 %s, %s, %s, %s" % (d, vr(ONES, 2), vr(S + 32, 2), "0" if j == 0 else d))
        for f in range(20):
            rem = min(20, f + PD) - (f + 1)
            A("s_waitcnt lgkmcnt(%d)" % (2 * rem))
            fa = F + (f % NF) * 4
            if f < 16:
                u, dt = f // 8, f % 8
                for t in range(2):
                    d = vr(O + t * 32 + dt * 4, 4)
                    A("v_mfma_f32_16x16x32_bf16 %s, %s, %s, %s" % (d, vr(fa, 4), vr(S + t * 16 + u * 8, 4), "0" if (j == 0 and u == 0) else d))
            else:
                for hh in range(2):
                    dt = (f - 16) * 2 + hh
                    d = vr(O + 64 + dt * 4, 4)
                    A("v_mfma_f32_16x16x16_bf16 %s, %s, %s, %s" % (d, vr(fa + hh * 2, 2), vr(S + 32, 2), "0" if j == 0 else d))
            if f + PD < 20:
                vreads(f + PD)

    stamp(A, 6)
    A("s_barrier")
    A("v_lshlrev_b32 v%d, 4, v%d" % (T2, LANE))
    A("s_lshl_b32 s%d, s%d, 13" % (sT, sWv))
    A("v_add_u32 v%d, s%d, v%d" % (T3, sT, T2))
    for dt in range(8):
        A("ds_write_b128 v%d, %s offset:%d" % (T3, vr(O + 64 + dt * 4, 4), dt * 1024))
    A("v_and_b32 v%d, 15, v%d" % (T4, LANE))
    A("v_lshlrev_b32 v%d, 3, v%d" % (T4, T4))
    A("s_lshl_b32 s%d, s%d, 7" % (sT, sWv))
    A("v_add_u32 v%d, s%d, v%d" % (T5, sT, T4))
    A("v_mov_b32 v%d, v%d" % (KA + 1, M + 2))
    A("v_mov_b32 v%d, v%d" % (KA + 2, LACC + 8))
    A("ds_write_b64 v%d, %s offset:32768" % (T5, vr(KA + 1, 2)))
    VO = T2
    A("s_lshl_b32 s%d, s%d, 13" % (sT, sWv))
    for t in range(2):
        A("v_rcp_f32 v%d, v%d" % (T1, LACC + t * 4))
        for i in range(32):
            A("v_mul_f32 v%d, v%d, v%d" % (O + t * 32 + i, O + t * 32 + i, T1))
        for ds in range(4):
            a = O + t * 32 + ds * 8
            pk = QF + t * 16 + ds * 4
            for i in range(4):
                A("v_cvt_pk_bf16_f32 v%d, v%d, v%d" % (pk + i, a + 2 * i, a + 2 * i + 1))
            A("buffer_store_dwordx4 %s, v%d, %s, s%d offen offset:%d%s" % (vr(pk, 4), VO, sr(sO, 4), sT, 1024 * ds, " sc1" if FUSED else " " + OPOL))
        if t == 0:
            A("s_add_u32 s%d, s%d, 4096" % (sT, sT))
    A("s_waitcnt lgkmcnt(0)")
    A("s_barrier")
    ML = S
    OP = F
    for w2 in range(4):
        A("ds_read_b64 %s, v%d offset:%d" % (vr(ML + 2 * w2, 2), T4, 32768 + w2 * 128))
    A("s_lshl_b32 s%d, s%d, 11" % (sT, sWv))
    A("v_add_u32 v%d, s%d, v%d" % (T3, sT, T2))
    for w2 in range(4):
        for dd in range(2):
            A("ds_read_b128 %s, v%d offset:%d" % (vr(OP + (w2 * 2 + dd) * 4, 4), T3, w2 * 8192 + dd * 1024))
    A("s_waitcnt lgkmcnt(0)")
    A("v_max3_f32 v%d, v%d, v%d, v%d" % (T1, ML, ML + 2, ML + 4))
    A("v_max_f32 v%d, v%d, v%d" % (T1, T1, ML + 6))
    for w2 in range(4):
        A("v_sub_f32 v%d, v%d, v%d" % (ML + 2 * w2, ML + 2 * w2, T1))
        A("v_exp_f32 v%d, v%d" % (ML + 2 * w2, ML + 2 * w2))
    A("v_mul_f32 v%d, v%d, v%d" % (T5, ML, ML + 1))
    for w2 in range(1, 4):
        A("v_fma_f32 v%d, v%d, v%d, v%d" % (T5, ML + 2 * w2, ML + 2 * w2 + 1, T5))
    A("v_rcp_f32 v%d, v%d" % (T5, T5))
    for w2 in range(4):
        A("v_mul_f32 v%d, v%d, v%d" % (ML + 2 * w2, ML + 2 * w2, T5))
    for dd in range(2):
        for r in range(4):
            d = O + dd * 4 + r
            A("v_mul_f32 v%d, v%d, v%d" % (d, OP + dd * 4 + r, ML))
            for w2 in range(1, 4):
                A("v_fma_f32 v%d, v%d, v%d, v%d" % (d, OP + (w2 * 2 + dd) * 4 + r, ML + 2 * w2, d))
    A("s_lshl_b32 s%d, s%d, 10" % (sT, sWv))
    A("s_add_u32 s%d, s%d, %d" % (sT, sT, 8 * 4096))
    for i in range(4):
        A("v_cvt_pk_bf16_f32 v%d, v%d, v%d" % (QF + 32 + i, O + 2 * i, O + 2 * i + 1))
    A("buffer_store_dwordx4 %s, v%d, %s, s%d offen%s" % (vr(QF + 32, 4), VO, sr(sO, 4), sT, " sc1" if FUSED else " " + OPOL))
    if FUSED:
        A("s_waitcnt vmcnt(0)")
        A("s_barrier")
        A("s_cmp_eq_u32 s%d, 0" % sWv)
        A("s_cbranch_scc0 L1_nopub")
        A("s_lshl_b32 s%d, s%d, 3" % (sT, sBr))
        A("s_add_u32 s%d, s%d, s%d" % (sT, sT, sB))
        A("s_lshl_b32 s%d, s%d, 2" % (sT, sT))
        A("s_lshr_b32 s%d, s%d, 3" % (sT2, sH))
        A("s_add_u32 s%d, s%d, s%d" % (sT, sT, sT2))
        A("s_lshl_b32 s%d, s%d, 2" % (sT, sT))
        A("s_mov_b64 exec, 1")
        A("v_mov_b32 v%d, s%d" % (T0, sT))
        A("v_mov_b32 v%d, 1" % T1)
        A("global_atomic_add v%d, v%d, s[26:27] sc1" % (T0, T1))
        A("s_waitcnt vmcnt(0)")
        A("s_mov_b64 exec, -1")
        A.label("L1_nopub")
    if STAMP:
        A("s_waitcnt vmcnt(0)")
    stamp(A, 7)
    dump_stamps(A, 8, 0, sWv, 240)
    A.label("L1_done")
    A("s_endpgm")


def kernel_oproj3(A):
    K2 = "oproj_kernel"
    A.raw(".globl %s\n.p2align 8\n.type %s,@function\n%s:" % (K2, K2, K2))
    A("s_cmp_ge_u32 s2, 192")
    A("s_cbranch_scc1 L2_done")
    stamp(A, 0)
    load_kernargs(A)
    sBr, sMt, sNt, sW8 = 30, 31, 32, 33
    A("s_and_b32 s35, s2, 7")
    A("s_lshr_b32 s%d, s35, 2" % sBr)
    A("s_and_b32 s35, s35, 3")
    A("s_mul_i32 s35, s35, 3")
    A("s_lshr_b32 s36, s2, 3")
    A("s_and_b32 s%d, s36, 7" % sNt)
    A("s_lshr_b32 s36, s36, 3")
    A("s_add_u32 s%d, s35, s36" % sMt)
    ACC, XR, FR = 0, 96, 168
    WD, VX, RD = 200, 201, 202
    LANE, T0, T1, T2, T3 = 206, 207, 208, 209, 210
    A("v_and_b32 v%d, 63, v0" % LANE)
    A("v_lshrrev_b32 v%d, 6, v0" % T0)
    A("v_readfirstlane_b32 s%d, v%d" % (sW8, T0))
    A("s_waitcnt lgkmcnt(0)")
    stamp(A, 6)
    A("s_cmp_eq_u32 s%d, 0" % sBr)
    A("s_cselect_b64 s[12:13], s[12:13], s[22:23]")
    sW, sX, sO = 44, 48, 52
    A("s_lshl_b32 s36, s%d, 7" % sNt)
    A("s_sub_u32 s37, %d, s36" % (4096 * 1024))
    make_srd(A, sW, 12, 13, "s36", "s37")
    A("s_mul_i32 s35, s%d, %d" % (sBr, O_BRANCH_BYTES))
    make_srd(A, sX, 28, 29, "s35", "%d" % O_BRANCH_BYTES)
    A("s_mul_i32 s35, s%d, %d" % (sMt, 96 * 2048))
    A("s_lshl_b32 s37, s%d, 10" % sBr)
    A("s_add_u32 s36, s36, s37")
    A("s_add_u32 s35, s35, s36")
    A("s_sub_u32 s37, %d, s36" % (96 * 2048))
    make_srd(A, sO, 24, 25, "s35", "s37")
    sQ = 56
    A("s_mul_i32 s35, s%d, 6" % sMt)
    for i in range(6):
        A("s_add_u32 s36, s35, %d" % i)
        A("s_mul_i32 s37, s36, 57")
        A("s_lshr_b32 s37, s37, 9")
        A("s_mul_i32 s38, s37, 9")
        A("s_sub_u32 s38, s36, s38")
        A("s_mul_i32 s37, s37, %d" % (32 * 36864))
        A("s_lshl_b32 s38, s38, 12")
        A("s_add_u32 s%d, s37, s38" % (sQ + i))
    sRot, sk, st, sx, sL = 62, 63, 64, 65, 66
    A("s_lshl_b32 s%d, s%d, 1" % (sRot, sNt))
    A("s_mul_i32 s35, s%d, 5" % sMt)
    A("s_add_u32 s%d, s%d, s35" % (sRot, sRot))
    if os.environ.get("ROTM"):
        A("s_mul_i32 s35, s%d, 3" % sMt)
        A("s_add_u32 s%d, s%d, s35" % (sRot, sNt))
        A("s_and_b32 s%d, s%d, %s" % (sRot, sRot, os.environ.get("ROTM")))
    A("s_lshl_b32 s%d, s%d, 14" % (sL, sW8))
    A("v_bfe_u32 v%d, v%d, 1, 2" % (T0, LANE))
    A("v_lshrrev_b32 v%d, 4, v%d" % (T1, LANE))
    A("v_xor_b32 v%d, v%d, v%d" % (T0, T0, T1))
    A("v_lshlrev_b32 v%d, 5, v%d" % (T0, T0))
    A("v_and_b32 v%d, 1, v%d" % (T1, LANE))
    A("v_lshl_add_u32 v%d, v%d, 4, v%d" % (T0, T1, T0))
    A("v_lshrrev_b32 v%d, 3, v%d" % (T1, LANE))
    A("v_lshl_add_u32 v%d, v%d, 10, v%d" % (WD, T1, T0))
    A("v_lshlrev_b32 v%d, 4, v%d" % (VX, LANE))
    A("v_lshrrev_b32 v%d, 2, v%d" % (T0, LANE))
    A("v_bfe_u32 v%d, v%d, 3, 2" % (T1, LANE))
    A("v_lshlrev_b32 v%d, 5, v%d" % (T1, T1))
    A("v_lshl_add_u32 v%d, v%d, 7, v%d" % (T1, T0, T1))
    A("v_and_b32 v%d, 3, v%d" % (T0, LANE))
    A("v_lshl_add_u32 v%d, v%d, 3, v%d" % (T1, T0, T1))
    A("v_add_u32 v%d, s%d, v%d" % (RD, sL, T1))
    for nt in range(1, 4):
        A("v_xor_b32 v%d, %d, v%d" % (RD + nt, nt << 5, RD))
    vq = VmQ()
    NS, XD, NK = 4, 3, 16

    def kidx(i):
        A("s_add_u32 s%d, s%d, %d" % (sk, sRot, i))
        A("s_and_b32 s%d, s%d, 15" % (sk, sk))
        A("s_lshl_b32 s%d, s%d, 3" % (sk, sk))
        A("s_add_u32 s%d, s%d, s%d" % (sk, sk, sW8))

    def dma_w(i):
        A("s_lshl_b32 s%d, s%d, 15" % (st, sk))
        for m in range(4):
            A("s_add_u32 m0, s%d, %d" % (sL, (i % NS) * 4096 + m * 1024))
            if m:
                A("s_add_u32 s%d, s%d, 8192" % (st, st))
            A("buffer_load_dwordx4 v%d, %s, s%d offen lds" % (WD, sr(sW, 4), st))
            vq.issue(("w", i))

    def xload(i):
        A("s_lshr_b32 s%d, s%d, 2" % (sx, sk))
        A("s_mul_i32 s%d, s%d, 36864" % (sx, sx))
        A("s_and_b32 s%d, s%d, 3" % (st, sk))
        A("s_lshl_b32 s%d, s%d, 10" % (st, st))
        A("s_add_u32 s%d, s%d, s%d" % (sx, sx, st))
        for q in range(6):
            A("s_add_u32 s%d, s%d, s%d" % (st, sx, sQ + q))
            A("buffer_load_dwordx4 %s, v%d, %s, s%d offen" % (vr(XR + (i % XD) * 24 + q * 4, 4), VX, sr(sX, 4), st))
            vq.issue(("x", i))

    def wreads(i):
        for nt in range(4):
            for hh in range(2):
                A("ds_read_b64_tr_b16 %s, v%d offset:%d" % (vr(FR + (i & 1) * 16 + nt * 4 + hh * 2, 2), RD + nt, (i % NS) * 4096 + hh * 2048))

    for i in range(2):
        kidx(i)
        dma_w(i)
        xload(i)
    kidx(2)
    dma_w(2)
    stamp(A, 1)
    A("s_waitcnt vmcnt(%d)" % vq.wait_for({("w", 0)}))
    stamp(A, 2)
    wreads(0)
    for i in range(NK):
        need = {("x", i)}
        if i + 1 < NK:
            need.add(("w", i + 1))
        A("s_waitcnt vmcnt(%d) lgkmcnt(0)" % vq.wait_for(need))
        if i == NK // 2:
            stamp(A, 3)
        if i + 1 < NK:
            wreads(i + 1)
        if i + 3 < NK:
            kidx(i + 3)
            dma_w(i + 3)
        if i + 2 < NK:
            kidx(i + 2)
            xload(i + 2)
        for nt in range(4):
            for q in range(6):
                a = ACC + (nt * 6 + q) * 4
                c = "0" if i == 0 else vr(a, 4)
                A("v_mfma_f32_16x16x32_bf16 %s, %s, %s, %s" % (vr(a, 4), vr(FR + (i & 1) * 16 + nt * 4, 4), vr(XR + (i % XD) * 24 + q * 4, 4), c))
    stamp(A, 4)
    A("s_lshl_b32 s35, s%d, 13" % sW8)
    A("v_add_u32 v%d, s35, v%d" % (T0, VX))
    A("s_lshl_b32 s35, s%d, 10" % sW8)
    A("v_add_u32 v%d, s35, v%d" % (T1, VX))
    Y = 96
    for rnd in range(3):
        A("s_barrier")
        for f in range(8):
            A("ds_write_b128 v%d, %s offset:%d" % (T0, vr(ACC + (rnd * 8 + f) * 4, 4), f * 1024))
        A("s_waitcnt lgkmcnt(0)")
        A("s_barrier")
        for w2 in range(8):
            A("ds_read_b128 %s, v%d offset:%d" % (vr(Y + rnd * 32 + w2 * 4, 4), T1, w2 * 8192))
        A("s_waitcnt lgkmcnt(0)")
    A("v_and_b32 v%d, 15, v%d" % (T0, LANE))
    A("v_lshlrev_b32 v%d, 11, v%d" % (T0, T0))
    A("v_lshrrev_b32 v%d, 4, v%d" % (T1, LANE))
    A("v_lshl_add_u32 v%d, v%d, 3, v%d" % (T0, T1, T0))
    for rnd in range(3):
        y = Y + rnd * 32
        for step in (16, 8, 4):
            for i in range(step):
                A("v_add_f32 v%d, v%d, v%d" % (y + i, y + i, y + step + i))
        A("s_add_u32 s35, s%d, %d" % (sW8, 8 * rnd))
        A("s_mul_i32 s36, s35, 43")
        A("s_lshr_b32 s36, s36, 8")
        A("s_mul_i32 s37, s36, 6")
        A("s_sub_u32 s37, s35, s37")
        A("s_lshl_b32 s37, s37, 15")
        A("s_lshl_b32 s36, s36, 5")
        A("s_add_u32 s36, s36, s37")
        A("v_cvt_pk_bf16_f32 v%d, v%d, v%d" % (y + 8, y, y + 1))
        A("v_cvt_pk_bf16_f32 v%d, v%d, v%d" % (y + 9, y + 2, y + 3))
        A("buffer_store_dwordx2 %s, v%d, %s, s36 offen" % (vr(y + 8, 2), T0, sr(sO, 4)))
    if STAMP:
        A("s_waitcnt vmcnt(0)")
        stamp(A, 7)
        A("s_lshr_b32 s98, s%d, 1" % sW8)
        dump_stamps(A, 8, 1, 98, 212)
    A.label("L2_done")
    A("s_endpgm")


def kernel_oproj(A):
    K2 = "oproj_kernel"
    A.raw(".globl %s\n.p2align 8\n.type %s,@function\n%s:" % (K2, K2, K2))
    A("s_cmp_ge_u32 s2, 256")
    A("s_cbranch_scc1 L2_done")
    stamp(A, 0)
    load_kernargs(A)
    sBr, sKq, sB, sNb, sWv, sGr, sW8 = 30, 31, 32, 33, 34, 39, 40
    A("s_and_b32 s35, s2, 7")
    A("s_lshr_b32 s%d, s35, 2" % sBr)
    A("s_and_b32 s%d, s35, 3" % sKq)
    A("s_lshr_b32 s35, s2, 3")
    A("s_lshr_b32 s%d, s35, 2" % sB)
    A("s_and_b32 s%d, s35, 3" % sNb)
    LANE, T0, T1, T2, T3 = 254, 238, 239, 240, 241
    A("v_and_b32 v%d, 63, v0" % LANE)
    A("v_lshrrev_b32 v%d, 6, v0" % T0)
    A("v_readfirstlane_b32 s%d, v%d" % (sW8, T0))
    A("s_and_b32 s%d, s%d, 3" % (sWv, sW8))
    A("s_lshr_b32 s%d, s%d, 2" % (sGr, sW8))
    A("s_waitcnt lgkmcnt(0)")
    stamp(A, 6)
    A("s_cmp_eq_u32 s%d, 0" % sBr)
    A("s_cselect_b64 s[12:13], s[12:13], s[22:23]")
    sW, sX, sP = 44, 48, 52
    A("s_lshl_b32 s35, s%d, 1" % sKq)
    A("s_add_u32 s38, s35, s%d" % sGr)
    A("s_lshl_b32 s35, s38, 19")
    A("s_lshl_b32 s36, s%d, 8" % sNb)
    A("s_add_u32 s35, s35, s36")
    A("s_sub_u32 s37, %d, s36" % (512 * 1024))
    make_srd(A, sW, 12, 13, "s35", "s37")
    A("s_mul_i32 s35, s%d, %d" % (sBr, O_BRANCH_BYTES))
    A("s_lshl_b32 s36, s%d, 3" % sB)
    A("s_add_u32 s36, s36, s38")
    A("s_mul_i32 s36, s36, %d" % (4 * 36864))
    A("s_add_u32 s35, s35, s36")
    make_srd(A, sX, 28, 29, "s35", "%d" % (4 * 36864))
    sRot = 68
    A("s_lshl_b32 s%d, s%d, 1" % (sRot, sNb))
    A("s_add_u32 s%d, s%d, s%d" % (sRot, sRot, sB))
    A("s_lshl_b32 s%d, s%d, 1" % (sRot, sRot))
    PW_ = 9 * 1024 // (2 if PBF else 1)
    PT = 8 * PW_
    sTile = 41
    A("s_lshl_b32 s%d, s%d, 5" % (sTile, sBr))
    A("s_lshl_b32 s35, s%d, 2" % sB)
    A("s_add_u32 s%d, s%d, s35" % (sTile, sTile))
    A("s_add_u32 s%d, s%d, s%d" % (sTile, sTile, sNb))
    A("s_lshl_b32 s35, s%d, 2" % sTile)
    A("s_add_u32 s35, s35, s%d" % sKq)
    A("s_mul_i32 s35, s35, %d" % PT)
    A("s_mul_i32 s36, s%d, %d" % (sW8, PW_))
    A("s_add_u32 s35, s35, s36")
    A("s_add_u32 s35, s35, %d" % P_BASE)
    make_srd(A, sP, 28, 29, "s35", "%d" % PW_)
    A("s_lshl_b32 s69, s%d, 16" % sGr)
    R = dict(acc=0, xr=88, fr=172, wrd=72, wdma=80, vx=82, lane=LANE, t0=T0, t1=T1, t2=T2, t3=T3,
             sq0=60, swb=62, sm0=63, st=64, sk=65, sx=66, sw1k=67, slds=69)
    gemm_phase(A, 16, 1024, "perm", sW, sX, sWv, sRot, R, {})
    stamp(A, 4)
    A("s_barrier")
    A("v_lshlrev_b32 v%d, 4, v%d" % (T0, LANE))
    A("s_mul_i32 s35, s%d, 9216" % sW8)
    A("v_add_u32 v%d, s35, v%d" % (T1, T0))
    A("s_xor_b32 s36, s%d, 4" % sW8)
    A("s_mul_i32 s36, s36, 9216")
    A("v_add_u32 v%d, s36, v%d" % (T2, T0))
    X = 96
    A("s_cmp_eq_u32 s%d, 0" % sGr)
    A("s_cbranch_scc0 L2_grB")
    for grp in range(2):
        keep = range(0, 9) if grp == 0 else range(9, 18)
        give = range(9, 18) if grp == 0 else range(0, 9)
        for i, f in enumerate(give):
            A("ds_write_b128 v%d, %s offset:%d" % (T1, vr(f * 4, 4), i * 1024))
        A("s_waitcnt lgkmcnt(0)")
        A("s_barrier")
        for i in range(9):
            A("ds_read_b128 %s, v%d offset:%d" % (vr(X + i * 4, 4), T2, i * 1024))
        A("s_waitcnt lgkmcnt(0)")
        for i, f in enumerate(keep):
            for r in range(4):
                A("v_add_f32 v%d, v%d, v%d" % (X + i * 4 + r, X + i * 4 + r, f * 4 + r))
        if grp == 0:
            A.flush()
            A("s_branch L2_join")
            A.label("L2_grB")
    A.label("L2_join")
    A("s_mov_b32 s35, 0")
    if PBF:
        A("v_lshlrev_b32 v%d, 3, v%d" % (T1, LANE))
        for i in range(9):
            A("v_cvt_pk_bf16_f32 v%d, v%d, v%d" % (2 * i, X + 4 * i, X + 4 * i + 1))
            A("v_cvt_pk_bf16_f32 v%d, v%d, v%d" % (2 * i + 1, X + 4 * i + 2, X + 4 * i + 3))
            if i == 8:
                A("s_mov_b32 s35, 4096")
            A("buffer_store_dwordx2 %s, v%d, %s, s35 offen offset:%d %s" % (vr(2 * i, 2), T1, sr(sP, 4), (i % 8) * 512, PPOL))
    else:
        for i in range(9):
            if i % 4 == 0 and i:
                A("s_add_u32 s35, s35, 4096")
            A("buffer_store_dwordx4 %s, v%d, %s, s35 offen offset:%d" % (vr(X + i * 4, 4), T0, sr(sP, 4), (i % 4) * 1024))
    if STAMP:
        A("s_waitcnt vmcnt(0)")
        stamp(A, 7)
        A("s_lshr_b32 s98, s%d, 1" % sW8)
        dump_stamps(A, 8, 1, 98, 240)
    A.label("L2_done")
    A("s_endpgm")


def role_oproj(A):
    A.label("LF_oproj")
    stamp(A, 0)
    load_kernargs(A)
    sBr, sKq, sB, sNb, sWv = 30, 31, 32, 33, 34
    A("s_sub_u32 s39, s2, 512")
    A("s_and_b32 s35, s39, 7")
    A("s_lshr_b32 s%d, s35, 2" % sBr)
    A("s_and_b32 s%d, s35, 3" % sKq)
    A("s_lshr_b32 s35, s39, 3")
    A("s_lshr_b32 s%d, s35, 2" % sB)
    A("s_and_b32 s%d, s35, 3" % sNb)
    LANE, T0, T1, T2, T3 = 254, 238, 239, 240, 241
    A("v_and_b32 v%d, 63, v0" % LANE)
    A("v_lshrrev_b32 v%d, 6, v0" % T0)
    A("v_readfirstlane_b32 s%d, v%d" % (sWv, T0))
    A("s_waitcnt lgkmcnt(0)")
    A("s_cmp_eq_u32 s%d, 0" % sBr)
    A("s_cselect_b64 s[12:13], s[12:13], s[22:23]")
    sW, sX, sP = 44, 48, 52
    A("s_lshl_b32 s35, s%d, 20" % sKq)
    A("s_lshl_b32 s36, s%d, 8" % sNb)
    A("s_add_u32 s35, s35, s36")
    A("s_sub_u32 s37, %d, s36" % (1024 * 1024))
    make_srd(A, sW, 12, 13, "s35", "s37")
    A("s_mul_i32 s35, s%d, %d" % (sBr, O_BRANCH_BYTES))
    A("s_lshl_b32 s36, s%d, 2" % sB)
    A("s_add_u32 s36, s36, s%d" % sKq)
    A("s_mul_i32 s36, s36, %d" % (8 * 36864))
    A("s_add_u32 s35, s35, s36")
    make_srd(A, sX, 28, 29, "s35", "%d" % (8 * 36864))
    sRot = 68
    A("s_lshl_b32 s%d, s%d, 1" % (sRot, sNb))
    A("s_add_u32 s%d, s%d, s%d" % (sRot, sRot, sB))
    A("s_lshl_b32 s%d, s%d, 2" % (sRot, sRot))
    FB = 512 if PBF else 1024
    PW_ = 18 * FB
    PT = 4 * PW_
    sTile = 41
    A("s_lshl_b32 s%d, s%d, 5" % (sTile, sBr))
    A("s_lshl_b32 s35, s%d, 2" % sB)
    A("s_add_u32 s%d, s%d, s35" % (sTile, sTile))
    A("s_add_u32 s%d, s%d, s%d" % (sTile, sTile, sNb))
    A("s_lshl_b32 s35, s%d, 2" % sTile)
    A("s_add_u32 s35, s35, s%d" % sKq)
    A("s_mul_i32 s35, s35, %d" % PT)
    A("s_mul_i32 s36, s%d, %d" % (sWv, PW_))
    A("s_add_u32 s35, s35, s36")
    A("s_add_u32 s35, s35, %d" % P_BASE)
    make_srd(A, sP, 28, 29, "s35", "%d" % PW_)

    def wait_o(A):
        A("s_cmp_eq_u32 s%d, 0" % sWv)
        A("s_cbranch_scc0 LF_waited")
        A("s_lshl_b32 s35, s%d, 3" % sBr)
        A("s_add_u32 s35, s35, s%d" % sB)
        A("s_lshl_b32 s35, s35, 2")
        A("s_add_u32 s35, s35, s%d" % sKq)
        A("s_lshl_b32 s35, s35, 2")
        A("v_mov_b32 v%d, s35" % T0)
        A("s_mov_b32 s36, 200000")
        A.label("LF_poll")
        A("global_load_dword v%d, v%d, s[26:27] sc1" % (T1, T0))
        A("s_waitcnt vmcnt(0)")
        A("v_readfirstlane_b32 s35, v%d" % T1)
        A("s_cmp_ge_u32 s35, 8")
        A("s_cbranch_scc1 LF_waited")
        A("s_sleep 4")
        A("s_sub_u32 s36, s36, 1")
        A("s_cmp_lg_u32 s36, 0")
        A("s_cbranch_scc1 LF_poll")
        A.label("LF_waited")
        A("s_barrier")
        stamp(A, 6)

    R = dict(acc=0, xr=88, fr=172, wrd=72, wdma=80, vx=82, lane=LANE, t0=T0, t1=T1, t2=T2, t3=T3,
             sq0=60, swb=62, sm0=63, st=64, sk=65, sx=66, sw1k=67, prex=wait_o, xpol="sc1")
    gemm_phase(A, 32, 1024, "perm", sW, sX, sWv, sRot, R, {})
    stamp(A, 4)
    A("s_mov_b32 s35, 0")
    if PBF:
        A("v_lshlrev_b32 v%d, 3, v%d" % (T1, LANE))
        for i in range(18):
            A("v_cvt_pk_bf16_f32 v%d, v%d, v%d" % (96 + 2 * i, 4 * i, 4 * i + 1))
            A("v_cvt_pk_bf16_f32 v%d, v%d, v%d" % (97 + 2 * i, 4 * i + 2, 4 * i + 3))
            if i % 8 == 0 and i:
                A("s_add_u32 s35, s35, 4096")
            A("buffer_store_dwordx2 %s, v%d, %s, s35 offen offset:%d" % (vr(96 + 2 * i, 2), T1, sr(sP, 4), (i % 8) * 512))
    else:
        A("v_lshlrev_b32 v%d, 4, v%d" % (T1, LANE))
        for i in range(18):
            if i % 4 == 0 and i:
                A("s_add_u32 s35, s35, 4096")
            A("buffer_store_dwordx4 %s, v%d, %s, s35 offen offset:%d" % (vr(i * 4, 4), T1, sr(sP, 4), (i % 4) * 1024))
    if STAMP:
        A("s_waitcnt vmcnt(0)")
        stamp(A, 7)
        A("s_mov_b32 s99, s2")
        A("s_sub_u32 s2, s2, 512")
        dump_stamps(A, 8, 1, sWv, 240)
    A("s_endpgm")


def kernel_reduce(A):
    K3 = "reduce_kernel"
    FB = 512 if PBF else 1024
    PT = 72 * FB
    A.raw(".globl %s\n.p2align 8\n.type %s,@function\n%s:" % (K3, K3, K3))
    A("s_cmp_ge_u32 s2, 1152")
    A("s_cbranch_scc1 L3_done")
    A("s_load_dwordx2 s[24:25], s[0:1], 80")
    A("s_load_dwordx2 s[28:29], s[0:1], 96")
    A("v_lshrrev_b32 v1, 6, v0")
    A("v_and_b32 v2, 63, v0")
    A("v_readfirstlane_b32 s30, v1")
    A("s_lshl_b32 s31, s2, 2")
    A("s_add_u32 s30, s30, s31")
    A("s_mul_hi_u32 s31, s30, %d" % ((1 << 32) // 72 + 1))
    A("s_mul_i32 s32, s31, 72")
    A("s_sub_u32 s32, s30, s32")
    NFW = 18 if FUSED else 9
    A("s_mul_hi_u32 s33, s32, %d" % ((1 << 32) // NFW + 1))
    A("s_mul_i32 s34, s33, %d" % NFW)
    A("s_sub_u32 s34, s32, s34")
    A("s_mul_i32 s35, s31, %d" % (4 * PT))
    A("s_mul_i32 s36, s32, %d" % FB)
    A("s_add_u32 s35, s35, s36")
    A("s_add_u32 s35, s35, %d" % P_BASE)
    A("s_waitcnt lgkmcnt(0)")
    make_srd(A, 40, 28, 29, "s35", "%d" % (3 * PT + FB))
    A("v_lshlrev_b32 v3, %d, v2" % (3 if PBF else 4))
    for kq in range(4):
        A("s_mov_b32 s%d, %d" % (48 + kq, kq * PT))
        if PBF:
            A("buffer_load_dwordx2 %s, v3, s[40:43], s%d offen" % (vr(24 + kq * 2, 2), 48 + kq))
        else:
            A("buffer_load_dwordx4 %s, v3, s[40:43], s%d offen" % (vr(4 + kq * 4, 4), 48 + kq))
    A("s_lshr_b32 s36, s33, 2")
    A("s_mul_i32 s36, s36, 9")
    A("s_add_u32 s36, s36, s34")
    A("s_and_b32 s37, s33, 3")
    A("s_lshl_b32 s37, s37, 1")
    A("s_lshr_b32 s38, s36, 3")
    A("s_add_u32 s39, s37, s38")
    A("s_cmp_ge_u32 s36, 16")
    A("s_cselect_b32 s39, 8, s39")
    A("s_and_b32 s36, s36, 7")
    A("s_xor_b32 s36, s36, s37")
    A("s_lshr_b32 s52, s31, 5")
    A("s_lshr_b32 s53, s31, 2")
    A("s_and_b32 s53, s53, 7")
    A("s_and_b32 s54, s31, 3")
    A("s_mul_i32 s53, s53, 144")
    A("s_lshl_b32 s39, s39, 4")
    A("s_add_u32 s53, s53, s39")
    A("s_lshl_b32 s53, s53, 11")
    A("s_lshl_b32 s52, s52, 10")
    A("s_lshl_b32 s54, s54, 8")
    A("s_lshl_b32 s36, s36, 5")
    A("s_add_u32 s53, s53, s52")
    A("s_add_u32 s53, s53, s54")
    A("s_add_u32 s53, s53, s36")
    A("s_mov_b32 s55, 0")
    make_srd(A, 44, 24, 25, "s55", "%d" % (8 * 144 * 1024 * 2))
    A("v_and_b32 v1, 15, v2")
    A("v_lshlrev_b32 v1, 11, v1")
    A("v_lshrrev_b32 v2, 4, v2")
    A("v_lshl_add_u32 v1, v2, 3, v1")
    A("s_waitcnt vmcnt(0)")
    if PBF:
        for kq in range(4):
            for h in range(2):
                A("v_lshlrev_b32 v%d, 16, v%d" % (4 + kq * 4 + 2 * h, 24 + kq * 2 + h))
                A("v_and_b32 v%d, 0xffff0000, v%d" % (5 + kq * 4 + 2 * h, 24 + kq * 2 + h))
    for i in range(4):
        A("v_add_f32 v%d, v%d, v%d" % (4 + i, 4 + i, 8 + i))
        A("v_add_f32 v%d, v%d, v%d" % (12 + i, 12 + i, 16 + i))
    for i in range(4):
        A("v_add_f32 v%d, v%d, v%d" % (4 + i, 4 + i, 12 + i))
    A("v_cvt_pk_bf16_f32 v20, v4, v5")
    A("v_cvt_pk_bf16_f32 v21, v6, v7")
    A("buffer_store_dwordx2 v[20:21], v1, s[44:47], s53 offen")
    A.label("L3_done")
    A("s_endpgm")


def kd(name, vgpr, sgpr=102):
    return """.amdhsa_kernel %s
  .amdhsa_next_free_vgpr %d
  .amdhsa_next_free_sgpr %d
  .amdhsa_accum_offset %d
  .amdhsa_group_segment_fixed_size 0
  .amdhsa_kernarg_size 104
  .amdhsa_user_sgpr_count 2
  .amdhsa_user_sgpr_kernarg_segment_ptr 1
  .amdhsa_system_sgpr_workgroup_id_x 1
.end_amdhsa_kernel
""" % (name, vgpr, sgpr, (vgpr + 3) // 4 * 4)


def main():
    A = Asm()
    hdr = open(os.path.join(os.path.dirname(os.path.abspath(__file__)), "..", "cdna_kernels", NAME + ".s.ref")).read().split("\n")
    head = [l for l in hdr if l.startswith(";") and "@launch" not in l and "Override launch" not in l and "grid=ceil" not in l]
    out = "\n".join(head) + "\n"
    if FUSED:
        out += "; @launch kernel=attn_kernel grid=(768,1,1) block=(256,1,1) lds=81920\n"
    else:
        out += "; @launch kernel=attn_kernel grid=(512,1,1) block=(256,1,1) lds=81920\n"
        out += "; @launch kernel=oproj_kernel grid=(256,1,1) block=(512,1,1) lds=131072\n"
    out += "; @launch kernel=reduce_kernel grid=(1152,1,1) block=(256,1,1) lds=0\n"
    if "twice" in EXP:
        out += "; @launch kernel=oproj_kernel grid=(256,1,1) block=(512,1,1) lds=131072\n"
    out += '.amdgcn_target "amdgcn-amd-amdhsa--gfx950"\n.text\n'
    kernel_attn(A)
    if FUSED:
        role_oproj(A)
    else:
        kernel_oproj(A)
    kernel_reduce(A)
    out += A.text()
    out += '.section .rodata,"a"\n.p2align 6\n'
    out += kd("attn_kernel", 256, 100 if STAMP else 76)
    if not FUSED:
        out += ".p2align 6\n" + kd("oproj_kernel", 256, 100 if STAMP else 74)
    out += ".p2align 6\n" + kd("reduce_kernel", 32, 60)
    dst = sys.argv[1] if len(sys.argv) > 1 else os.path.join(os.path.dirname(os.path.abspath(__file__)), "..", "cdna_kernels", NAME + ".s")
    open(dst, "w").write(out)
    print("wrote", dst, A.ninst, "instructions")


if __name__ == "__main__":
    main()
```

```python
import sys, os, struct
sys.path.insert(0, os.path.dirname(os.path.abspath(__file__)))
from asmlib import Asm, VmQ

NAME = "concat_heads__mha_block_cached__mha_block_cached__near_ridge"
O_BRANCH_BYTES = 1152 * 4096 * 2
P_BASE = 2 * O_BRANCH_BYTES
SCALE_C = 1.4426950408889634 / (128.0 ** 0.5)
EXP = os.environ.get("EXP", "")
KVPOL = os.environ.get("KVPOL", "nt ")
WPOL = os.environ.get("WPOL", "")
FUSED = os.environ.get("FUSED", "0") == "1"
OPOL = os.environ.get("OPOL", "sc1")
PBF = os.environ.get("PBF", "1") == "1"
PPOL = os.environ.get("PPOL", "sc1")
PLPOL = os.environ.get("PLPOL", "sc1")
XPOL = os.environ.get("XPOL", "")


def f32bits(x):
    return struct.unpack("<I", struct.pack("<f", x))[0]


def vr(base, n):
    return "v[%d:%d]" % (base, base + n - 1)


def sr(base, n):
    return "s[%d:%d]" % (base, base + n - 1)


def load_kernargs(A):
    A("s_load_dwordx16 s[4:19], s[0:1], 0")
    A("s_load_dwordx8 s[20:27], s[0:1], 64")
    A("s_load_dwordx2 s[28:29], s[0:1], 96")


def make_srd(A, d, lo, hi, off_s, nrec):
    A("s_add_u32 s%d, s%d, %s" % (d, lo, off_s))
    A("s_addc_u32 s%d, s%d, 0" % (d + 1, hi))
    A("s_and_b32 s%d, s%d, 0xffff" % (d + 1, d + 1))
    A("s_mov_b32 s%d, %s" % (d + 2, nrec))
    A("s_mov_b32 s%d, 0x00020000" % (d + 3))


STAMP = "stamp" in EXP


def stamp(A, i):
    if STAMP:
        if "real" in EXP:
            A("s_memrealtime s[%d:%d]" % (80 + 2 * i, 81 + 2 * i))
        else:
            A("s_memtime s[%d:%d]" % (80 + 2 * i, 81 + 2 * i))


def dump_stamps(A, n, kidx, sWv, vt):
    if not STAMP:
        return
    A("s_waitcnt lgkmcnt(0)")
    A("s_lshl_b32 s96, s2, 8")
    A("s_lshl_b32 s97, s%d, 6" % sWv)
    A("s_add_u32 s96, s96, s97")
    A("s_add_u32 s96, s96, %d" % (200 * 1024 * 1024 + kidx * 1024 * 1024))
    A("s_add_u32 s76, s28, s96")
    A("s_addc_u32 s77, s29, 0")
    A("s_and_b32 s77, s77, 0xffff")
    A("s_mov_b32 s78, 64")
    A("s_mov_b32 s79, 0x00020000")
    A("v_mov_b32 v%d, 0" % vt)
    for i in range(n):
        A("v_mov_b32 v%d, s%d" % (vt + 1, 80 + 2 * i))
        A("buffer_store_dword v%d, v%d, s[76:79], 0 offen offset:%d" % (vt + 1, vt, 4 * i))
    A("s_waitcnt vmcnt(0)")


def gemm_phase(A, nk, wstride, mode, sW, sX, sWave, sRot, R, hooks):
    vq = VmQ()
    lane, t0, t1, t2, t3 = R["lane"], R["t0"], R["t1"], R["t2"], R["t3"]
    wdma, vx, wrd = R["wdma"], R["vx"], R["wrd"]
    sq0, swb, sm0, st, sk, sx, sw1k = R["sq0"], R["swb"], R["sm0"], R["st"], R["sk"], R["sx"], R["sw1k"]
    nat = mode == "nat"
    NW = 5 if nat else 8
    XD = 4 if nat else 7
    XB = 40960
    wslot = (lambda c: (c + 4) % 5) if nat else (lambda c: c % 8)
    xslot = lambda c: (c + 1) & 1
    A("v_lshrrev_b32 v%d, 4, v%d" % (t0, lane))
    A("v_and_b32 v%d, 15, v%d" % (t1, lane))
    if nat:
        A("s_and_b32 s%d, s%d, 1" % (st, sWave))
        A("s_lshl_b32 s%d, s%d, 2" % (st, st))
        A("v_or_b32 v%d, s%d, v%d" % (t2, st, t0))
    else:
        A("v_mov_b32 v%d, v%d" % (t2, t0))
    A("v_lshrrev_b32 v%d, 1, v%d" % (t3, t1))
    A("v_xor_b32 v%d, v%d, v%d" % (t2, t2, t3))
    A("v_lshlrev_b32 v%d, 5, v%d" % (t2, t2))
    A("v_and_b32 v%d, 1, v%d" % (t3, lane))
    A("v_lshl_add_u32 v%d, v%d, 4, v%d" % (t2, t3, t2))
    A("v_mul_u32_u24 v%d, %d, v%d" % (t3, wstride, t0))
    A("v_add_u32 v%d, v%d, v%d" % (wdma, t2, t3))
    if nat:
        A("v_mov_b32 v%d, v%d" % (wdma + 1, wdma))
        A("s_lshl_b32 s%d, s%d, 2" % (st, sWave))
        A("v_add_u32 v%d, s%d, v%d" % (t2, st, t0))
        A("v_xor_b32 v%d, v%d, v%d" % (t2, t2, lane))
        A("v_and_b32 v%d, 7, v%d" % (t2, t2))
        A("v_lshlrev_b32 v%d, 4, v%d" % (t2, t2))
        A("v_lshrrev_b32 v%d, 3, v%d" % (t3, lane))
        A("s_lshl_b32 s%d, s%d, 3" % (st, sWave))
        A("v_add_u32 v%d, s%d, v%d" % (t3, st, t3))
        A("v_lshl_add_u32 v%d, v%d, 10, v%d" % (vx, t3, t2))
        A("v_lshrrev_b32 v%d, 1, v%d" % (t2, t1))
        A("v_xor_b32 v%d, v%d, v%d" % (t2, t2, t0))
        A("v_lshlrev_b32 v%d, 4, v%d" % (t2, t2))
        A("v_lshl_add_u32 v%d, v%d, 7, v%d" % (t2, t1, t2))
        A("v_add_u32 v%d, %d, v%d" % (vx + 1, XB, t2))
        A("v_xor_b32 v%d, 64, v%d" % (vx + 2, vx + 1))
        A("s_lshl_b32 s%d, s%d, 12" % (st, sWave))
        A("v_add_u32 v%d, s%d, v%d" % (vx + 3, st, vx + 1))
        A("v_add_u32 v%d, s%d, v%d" % (vx + 4, st, vx + 2))
        A("v_bfe_u32 v%d, v%d, 2, 2" % (t1, lane))
        A("v_and_b32 v%d, 1, v%d" % (t2, t0))
        A("v_lshl_add_u32 v%d, v%d, 2, v%d" % (t2, t2, t1))
        A("v_lshl_add_u32 v%d, v%d, 3, v%d" % (t3, t0, t1))
        hoff = 1024
    else:
        A("v_xor_b32 v%d, 0x80, v%d" % (wdma + 1, wdma))
        A("v_lshlrev_b32 v%d, 4, v%d" % (vx, lane))
        A("v_lshrrev_b32 v%d, 2, v%d" % (t3, lane))
        A("v_and_b32 v%d, 7, v%d" % (t2, t3))
        hoff = 4096
    A("s_lshl_b32 s%d, s%d, 1" % (st, sWave))
    A("v_xor_b32 v%d, s%d, v%d" % (t2, st, t2))
    A("v_lshlrev_b32 v%d, 5, v%d" % (t2, t2))
    A("v_lshl_add_u32 v%d, v%d, 8, v%d" % (t2, t3, t2))
    A("v_and_b32 v%d, 3, v%d" % (t3, lane))
    A("v_lshl_add_u32 v%d, v%d, 3, v%d" % (wrd, t3, t2))
    if "slds" in R:
        A("v_add_u32 v%d, s%d, v%d" % (wrd, R["slds"], wrd))
    for dl in range(1, 8):
        A("v_xor_b32 v%d, %d, v%d" % (wrd + dl, dl << 5, wrd))
    A("s_lshl_b32 s%d, s%d, 13" % (sq0, sWave))
    A("s_mul_i32 s%d, s%d, %d" % (swb, sWave, 8 * wstride))
    A("s_lshl_b32 s%d, s%d, 11" % (sm0, sWave))
    if "slds" in R:
        A("s_add_u32 s%d, s%d, s%d" % (sm0, sm0, R["slds"]))
    A("s_lshl_b32 s%d, s%d, 10" % (sw1k, sWave))

    def kidx(ks):
        A("s_add_u32 s%d, s%d, %d" % (sk, sRot, ks))
        A("s_and_b32 s%d, s%d, %d" % (sk, sk, nk - 1))

    def dma_w(ks):
        kidx(ks)
        A("s_mul_i32 s%d, s%d, %d" % (st, sk, 32 * wstride))
        A("s_add_u32 s%d, s%d, s%d" % (st, st, swb))
        for mm in range(2):
            A("s_add_u32 m0, s%d, %d" % (sm0, wslot(ks) * 8192 + mm * 1024))
            if mm:
                A("s_add_u32 s%d, s%d, %d" % (st, st, 4 * wstride))
            A("buffer_load_dwordx4 v%d, %s, s%d offen %slds" % (wdma + mm, sr(sW, 4), st, WPOL))
            vq.issue(("w", ks))

    def dma_x(c):
        kidx(2 * c)
        A("s_lshl_b32 s%d, s%d, 6" % (sx, sk))
        for i in range(5):
            A("s_add_u32 m0, s%d, %d" % (sw1k, XB + xslot(c) * 20480 + i * 4096))
            if i:
                A("s_add_u32 s%d, s%d, 32768" % (sx, sx))
            A("buffer_load_dwordx4 v%d, %s, s%d offen %slds" % (vx, sr(sX, 4), sx, XPOL))
            vq.issue(("x", c))

    def xreads(c):
        out = []
        for p in range(2):
            base = R["xr"] + ((2 * c + p) % XD) * 12
            so = xslot(c) * 20480
            out.append("ds_read_b128 %s, v%d offset:%d" % (vr(base, 4), vx + 3 + p, so))
            out.append("ds_read_b128 %s, v%d offset:%d" % (vr(base + 4, 4), vx + 3 + p, so + 2048))
            out.append("ds_read_b128 %s, v%d offset:%d" % (vr(base + 8, 4), vx + 1 + p, so + 16384))
        return out

    def xload(ks):
        base = R["xr"] + (ks % XD) * 12
        kidx(ks)
        A("s_lshr_b32 s%d, s%d, 2" % (sx, sk))
        A("s_mul_i32 s%d, s%d, 36864" % (sx, sx))
        A("s_and_b32 s%d, s%d, 3" % (st, sk))
        A("s_lshl_b32 s%d, s%d, 10" % (st, st))
        A("s_add_u32 s%d, s%d, s%d" % (sx, sx, st))
        A("s_add_u32 s%d, s%d, s%d" % (st, sx, sq0))
        A("buffer_load_dwordx4 %s, v%d, %s, s%d offen" % (vr(base, 4), vx, sr(sX, 4), st) + " " + R.get("xpol", XPOL))
        A("s_add_u32 s%d, s%d, %d" % (st, st, 4096))
        A("buffer_load_dwordx4 %s, v%d, %s, s%d offen" % (vr(base + 4, 4), vx, sr(sX, 4), st) + " " + R.get("xpol", XPOL))
        A("s_add_u32 s%d, s%d, %d" % (st, sx, 8 * 4096))
        A("buffer_load_dwordx4 %s, v%d, %s, s%d offen" % (vr(base + 8, 4), vx, sr(sX, 4), st) + " " + R.get("xpol", XPOL))
        for _ in range(3):
            vq.issue(("x", ks))

    acc, fr = R["acc"], R["fr"]

    def wreads(ks, dl):
        return ["ds_read_b64_tr_b16 %s, v%d offset:%d" % (vr(fr + (ks & 1) * 32 + dl * 4 + h * 2, 2), wrd + dl, wslot(ks) * 8192 + h * hoff)
                for h in range(2)]

    nw = [0]
    nx = [0]

    def fill(i, maxw, maxx):
        k = 0
        while nw[0] < min(nk, i + 1 + NW - (0 if i >= 0 else 0)) and nw[0] <= i + NW and k < maxw:
            if nw[0] >= NW and nw[0] - NW > i:
                break
            dma_w(nw[0])
            nw[0] += 1
            k += 1
        k = 0
        if nat:
            while nx[0] < nk // 2 and (nx[0] < 2 or 2 * (nx[0] - 2) <= i) and k < maxx:
                dma_x(nx[0])
                nx[0] += 1
                k += 1
        else:
            while nx[0] < nk and nx[0] <= i + XD - 1 and k < maxx:
                xload(nx[0])
                nx[0] += 1
                k += 1

    PW, PX = int(os.environ.get("PW", "2")), int(os.environ.get("PX", "1" if nat else "2"))
    if nat:
        dma_w(0)
        dma_x(0)
        dma_w(1)
        nw[0], nx[0] = 2, 1
    elif "prex" in R:
        for i in range(NW):
            dma_w(i)
        R["prex"](A)
        xload(0)
        xload(1)
        nw[0], nx[0] = NW, 2
    else:
        dma_w(0)
        xload(0)
        dma_w(1)
        xload(1)
        nw[0], nx[0] = 2, 2
    stamp(A, 1)
    A("s_waitcnt vmcnt(%d)" % vq.wait_for({("w", 0)} | ({("x", 0)} if nat else set())))
    A("s_barrier")
    stamp(A, 2)
    fill(-1, PW, PX)
    for dl in range(8):
        for r in wreads(0, dl):
            A(r)
    if nat:
        for r in xreads(0):
            A(r)
    for i in range(nk):
        need = set()
        if i + 1 < nk:
            need.add(("w", i + 1))
        if nat:
            if i % 2 == 1 and i + 1 < nk:
                need.add(("x", (i + 1) // 2))
        else:
            need.add(("x", i))
        n = vq.wait_for(need)
        A("s_waitcnt vmcnt(%d) lgkmcnt(0)" % n)
        A("s_barrier")
        if i == nk // 2:
            stamp(A, 3)
        fill(i, PW, PX)
        if i in hooks:
            hooks[i](A, vq)
        xr = xreads((i + 1) // 2) if (nat and i % 2 == 1 and i + 1 < nk) else []
        xb = R["xr"] + (i % XD) * 12
        for dl in range(8):
            if i + 1 < nk:
                for r in wreads(i + 1, dl):
                    A(r)
            if dl < len(xr):
                A(xr[dl])
            for t in range(3):
                if t == 2 and dl >= 2:
                    continue
                a = acc + (t * 8 + dl) * 4 if t < 2 else acc + 64 + dl * 4
                c = "0" if i == 0 else vr(a, 4)
                A("v_mfma_f32_16x16x32_bf16 %s, %s, %s, %s" % (vr(a, 4), vr(fr + (i & 1) * 32 + dl * 4, 4), vr(xb + t * 4, 4), c))
    return vq


def cross_lane(A, op, v, tmp):
    A("v_mov_b32 v%d, v%d" % (tmp, v))
    A("v_permlane32_swap_b32 v%d, v%d" % (v, tmp))
    A("%s v%d, v%d, v%d" % (op, v, v, tmp))
    A("v_mov_b32 v%d, v%d" % (tmp, v))
    A("v_permlane16_swap_b32 v%d, v%d" % (v, tmp))
    A("%s v%d, v%d, v%d" % (op, v, v, tmp))


THR = float(os.environ.get("THR", "8.0"))


def kernel_attn(A):
    K1 = "attn_kernel"
    A.raw(".globl %s\n.p2align 8\n.type %s,@function\n%s:" % (K1, K1, K1))
    if FUSED:
        A("s_cmp_ge_u32 s2, 768")
        A("s_cbranch_scc1 L1_exit")
        A("s_cmp_ge_u32 s2, 512")
        A("s_cbranch_scc0 L1_go")
        A("s_branch LF_oproj")
        A.label("L1_exit")
        A("s_endpgm")
        A.label("L1_go")
    else:
        A("s_cmp_ge_u32 s2, 512")
        A("s_cbranch_scc1 L1_done")
    stamp(A, 0)
    load_kernargs(A)
    PRIO = os.environ.get("PRIO", "ad")

    def prio(tag, val):
        if tag in PRIO:
            A("s_cmp_ge_u32 s2, 256")
            A("s_cbranch_scc0 L1_pr%s" % tag)
            A("s_setprio %d" % val)
            A.label("L1_pr%s" % tag)
    prio("a", 1)
    sBr, sH, sB, sWv = 30, 31, 32, 33
    A("s_and_b32 s34, s2, 7")
    A("s_lshr_b32 s35, s2, 3")
    A("s_lshr_b32 s%d, s34, 2" % sBr)
    A("s_and_b32 s34, s34, 3")
    A("s_lshl_b32 s34, s34, 3")
    A("s_and_b32 s%d, s35, 7" % sH)
    A("s_add_u32 s%d, s%d, s34" % (sH, sH))
    A("s_lshr_b32 s%d, s35, 3" % sB)
    O, QF, S, LACC, ONES, F = 0, 96, 144, 180, 192, 196
    M = 232
    KA, VA = 235, 239
    VKD, VVD = 247, 248
    T0, T1, T2, T3, T4, T5 = 249, 250, 251, 252, 253, 254
    LANE = 255
    A("v_and_b32 v%d, 63, v0" % LANE)
    A("v_lshrrev_b32 v%d, 6, v0" % T0)
    A("v_readfirstlane_b32 s%d, v%d" % (sWv, T0))
    A("s_waitcnt lgkmcnt(0)")
    A("s_cmp_eq_u32 s%d, 0" % sBr)
    A("s_cselect_b64 s[4:5], s[4:5], s[14:15]")
    A("s_cselect_b64 s[6:7], s[6:7], s[16:17]")
    A("s_cselect_b64 s[8:9], s[8:9], s[18:19]")
    A("s_cselect_b64 s[10:11], s[10:11], s[20:21]")
    sK, sV, sW, sX, sO = 36, 40, 44, 48, 52
    A("s_lshl_b32 s34, s%d, 5" % sB)
    A("s_add_u32 s34, s34, s%d" % sH)
    A("s_lshl_b32 s34, s34, 17")
    make_srd(A, sK, 6, 7, "s34", "131072")
    make_srd(A, sV, 8, 9, "s34", "131072")
    A("s_lshl_b32 s34, s%d, 8" % sH)
    A("s_sub_u32 s35, %d, s34" % (512 * 8192))
    make_srd(A, sW, 10, 11, "s34", "s35")
    A("s_mul_i32 s35, s%d, 147456" % sB)
    make_srd(A, sX, 4, 5, "s35", "147456")
    A("s_mul_i32 s35, s%d, %d" % (sBr, O_BRANCH_BYTES))
    A("s_lshl_b32 s56, s%d, 5" % sB)
    A("s_add_u32 s56, s56, s%d" % sH)
    A("s_mul_i32 s56, s56, 36864")
    A("s_add_u32 s35, s35, s56")
    make_srd(A, sO, 28, 29, "s35", "36864")
    sRot, sRotK = 68, 69
    A("s_lshr_b32 s%d, s2, 3" % sRot)
    A("s_add_u32 s%d, s%d, s%d" % (sRot, sRot, sB))
    A("s_lshl_b32 s%d, s%d, 1" % (sRot, sRot))
    A("s_and_b32 s%d, s%d, 15" % (sRot, sRot))
    A("s_lshr_b32 s%d, s%d, 1" % (sRotK, sRot))
    sC, sW1k, sT, sT2, sW4k, sThr = 56, 57, 58, 59, 70, 71
    A("s_mov_b32 s%d, 0x%08x" % (sC, f32bits(SCALE_C)))
    A("s_mov_b32 s%d, 0x%08x" % (sThr, f32bits(THR)))
    A("s_lshl_b32 s%d, s%d, 10" % (sW1k, sWv))
    A("s_lshl_b32 s%d, s%d, 12" % (sW4k, sWv))

    g, lo = T0, T1
    VLIN = 92
    A("v_lshrrev_b32 v%d, 4, v%d" % (g, LANE))
    A("v_and_b32 v%d, 15, v%d" % (lo, LANE))
    A("s_lshl_b32 s%d, s%d, 2" % (sT, sWv))
    A("v_add_u32 v%d, s%d, v%d" % (T2, sT, g))
    A("v_xor_b32 v%d, v%d, v%d" % (T3, lo, T2))
    A("v_lshlrev_b32 v%d, 4, v%d" % (T3, T3))
    A("v_lshl_add_u32 v%d, v%d, 8, v%d" % (VKD, T2, T3))
    A("v_and_b32 v%d, 7, v%d" % (T3, T2))
    A("v_lshlrev_b32 v%d, 1, v%d" % (T3, T3))
    A("v_xor_b32 v%d, v%d, v%d" % (T3, lo, T3))
    A("v_lshlrev_b32 v%d, 4, v%d" % (T3, T3))
    A("v_lshl_add_u32 v%d, v%d, 8, v%d" % (VVD, T2, T3))
    A("v_lshlrev_b32 v%d, 4, v%d" % (T3, lo))
    A("v_lshl_add_u32 v%d, v%d, 8, v%d" % (VLIN, T2, T3))

    KS = lambda j: ((j + 2) % 3) * 16384
    VS = lambda j: 49152 + (j % 2) * 16384

    def blk_off(j, i):
        if i == 0:
            A("s_add_u32 s%d, s%d, %d" % (sT2, sRotK, j))
            A("s_and_b32 s%d, s%d, 7" % (sT2, sT2))
            A("s_lshl_b32 s%d, s%d, 14" % (sT2, sT2))
        else:
            A("s_add_u32 s%d, s%d, 4096" % (sT2, sT2))

    def kv_dma(vq, isv, j):
        srd, vd, base = (sV, VVD, VS(j)) if isv else (sK, VKD, KS(j))
        for i in range(4):
            A("s_add_u32 m0, s%d, %d" % (sW1k, base + i * 4096))
            blk_off(j, i)
            A("buffer_load_dwordx4 v%d, %s, s%d offen %slds" % (vd, sr(srd, 4), sT2, KVPOL))
            vq.issue(("v" if isv else "k", j))

    PRE = 208

    def pre_load(n, half):
        def fn(A, vq):
            for i in range(2 * half, 2 * half + 2):
                A("s_lshl_b32 s%d, s%d, 14" % (sT2, sRotK))
                if i:
                    A("s_add_u32 s%d, s%d, %d" % (sT2, sT2, 4096 * i))
                A("buffer_load_dwordx4 %s, v%d, %s, s%d offen %s" % (vr(PRE + n * 16 + i * 4, 4), VLIN, sr(sK if n == 0 else sV, 4), sT2, KVPOL))
                vq.issue(("pre", 0))
        return fn

    R = dict(acc=0, xr=96, fr=144, wrd=72, wdma=80, vx=82, lane=LANE, t0=T0, t1=T1, t2=T2, t3=T3,
             sq0=60, swb=62, sm0=63, st=64, sk=65, sx=66, sw1k=67)

    def h12(A, vq):
        kv_dma(vq, 0, 1)
        kv_dma(vq, 1, 1)
    hooks = {1: pre_load(0, 0), 3: pre_load(0, 1), 5: pre_load(1, 0), 7: pre_load(1, 1),
             12: h12, 14: lambda A, vq: kv_dma(vq, 0, 2)}
    vq = gemm_phase(A, 16, 8192, "nat", sW, sX, sWv, sRot, R, hooks)
    assert ("pre", 0) not in vq.q
    if "p1only" in EXP:
        A("s_waitcnt vmcnt(0)")
        A("s_branch L1_done")

    stamp(A, 4)
    SCR = 32768
    TA = 240
    A("v_lshrrev_b32 v%d, 4, v%d" % (g, LANE))
    A("v_and_b32 v%d, 15, v%d" % (lo, LANE))
    A("s_lshl_b32 s%d, s%d, 2" % (sT, sWv))
    A("v_lshrrev_b32 v%d, 1, v%d" % (T2, g))
    A("v_or_b32 v%d, s%d, v%d" % (T2, sT, T2))
    A("v_xor_b32 v%d, v%d, v%d" % (T2, T2, lo))
    A("v_lshlrev_b32 v%d, 4, v%d" % (T2, T2))
    A("v_lshl_add_u32 v%d, v%d, 8, v%d" % (T2, lo, T2))
    A("v_and_b32 v%d, 1, v%d" % (T3, g))
    A("v_lshl_add_u32 v%d, v%d, 3, v%d" % (T2, T3, T2))
    A("v_add_u32 v%d, s%d, v%d" % (T3, sW4k, T2))
    A("v_xor_b32 v%d, v%d, v%d" % (T4, g, lo))
    A("v_lshlrev_b32 v%d, 4, v%d" % (T4, T4))
    A("v_lshl_add_u32 v%d, v%d, 8, v%d" % (T4, lo, T4))
    A("v_add_u32 v%d, s%d, v%d" % (T5, sW4k, T4))
    PK = 144
    for dl in range(8):
        A("v_xor_b32 v%d, %d, v%d" % (TA + (dl & 3), dl << 5, T3))
        for t in range(2):
            a = (t * 8 + dl) * 4
            pk = PK + t * 16 + dl * 2
            A("v_cvt_pk_bf16_f32 v%d, v%d, v%d" % (pk, a, a + 1))
            A("v_cvt_pk_bf16_f32 v%d, v%d, v%d" % (pk + 1, a + 2, a + 3))
            A("ds_write_b64 v%d, %s offset:%d" % (TA + (dl & 3), vr(pk, 2), SCR + t * 16384))
    for ds in range(4):
        A("v_xor_b32 v%d, %d, v%d" % (TA + ds, ds << 6, T5))
        for t in range(2):
            A("ds_read_b128 %s, v%d offset:%d" % (vr(QF + t * 16 + ds * 4, 4), TA + ds, SCR + t * 16384))
    for dl in range(2):
        a = 64 + dl * 4
        A("v_cvt_pk_bf16_f32 v%d, v%d, v%d" % (176 + dl * 2, a, a + 1))
        A("v_cvt_pk_bf16_f32 v%d, v%d, v%d" % (176 + dl * 2 + 1, a + 2, a + 3))
        A("v_xor_b32 v%d, %d, v%d" % (T0 + dl, dl << 5, T3))
        A("ds_write_b64 v%d, %s offset:%d" % (T0 + dl, vr(176 + dl * 2, 2), SCR))
    A("s_waitcnt lgkmcnt(0)")
    A("s_barrier")
    for ds in range(4):
        A("v_xor_b32 v%d, %d, v%d" % (TA + ds, ds << 6, T4))
        A("ds_read_b128 %s, v%d offset:%d" % (vr(QF + 32 + ds * 4, 4), TA + ds, SCR + ds * 4096))
    for i in range(4):
        A("v_mov_b32 v%d, 0x3f803f80" % (ONES + i))
    A("s_waitcnt lgkmcnt(0)")
    A("s_barrier")
    for n in range(2):
        for i in range(4):
            A("ds_write_b128 v%d, %s offset:%d" % (VKD if n == 0 else VVD, vr(PRE + n * 16 + i * 4, 4), (KS(0) if n == 0 else VS(0)) + i * 4096))
    A("s_waitcnt lgkmcnt(0)")
    for ds in range(4):
        A("v_xor_b32 v%d, %d, v%d" % (KA + ds, ds << 6, T4))
    A("v_lshrrev_b32 v%d, 2, v%d" % (T2, LANE))
    A("v_and_b32 v%d, 7, v%d" % (T3, T2))
    A("v_lshlrev_b32 v%d, 5, v%d" % (T3, T3))
    A("v_lshl_add_u32 v%d, v%d, 8, v%d" % (T3, T2, T3))
    A("v_and_b32 v%d, 3, v%d" % (T2, LANE))
    A("v_lshl_add_u32 v%d, v%d, 3, v%d" % (T3, T2, T3))
    A("v_add_u32 v%d, 49152, v%d" % (T3, T3))
    for dt in range(8):
        A("v_xor_b32 v%d, %d, v%d" % (VA + dt, dt << 5, T3))
    for t in range(3):
        A("v_mov_b32 v%d, 0xf149f2ca" % (M + t))
    stamp(A, 5)
    prio("b", 0)
    prio("c", 1)

    NKF = 2
    for j in range(8):
        if j == int(os.environ.get("PJ", "5")):
            prio("d", 0)
            prio("e", 1)
        n = vq.wait_for({("k", j)})
        A("s_waitcnt vmcnt(%d)" % n)
        A("s_barrier")
        if 1 <= j < 7:
            kv_dma(vq, 1, j + 1)
        kb = KS(j)

        def kreads(l):
            buf = F + (l & 1) * 16
            for ds in range(4):
                if l < 4:
                    A("ds_read_b128 %s, v%d offset:%d" % (vr(buf + ds * 4, 4), KA + ds, kb + l * 4096))
                else:
                    A("v_add_u32 v%d, s%d, v%d" % (T0 + ds, sW4k, KA + ds))
                    A("ds_read_b128 %s, v%d offset:%d" % (vr(buf + ds * 4, 4), T0 + ds, kb))

        kreads(0)
        kreads(1)
        for l in range(5):
            A("s_waitcnt lgkmcnt(%d)" % (4 if l < 4 else 0))
            for ds in range(4):
                fa = vr(F + (l & 1) * 16 + ds * 4, 4)
                for t in ((0, 1) if l < 4 else (2,)):
                    d = S + t * 16 + l * 4 if t < 2 else S + 32
                    c = "0" if ds == 0 else vr(d, 4)
                    A("v_mfma_f32_16x16x32_bf16 %s, %s, %s, %s" % (vr(d, 4), fa, vr(QF + t * 16 + ds * 4, 4), c))
            if l + 2 < 5:
                kreads(l + 2)
        for t in range(3):
            nv = 16 if t < 2 else 4
            s0 = S + t * 16
            mx = T0 + t
            A("v_max3_f32 v%d, v%d, v%d, v%d" % (mx, s0, s0 + 1, s0 + 2))
            for i in range(3, nv - 1, 2):
                A("v_max3_f32 v%d, v%d, v%d, v%d" % (mx, mx, s0 + i, s0 + i + 1))
            A("v_max_f32 v%d, v%d, v%d" % (mx, mx, s0 + nv - 1))
        for t in range(3):
            A("v_mov_b32 v%d, v%d" % (T3 + t, T0 + t))
        for t in range(3):
            A("v_permlane32_swap_b32 v%d, v%d" % (T0 + t, T3 + t))
        for t in range(3):
            A("v_max_f32 v%d, v%d, v%d" % (T0 + t, T0 + t, T3 + t))
        for t in range(3):
            A("v_mov_b32 v%d, v%d" % (T3 + t, T0 + t))
        for t in range(3):
            A("v_permlane16_swap_b32 v%d, v%d" % (T0 + t, T3 + t))
        for t in range(3):
            A("v_max_f32 v%d, v%d, v%d" % (T0 + t, T0 + t, T3 + t))
        for t in range(3):
            A("v_fma_f32 v%d, v%d, s%d, -v%d" % (T3 + t, T0 + t, sC, M + t))
        A("v_max3_f32 v%d, v%d, v%d, v%d" % (T3, T3, T4, T5))
        A("v_cmp_lt_f32 s[72:73], s%d, v%d" % (sThr, T3))
        A("s_nop 1")
        A("s_cmp_lg_u64 s[72:73], 0")
        A("s_cbranch_scc0 L1_nr%d" % j)
        for t in range(3):
            A("v_mul_f32 v%d, s%d, v%d" % (T0 + t, sC, T0 + t))
            A("v_max_f32 v%d, v%d, v%d" % (T0 + t, T0 + t, M + t))
            A("v_sub_f32 v%d, v%d, v%d" % (T3, M + t, T0 + t))
            A("v_exp_f32 v%d, v%d" % (T3, T3))
            A("v_mov_b32 v%d, v%d" % (M + t, T0 + t))
            if j > 0:
                for i in range(32):
                    A("v_mul_f32 v%d, v%d, v%d" % (O + t * 32 + i, O + t * 32 + i, T3))
                for i in range(4):
                    A("v_mul_f32 v%d, v%d, v%d" % (LACC + t * 4 + i, LACC + t * 4 + i, T3))
        A.label("L1_nr%d" % j)
        for t in range(3):
            nv = 16 if t < 2 else 4
            s0 = S + t * 16
            for i in range(nv):
                A("v_fma_f32 v%d, v%d, s%d, -v%d" % (s0 + i, s0 + i, sC, M + t))
            for i in range(nv):
                A("v_exp_f32 v%d, v%d" % (s0 + i, s0 + i))
            for i in range(0, nv, 2):
                A("v_cvt_pk_bf16_f32 v%d, v%d, v%d" % (s0 + (i // 8) * 8 + (i % 8) // 2, s0 + i, s0 + i + 1))
        n = vq.wait_for({("v", j)})
        A("s_waitcnt vmcnt(%d)" % n)
        A("s_barrier")
        if j + 3 < 8:
            kv_dma(vq, 0, j + 3)
        vb = VS(j) - 49152
        NF = 9

        def vreads(f):
            buf = F + (f % NF) * 4
            if f < 16:
                u, dt = f // 8, f % 8
                for hh in range(2):
                    A("ds_read_b64_tr_b16 %s, v%d offset:%d" % (vr(buf + hh * 2, 2), VA + dt, vb + (2 * u + hh) * 4096))
            else:
                for hh in range(2):
                    dt = (f - 16) * 2 + hh
                    A("v_add_u32 v%d, s%d, v%d" % (T0 + hh, sW4k, VA + dt))
                    A("ds_read_b64_tr_b16 %s, v%d offset:%d" % (vr(buf + hh * 2, 2), T0 + hh, vb))

        PD = 6
        for f in range(PD):
            vreads(f)
        for t in range(2):
            for u in range(2):
                d = vr(LACC + t * 4, 4)
                A("v_mfma_f32_16x16x32_bf16 %s, %s, %s, %s" % (d, vr(ONES, 4), vr(S + t * 16 + u * 8, 4), "0" if (j == 0 and u == 0) else d))
        d = vr(LACC + 8, 4)
        A("v_mfma_f32_16x16x16_bf16 %s, %s, %s, %s" % (d, vr(ONES, 2), vr(S + 32, 2), "0" if j == 0 else d))
        for f in range(20):
            rem = min(20, f + PD) - (f + 1)
            A("s_waitcnt lgkmcnt(%d)" % (2 * rem))
            fa = F + (f % NF) * 4
            if f < 16:
                u, dt = f // 8, f % 8
                for t in range(2):
                    d = vr(O + t * 32 + dt * 4, 4)
                    A("v_mfma_f32_16x16x32_bf16 %s, %s, %s, %s" % (d, vr(fa, 4), vr(S + t * 16 + u * 8, 4), "0" if (j == 0 and u == 0) else d))
            else:
                for hh in range(2):
                    dt = (f - 16) * 2 + hh
                    d = vr(O + 64 + dt * 4, 4)
                    A("v_mfma_f32_16x16x16_bf16 %s, %s, %s, %s" % (d, vr(fa + hh * 2, 2), vr(S + 32, 2), "0" if j == 0 else d))
            if f + PD < 20:
                vreads(f + PD)

    stamp(A, 6)
    A("s_barrier")
    A("v_lshlrev_b32 v%d, 4, v%d" % (T2, LANE))
    A("s_lshl_b32 s%d, s%d, 13" % (sT, sWv))
    A("v_add_u32 v%d, s%d, v%d" % (T3, sT, T2))
    for dt in range(8):
        A("ds_write_b128 v%d, %s offset:%d" % (T3, vr(O + 64 + dt * 4, 4), dt * 1024))
    A("v_and_b32 v%d, 15, v%d" % (T4, LANE))
    A("v_lshlrev_b32 v%d, 3, v%d" % (T4, T4))
    A("s_lshl_b32 s%d, s%d, 7" % (sT, sWv))
    A("v_add_u32 v%d, s%d, v%d" % (T5, sT, T4))
    A("v_mov_b32 v%d, v%d" % (KA + 1, M + 2))
    A("v_mov_b32 v%d, v%d" % (KA + 2, LACC + 8))
    A("ds_write_b64 v%d, %s offset:32768" % (T5, vr(KA + 1, 2)))
    VO = T2
    A("s_lshl_b32 s%d, s%d, 13" % (sT, sWv))
    for t in range(2):
        A("v_rcp_f32 v%d, v%d" % (T1, LACC + t * 4))
        for i in range(32):
            A("v_mul_f32 v%d, v%d, v%d" % (O + t * 32 + i, O + t * 32 + i, T1))
        for ds in range(4):
            a = O + t * 32 + ds * 8
            pk = QF + t * 16 + ds * 4
            for i in range(4):
                A("v_cvt_pk_bf16_f32 v%d, v%d, v%d" % (pk + i, a + 2 * i, a + 2 * i + 1))
            A("buffer_store_dwordx4 %s, v%d, %s, s%d offen offset:%d%s" % (vr(pk, 4), VO, sr(sO, 4), sT, 1024 * ds, " sc1" if FUSED else " " + OPOL))
        if t == 0:
            A("s_add_u32 s%d, s%d, 4096" % (sT, sT))
    A("s_waitcnt lgkmcnt(0)")
    A("s_barrier")
    ML = S
    OP = F
    for w2 in range(4):
        A("ds_read_b64 %s, v%d offset:%d" % (vr(ML + 2 * w2, 2), T4, 32768 + w2 * 128))
    A("s_lshl_b32 s%d, s%d, 11" % (sT, sWv))
    A("v_add_u32 v%d, s%d, v%d" % (T3, sT, T2))
    for w2 in range(4):
        for dd in range(2):
            A("ds_read_b128 %s, v%d offset:%d" % (vr(OP + (w2 * 2 + dd) * 4, 4), T3, w2 * 8192 + dd * 1024))
    A("s_waitcnt lgkmcnt(0)")
    A("v_max3_f32 v%d, v%d, v%d, v%d" % (T1, ML, ML + 2, ML + 4))
    A("v_max_f32 v%d, v%d, v%d" % (T1, T1, ML + 6))
    for w2 in range(4):
        A("v_sub_f32 v%d, v%d, v%d" % (ML + 2 * w2, ML + 2 * w2, T1))
        A("v_exp_f32 v%d, v%d" % (ML + 2 * w2, ML + 2 * w2))
    A("v_mul_f32 v%d, v%d, v%d" % (T5, ML, ML + 1))
    for w2 in range(1, 4):
        A("v_fma_f32 v%d, v%d, v%d, v%d" % (T5, ML + 2 * w2, ML + 2 * w2 + 1, T5))
    A("v_rcp_f32 v%d, v%d" % (T5, T5))
    for w2 in range(4):
        A("v_mul_f32 v%d, v%d, v%d" % (ML + 2 * w2, ML + 2 * w2, T5))
    for dd in range(2):
        for r in range(4):
            d = O + dd * 4 + r
            A("v_mul_f32 v%d, v%d, v%d" % (d, OP + dd * 4 + r, ML))
            for w2 in range(1, 4):
                A("v_fma_f32 v%d, v%d, v%d, v%d" % (d, OP + (w2 * 2 + dd) * 4 + r, ML + 2 * w2, d))
    A("s_lshl_b32 s%d, s%d, 10" % (sT, sWv))
    A("s_add_u32 s%d, s%d, %d" % (sT, sT, 8 * 4096))
    for i in range(4):
        A("v_cvt_pk_bf16_f32 v%d, v%d, v%d" % (QF + 32 + i, O + 2 * i, O + 2 * i + 1))
    A("buffer_store_dwordx4 %s, v%d, %s, s%d offen%s" % (vr(QF + 32, 4), VO, sr(sO, 4), sT, " sc1" if FUSED else " " + OPOL))
    if FUSED:
        A("s_waitcnt vmcnt(0)")
        A("s_barrier")
        A("s_cmp_eq_u32 s%d, 0" % sWv)
        A("s_cbranch_scc0 L1_nopub")
        A("s_lshl_b32 s%d, s%d, 3" % (sT, sBr))
        A("s_add_u32 s%d, s%d, s%d" % (sT, sT, sB))
        A("s_lshl_b32 s%d, s%d, 2" % (sT, sT))
        A("s_lshr_b32 s%d, s%d, 3" % (sT2, sH))
        A("s_add_u32 s%d, s%d, s%d" % (sT, sT, sT2))
        A("s_lshl_b32 s%d, s%d, 2" % (sT, sT))
        A("s_mov_b64 exec, 1")
        A("v_mov_b32 v%d, s%d" % (T0, sT))
        A("v_mov_b32 v%d, 1" % T1)
        A("global_atomic_add v%d, v%d, s[26:27] sc1" % (T0, T1))
        A("s_waitcnt vmcnt(0)")
        A("s_mov_b64 exec, -1")
        A.label("L1_nopub")
    if STAMP:
        A("s_waitcnt vmcnt(0)")
    stamp(A, 7)
    dump_stamps(A, 8, 0, sWv, 240)
    A.label("L1_done")
    A("s_endpgm")


def kernel_oproj3(A):
    K2 = "oproj_kernel"
    A.raw(".globl %s\n.p2align 8\n.type %s,@function\n%s:" % (K2, K2, K2))
    A("s_cmp_ge_u32 s2, 192")
    A("s_cbranch_scc1 L2_done")
    stamp(A, 0)
    load_kernargs(A)
    sBr, sMt, sNt, sW8 = 30, 31, 32, 33
    A("s_and_b32 s35, s2, 7")
    A("s_lshr_b32 s%d, s35, 2" % sBr)
    A("s_and_b32 s35, s35, 3")
    A("s_mul_i32 s35, s35, 3")
    A("s_lshr_b32 s36, s2, 3")
    A("s_and_b32 s%d, s36, 7" % sNt)
    A("s_lshr_b32 s36, s36, 3")
    A("s_add_u32 s%d, s35, s36" % sMt)
    ACC, XR, FR = 0, 96, 168
    WD, VX, RD = 200, 201, 202
    LANE, T0, T1, T2, T3 = 206, 207, 208, 209, 210
    A("v_and_b32 v%d, 63, v0" % LANE)
    A("v_lshrrev_b32 v%d, 6, v0" % T0)
    A("v_readfirstlane_b32 s%d, v%d" % (sW8, T0))
    A("s_waitcnt lgkmcnt(0)")
    stamp(A, 6)
    A("s_cmp_eq_u32 s%d, 0" % sBr)
    A("s_cselect_b64 s[12:13], s[12:13], s[22:23]")
    sW, sX, sO = 44, 48, 52
    A("s_lshl_b32 s36, s%d, 7" % sNt)
    A("s_sub_u32 s37, %d, s36" % (4096 * 1024))
    make_srd(A, sW, 12, 13, "s36", "s37")
    A("s_mul_i32 s35, s%d, %d" % (sBr, O_BRANCH_BYTES))
    make_srd(A, sX, 28, 29, "s35", "%d" % O_BRANCH_BYTES)
    A("s_mul_i32 s35, s%d, %d" % (sMt, 96 * 2048))
    A("s_lshl_b32 s37, s%d, 10" % sBr)
    A("s_add_u32 s36, s36, s37")
    A("s_add_u32 s35, s35, s36")
    A("s_sub_u32 s37, %d, s36" % (96 * 2048))
    make_srd(A, sO, 24, 25, "s35", "s37")
    sQ = 56
    A("s_mul_i32 s35, s%d, 6" % sMt)
    for i in range(6):
        A("s_add_u32 s36, s35, %d" % i)
        A("s_mul_i32 s37, s36, 57")
        A("s_lshr_b32 s37, s37, 9")
        A("s_mul_i32 s38, s37, 9")
        A("s_sub_u32 s38, s36, s38")
        A("s_mul_i32 s37, s37, %d" % (32 * 36864))
        A("s_lshl_b32 s38, s38, 12")
        A("s_add_u32 s%d, s37, s38" % (sQ + i))
    sRot, sk, st, sx, sL = 62, 63, 64, 65, 66
    A("s_lshl_b32 s%d, s%d, 1" % (sRot, sNt))
    A("s_mul_i32 s35, s%d, 5" % sMt)
    A("s_add_u32 s%d, s%d, s35" % (sRot, sRot))
    if os.environ.get("ROTM"):
        A("s_mul_i32 s35, s%d, 3" % sMt)
        A("s_add_u32 s%d, s%d, s35" % (sRot, sNt))
        A("s_and_b32 s%d, s%d, %s" % (sRot, sRot, os.environ.get("ROTM")))
    A("s_lshl_b32 s%d, s%d, 14" % (sL, sW8))
    A("v_bfe_u32 v%d, v%d, 1, 2" % (T0, LANE))
    A("v_lshrrev_b32 v%d, 4, v%d" % (T1, LANE))
    A("v_xor_b32 v%d, v%d, v%d" % (T0, T0, T1))
    A("v_lshlrev_b32 v%d, 5, v%d" % (T0, T0))
    A("v_and_b32 v%d, 1, v%d" % (T1, LANE))
    A("v_lshl_add_u32 v%d, v%d, 4, v%d" % (T0, T1, T0))
    A("v_lshrrev_b32 v%d, 3, v%d" % (T1, LANE))
    A("v_lshl_add_u32 v%d, v%d, 10, v%d" % (WD, T1, T0))
    A("v_lshlrev_b32 v%d, 4, v%d" % (VX, LANE))
    A("v_lshrrev_b32 v%d, 2, v%d" % (T0, LANE))
    A("v_bfe_u32 v%d, v%d, 3, 2" % (T1, LANE))
    A("v_lshlrev_b32 v%d, 5, v%d" % (T1, T1))
    A("v_lshl_add_u32 v%d, v%d, 7, v%d" % (T1, T0, T1))
    A("v_and_b32 v%d, 3, v%d" % (T0, LANE))
    A("v_lshl_add_u32 v%d, v%d, 3, v%d" % (T1, T0, T1))
    A("v_add_u32 v%d, s%d, v%d" % (RD, sL, T1))
    for nt in range(1, 4):
        A("v_xor_b32 v%d, %d, v%d" % (RD + nt, nt << 5, RD))
    vq = VmQ()
    NS, XD, NK = 4, 3, 16

    def kidx(i):
        A("s_add_u32 s%d, s%d, %d" % (sk, sRot, i))
        A("s_and_b32 s%d, s%d, 15" % (sk, sk))
        A("s_lshl_b32 s%d, s%d, 3" % (sk, sk))
        A("s_add_u32 s%d, s%d, s%d" % (sk, sk, sW8))

    def dma_w(i):
        A("s_lshl_b32 s%d, s%d, 15" % (st, sk))
        for m in range(4):
            A("s_add_u32 m0, s%d, %d" % (sL, (i % NS) * 4096 + m * 1024))
            if m:
                A("s_add_u32 s%d, s%d, 8192" % (st, st))
            A("buffer_load_dwordx4 v%d, %s, s%d offen lds" % (WD, sr(sW, 4), st))
            vq.issue(("w", i))

    def xload(i):
        A("s_lshr_b32 s%d, s%d, 2" % (sx, sk))
        A("s_mul_i32 s%d, s%d, 36864" % (sx, sx))
        A("s_and_b32 s%d, s%d, 3" % (st, sk))
        A("s_lshl_b32 s%d, s%d, 10" % (st, st))
        A("s_add_u32 s%d, s%d, s%d" % (sx, sx, st))
        for q in range(6):
            A("s_add_u32 s%d, s%d, s%d" % (st, sx, sQ + q))
            A("buffer_load_dwordx4 %s, v%d, %s, s%d offen" % (vr(XR + (i % XD) * 24 + q * 4, 4), VX, sr(sX, 4), st))
            vq.issue(("x", i))

    def wreads(i):
        for nt in range(4):
            for hh in range(2):
                A("ds_read_b64_tr_b16 %s, v%d offset:%d" % (vr(FR + (i & 1) * 16 + nt * 4 + hh * 2, 2), RD + nt, (i % NS) * 4096 + hh * 2048))

    for i in range(2):
        kidx(i)
        dma_w(i)
        xload(i)
    kidx(2)
    dma_w(2)
    stamp(A, 1)
    A("s_waitcnt vmcnt(%d)" % vq.wait_for({("w", 0)}))
    stamp(A, 2)
    wreads(0)
    for i in range(NK):
        need = {("x", i)}
        if i + 1 < NK:
            need.add(("w", i + 1))
        A("s_waitcnt vmcnt(%d) lgkmcnt(0)" % vq.wait_for(need))
        if i == NK // 2:
            stamp(A, 3)
        if i + 1 < NK:
            wreads(i + 1)
        if i + 3 < NK:
            kidx(i + 3)
            dma_w(i + 3)
        if i + 2 < NK:
            kidx(i + 2)
            xload(i + 2)
        for nt in range(4):
            for q in range(6):
                a = ACC + (nt * 6 + q) * 4
                c = "0" if i == 0 else vr(a, 4)
                A("v_mfma_f32_16x16x32_bf16 %s, %s, %s, %s" % (vr(a, 4), vr(FR + (i & 1) * 16 + nt * 4, 4), vr(XR + (i % XD) * 24 + q * 4, 4), c))
    stamp(A, 4)
    A("s_lshl_b32 s35, s%d, 13" % sW8)
    A("v_add_u32 v%d, s35, v%d" % (T0, VX))
    A("s_lshl_b32 s35, s%d, 10" % sW8)
    A("v_add_u32 v%d, s35, v%d" % (T1, VX))
    Y = 96
    for rnd in range(3):
        A("s_barrier")
        for f in range(8):
            A("ds_write_b128 v%d, %s offset:%d" % (T0, vr(ACC + (rnd * 8 + f) * 4, 4), f * 1024))
        A("s_waitcnt lgkmcnt(0)")
        A("s_barrier")
        for w2 in range(8):
            A("ds_read_b128 %s, v%d offset:%d" % (vr(Y + rnd * 32 + w2 * 4, 4), T1, w2 * 8192))
        A("s_waitcnt lgkmcnt(0)")
    A("v_and_b32 v%d, 15, v%d" % (T0, LANE))
    A("v_lshlrev_b32 v%d, 11, v%d" % (T0, T0))
    A("v_lshrrev_b32 v%d, 4, v%d" % (T1, LANE))
    A("v_lshl_add_u32 v%d, v%d, 3, v%d" % (T0, T1, T0))
    for rnd in range(3):
        y = Y + rnd * 32
        for step in (16, 8, 4):
            for i in range(step):
                A("v_add_f32 v%d, v%d, v%d" % (y + i, y + i, y + step + i))
        A("s_add_u32 s35, s%d, %d" % (sW8, 8 * rnd))
        A("s_mul_i32 s36, s35, 43")
        A("s_lshr_b32 s36, s36, 8")
        A("s_mul_i32 s37, s36, 6")
        A("s_sub_u32 s37, s35, s37")
        A("s_lshl_b32 s37, s37, 15")
        A("s_lshl_b32 s36, s36, 5")
        A("s_add_u32 s36, s36, s37")
        A("v_cvt_pk_bf16_f32 v%d, v%d, v%d" % (y + 8, y, y + 1))
        A("v_cvt_pk_bf16_f32 v%d, v%d, v%d" % (y + 9, y + 2, y + 3))
        A("buffer_store_dwordx2 %s, v%d, %s, s36 offen" % (vr(y + 8, 2), T0, sr(sO, 4)))
    if STAMP:
        A("s_waitcnt vmcnt(0)")
        stamp(A, 7)
        A("s_lshr_b32 s98, s%d, 1" % sW8)
        dump_stamps(A, 8, 1, 98, 212)
    A.label("L2_done")
    A("s_endpgm")


def kernel_oproj(A):
    K2 = "oproj_kernel"
    A.raw(".globl %s\n.p2align 8\n.type %s,@function\n%s:" % (K2, K2, K2))
    A("s_cmp_ge_u32 s2, 256")
    A("s_cbranch_scc1 L2_done")
    stamp(A, 0)
    load_kernargs(A)
    sBr, sKq, sB, sNb, sWv, sGr, sW8 = 30, 31, 32, 33, 34, 39, 40
    A("s_and_b32 s35, s2, 7")
    A("s_lshr_b32 s%d, s35, 2" % sBr)
    A("s_and_b32 s%d, s35, 3" % sKq)
    A("s_lshr_b32 s35, s2, 3")
    A("s_lshr_b32 s%d, s35, 2" % sB)
    A("s_and_b32 s%d, s35, 3" % sNb)
    LANE, T0, T1, T2, T3 = 254, 238, 239, 240, 241
    A("v_and_b32 v%d, 63, v0" % LANE)
    A("v_lshrrev_b32 v%d, 6, v0" % T0)
    A("v_readfirstlane_b32 s%d, v%d" % (sW8, T0))
    A("s_and_b32 s%d, s%d, 3" % (sWv, sW8))
    A("s_lshr_b32 s%d, s%d, 2" % (sGr, sW8))
    A("s_waitcnt lgkmcnt(0)")
    stamp(A, 6)
    A("s_cmp_eq_u32 s%d, 0" % sBr)
    A("s_cselect_b64 s[12:13], s[12:13], s[22:23]")
    sW, sX, sP = 44, 48, 52
    A("s_lshl_b32 s35, s%d, 1" % sKq)
    A("s_add_u32 s38, s35, s%d" % sGr)
    A("s_lshl_b32 s35, s38, 19")
    A("s_lshl_b32 s36, s%d, 8" % sNb)
    A("s_add_u32 s35, s35, s36")
    A("s_sub_u32 s37, %d, s36" % (512 * 1024))
    make_srd(A, sW, 12, 13, "s35", "s37")
    A("s_mul_i32 s35, s%d, %d" % (sBr, O_BRANCH_BYTES))
    A("s_lshl_b32 s36, s%d, 3" % sB)
    A("s_add_u32 s36, s36, s38")
    A("s_mul_i32 s36, s36, %d" % (4 * 36864))
    A("s_add_u32 s35, s35, s36")
    make_srd(A, sX, 28, 29, "s35", "%d" % (4 * 36864))
    sRot = 68
    A("s_lshl_b32 s%d, s%d, 1" % (sRot, sNb))
    A("s_add_u32 s%d, s%d, s%d" % (sRot, sRot, sB))
    A("s_lshl_b32 s%d, s%d, 1" % (sRot, sRot))
    PW_ = 5 * 1024 if PBF else 9 * 1024
    PT = 8 * PW_
    sTile = 41
    A("s_lshl_b32 s%d, s%d, 5" % (sTile, sBr))
    A("s_lshl_b32 s35, s%d, 2" % sB)
    A("s_add_u32 s%d, s%d, s35" % (sTile, sTile))
    A("s_add_u32 s%d, s%d, s%d" % (sTile, sTile, sNb))
    A("s_lshl_b32 s35, s%d, 2" % sTile)
    A("s_add_u32 s35, s35, s%d" % sKq)
    A("s_mul_i32 s35, s35, %d" % PT)
    A("s_mul_i32 s36, s%d, %d" % (sW8, PW_))
    A("s_add_u32 s35, s35, s36")
    A("s_add_u32 s35, s35, %d" % P_BASE)
    make_srd(A, sP, 28, 29, "s35", "%d" % PW_)
    A("s_lshl_b32 s69, s%d, 16" % sGr)
    R = dict(acc=0, xr=88, fr=172, wrd=72, wdma=80, vx=82, lane=LANE, t0=T0, t1=T1, t2=T2, t3=T3,
             sq0=60, swb=62, sm0=63, st=64, sk=65, sx=66, sw1k=67, slds=69)
    gemm_phase(A, 16, 1024, "perm", sW, sX, sWv, sRot, R, {})
    stamp(A, 4)
    A("s_barrier")
    A("v_lshlrev_b32 v%d, 4, v%d" % (T0, LANE))
    A("s_mul_i32 s35, s%d, 9216" % sW8)
    A("v_add_u32 v%d, s35, v%d" % (T1, T0))
    A("s_xor_b32 s36, s%d, 4" % sW8)
    A("s_mul_i32 s36, s36, 9216")
    A("v_add_u32 v%d, s36, v%d" % (T2, T0))
    X = 96
    A("s_cmp_eq_u32 s%d, 0" % sGr)
    A("s_cbranch_scc0 L2_grB")
    for grp in range(2):
        keep = range(0, 9) if grp == 0 else range(9, 18)
        give = range(9, 18) if grp == 0 else range(0, 9)
        for i, f in enumerate(give):
            A("ds_write_b128 v%d, %s offset:%d" % (T1, vr(f * 4, 4), i * 1024))
        A("s_waitcnt lgkmcnt(0)")
        A("s_barrier")
        for i in range(9):
            A("ds_read_b128 %s, v%d offset:%d" % (vr(X + i * 4, 4), T2, i * 1024))
        A("s_waitcnt lgkmcnt(0)")
        for i, f in enumerate(keep):
            for r in range(4):
                A("v_add_f32 v%d, v%d, v%d" % (X + i * 4 + r, X + i * 4 + r, f * 4 + r))
        if grp == 0:
            A.flush()
            A("s_branch L2_join")
            A.label("L2_grB")
    A.label("L2_join")
    A("s_mov_b32 s35, 0")
    if PBF:
        for i in range(9):
            A("v_cvt_pk_bf16_f32 v%d, v%d, v%d" % (2 * i, X + 4 * i, X + 4 * i + 1))
            A("v_cvt_pk_bf16_f32 v%d, v%d, v%d" % (2 * i + 1, X + 4 * i + 2, X + 4 * i + 3))
            if i == 8:
                A("s_mov_b32 s35, 4096")
            if i % 2 == 1 or i == 8:
                u = i // 2
                A("buffer_store_dwordx4 %s, v%d, %s, s35 offen offset:%d %s" % (vr(4 * u, 4), T0, sr(sP, 4), (u % 4) * 1024, PPOL))
    else:
        for i in range(9):
            if i % 4 == 0 and i:
                A("s_add_u32 s35, s35, 4096")
            A("buffer_store_dwordx4 %s, v%d, %s, s35 offen offset:%d" % (vr(X + i * 4, 4), T0, sr(sP, 4), (i % 4) * 1024))
    if STAMP:
        A("s_waitcnt vmcnt(0)")
        stamp(A, 7)
        A("s_lshr_b32 s98, s%d, 1" % sW8)
        dump_stamps(A, 8, 1, 98, 240)
    A.label("L2_done")
    A("s_endpgm")


def role_oproj(A):
    A.label("LF_oproj")
    stamp(A, 0)
    load_kernargs(A)
    sBr, sKq, sB, sNb, sWv = 30, 31, 32, 33, 34
    A("s_sub_u32 s39, s2, 512")
    A("s_and_b32 s35, s39, 7")
    A("s_lshr_b32 s%d, s35, 2" % sBr)
    A("s_and_b32 s%d, s35, 3" % sKq)
    A("s_lshr_b32 s35, s39, 3")
    A("s_lshr_b32 s%d, s35, 2" % sB)
    A("s_and_b32 s%d, s35, 3" % sNb)
    LANE, T0, T1, T2, T3 = 254, 238, 239, 240, 241
    A("v_and_b32 v%d, 63, v0" % LANE)
    A("v_lshrrev_b32 v%d, 6, v0" % T0)
    A("v_readfirstlane_b32 s%d, v%d" % (sWv, T0))
    A("s_waitcnt lgkmcnt(0)")
    A("s_cmp_eq_u32 s%d, 0" % sBr)
    A("s_cselect_b64 s[12:13], s[12:13], s[22:23]")
    sW, sX, sP = 44, 48, 52
    A("s_lshl_b32 s35, s%d, 20" % sKq)
    A("s_lshl_b32 s36, s%d, 8" % sNb)
    A("s_add_u32 s35, s35, s36")
    A("s_sub_u32 s37, %d, s36" % (1024 * 1024))
    make_srd(A, sW, 12, 13, "s35", "s37")
    A("s_mul_i32 s35, s%d, %d" % (sBr, O_BRANCH_BYTES))
    A("s_lshl_b32 s36, s%d, 2" % sB)
    A("s_add_u32 s36, s36, s%d" % sKq)
    A("s_mul_i32 s36, s36, %d" % (8 * 36864))
    A("s_add_u32 s35, s35, s36")
    make_srd(A, sX, 28, 29, "s35", "%d" % (8 * 36864))
    sRot = 68
    A("s_lshl_b32 s%d, s%d, 1" % (sRot, sNb))
    A("s_add_u32 s%d, s%d, s%d" % (sRot, sRot, sB))
    A("s_lshl_b32 s%d, s%d, 2" % (sRot, sRot))
    FB = 512 if PBF else 1024
    PW_ = 18 * FB
    PT = 4 * PW_
    sTile = 41
    A("s_lshl_b32 s%d, s%d, 5" % (sTile, sBr))
    A("s_lshl_b32 s35, s%d, 2" % sB)
    A("s_add_u32 s%d, s%d, s35" % (sTile, sTile))
    A("s_add_u32 s%d, s%d, s%d" % (sTile, sTile, sNb))
    A("s_lshl_b32 s35, s%d, 2" % sTile)
    A("s_add_u32 s35, s35, s%d" % sKq)
    A("s_mul_i32 s35, s35, %d" % PT)
    A("s_mul_i32 s36, s%d, %d" % (sWv, PW_))
    A("s_add_u32 s35, s35, s36")
    A("s_add_u32 s35, s35, %d" % P_BASE)
    make_srd(A, sP, 28, 29, "s35", "%d" % PW_)

    def wait_o(A):
        A("s_cmp_eq_u32 s%d, 0" % sWv)
        A("s_cbranch_scc0 LF_waited")
        A("s_lshl_b32 s35, s%d, 3" % sBr)
        A("s_add_u32 s35, s35, s%d" % sB)
        A("s_lshl_b32 s35, s35, 2")
        A("s_add_u32 s35, s35, s%d" % sKq)
        A("s_lshl_b32 s35, s35, 2")
        A("v_mov_b32 v%d, s35" % T0)
        A("s_mov_b32 s36, 200000")
        A.label("LF_poll")
        A("global_load_dword v%d, v%d, s[26:27] sc1" % (T1, T0))
        A("s_waitcnt vmcnt(0)")
        A("v_readfirstlane_b32 s35, v%d" % T1)
        A("s_cmp_ge_u32 s35, 8")
        A("s_cbranch_scc1 LF_waited")
        A("s_sleep 4")
        A("s_sub_u32 s36, s36, 1")
        A("s_cmp_lg_u32 s36, 0")
        A("s_cbranch_scc1 LF_poll")
        A.label("LF_waited")
        A("s_barrier")
        stamp(A, 6)

    R = dict(acc=0, xr=88, fr=172, wrd=72, wdma=80, vx=82, lane=LANE, t0=T0, t1=T1, t2=T2, t3=T3,
             sq0=60, swb=62, sm0=63, st=64, sk=65, sx=66, sw1k=67, prex=wait_o, xpol="sc1")
    gemm_phase(A, 32, 1024, "perm", sW, sX, sWv, sRot, R, {})
    stamp(A, 4)
    A("s_mov_b32 s35, 0")
    if PBF:
        A("v_lshlrev_b32 v%d, 3, v%d" % (T1, LANE))
        for i in range(18):
            A("v_cvt_pk_bf16_f32 v%d, v%d, v%d" % (96 + 2 * i, 4 * i, 4 * i + 1))
            A("v_cvt_pk_bf16_f32 v%d, v%d, v%d" % (97 + 2 * i, 4 * i + 2, 4 * i + 3))
            if i % 8 == 0 and i:
                A("s_add_u32 s35, s35, 4096")
            A("buffer_store_dwordx2 %s, v%d, %s, s35 offen offset:%d" % (vr(96 + 2 * i, 2), T1, sr(sP, 4), (i % 8) * 512))
    else:
        A("v_lshlrev_b32 v%d, 4, v%d" % (T1, LANE))
        for i in range(18):
            if i % 4 == 0 and i:
                A("s_add_u32 s35, s35, 4096")
            A("buffer_store_dwordx4 %s, v%d, %s, s35 offen offset:%d" % (vr(i * 4, 4), T1, sr(sP, 4), (i % 4) * 1024))
    if STAMP:
        A("s_waitcnt vmcnt(0)")
        stamp(A, 7)
        A("s_mov_b32 s99, s2")
        A("s_sub_u32 s2, s2, 512")
        dump_stamps(A, 8, 1, sWv, 240)
    A("s_endpgm")


def kernel_reduce_pbf(A):
    K3 = "reduce_kernel"
    PT = 40 * 1024
    A.raw(".globl %s\n.p2align 8\n.type %s,@function\n%s:" % (K3, K3, K3))
    A("s_cmp_ge_u32 s2, 640")
    A("s_cbranch_scc1 L3_done")
    A("s_load_dwordx2 s[24:25], s[0:1], 80")
    A("s_load_dwordx2 s[28:29], s[0:1], 96")
    A("v_lshrrev_b32 v1, 6, v0")
    A("v_and_b32 v2, 63, v0")
    A("v_readfirstlane_b32 s30, v1")
    A("s_lshl_b32 s31, s2, 2")
    A("s_add_u32 s30, s30, s31")
    A("s_mul_hi_u32 s31, s30, %d" % ((1 << 32) // 40 + 1))
    A("s_mul_i32 s32, s31, 40")
    A("s_sub_u32 s32, s30, s32")
    A("s_mul_hi_u32 s33, s32, %d" % ((1 << 32) // 5 + 1))
    A("s_mul_i32 s34, s33, 5")
    A("s_sub_u32 s34, s32, s34")
    A("s_mul_i32 s35, s31, %d" % (4 * PT))
    A("s_lshl_b32 s36, s32, 10")
    A("s_add_u32 s35, s35, s36")
    A("s_add_u32 s35, s35, %d" % P_BASE)
    A("s_waitcnt lgkmcnt(0)")
    make_srd(A, 40, 28, 29, "s35", "%d" % (3 * PT + 1024))
    A("v_lshlrev_b32 v3, 4, v2")
    for kq in range(4):
        A("s_mov_b32 s%d, %d" % (48 + kq, kq * PT))
        A("buffer_load_dwordx4 %s, v3, s[40:43], s%d offen" % (vr(40 + kq * 4, 4), 48 + kq))
    A("s_lshr_b32 s52, s31, 5")
    A("s_lshr_b32 s53, s31, 2")
    A("s_and_b32 s53, s53, 7")
    A("s_and_b32 s54, s31, 3")
    A("s_mul_i32 s53, s53, %d" % (144 * 2048))
    A("s_lshl_b32 s52, s52, 10")
    A("s_lshl_b32 s54, s54, 8")
    A("s_add_u32 s53, s53, s52")
    A("s_add_u32 s53, s53, s54")
    A("s_and_b32 s37, s33, 3")
    A("s_lshl_b32 s37, s37, 1")
    A("s_lshr_b32 s55, s33, 2")
    A("s_mul_i32 s55, s55, 9")
    A("s_lshl_b32 s56, s34, 1")
    A("s_add_u32 s55, s55, s56")
    for k in range(2):
        A("s_add_u32 s36, s55, %d" % k)
        A("s_lshr_b32 s38, s36, 3")
        A("s_add_u32 s39, s37, s38")
        A("s_cmp_ge_u32 s36, 16")
        A("s_cselect_b32 s39, 8, s39")
        A("s_and_b32 s36, s36, 7")
        A("s_xor_b32 s36, s36, s37")
        A("s_lshl_b32 s39, s39, 15")
        A("s_lshl_b32 s36, s36, 5")
        A("s_add_u32 s%d, s53, s39" % (57 + k))
        A("s_add_u32 s%d, s%d, s36" % (57 + k, 57 + k))
    A("s_cmp_eq_u32 s34, 4")
    A("s_cselect_b32 s58, 0x7ff00000, s58")
    A("s_mov_b32 s59, 0")
    make_srd(A, 44, 24, 25, "s59", "%d" % (8 * 144 * 1024 * 2))
    A("v_and_b32 v1, 15, v2")
    A("v_lshlrev_b32 v1, 11, v1")
    A("v_lshrrev_b32 v2, 4, v2")
    A("v_lshl_add_u32 v1, v2, 3, v1")
    A("s_waitcnt vmcnt(0)")
    for kq in range(4):
        for h in range(4):
            A("v_lshlrev_b32 v%d, 16, v%d" % (4 + kq * 8 + 2 * h, 40 + kq * 4 + h))
            A("v_and_b32 v%d, 0xffff0000, v%d" % (5 + kq * 8 + 2 * h, 40 + kq * 4 + h))
    for i in range(8):
        A("v_add_f32 v%d, v%d, v%d" % (4 + i, 4 + i, 12 + i))
        A("v_add_f32 v%d, v%d, v%d" % (20 + i, 20 + i, 28 + i))
    for i in range(8):
        A("v_add_f32 v%d, v%d, v%d" % (4 + i, 4 + i, 20 + i))
    for i in range(4):
        A("v_cvt_pk_bf16_f32 v%d, v%d, v%d" % (36 + i, 4 + 2 * i, 5 + 2 * i))
    A("buffer_store_dwordx2 v[36:37], v1, s[44:47], s57 offen")
    A("buffer_store_dwordx2 v[38:39], v1, s[44:47], s58 offen")
    A.label("L3_done")
    A("s_endpgm")


def kernel_reduce(A):
    K3 = "reduce_kernel"
    FB = 512 if PBF else 1024
    PT = 72 * FB
    A.raw(".globl %s\n.p2align 8\n.type %s,@function\n%s:" % (K3, K3, K3))
    A("s_cmp_ge_u32 s2, 1152")
    A("s_cbranch_scc1 L3_done")
    A("s_load_dwordx2 s[24:25], s[0:1], 80")
    A("s_load_dwordx2 s[28:29], s[0:1], 96")
    A("v_lshrrev_b32 v1, 6, v0")
    A("v_and_b32 v2, 63, v0")
    A("v_readfirstlane_b32 s30, v1")
    A("s_lshl_b32 s31, s2, 2")
    A("s_add_u32 s30, s30, s31")
    A("s_mul_hi_u32 s31, s30, %d" % ((1 << 32) // 72 + 1))
    A("s_mul_i32 s32, s31, 72")
    A("s_sub_u32 s32, s30, s32")
    NFW = 18 if FUSED else 9
    A("s_mul_hi_u32 s33, s32, %d" % ((1 << 32) // NFW + 1))
    A("s_mul_i32 s34, s33, %d" % NFW)
    A("s_sub_u32 s34, s32, s34")
    A("s_mul_i32 s35, s31, %d" % (4 * PT))
    A("s_mul_i32 s36, s32, %d" % FB)
    A("s_add_u32 s35, s35, s36")
    A("s_add_u32 s35, s35, %d" % P_BASE)
    A("s_waitcnt lgkmcnt(0)")
    make_srd(A, 40, 28, 29, "s35", "%d" % (3 * PT + FB))
    A("v_lshlrev_b32 v3, %d, v2" % (3 if PBF else 4))
    for kq in range(4):
        A("s_mov_b32 s%d, %d" % (48 + kq, kq * PT))
        if PBF:
            A("buffer_load_dwordx2 %s, v3, s[40:43], s%d offen" % (vr(24 + kq * 2, 2), 48 + kq))
        else:
            A("buffer_load_dwordx4 %s, v3, s[40:43], s%d offen" % (vr(4 + kq * 4, 4), 48 + kq))
    A("s_lshr_b32 s36, s33, 2")
    A("s_mul_i32 s36, s36, 9")
    A("s_add_u32 s36, s36, s34")
    A("s_and_b32 s37, s33, 3")
    A("s_lshl_b32 s37, s37, 1")
    A("s_lshr_b32 s38, s36, 3")
    A("s_add_u32 s39, s37, s38")
    A("s_cmp_ge_u32 s36, 16")
    A("s_cselect_b32 s39, 8, s39")
    A("s_and_b32 s36, s36, 7")
    A("s_xor_b32 s36, s36, s37")
    A("s_lshr_b32 s52, s31, 5")
    A("s_lshr_b32 s53, s31, 2")
    A("s_and_b32 s53, s53, 7")
    A("s_and_b32 s54, s31, 3")
    A("s_mul_i32 s53, s53, 144")
    A("s_lshl_b32 s39, s39, 4")
    A("s_add_u32 s53, s53, s39")
    A("s_lshl_b32 s53, s53, 11")
    A("s_lshl_b32 s52, s52, 10")
    A("s_lshl_b32 s54, s54, 8")
    A("s_lshl_b32 s36, s36, 5")
    A("s_add_u32 s53, s53, s52")
    A("s_add_u32 s53, s53, s54")
    A("s_add_u32 s53, s53, s36")
    A("s_mov_b32 s55, 0")
    make_srd(A, 44, 24, 25, "s55", "%d" % (8 * 144 * 1024 * 2))
    A("v_and_b32 v1, 15, v2")
    A("v_lshlrev_b32 v1, 11, v1")
    A("v_lshrrev_b32 v2, 4, v2")
    A("v_lshl_add_u32 v1, v2, 3, v1")
    A("s_waitcnt vmcnt(0)")
    if PBF:
        for kq in range(4):
            for h in range(2):
                A("v_lshlrev_b32 v%d, 16, v%d" % (4 + kq * 4 + 2 * h, 24 + kq * 2 + h))
                A("v_and_b32 v%d, 0xffff0000, v%d" % (5 + kq * 4 + 2 * h, 24 + kq * 2 + h))
    for i in range(4):
        A("v_add_f32 v%d, v%d, v%d" % (4 + i, 4 + i, 8 + i))
        A("v_add_f32 v%d, v%d, v%d" % (12 + i, 12 + i, 16 + i))
    for i in range(4):
        A("v_add_f32 v%d, v%d, v%d" % (4 + i, 4 + i, 12 + i))
    A("v_cvt_pk_bf16_f32 v20, v4, v5")
    A("v_cvt_pk_bf16_f32 v21, v6, v7")
    A("buffer_store_dwordx2 v[20:21], v1, s[44:47], s53 offen")
    A.label("L3_done")
    A("s_endpgm")


def kd(name, vgpr, sgpr=102):
    return """.amdhsa_kernel %s
  .amdhsa_next_free_vgpr %d
  .amdhsa_next_free_sgpr %d
  .amdhsa_accum_offset %d
  .amdhsa_group_segment_fixed_size 0
  .amdhsa_kernarg_size 104
  .amdhsa_user_sgpr_count 2
  .amdhsa_user_sgpr_kernarg_segment_ptr 1
  .amdhsa_system_sgpr_workgroup_id_x 1
.end_amdhsa_kernel
""" % (name, vgpr, sgpr, (vgpr + 3) // 4 * 4)


def main():
    A = Asm()
    hdr = open(os.path.join(os.path.dirname(os.path.abspath(__file__)), "..", "cdna_kernels", NAME + ".s.ref")).read().split("\n")
    head = [l for l in hdr if l.startswith(";") and "@launch" not in l and "Override launch" not in l and "grid=ceil" not in l]
    out = "\n".join(head) + "\n"
    if FUSED:
        out += "; @launch kernel=attn_kernel grid=(768,1,1) block=(256,1,1) lds=81920\n"
    else:
        out += "; @launch kernel=attn_kernel grid=(512,1,1) block=(256,1,1) lds=81920\n"
        out += "; @launch kernel=oproj_kernel grid=(256,1,1) block=(512,1,1) lds=131072\n"
    out += "; @launch kernel=reduce_kernel grid=(%d,1,1) block=(256,1,1) lds=0\n" % (640 if (PBF and not FUSED) else 1152)
    if "twice" in EXP:
        out += "; @launch kernel=oproj_kernel grid=(256,1,1) block=(512,1,1) lds=131072\n"
    out += '.amdgcn_target "amdgcn-amd-amdhsa--gfx950"\n.text\n'
    kernel_attn(A)
    if FUSED:
        role_oproj(A)
    else:
        kernel_oproj(A)
    if PBF and not FUSED:
        kernel_reduce_pbf(A)
    else:
        kernel_reduce(A)
    out += A.text()
    out += '.section .rodata,"a"\n.p2align 6\n'
    out += kd("attn_kernel", 256, 100 if STAMP else 76)
    if not FUSED:
        out += ".p2align 6\n" + kd("oproj_kernel", 256, 100 if STAMP else 74)
    out += ".p2align 6\n" + kd("reduce_kernel", 56, 64)
    dst = sys.argv[1] if len(sys.argv) > 1 else os.path.join(os.path.dirname(os.path.abspath(__file__)), "..", "cdna_kernels", NAME + ".s")
    open(dst, "w").write(out)
    print("wrote", dst, A.ninst, "instructions")


if __name__ == "__main__":
    main()
```

```python
import sys, os, struct
sys.path.insert(0, os.path.dirname(os.path.abspath(__file__)))
from asmlib import Asm, VmQ

NAME = "concat_heads__mha_block_cached__mha_block_cached__near_ridge"
O_BRANCH_BYTES = 1152 * 4096 * 2
P_BASE = 2 * O_BRANCH_BYTES
SCALE_C = 1.4426950408889634 / (128.0 ** 0.5)
EXP = os.environ.get("EXP", "")
KVPOL = os.environ.get("KVPOL", "nt ")
WPOL = os.environ.get("WPOL", "")
FUSED = os.environ.get("FUSED", "0") == "1"
FR = os.environ.get("FR", "1") == "1"
OPOL = os.environ.get("OPOL", "sc1")
PBF = os.environ.get("PBF", "1") == "1"
PPOL = os.environ.get("PPOL", "sc1")
PLPOL = os.environ.get("PLPOL", "sc1")
XPOL = os.environ.get("XPOL", "")


def f32bits(x):
    return struct.unpack("<I", struct.pack("<f", x))[0]


def vr(base, n):
    return "v[%d:%d]" % (base, base + n - 1)


def sr(base, n):
    return "s[%d:%d]" % (base, base + n - 1)


def load_kernargs(A):
    A("s_load_dwordx16 s[4:19], s[0:1], 0")
    A("s_load_dwordx8 s[20:27], s[0:1], 64")
    A("s_load_dwordx2 s[28:29], s[0:1], 96")


def make_srd(A, d, lo, hi, off_s, nrec):
    A("s_add_u32 s%d, s%d, %s" % (d, lo, off_s))
    A("s_addc_u32 s%d, s%d, 0" % (d + 1, hi))
    A("s_and_b32 s%d, s%d, 0xffff" % (d + 1, d + 1))
    A("s_mov_b32 s%d, %s" % (d + 2, nrec))
    A("s_mov_b32 s%d, 0x00020000" % (d + 3))


STAMP = "stamp" in EXP


def stamp(A, i):
    if STAMP:
        if "real" in EXP:
            A("s_memrealtime s[%d:%d]" % (80 + 2 * i, 81 + 2 * i))
        else:
            A("s_memtime s[%d:%d]" % (80 + 2 * i, 81 + 2 * i))


def dump_stamps(A, n, kidx, sWv, vt):
    if not STAMP:
        return
    A("s_waitcnt lgkmcnt(0)")
    A("s_lshl_b32 s96, s2, 8")
    A("s_lshl_b32 s97, s%d, 6" % sWv)
    A("s_add_u32 s96, s96, s97")
    A("s_add_u32 s96, s96, %d" % (200 * 1024 * 1024 + kidx * 1024 * 1024))
    A("s_add_u32 s76, s28, s96")
    A("s_addc_u32 s77, s29, 0")
    A("s_and_b32 s77, s77, 0xffff")
    A("s_mov_b32 s78, 64")
    A("s_mov_b32 s79, 0x00020000")
    A("v_mov_b32 v%d, 0" % vt)
    for i in range(n):
        A("v_mov_b32 v%d, s%d" % (vt + 1, 80 + 2 * i))
        A("buffer_store_dword v%d, v%d, s[76:79], 0 offen offset:%d" % (vt + 1, vt, 4 * i))
    A("s_waitcnt vmcnt(0)")


def gemm_phase(A, nk, wstride, mode, sW, sX, sWave, sRot, R, hooks):
    vq = VmQ()
    lane, t0, t1, t2, t3 = R["lane"], R["t0"], R["t1"], R["t2"], R["t3"]
    wdma, vx, wrd = R["wdma"], R["vx"], R["wrd"]
    sq0, swb, sm0, st, sk, sx, sw1k = R["sq0"], R["swb"], R["sm0"], R["st"], R["sk"], R["sx"], R["sw1k"]
    nat = mode == "nat"
    NW = 5 if nat else 8
    XD = 4 if nat else 7
    XB = 40960
    wslot = (lambda c: (c + 4) % 5) if nat else (lambda c: c % 8)
    xslot = lambda c: (c + 1) & 1
    A("v_lshrrev_b32 v%d, 4, v%d" % (t0, lane))
    A("v_and_b32 v%d, 15, v%d" % (t1, lane))
    if nat:
        A("s_and_b32 s%d, s%d, 1" % (st, sWave))
        A("s_lshl_b32 s%d, s%d, 2" % (st, st))
        A("v_or_b32 v%d, s%d, v%d" % (t2, st, t0))
    else:
        A("v_mov_b32 v%d, v%d" % (t2, t0))
    A("v_lshrrev_b32 v%d, 1, v%d" % (t3, t1))
    A("v_xor_b32 v%d, v%d, v%d" % (t2, t2, t3))
    A("v_lshlrev_b32 v%d, 5, v%d" % (t2, t2))
    A("v_and_b32 v%d, 1, v%d" % (t3, lane))
    A("v_lshl_add_u32 v%d, v%d, 4, v%d" % (t2, t3, t2))
    A("v_mul_u32_u24 v%d, %d, v%d" % (t3, wstride, t0))
    A("v_add_u32 v%d, v%d, v%d" % (wdma, t2, t3))
    if nat:
        A("v_mov_b32 v%d, v%d" % (wdma + 1, wdma))
        A("s_lshl_b32 s%d, s%d, 2" % (st, sWave))
        A("v_add_u32 v%d, s%d, v%d" % (t2, st, t0))
        A("v_xor_b32 v%d, v%d, v%d" % (t2, t2, lane))
        A("v_and_b32 v%d, 7, v%d" % (t2, t2))
        A("v_lshlrev_b32 v%d, 4, v%d" % (t2, t2))
        A("v_lshrrev_b32 v%d, 3, v%d" % (t3, lane))
        A("s_lshl_b32 s%d, s%d, 3" % (st, sWave))
        A("v_add_u32 v%d, s%d, v%d" % (t3, st, t3))
        A("v_lshl_add_u32 v%d, v%d, 10, v%d" % (vx, t3, t2))
        A("v_lshrrev_b32 v%d, 1, v%d" % (t2, t1))
        A("v_xor_b32 v%d, v%d, v%d" % (t2, t2, t0))
        A("v_lshlrev_b32 v%d, 4, v%d" % (t2, t2))
        A("v_lshl_add_u32 v%d, v%d, 7, v%d" % (t2, t1, t2))
        A("v_add_u32 v%d, %d, v%d" % (vx + 1, XB, t2))
        A("v_xor_b32 v%d, 64, v%d" % (vx + 2, vx + 1))
        A("s_lshl_b32 s%d, s%d, 12" % (st, sWave))
        A("v_add_u32 v%d, s%d, v%d" % (vx + 3, st, vx + 1))
        A("v_add_u32 v%d, s%d, v%d" % (vx + 4, st, vx + 2))
        A("v_bfe_u32 v%d, v%d, 2, 2" % (t1, lane))
        A("v_and_b32 v%d, 1, v%d" % (t2, t0))
        A("v_lshl_add_u32 v%d, v%d, 2, v%d" % (t2, t2, t1))
        A("v_lshl_add_u32 v%d, v%d, 3, v%d" % (t3, t0, t1))
        hoff = 1024
    else:
        A("v_xor_b32 v%d, 0x80, v%d" % (wdma + 1, wdma))
        A("v_lshlrev_b32 v%d, 4, v%d" % (vx, lane))
        A("v_lshrrev_b32 v%d, 2, v%d" % (t3, lane))
        A("v_and_b32 v%d, 7, v%d" % (t2, t3))
        hoff = 4096
    A("s_lshl_b32 s%d, s%d, 1" % (st, sWave))
    A("v_xor_b32 v%d, s%d, v%d" % (t2, st, t2))
    A("v_lshlrev_b32 v%d, 5, v%d" % (t2, t2))
    A("v_lshl_add_u32 v%d, v%d, 8, v%d" % (t2, t3, t2))
    A("v_and_b32 v%d, 3, v%d" % (t3, lane))
    A("v_lshl_add_u32 v%d, v%d, 3, v%d" % (wrd, t3, t2))
    if "slds" in R:
        A("v_add_u32 v%d, s%d, v%d" % (wrd, R["slds"], wrd))
    for dl in range(1, 8):
        A("v_xor_b32 v%d, %d, v%d" % (wrd + dl, dl << 5, wrd))
    A("s_lshl_b32 s%d, s%d, 13" % (sq0, sWave))
    A("s_mul_i32 s%d, s%d, %d" % (swb, sWave, 8 * wstride))
    A("s_lshl_b32 s%d, s%d, 11" % (sm0, sWave))
    if "slds" in R:
        A("s_add_u32 s%d, s%d, s%d" % (sm0, sm0, R["slds"]))
    A("s_lshl_b32 s%d, s%d, 10" % (sw1k, sWave))

    def kidx(ks):
        A("s_add_u32 s%d, s%d, %d" % (sk, sRot, ks))
        A("s_and_b32 s%d, s%d, %d" % (sk, sk, nk - 1))

    def dma_w(ks):
        kidx(ks)
        A("s_mul_i32 s%d, s%d, %d" % (st, sk, 32 * wstride))
        A("s_add_u32 s%d, s%d, s%d" % (st, st, swb))
        for mm in range(2):
            A("s_add_u32 m0, s%d, %d" % (sm0, wslot(ks) * 8192 + mm * 1024))
            if mm:
                A("s_add_u32 s%d, s%d, %d" % (st, st, 4 * wstride))
            A("buffer_load_dwordx4 v%d, %s, s%d offen %slds" % (wdma + mm, sr(sW, 4), st, WPOL))
            vq.issue(("w", ks))

    def dma_x(c):
        kidx(2 * c)
        A("s_lshl_b32 s%d, s%d, 6" % (sx, sk))
        for i in range(5):
            A("s_add_u32 m0, s%d, %d" % (sw1k, XB + xslot(c) * 20480 + i * 4096))
            if i:
                A("s_add_u32 s%d, s%d, 32768" % (sx, sx))
            A("buffer_load_dwordx4 v%d, %s, s%d offen %slds" % (vx, sr(sX, 4), sx, XPOL))
            vq.issue(("x", c))

    def xreads(c):
        out = []
        for p in range(2):
            base = R["xr"] + ((2 * c + p) % XD) * 12
            so = xslot(c) * 20480
            out.append("ds_read_b128 %s, v%d offset:%d" % (vr(base, 4), vx + 3 + p, so))
            out.append("ds_read_b128 %s, v%d offset:%d" % (vr(base + 4, 4), vx + 3 + p, so + 2048))
            out.append("ds_read_b128 %s, v%d offset:%d" % (vr(base + 8, 4), vx + 1 + p, so + 16384))
        return out

    def xload(ks):
        base = R["xr"] + (ks % XD) * 12
        kidx(ks)
        A("s_lshr_b32 s%d, s%d, 2" % (sx, sk))
        A("s_mul_i32 s%d, s%d, 36864" % (sx, sx))
        A("s_and_b32 s%d, s%d, 3" % (st, sk))
        A("s_lshl_b32 s%d, s%d, 10" % (st, st))
        A("s_add_u32 s%d, s%d, s%d" % (sx, sx, st))
        A("s_add_u32 s%d, s%d, s%d" % (st, sx, sq0))
        A("buffer_load_dwordx4 %s, v%d, %s, s%d offen" % (vr(base, 4), vx, sr(sX, 4), st) + " " + R.get("xpol", XPOL))
        A("s_add_u32 s%d, s%d, %d" % (st, st, 4096))
        A("buffer_load_dwordx4 %s, v%d, %s, s%d offen" % (vr(base + 4, 4), vx, sr(sX, 4), st) + " " + R.get("xpol", XPOL))
        A("s_add_u32 s%d, s%d, %d" % (st, sx, 8 * 4096))
        A("buffer_load_dwordx4 %s, v%d, %s, s%d offen" % (vr(base + 8, 4), vx, sr(sX, 4), st) + " " + R.get("xpol", XPOL))
        for _ in range(3):
            vq.issue(("x", ks))

    acc, fr = R["acc"], R["fr"]

    def wreads(ks, dl):
        return ["ds_read_b64_tr_b16 %s, v%d offset:%d" % (vr(fr + (ks & 1) * 32 + dl * 4 + h * 2, 2), wrd + dl, wslot(ks) * 8192 + h * hoff)
                for h in range(2)]

    nw = [0]
    nx = [0]

    def fill(i, maxw, maxx):
        k = 0
        while nw[0] < min(nk, i + 1 + NW - (0 if i >= 0 else 0)) and nw[0] <= i + NW and k < maxw:
            if nw[0] >= NW and nw[0] - NW > i:
                break
            dma_w(nw[0])
            nw[0] += 1
            k += 1
        k = 0
        if nat:
            while nx[0] < nk // 2 and (nx[0] < 2 or 2 * (nx[0] - 2) <= i) and k < maxx:
                dma_x(nx[0])
                nx[0] += 1
                k += 1
        else:
            while nx[0] < nk and nx[0] <= i + XD - 1 and k < maxx:
                xload(nx[0])
                nx[0] += 1
                k += 1

    PW, PX = int(os.environ.get("PW", "2")), int(os.environ.get("PX", "1" if nat else "2"))
    if nat:
        dma_w(0)
        dma_x(0)
        dma_w(1)
        nw[0], nx[0] = 2, 1
    elif "prex" in R:
        for i in range(NW):
            dma_w(i)
        R["prex"](A)
        xload(0)
        xload(1)
        nw[0], nx[0] = NW, 2
    else:
        dma_w(0)
        xload(0)
        dma_w(1)
        xload(1)
        nw[0], nx[0] = 2, 2
    stamp(A, 1)
    A("s_waitcnt vmcnt(%d)" % vq.wait_for({("w", 0)} | ({("x", 0)} if nat else set())))
    A("s_barrier")
    stamp(A, 2)
    fill(-1, PW, PX)
    for dl in range(8):
        for r in wreads(0, dl):
            A(r)
    if nat:
        for r in xreads(0):
            A(r)
    for i in range(nk):
        need = set()
        if i + 1 < nk:
            need.add(("w", i + 1))
        if nat:
            if i % 2 == 1 and i + 1 < nk:
                need.add(("x", (i + 1) // 2))
        else:
            need.add(("x", i))
        n = vq.wait_for(need)
        A("s_waitcnt vmcnt(%d) lgkmcnt(0)" % n)
        A("s_barrier")
        if i == nk // 2:
            stamp(A, 3)
        fill(i, PW, PX)
        if i in hooks:
            hooks[i](A, vq)
        xr = xreads((i + 1) // 2) if (nat and i % 2 == 1 and i + 1 < nk) else []
        xb = R["xr"] + (i % XD) * 12
        for dl in range(8):
            if i + 1 < nk:
                for r in wreads(i + 1, dl):
                    A(r)
            if dl < len(xr):
                A(xr[dl])
            for t in range(3):
                if t == 2 and dl >= 2:
                    continue
                a = acc + (t * 8 + dl) * 4 if t < 2 else acc + 64 + dl * 4
                c = "0" if i == 0 else vr(a, 4)
                A("v_mfma_f32_16x16x32_bf16 %s, %s, %s, %s" % (vr(a, 4), vr(fr + (i & 1) * 32 + dl * 4, 4), vr(xb + t * 4, 4), c))
    return vq


def cross_lane(A, op, v, tmp):
    A("v_mov_b32 v%d, v%d" % (tmp, v))
    A("v_permlane32_swap_b32 v%d, v%d" % (v, tmp))
    A("%s v%d, v%d, v%d" % (op, v, v, tmp))
    A("v_mov_b32 v%d, v%d" % (tmp, v))
    A("v_permlane16_swap_b32 v%d, v%d" % (v, tmp))
    A("%s v%d, v%d, v%d" % (op, v, v, tmp))


THR = float(os.environ.get("THR", "8.0"))


def kernel_attn(A):
    K1 = "attn_kernel"
    A.raw(".globl %s\n.p2align 8\n.type %s,@function\n%s:" % (K1, K1, K1))
    if FUSED:
        A("s_cmp_ge_u32 s2, 768")
        A("s_cbranch_scc1 L1_exit")
        A("s_cmp_ge_u32 s2, 512")
        A("s_cbranch_scc0 L1_go")
        A("s_branch LF_oproj")
        A.label("L1_exit")
        A("s_endpgm")
        A.label("L1_go")
    else:
        A("s_cmp_ge_u32 s2, 512")
        A("s_cbranch_scc1 L1_done")
    stamp(A, 0)
    load_kernargs(A)
    PRIO = os.environ.get("PRIO", "ad")

    def prio(tag, val):
        if tag in PRIO:
            A("s_cmp_ge_u32 s2, 256")
            A("s_cbranch_scc0 L1_pr%s" % tag)
            A("s_setprio %d" % val)
            A.label("L1_pr%s" % tag)
    prio("a", 1)
    sBr, sH, sB, sWv = 30, 31, 32, 33
    A("s_and_b32 s34, s2, 7")
    A("s_lshr_b32 s35, s2, 3")
    A("s_lshr_b32 s%d, s34, 2" % sBr)
    A("s_and_b32 s34, s34, 3")
    A("s_lshl_b32 s34, s34, 3")
    A("s_and_b32 s%d, s35, 7" % sH)
    A("s_add_u32 s%d, s%d, s34" % (sH, sH))
    A("s_lshr_b32 s%d, s35, 3" % sB)
    O, QF, S, LACC, ONES, F = 0, 96, 144, 180, 192, 196
    M = 232
    KA, VA = 235, 239
    VKD, VVD = 247, 248
    T0, T1, T2, T3, T4, T5 = 249, 250, 251, 252, 253, 254
    LANE = 255
    A("v_and_b32 v%d, 63, v0" % LANE)
    A("v_lshrrev_b32 v%d, 6, v0" % T0)
    A("v_readfirstlane_b32 s%d, v%d" % (sWv, T0))
    A("s_waitcnt lgkmcnt(0)")
    A("s_cmp_eq_u32 s%d, 0" % sBr)
    A("s_cselect_b64 s[4:5], s[4:5], s[14:15]")
    A("s_cselect_b64 s[6:7], s[6:7], s[16:17]")
    A("s_cselect_b64 s[8:9], s[8:9], s[18:19]")
    A("s_cselect_b64 s[10:11], s[10:11], s[20:21]")
    sK, sV, sW, sX, sO = 36, 40, 44, 48, 52
    A("s_lshl_b32 s34, s%d, 5" % sB)
    A("s_add_u32 s34, s34, s%d" % sH)
    A("s_lshl_b32 s34, s34, 17")
    make_srd(A, sK, 6, 7, "s34", "131072")
    make_srd(A, sV, 8, 9, "s34", "131072")
    A("s_lshl_b32 s34, s%d, 8" % sH)
    A("s_sub_u32 s35, %d, s34" % (512 * 8192))
    make_srd(A, sW, 10, 11, "s34", "s35")
    A("s_mul_i32 s35, s%d, 147456" % sB)
    make_srd(A, sX, 4, 5, "s35", "147456")
    A("s_mul_i32 s35, s%d, %d" % (sBr, O_BRANCH_BYTES))
    A("s_lshl_b32 s56, s%d, 5" % sB)
    A("s_add_u32 s56, s56, s%d" % sH)
    A("s_mul_i32 s56, s56, 36864")
    A("s_add_u32 s35, s35, s56")
    make_srd(A, sO, 28, 29, "s35", "36864")
    sRot, sRotK = 68, 69
    A("s_lshr_b32 s%d, s2, 3" % sRot)
    A("s_add_u32 s%d, s%d, s%d" % (sRot, sRot, sB))
    A("s_lshl_b32 s%d, s%d, 1" % (sRot, sRot))
    A("s_and_b32 s%d, s%d, 15" % (sRot, sRot))
    A("s_lshr_b32 s%d, s%d, 1" % (sRotK, sRot))
    sC, sW1k, sT, sT2, sW4k, sThr = 56, 57, 58, 59, 70, 71
    A("s_mov_b32 s%d, 0x%08x" % (sC, f32bits(SCALE_C)))
    A("s_mov_b32 s%d, 0x%08x" % (sThr, f32bits(THR)))
    A("s_lshl_b32 s%d, s%d, 10" % (sW1k, sWv))
    A("s_lshl_b32 s%d, s%d, 12" % (sW4k, sWv))

    g, lo = T0, T1
    VLIN = 92
    A("v_lshrrev_b32 v%d, 4, v%d" % (g, LANE))
    A("v_and_b32 v%d, 15, v%d" % (lo, LANE))
    A("s_lshl_b32 s%d, s%d, 2" % (sT, sWv))
    A("v_add_u32 v%d, s%d, v%d" % (T2, sT, g))
    A("v_xor_b32 v%d, v%d, v%d" % (T3, lo, T2))
    A("v_lshlrev_b32 v%d, 4, v%d" % (T3, T3))
    A("v_lshl_add_u32 v%d, v%d, 8, v%d" % (VKD, T2, T3))
    A("v_and_b32 v%d, 7, v%d" % (T3, T2))
    A("v_lshlrev_b32 v%d, 1, v%d" % (T3, T3))
    A("v_xor_b32 v%d, v%d, v%d" % (T3, lo, T3))
    A("v_lshlrev_b32 v%d, 4, v%d" % (T3, T3))
    A("v_lshl_add_u32 v%d, v%d, 8, v%d" % (VVD, T2, T3))
    A("v_lshlrev_b32 v%d, 4, v%d" % (T3, lo))
    A("v_lshl_add_u32 v%d, v%d, 8, v%d" % (VLIN, T2, T3))

    KS = lambda j: ((j + 2) % 3) * 16384
    VS = lambda j: 49152 + (j % 2) * 16384

    def blk_off(j, i):
        if i == 0:
            A("s_add_u32 s%d, s%d, %d" % (sT2, sRotK, j))
            A("s_and_b32 s%d, s%d, 7" % (sT2, sT2))
            A("s_lshl_b32 s%d, s%d, 14" % (sT2, sT2))
        else:
            A("s_add_u32 s%d, s%d, 4096" % (sT2, sT2))

    def kv_dma(vq, isv, j):
        srd, vd, base = (sV, VVD, VS(j)) if isv else (sK, VKD, KS(j))
        for i in range(4):
            A("s_add_u32 m0, s%d, %d" % (sW1k, base + i * 4096))
            blk_off(j, i)
            A("buffer_load_dwordx4 v%d, %s, s%d offen %slds" % (vd, sr(srd, 4), sT2, KVPOL))
            vq.issue(("v" if isv else "k", j))

    PRE = 208

    def pre_load(n, half):
        def fn(A, vq):
            for i in range(2 * half, 2 * half + 2):
                A("s_lshl_b32 s%d, s%d, 14" % (sT2, sRotK))
                if i:
                    A("s_add_u32 s%d, s%d, %d" % (sT2, sT2, 4096 * i))
                A("buffer_load_dwordx4 %s, v%d, %s, s%d offen %s" % (vr(PRE + n * 16 + i * 4, 4), VLIN, sr(sK if n == 0 else sV, 4), sT2, KVPOL))
                vq.issue(("pre", 0))
        return fn

    R = dict(acc=0, xr=96, fr=144, wrd=72, wdma=80, vx=82, lane=LANE, t0=T0, t1=T1, t2=T2, t3=T3,
             sq0=60, swb=62, sm0=63, st=64, sk=65, sx=66, sw1k=67)

    def h12(A, vq):
        kv_dma(vq, 0, 1)
        kv_dma(vq, 1, 1)
    hooks = {1: pre_load(0, 0), 3: pre_load(0, 1), 5: pre_load(1, 0), 7: pre_load(1, 1),
             12: h12, 14: lambda A, vq: kv_dma(vq, 0, 2)}
    vq = gemm_phase(A, 16, 8192, "nat", sW, sX, sWv, sRot, R, hooks)
    assert ("pre", 0) not in vq.q
    if "p1only" in EXP:
        A("s_waitcnt vmcnt(0)")
        A("s_branch L1_done")

    stamp(A, 4)
    SCR = 32768
    TA = 240
    A("v_lshrrev_b32 v%d, 4, v%d" % (g, LANE))
    A("v_and_b32 v%d, 15, v%d" % (lo, LANE))
    A("s_lshl_b32 s%d, s%d, 2" % (sT, sWv))
    A("v_lshrrev_b32 v%d, 1, v%d" % (T2, g))
    A("v_or_b32 v%d, s%d, v%d" % (T2, sT, T2))
    A("v_xor_b32 v%d, v%d, v%d" % (T2, T2, lo))
    A("v_lshlrev_b32 v%d, 4, v%d" % (T2, T2))
    A("v_lshl_add_u32 v%d, v%d, 8, v%d" % (T2, lo, T2))
    A("v_and_b32 v%d, 1, v%d" % (T3, g))
    A("v_lshl_add_u32 v%d, v%d, 3, v%d" % (T2, T3, T2))
    A("v_add_u32 v%d, s%d, v%d" % (T3, sW4k, T2))
    A("v_xor_b32 v%d, v%d, v%d" % (T4, g, lo))
    A("v_lshlrev_b32 v%d, 4, v%d" % (T4, T4))
    A("v_lshl_add_u32 v%d, v%d, 8, v%d" % (T4, lo, T4))
    A("v_add_u32 v%d, s%d, v%d" % (T5, sW4k, T4))
    PK = 144
    for dl in range(8):
        A("v_xor_b32 v%d, %d, v%d" % (TA + (dl & 3), dl << 5, T3))
        for t in range(2):
            a = (t * 8 + dl) * 4
            pk = PK + t * 16 + dl * 2
            A("v_cvt_pk_bf16_f32 v%d, v%d, v%d" % (pk, a, a + 1))
            A("v_cvt_pk_bf16_f32 v%d, v%d, v%d" % (pk + 1, a + 2, a + 3))
            A("ds_write_b64 v%d, %s offset:%d" % (TA + (dl & 3), vr(pk, 2), SCR + t * 16384))
    for ds in range(4):
        A("v_xor_b32 v%d, %d, v%d" % (TA + ds, ds << 6, T5))
        for t in range(2):
            A("ds_read_b128 %s, v%d offset:%d" % (vr(QF + t * 16 + ds * 4, 4), TA + ds, SCR + t * 16384))
    for dl in range(2):
        a = 64 + dl * 4
        A("v_cvt_pk_bf16_f32 v%d, v%d, v%d" % (176 + dl * 2, a, a + 1))
        A("v_cvt_pk_bf16_f32 v%d, v%d, v%d" % (176 + dl * 2 + 1, a + 2, a + 3))
        A("v_xor_b32 v%d, %d, v%d" % (T0 + dl, dl << 5, T3))
        A("ds_write_b64 v%d, %s offset:%d" % (T0 + dl, vr(176 + dl * 2, 2), SCR))
    A("s_waitcnt lgkmcnt(0)")
    A("s_barrier")
    for ds in range(4):
        A("v_xor_b32 v%d, %d, v%d" % (TA + ds, ds << 6, T4))
        A("ds_read_b128 %s, v%d offset:%d" % (vr(QF + 32 + ds * 4, 4), TA + ds, SCR + ds * 4096))
    for i in range(4):
        A("v_mov_b32 v%d, 0x3f803f80" % (ONES + i))
    A("s_waitcnt lgkmcnt(0)")
    A("s_barrier")
    for n in range(2):
        for i in range(4):
            A("ds_write_b128 v%d, %s offset:%d" % (VKD if n == 0 else VVD, vr(PRE + n * 16 + i * 4, 4), (KS(0) if n == 0 else VS(0)) + i * 4096))
    A("s_waitcnt lgkmcnt(0)")
    for ds in range(4):
        A("v_xor_b32 v%d, %d, v%d" % (KA + ds, ds << 6, T4))
    A("v_lshrrev_b32 v%d, 2, v%d" % (T2, LANE))
    A("v_and_b32 v%d, 7, v%d" % (T3, T2))
    A("v_lshlrev_b32 v%d, 5, v%d" % (T3, T3))
    A("v_lshl_add_u32 v%d, v%d, 8, v%d" % (T3, T2, T3))
    A("v_and_b32 v%d, 3, v%d" % (T2, LANE))
    A("v_lshl_add_u32 v%d, v%d, 3, v%d" % (T3, T2, T3))
    A("v_add_u32 v%d, 49152, v%d" % (T3, T3))
    for dt in range(8):
        A("v_xor_b32 v%d, %d, v%d" % (VA + dt, dt << 5, T3))
    for t in range(3):
        A("v_mov_b32 v%d, 0xf149f2ca" % (M + t))
    stamp(A, 5)
    prio("b", 0)
    prio("c", 1)

    NKF = 2
    for j in range(8):
        if j == int(os.environ.get("PJ", "5")):
            prio("d", 0)
            prio("e", 1)
        n = vq.wait_for({("k", j)})
        A("s_waitcnt vmcnt(%d)" % n)
        A("s_barrier")
        if 1 <= j < 7:
            kv_dma(vq, 1, j + 1)
        kb = KS(j)

        def kreads(l):
            buf = F + (l & 1) * 16
            for ds in range(4):
                if l < 4:
                    A("ds_read_b128 %s, v%d offset:%d" % (vr(buf + ds * 4, 4), KA + ds, kb + l * 4096))
                else:
                    A("v_add_u32 v%d, s%d, v%d" % (T0 + ds, sW4k, KA + ds))
                    A("ds_read_b128 %s, v%d offset:%d" % (vr(buf + ds * 4, 4), T0 + ds, kb))

        kreads(0)
        kreads(1)
        for l in range(5):
            A("s_waitcnt lgkmcnt(%d)" % (4 if l < 4 else 0))
            for ds in range(4):
                fa = vr(F + (l & 1) * 16 + ds * 4, 4)
                for t in ((0, 1) if l < 4 else (2,)):
                    d = S + t * 16 + l * 4 if t < 2 else S + 32
                    c = "0" if ds == 0 else vr(d, 4)
                    A("v_mfma_f32_16x16x32_bf16 %s, %s, %s, %s" % (vr(d, 4), fa, vr(QF + t * 16 + ds * 4, 4), c))
            if l + 2 < 5:
                kreads(l + 2)
        for t in range(3):
            nv = 16 if t < 2 else 4
            s0 = S + t * 16
            mx = T0 + t
            A("v_max3_f32 v%d, v%d, v%d, v%d" % (mx, s0, s0 + 1, s0 + 2))
            for i in range(3, nv - 1, 2):
                A("v_max3_f32 v%d, v%d, v%d, v%d" % (mx, mx, s0 + i, s0 + i + 1))
            A("v_max_f32 v%d, v%d, v%d" % (mx, mx, s0 + nv - 1))
        for t in range(3):
            A("v_mov_b32 v%d, v%d" % (T3 + t, T0 + t))
        for t in range(3):
            A("v_permlane32_swap_b32 v%d, v%d" % (T0 + t, T3 + t))
        for t in range(3):
            A("v_max_f32 v%d, v%d, v%d" % (T0 + t, T0 + t, T3 + t))
        for t in range(3):
            A("v_mov_b32 v%d, v%d" % (T3 + t, T0 + t))
        for t in range(3):
            A("v_permlane16_swap_b32 v%d, v%d" % (T0 + t, T3 + t))
        for t in range(3):
            A("v_max_f32 v%d, v%d, v%d" % (T0 + t, T0 + t, T3 + t))
        for t in range(3):
            A("v_fma_f32 v%d, v%d, s%d, -v%d" % (T3 + t, T0 + t, sC, M + t))
        A("v_max3_f32 v%d, v%d, v%d, v%d" % (T3, T3, T4, T5))
        A("v_cmp_lt_f32 s[72:73], s%d, v%d" % (sThr, T3))
        A("s_nop 1")
        A("s_cmp_lg_u64 s[72:73], 0")
        A("s_cbranch_scc0 L1_nr%d" % j)
        for t in range(3):
            A("v_mul_f32 v%d, s%d, v%d" % (T0 + t, sC, T0 + t))
            A("v_max_f32 v%d, v%d, v%d" % (T0 + t, T0 + t, M + t))
            A("v_sub_f32 v%d, v%d, v%d" % (T3, M + t, T0 + t))
            A("v_exp_f32 v%d, v%d" % (T3, T3))
            A("v_mov_b32 v%d, v%d" % (M + t, T0 + t))
            if j > 0:
                for i in range(32):
                    A("v_mul_f32 v%d, v%d, v%d" % (O + t * 32 + i, O + t * 32 + i, T3))
                for i in range(4):
                    A("v_mul_f32 v%d, v%d, v%d" % (LACC + t * 4 + i, LACC + t * 4 + i, T3))
        A.label("L1_nr%d" % j)
        for t in range(3):
            nv = 16 if t < 2 else 4
            s0 = S + t * 16
            for i in range(nv):
                A("v_fma_f32 v%d, v%d, s%d, -v%d" % (s0 + i, s0 + i, sC, M + t))
            for i in range(nv):
                A("v_exp_f32 v%d, v%d" % (s0 + i, s0 + i))
            for i in range(0, nv, 2):
                A("v_cvt_pk_bf16_f32 v%d, v%d, v%d" % (s0 + (i // 8) * 8 + (i % 8) // 2, s0 + i, s0 + i + 1))
        n = vq.wait_for({("v", j)})
        A("s_waitcnt vmcnt(%d)" % n)
        A("s_barrier")
        if j + 3 < 8:
            kv_dma(vq, 0, j + 3)
        vb = VS(j) - 49152
        NF = 9

        def vreads(f):
            buf = F + (f % NF) * 4
            if f < 16:
                u, dt = f // 8, f % 8
                for hh in range(2):
                    A("ds_read_b64_tr_b16 %s, v%d offset:%d" % (vr(buf + hh * 2, 2), VA + dt, vb + (2 * u + hh) * 4096))
            else:
                for hh in range(2):
                    dt = (f - 16) * 2 + hh
                    A("v_add_u32 v%d, s%d, v%d" % (T0 + hh, sW4k, VA + dt))
                    A("ds_read_b64_tr_b16 %s, v%d offset:%d" % (vr(buf + hh * 2, 2), T0 + hh, vb))

        PD = 6
        for f in range(PD):
            vreads(f)
        for t in range(2):
            for u in range(2):
                d = vr(LACC + t * 4, 4)
                A("v_mfma_f32_16x16x32_bf16 %s, %s, %s, %s" % (d, vr(ONES, 4), vr(S + t * 16 + u * 8, 4), "0" if (j == 0 and u == 0) else d))
        d = vr(LACC + 8, 4)
        A("v_mfma_f32_16x16x16_bf16 %s, %s, %s, %s" % (d, vr(ONES, 2), vr(S + 32, 2), "0" if j == 0 else d))
        for f in range(20):
            rem = min(20, f + PD) - (f + 1)
            A("s_waitcnt lgkmcnt(%d)" % (2 * rem))
            fa = F + (f % NF) * 4
            if f < 16:
                u, dt = f // 8, f % 8
                for t in range(2):
                    d = vr(O + t * 32 + dt * 4, 4)
                    A("v_mfma_f32_16x16x32_bf16 %s, %s, %s, %s" % (d, vr(fa, 4), vr(S + t * 16 + u * 8, 4), "0" if (j == 0 and u == 0) else d))
            else:
                for hh in range(2):
                    dt = (f - 16) * 2 + hh
                    d = vr(O + 64 + dt * 4, 4)
                    A("v_mfma_f32_16x16x16_bf16 %s, %s, %s, %s" % (d, vr(fa + hh * 2, 2), vr(S + 32, 2), "0" if j == 0 else d))
            if f + PD < 20:
                vreads(f + PD)

    stamp(A, 6)
    A("s_barrier")
    A("v_lshlrev_b32 v%d, 4, v%d" % (T2, LANE))
    A("s_lshl_b32 s%d, s%d, 13" % (sT, sWv))
    A("v_add_u32 v%d, s%d, v%d" % (T3, sT, T2))
    for dt in range(8):
        A("ds_write_b128 v%d, %s offset:%d" % (T3, vr(O + 64 + dt * 4, 4), dt * 1024))
    A("v_and_b32 v%d, 15, v%d" % (T4, LANE))
    A("v_lshlrev_b32 v%d, 3, v%d" % (T4, T4))
    A("s_lshl_b32 s%d, s%d, 7" % (sT, sWv))
    A("v_add_u32 v%d, s%d, v%d" % (T5, sT, T4))
    A("v_mov_b32 v%d, v%d" % (KA + 1, M + 2))
    A("v_mov_b32 v%d, v%d" % (KA + 2, LACC + 8))
    A("ds_write_b64 v%d, %s offset:32768" % (T5, vr(KA + 1, 2)))
    VO = T2
    A("s_lshl_b32 s%d, s%d, 13" % (sT, sWv))
    for t in range(2):
        A("v_rcp_f32 v%d, v%d" % (T1, LACC + t * 4))
        for i in range(32):
            A("v_mul_f32 v%d, v%d, v%d" % (O + t * 32 + i, O + t * 32 + i, T1))
        for ds in range(4):
            a = O + t * 32 + ds * 8
            pk = QF + t * 16 + ds * 4
            for i in range(4):
                A("v_cvt_pk_bf16_f32 v%d, v%d, v%d" % (pk + i, a + 2 * i, a + 2 * i + 1))
            A("buffer_store_dwordx4 %s, v%d, %s, s%d offen offset:%d%s" % (vr(pk, 4), VO, sr(sO, 4), sT, 1024 * ds, " sc1" if FUSED else " " + OPOL))
        if t == 0:
            A("s_add_u32 s%d, s%d, 4096" % (sT, sT))
    A("s_waitcnt lgkmcnt(0)")
    A("s_barrier")
    ML = S
    OP = F
    for w2 in range(4):
        A("ds_read_b64 %s, v%d offset:%d" % (vr(ML + 2 * w2, 2), T4, 32768 + w2 * 128))
    A("s_lshl_b32 s%d, s%d, 11" % (sT, sWv))
    A("v_add_u32 v%d, s%d, v%d" % (T3, sT, T2))
    for w2 in range(4):
        for dd in range(2):
            A("ds_read_b128 %s, v%d offset:%d" % (vr(OP + (w2 * 2 + dd) * 4, 4), T3, w2 * 8192 + dd * 1024))
    A("s_waitcnt lgkmcnt(0)")
    A("v_max3_f32 v%d, v%d, v%d, v%d" % (T1, ML, ML + 2, ML + 4))
    A("v_max_f32 v%d, v%d, v%d" % (T1, T1, ML + 6))
    for w2 in range(4):
        A("v_sub_f32 v%d, v%d, v%d" % (ML + 2 * w2, ML + 2 * w2, T1))
        A("v_exp_f32 v%d, v%d" % (ML + 2 * w2, ML + 2 * w2))
    A("v_mul_f32 v%d, v%d, v%d" % (T5, ML, ML + 1))
    for w2 in range(1, 4):
        A("v_fma_f32 v%d, v%d, v%d, v%d" % (T5, ML + 2 * w2, ML + 2 * w2 + 1, T5))
    A("v_rcp_f32 v%d, v%d" % (T5, T5))
    for w2 in range(4):
        A("v_mul_f32 v%d, v%d, v%d" % (ML + 2 * w2, ML + 2 * w2, T5))
    for dd in range(2):
        for r in range(4):
            d = O + dd * 4 + r
            A("v_mul_f32 v%d, v%d, v%d" % (d, OP + dd * 4 + r, ML))
            for w2 in range(1, 4):
                A("v_fma_f32 v%d, v%d, v%d, v%d" % (d, OP + (w2 * 2 + dd) * 4 + r, ML + 2 * w2, d))
    A("s_lshl_b32 s%d, s%d, 10" % (sT, sWv))
    A("s_add_u32 s%d, s%d, %d" % (sT, sT, 8 * 4096))
    for i in range(4):
        A("v_cvt_pk_bf16_f32 v%d, v%d, v%d" % (QF + 32 + i, O + 2 * i, O + 2 * i + 1))
    A("buffer_store_dwordx4 %s, v%d, %s, s%d offen%s" % (vr(QF + 32, 4), VO, sr(sO, 4), sT, " sc1" if FUSED else " " + OPOL))
    if FUSED:
        A("s_waitcnt vmcnt(0)")
        A("s_barrier")
        A("s_cmp_eq_u32 s%d, 0" % sWv)
        A("s_cbranch_scc0 L1_nopub")
        A("s_lshl_b32 s%d, s%d, 3" % (sT, sBr))
        A("s_add_u32 s%d, s%d, s%d" % (sT, sT, sB))
        A("s_lshl_b32 s%d, s%d, 2" % (sT, sT))
        A("s_lshr_b32 s%d, s%d, 3" % (sT2, sH))
        A("s_add_u32 s%d, s%d, s%d" % (sT, sT, sT2))
        A("s_lshl_b32 s%d, s%d, 2" % (sT, sT))
        A("s_mov_b64 exec, 1")
        A("v_mov_b32 v%d, s%d" % (T0, sT))
        A("v_mov_b32 v%d, 1" % T1)
        A("global_atomic_add v%d, v%d, s[26:27] sc1" % (T0, T1))
        A("s_waitcnt vmcnt(0)")
        A("s_mov_b64 exec, -1")
        A.label("L1_nopub")
    if STAMP:
        A("s_waitcnt vmcnt(0)")
    stamp(A, 7)
    dump_stamps(A, 8, 0, sWv, 240)
    A.label("L1_done")
    A("s_endpgm")


def kernel_oproj3(A):
    K2 = "oproj_kernel"
    A.raw(".globl %s\n.p2align 8\n.type %s,@function\n%s:" % (K2, K2, K2))
    A("s_cmp_ge_u32 s2, 192")
    A("s_cbranch_scc1 L2_done")
    stamp(A, 0)
    load_kernargs(A)
    sBr, sMt, sNt, sW8 = 30, 31, 32, 33
    A("s_and_b32 s35, s2, 7")
    A("s_lshr_b32 s%d, s35, 2" % sBr)
    A("s_and_b32 s35, s35, 3")
    A("s_mul_i32 s35, s35, 3")
    A("s_lshr_b32 s36, s2, 3")
    A("s_and_b32 s%d, s36, 7" % sNt)
    A("s_lshr_b32 s36, s36, 3")
    A("s_add_u32 s%d, s35, s36" % sMt)
    ACC, XR, FR = 0, 96, 168
    WD, VX, RD = 200, 201, 202
    LANE, T0, T1, T2, T3 = 206, 207, 208, 209, 210
    A("v_and_b32 v%d, 63, v0" % LANE)
    A("v_lshrrev_b32 v%d, 6, v0" % T0)
    A("v_readfirstlane_b32 s%d, v%d" % (sW8, T0))
    A("s_waitcnt lgkmcnt(0)")
    stamp(A, 6)
    A("s_cmp_eq_u32 s%d, 0" % sBr)
    A("s_cselect_b64 s[12:13], s[12:13], s[22:23]")
    sW, sX, sO = 44, 48, 52
    A("s_lshl_b32 s36, s%d, 7" % sNt)
    A("s_sub_u32 s37, %d, s36" % (4096 * 1024))
    make_srd(A, sW, 12, 13, "s36", "s37")
    A("s_mul_i32 s35, s%d, %d" % (sBr, O_BRANCH_BYTES))
    make_srd(A, sX, 28, 29, "s35", "%d" % O_BRANCH_BYTES)
    A("s_mul_i32 s35, s%d, %d" % (sMt, 96 * 2048))
    A("s_lshl_b32 s37, s%d, 10" % sBr)
    A("s_add_u32 s36, s36, s37")
    A("s_add_u32 s35, s35, s36")
    A("s_sub_u32 s37, %d, s36" % (96 * 2048))
    make_srd(A, sO, 24, 25, "s35", "s37")
    sQ = 56
    A("s_mul_i32 s35, s%d, 6" % sMt)
    for i in range(6):
        A("s_add_u32 s36, s35, %d" % i)
        A("s_mul_i32 s37, s36, 57")
        A("s_lshr_b32 s37, s37, 9")
        A("s_mul_i32 s38, s37, 9")
        A("s_sub_u32 s38, s36, s38")
        A("s_mul_i32 s37, s37, %d" % (32 * 36864))
        A("s_lshl_b32 s38, s38, 12")
        A("s_add_u32 s%d, s37, s38" % (sQ + i))
    sRot, sk, st, sx, sL = 62, 63, 64, 65, 66
    A("s_lshl_b32 s%d, s%d, 1" % (sRot, sNt))
    A("s_mul_i32 s35, s%d, 5" % sMt)
    A("s_add_u32 s%d, s%d, s35" % (sRot, sRot))
    if os.environ.get("ROTM"):
        A("s_mul_i32 s35, s%d, 3" % sMt)
        A("s_add_u32 s%d, s%d, s35" % (sRot, sNt))
        A("s_and_b32 s%d, s%d, %s" % (sRot, sRot, os.environ.get("ROTM")))
    A("s_lshl_b32 s%d, s%d, 14" % (sL, sW8))
    A("v_bfe_u32 v%d, v%d, 1, 2" % (T0, LANE))
    A("v_lshrrev_b32 v%d, 4, v%d" % (T1, LANE))
    A("v_xor_b32 v%d, v%d, v%d" % (T0, T0, T1))
    A("v_lshlrev_b32 v%d, 5, v%d" % (T0, T0))
    A("v_and_b32 v%d, 1, v%d" % (T1, LANE))
    A("v_lshl_add_u32 v%d, v%d, 4, v%d" % (T0, T1, T0))
    A("v_lshrrev_b32 v%d, 3, v%d" % (T1, LANE))
    A("v_lshl_add_u32 v%d, v%d, 10, v%d" % (WD, T1, T0))
    A("v_lshlrev_b32 v%d, 4, v%d" % (VX, LANE))
    A("v_lshrrev_b32 v%d, 2, v%d" % (T0, LANE))
    A("v_bfe_u32 v%d, v%d, 3, 2" % (T1, LANE))
    A("v_lshlrev_b32 v%d, 5, v%d" % (T1, T1))
    A("v_lshl_add_u32 v%d, v%d, 7, v%d" % (T1, T0, T1))
    A("v_and_b32 v%d, 3, v%d" % (T0, LANE))
    A("v_lshl_add_u32 v%d, v%d, 3, v%d" % (T1, T0, T1))
    A("v_add_u32 v%d, s%d, v%d" % (RD, sL, T1))
    for nt in range(1, 4):
        A("v_xor_b32 v%d, %d, v%d" % (RD + nt, nt << 5, RD))
    vq = VmQ()
    NS, XD, NK = 4, 3, 16

    def kidx(i):
        A("s_add_u32 s%d, s%d, %d" % (sk, sRot, i))
        A("s_and_b32 s%d, s%d, 15" % (sk, sk))
        A("s_lshl_b32 s%d, s%d, 3" % (sk, sk))
        A("s_add_u32 s%d, s%d, s%d" % (sk, sk, sW8))

    def dma_w(i):
        A("s_lshl_b32 s%d, s%d, 15" % (st, sk))
        for m in range(4):
            A("s_add_u32 m0, s%d, %d" % (sL, (i % NS) * 4096 + m * 1024))
            if m:
                A("s_add_u32 s%d, s%d, 8192" % (st, st))
            A("buffer_load_dwordx4 v%d, %s, s%d offen lds" % (WD, sr(sW, 4), st))
            vq.issue(("w", i))

    def xload(i):
        A("s_lshr_b32 s%d, s%d, 2" % (sx, sk))
        A("s_mul_i32 s%d, s%d, 36864" % (sx, sx))
        A("s_and_b32 s%d, s%d, 3" % (st, sk))
        A("s_lshl_b32 s%d, s%d, 10" % (st, st))
        A("s_add_u32 s%d, s%d, s%d" % (sx, sx, st))
        for q in range(6):
            A("s_add_u32 s%d, s%d, s%d" % (st, sx, sQ + q))
            A("buffer_load_dwordx4 %s, v%d, %s, s%d offen" % (vr(XR + (i % XD) * 24 + q * 4, 4), VX, sr(sX, 4), st))
            vq.issue(("x", i))

    def wreads(i):
        for nt in range(4):
            for hh in range(2):
                A("ds_read_b64_tr_b16 %s, v%d offset:%d" % (vr(FR + (i & 1) * 16 + nt * 4 + hh * 2, 2), RD + nt, (i % NS) * 4096 + hh * 2048))

    for i in range(2):
        kidx(i)
        dma_w(i)
        xload(i)
    kidx(2)
    dma_w(2)
    stamp(A, 1)
    A("s_waitcnt vmcnt(%d)" % vq.wait_for({("w", 0)}))
    stamp(A, 2)
    wreads(0)
    for i in range(NK):
        need = {("x", i)}
        if i + 1 < NK:
            need.add(("w", i + 1))
        A("s_waitcnt vmcnt(%d) lgkmcnt(0)" % vq.wait_for(need))
        if i == NK // 2:
            stamp(A, 3)
        if i + 1 < NK:
            wreads(i + 1)
        if i + 3 < NK:
            kidx(i + 3)
            dma_w(i + 3)
        if i + 2 < NK:
            kidx(i + 2)
            xload(i + 2)
        for nt in range(4):
            for q in range(6):
                a = ACC + (nt * 6 + q) * 4
                c = "0" if i == 0 else vr(a, 4)
                A("v_mfma_f32_16x16x32_bf16 %s, %s, %s, %s" % (vr(a, 4), vr(FR + (i & 1) * 16 + nt * 4, 4), vr(XR + (i % XD) * 24 + q * 4, 4), c))
    stamp(A, 4)
    A("s_lshl_b32 s35, s%d, 13" % sW8)
    A("v_add_u32 v%d, s35, v%d" % (T0, VX))
    A("s_lshl_b32 s35, s%d, 10" % sW8)
    A("v_add_u32 v%d, s35, v%d" % (T1, VX))
    Y = 96
    for rnd in range(3):
        A("s_barrier")
        for f in range(8):
            A("ds_write_b128 v%d, %s offset:%d" % (T0, vr(ACC + (rnd * 8 + f) * 4, 4), f * 1024))
        A("s_waitcnt lgkmcnt(0)")
        A("s_barrier")
        for w2 in range(8):
            A("ds_read_b128 %s, v%d offset:%d" % (vr(Y + rnd * 32 + w2 * 4, 4), T1, w2 * 8192))
        A("s_waitcnt lgkmcnt(0)")
    A("v_and_b32 v%d, 15, v%d" % (T0, LANE))
    A("v_lshlrev_b32 v%d, 11, v%d" % (T0, T0))
    A("v_lshrrev_b32 v%d, 4, v%d" % (T1, LANE))
    A("v_lshl_add_u32 v%d, v%d, 3, v%d" % (T0, T1, T0))
    for rnd in range(3):
        y = Y + rnd * 32
        for step in (16, 8, 4):
            for i in range(step):
                A("v_add_f32 v%d, v%d, v%d" % (y + i, y + i, y + step + i))
        A("s_add_u32 s35, s%d, %d" % (sW8, 8 * rnd))
        A("s_mul_i32 s36, s35, 43")
        A("s_lshr_b32 s36, s36, 8")
        A("s_mul_i32 s37, s36, 6")
        A("s_sub_u32 s37, s35, s37")
        A("s_lshl_b32 s37, s37, 15")
        A("s_lshl_b32 s36, s36, 5")
        A("s_add_u32 s36, s36, s37")
        A("v_cvt_pk_bf16_f32 v%d, v%d, v%d" % (y + 8, y, y + 1))
        A("v_cvt_pk_bf16_f32 v%d, v%d, v%d" % (y + 9, y + 2, y + 3))
        A("buffer_store_dwordx2 %s, v%d, %s, s36 offen" % (vr(y + 8, 2), T0, sr(sO, 4)))
    if STAMP:
        A("s_waitcnt vmcnt(0)")
        stamp(A, 7)
        A("s_lshr_b32 s98, s%d, 1" % sW8)
        dump_stamps(A, 8, 1, 98, 212)
    A.label("L2_done")
    A("s_endpgm")


def kernel_oproj(A):
    K2 = "oproj_kernel"
    A.raw(".globl %s\n.p2align 8\n.type %s,@function\n%s:" % (K2, K2, K2))
    A("s_cmp_ge_u32 s2, 256")
    A("s_cbranch_scc1 L2_done")
    stamp(A, 0)
    load_kernargs(A)
    sBr, sKq, sB, sNb, sWv, sGr, sW8 = 30, 31, 32, 33, 34, 39, 40
    A("s_and_b32 s35, s2, 7")
    A("s_lshr_b32 s%d, s35, 2" % sBr)
    A("s_and_b32 s%d, s35, 3" % sKq)
    A("s_lshr_b32 s35, s2, 3")
    A("s_lshr_b32 s%d, s35, 2" % sB)
    A("s_and_b32 s%d, s35, 3" % sNb)
    LANE, T0, T1, T2, T3 = 254, 238, 239, 240, 241
    A("v_and_b32 v%d, 63, v0" % LANE)
    A("v_lshrrev_b32 v%d, 6, v0" % T0)
    A("v_readfirstlane_b32 s%d, v%d" % (sW8, T0))
    A("s_and_b32 s%d, s%d, 3" % (sWv, sW8))
    A("s_lshr_b32 s%d, s%d, 2" % (sGr, sW8))
    A("s_waitcnt lgkmcnt(0)")
    stamp(A, 6)
    A("s_cmp_eq_u32 s%d, 0" % sBr)
    A("s_cselect_b64 s[12:13], s[12:13], s[22:23]")
    sW, sX, sP = 44, 48, 52
    A("s_lshl_b32 s35, s%d, 1" % sKq)
    A("s_add_u32 s38, s35, s%d" % sGr)
    A("s_lshl_b32 s35, s38, 19")
    A("s_lshl_b32 s36, s%d, 8" % sNb)
    A("s_add_u32 s35, s35, s36")
    A("s_sub_u32 s37, %d, s36" % (512 * 1024))
    make_srd(A, sW, 12, 13, "s35", "s37")
    A("s_mul_i32 s35, s%d, %d" % (sBr, O_BRANCH_BYTES))
    A("s_lshl_b32 s36, s%d, 3" % sB)
    A("s_add_u32 s36, s36, s38")
    A("s_mul_i32 s36, s36, %d" % (4 * 36864))
    A("s_add_u32 s35, s35, s36")
    make_srd(A, sX, 28, 29, "s35", "%d" % (4 * 36864))
    sRot = 68
    A("s_lshl_b32 s%d, s%d, 1" % (sRot, sNb))
    A("s_add_u32 s%d, s%d, s%d" % (sRot, sRot, sB))
    A("s_lshl_b32 s%d, s%d, 1" % (sRot, sRot))
    PW_ = 5 * 1024 if PBF else 9 * 1024
    PT = 8 * PW_
    sTile = 41
    A("s_lshl_b32 s%d, s%d, 5" % (sTile, sBr))
    A("s_lshl_b32 s35, s%d, 2" % sB)
    A("s_add_u32 s%d, s%d, s35" % (sTile, sTile))
    A("s_add_u32 s%d, s%d, s%d" % (sTile, sTile, sNb))
    A("s_lshl_b32 s35, s%d, 2" % sTile)
    if not FR:
        A("s_add_u32 s35, s35, s%d" % sKq)
    A("s_mul_i32 s35, s35, %d" % PT)
    A("s_mul_i32 s36, s%d, %d" % (sW8, PW_))
    A("s_add_u32 s35, s35, s36")
    A("s_add_u32 s35, s35, %d" % P_BASE)
    make_srd(A, sP, 28, 29, "s35", "%d" % (3 * PT + PW_ if FR else PW_))
    sO = 56
    if FR:
        A("s_mul_i32 s35, s%d, %d" % (sB, 144 * 2048))
        A("s_lshl_b32 s36, s%d, 10" % sBr)
        A("s_lshl_b32 s37, s%d, 8" % sNb)
        A("s_add_u32 s36, s36, s37")
        A("s_add_u32 s35, s35, s36")
        A("s_sub_u32 s37, %d, s36" % (144 * 2048))
        make_srd(A, sO, 24, 25, "s35", "s37")
    A("s_lshl_b32 s69, s%d, 16" % sGr)
    R = dict(acc=0, xr=88, fr=172, wrd=72, wdma=80, vx=82, lane=LANE, t0=T0, t1=T1, t2=T2, t3=T3,
             sq0=60, swb=62, sm0=63, st=64, sk=65, sx=66, sw1k=67, slds=69)
    gemm_phase(A, 16, 1024, "perm", sW, sX, sWv, sRot, R, {})
    stamp(A, 4)
    A("s_barrier")
    A("v_lshlrev_b32 v%d, 4, v%d" % (T0, LANE))
    A("s_mul_i32 s35, s%d, 9216" % sW8)
    A("v_add_u32 v%d, s35, v%d" % (T1, T0))
    A("s_xor_b32 s36, s%d, 4" % sW8)
    A("s_mul_i32 s36, s36, 9216")
    A("v_add_u32 v%d, s36, v%d" % (T2, T0))
    X = 96
    A("s_cmp_eq_u32 s%d, 0" % sGr)
    A("s_cbranch_scc0 L2_grB")
    for grp in range(2):
        keep = range(0, 9) if grp == 0 else range(9, 18)
        give = range(9, 18) if grp == 0 else range(0, 9)
        for i, f in enumerate(give):
            A("ds_write_b128 v%d, %s offset:%d" % (T1, vr(f * 4, 4), i * 1024))
        A("s_waitcnt lgkmcnt(0)")
        A("s_barrier")
        for i in range(9):
            A("ds_read_b128 %s, v%d offset:%d" % (vr(X + i * 4, 4), T2, i * 1024))
        A("s_waitcnt lgkmcnt(0)")
        for i, f in enumerate(keep):
            for r in range(4):
                A("v_add_f32 v%d, v%d, v%d" % (X + i * 4 + r, X + i * 4 + r, f * 4 + r))
        if FR:
            A("v_and_b32 v%d, 15, v%d" % (T3, LANE))
            A("v_lshlrev_b32 v%d, 11, v%d" % (T3, T3))
            A("v_lshrrev_b32 v%d, 4, v%d" % (T1, LANE))
            A("v_lshl_add_u32 v%d, v%d, 3, v%d" % (T3, T1, T3))
            A("s_lshl_b32 s35, s%d, 6" % sWv)
            A("v_add_u32 v%d, s35, v%d" % (T3, T3))
            A("s_lshl_b32 s36, s%d, 16" % sWv)
            for i, f in enumerate(keep):
                t, dl = (f // 8, f % 8) if f < 16 else (2, f - 16)
                A("v_xor_b32 v%d, %d, v%d" % (140 + i, dl << 5, T3))
                if t < 2:
                    A("v_add_u32 v%d, s36, v%d" % (140 + i, 140 + i))
                    if t == 1:
                        A("v_add_u32 v%d, 0x8000, v%d" % (140 + i, 140 + i))
                else:
                    A("v_add_u32 v%d, 0x40000, v%d" % (140 + i, 140 + i))
        if grp == 0:
            A.flush()
            A("s_branch L2_join")
            A.label("L2_grB")
    A.label("L2_join")
    A("s_mov_b32 s35, 0")
    if FR:
        assert PBF
        A("s_lshr_b32 s38, s%d, 1" % sW8)
        A("s_cmp_eq_u32 s38, s%d" % sKq)
        A("s_cbranch_scc1 L2_nostore")
        A("s_mul_i32 s35, s%d, %d" % (sKq, PT))
        for i in range(9):
            A("v_cvt_pk_bf16_f32 v%d, v%d, v%d" % (2 * i, X + 4 * i, X + 4 * i + 1))
            A("v_cvt_pk_bf16_f32 v%d, v%d, v%d" % (2 * i + 1, X + 4 * i + 2, X + 4 * i + 3))
            if i == 8:
                A("s_add_u32 s35, s35, 4096")
            if i % 2 == 1 or i == 8:
                u = i // 2
                A("buffer_store_dwordx4 %s, v%d, %s, s35 offen offset:%d sc1" % (vr(4 * u, 4), T0, sr(sP, 4), (u % 4) * 1024))
        A.label("L2_nostore")
        A("s_waitcnt vmcnt(0)")
        A("s_barrier")
        A("s_cmp_eq_u32 s%d, 0" % sW8)
        A("s_cbranch_scc0 L2_waited")
        A("s_lshl_b32 s35, s%d, 2" % sTile)
        A("v_mov_b32 v%d, s35" % T1)
        A("v_mov_b32 v%d, 1" % T2)
        A("s_mov_b64 exec, 1")
        A("global_atomic_add v%d, v%d, s[26:27] sc1" % (T1, T2))
        A("s_mov_b64 exec, -1")
        A("s_mov_b32 s36, 400000")
        A.label("L2_poll")
        A("global_load_dword v%d, v%d, s[26:27] sc1" % (T2, T1))
        A("s_waitcnt vmcnt(0)")
        A("v_readfirstlane_b32 s35, v%d" % T2)
        A("s_cmp_ge_u32 s35, 4")
        A("s_cbranch_scc1 L2_waited")
        A("s_sleep 2")
        A("s_sub_u32 s36, s36, 1")
        A("s_cmp_lg_u32 s36, 0")
        A("s_cbranch_scc1 L2_poll")
        A.label("L2_waited")
        A("s_barrier")
        A("s_cmp_eq_u32 s38, s%d" % sKq)
        A("s_cbranch_scc0 L2_fin")
        for j in range(1, 4):
            A("s_add_u32 s35, s%d, %d" % (sKq, j))
            A("s_and_b32 s35, s35, 3")
            A("s_mul_i32 s35, s35, %d" % PT)
            for u in range(5):
                if u == 4:
                    A("s_add_u32 s35, s35, 4096")
                A("buffer_load_dwordx4 %s, v%d, %s, s35 offen offset:%d sc1" % (vr((j - 1) * 20 + u * 4, 4), T0, sr(sP, 4), (u % 4) * 1024))
        for j in range(1, 4):
            A("s_waitcnt vmcnt(%d)" % (5 * (3 - j)))
            for i in range(18):
                src = (j - 1) * 20 + i
                A("v_lshlrev_b32 v%d, 16, v%d" % (T1, src))
                A("v_and_b32 v%d, 0xffff0000, v%d" % (T2, src))
                A("v_add_f32 v%d, v%d, v%d" % (X + 2 * i, X + 2 * i, T1))
                A("v_add_f32 v%d, v%d, v%d" % (X + 2 * i + 1, X + 2 * i + 1, T2))
        for i in range(9):
            A("v_cvt_pk_bf16_f32 v%d, v%d, v%d" % (190 + 2 * i, X + 4 * i, X + 4 * i + 1))
            A("v_cvt_pk_bf16_f32 v%d, v%d, v%d" % (191 + 2 * i, X + 4 * i + 2, X + 4 * i + 3))
            A("buffer_store_dwordx2 %s, v%d, %s, 0 offen" % (vr(190 + 2 * i, 2), 140 + i, sr(sO, 4)))
        A.label("L2_fin")
    elif PBF:
        for i in range(9):
            A("v_cvt_pk_bf16_f32 v%d, v%d, v%d" % (2 * i, X + 4 * i, X + 4 * i + 1))
            A("v_cvt_pk_bf16_f32 v%d, v%d, v%d" % (2 * i + 1, X + 4 * i + 2, X + 4 * i + 3))
            if i == 8:
                A("s_mov_b32 s35, 4096")
            if i % 2 == 1 or i == 8:
                u = i // 2
                A("buffer_store_dwordx4 %s, v%d, %s, s35 offen offset:%d %s" % (vr(4 * u, 4), T0, sr(sP, 4), (u % 4) * 1024, PPOL))
    else:
        for i in range(9):
            if i % 4 == 0 and i:
                A("s_add_u32 s35, s35, 4096")
            A("buffer_store_dwordx4 %s, v%d, %s, s35 offen offset:%d" % (vr(X + i * 4, 4), T0, sr(sP, 4), (i % 4) * 1024))
    if STAMP:
        A("s_waitcnt vmcnt(0)")
        stamp(A, 7)
        A("s_lshr_b32 s98, s%d, 1" % sW8)
        dump_stamps(A, 8, 1, 98, 240)
    A.label("L2_done")
    A("s_endpgm")


def role_oproj(A):
    A.label("LF_oproj")
    stamp(A, 0)
    load_kernargs(A)
    sBr, sKq, sB, sNb, sWv = 30, 31, 32, 33, 34
    A("s_sub_u32 s39, s2, 512")
    A("s_and_b32 s35, s39, 7")
    A("s_lshr_b32 s%d, s35, 2" % sBr)
    A("s_and_b32 s%d, s35, 3" % sKq)
    A("s_lshr_b32 s35, s39, 3")
    A("s_lshr_b32 s%d, s35, 2" % sB)
    A("s_and_b32 s%d, s35, 3" % sNb)
    LANE, T0, T1, T2, T3 = 254, 238, 239, 240, 241
    A("v_and_b32 v%d, 63, v0" % LANE)
    A("v_lshrrev_b32 v%d, 6, v0" % T0)
    A("v_readfirstlane_b32 s%d, v%d" % (sWv, T0))
    A("s_waitcnt lgkmcnt(0)")
    A("s_cmp_eq_u32 s%d, 0" % sBr)
    A("s_cselect_b64 s[12:13], s[12:13], s[22:23]")
    sW, sX, sP = 44, 48, 52
    A("s_lshl_b32 s35, s%d, 20" % sKq)
    A("s_lshl_b32 s36, s%d, 8" % sNb)
    A("s_add_u32 s35, s35, s36")
    A("s_sub_u32 s37, %d, s36" % (1024 * 1024))
    make_srd(A, sW, 12, 13, "s35", "s37")
    A("s_mul_i32 s35, s%d, %d" % (sBr, O_BRANCH_BYTES))
    A("s_lshl_b32 s36, s%d, 2" % sB)
    A("s_add_u32 s36, s36, s%d" % sKq)
    A("s_mul_i32 s36, s36, %d" % (8 * 36864))
    A("s_add_u32 s35, s35, s36")
    make_srd(A, sX, 28, 29, "s35", "%d" % (8 * 36864))
    sRot = 68
    A("s_lshl_b32 s%d, s%d, 1" % (sRot, sNb))
    A("s_add_u32 s%d, s%d, s%d" % (sRot, sRot, sB))
    A("s_lshl_b32 s%d, s%d, 2" % (sRot, sRot))
    FB = 512 if PBF else 1024
    PW_ = 18 * FB
    PT = 4 * PW_
    sTile = 41
    A("s_lshl_b32 s%d, s%d, 5" % (sTile, sBr))
    A("s_lshl_b32 s35, s%d, 2" % sB)
    A("s_add_u32 s%d, s%d, s35" % (sTile, sTile))
    A("s_add_u32 s%d, s%d, s%d" % (sTile, sTile, sNb))
    A("s_lshl_b32 s35, s%d, 2" % sTile)
    A("s_add_u32 s35, s35, s%d" % sKq)
    A("s_mul_i32 s35, s35, %d" % PT)
    A("s_mul_i32 s36, s%d, %d" % (sWv, PW_))
    A("s_add_u32 s35, s35, s36")
    A("s_add_u32 s35, s35, %d" % P_BASE)
    make_srd(A, sP, 28, 29, "s35", "%d" % PW_)

    def wait_o(A):
        A("s_cmp_eq_u32 s%d, 0" % sWv)
        A("s_cbranch_scc0 LF_waited")
        A("s_lshl_b32 s35, s%d, 3" % sBr)
        A("s_add_u32 s35, s35, s%d" % sB)
        A("s_lshl_b32 s35, s35, 2")
        A("s_add_u32 s35, s35, s%d" % sKq)
        A("s_lshl_b32 s35, s35, 2")
        A("v_mov_b32 v%d, s35" % T0)
        A("s_mov_b32 s36, 200000")
        A.label("LF_poll")
        A("global_load_dword v%d, v%d, s[26:27] sc1" % (T1, T0))
        A("s_waitcnt vmcnt(0)")
        A("v_readfirstlane_b32 s35, v%d" % T1)
        A("s_cmp_ge_u32 s35, 8")
        A("s_cbranch_scc1 LF_waited")
        A("s_sleep 4")
        A("s_sub_u32 s36, s36, 1")
        A("s_cmp_lg_u32 s36, 0")
        A("s_cbranch_scc1 LF_poll")
        A.label("LF_waited")
        A("s_barrier")
        stamp(A, 6)

    R = dict(acc=0, xr=88, fr=172, wrd=72, wdma=80, vx=82, lane=LANE, t0=T0, t1=T1, t2=T2, t3=T3,
             sq0=60, swb=62, sm0=63, st=64, sk=65, sx=66, sw1k=67, prex=wait_o, xpol="sc1")
    gemm_phase(A, 32, 1024, "perm", sW, sX, sWv, sRot, R, {})
    stamp(A, 4)
    A("s_mov_b32 s35, 0")
    if PBF:
        A("v_lshlrev_b32 v%d, 3, v%d" % (T1, LANE))
        for i in range(18):
            A("v_cvt_pk_bf16_f32 v%d, v%d, v%d" % (96 + 2 * i, 4 * i, 4 * i + 1))
            A("v_cvt_pk_bf16_f32 v%d, v%d, v%d" % (97 + 2 * i, 4 * i + 2, 4 * i + 3))
            if i % 8 == 0 and i:
                A("s_add_u32 s35, s35, 4096")
            A("buffer_store_dwordx2 %s, v%d, %s, s35 offen offset:%d" % (vr(96 + 2 * i, 2), T1, sr(sP, 4), (i % 8) * 512))
    else:
        A("v_lshlrev_b32 v%d, 4, v%d" % (T1, LANE))
        for i in range(18):
            if i % 4 == 0 and i:
                A("s_add_u32 s35, s35, 4096")
            A("buffer_store_dwordx4 %s, v%d, %s, s35 offen offset:%d" % (vr(i * 4, 4), T1, sr(sP, 4), (i % 4) * 1024))
    if STAMP:
        A("s_waitcnt vmcnt(0)")
        stamp(A, 7)
        A("s_mov_b32 s99, s2")
        A("s_sub_u32 s2, s2, 512")
        dump_stamps(A, 8, 1, sWv, 240)
    A("s_endpgm")


def kernel_reduce_pbf(A):
    K3 = "reduce_kernel"
    PT = 40 * 1024
    A.raw(".globl %s\n.p2align 8\n.type %s,@function\n%s:" % (K3, K3, K3))
    A("s_cmp_ge_u32 s2, 640")
    A("s_cbranch_scc1 L3_done")
    A("s_load_dwordx2 s[24:25], s[0:1], 80")
    A("s_load_dwordx2 s[28:29], s[0:1], 96")
    A("v_lshrrev_b32 v1, 6, v0")
    A("v_and_b32 v2, 63, v0")
    A("v_readfirstlane_b32 s30, v1")
    A("s_lshl_b32 s31, s2, 2")
    A("s_add_u32 s30, s30, s31")
    A("s_mul_hi_u32 s31, s30, %d" % ((1 << 32) // 40 + 1))
    A("s_mul_i32 s32, s31, 40")
    A("s_sub_u32 s32, s30, s32")
    A("s_mul_hi_u32 s33, s32, %d" % ((1 << 32) // 5 + 1))
    A("s_mul_i32 s34, s33, 5")
    A("s_sub_u32 s34, s32, s34")
    A("s_mul_i32 s35, s31, %d" % (4 * PT))
    A("s_lshl_b32 s36, s32, 10")
    A("s_add_u32 s35, s35, s36")
    A("s_add_u32 s35, s35, %d" % P_BASE)
    A("s_waitcnt lgkmcnt(0)")
    make_srd(A, 40, 28, 29, "s35", "%d" % (3 * PT + 1024))
    A("v_lshlrev_b32 v3, 4, v2")
    for kq in range(4):
        A("s_mov_b32 s%d, %d" % (48 + kq, kq * PT))
        A("buffer_load_dwordx4 %s, v3, s[40:43], s%d offen" % (vr(40 + kq * 4, 4), 48 + kq))
    A("s_lshr_b32 s52, s31, 5")
    A("s_lshr_b32 s53, s31, 2")
    A("s_and_b32 s53, s53, 7")
    A("s_and_b32 s54, s31, 3")
    A("s_mul_i32 s53, s53, %d" % (144 * 2048))
    A("s_lshl_b32 s52, s52, 10")
    A("s_lshl_b32 s54, s54, 8")
    A("s_add_u32 s53, s53, s52")
    A("s_add_u32 s53, s53, s54")
    A("s_and_b32 s37, s33, 3")
    A("s_lshl_b32 s37, s37, 1")
    A("s_lshr_b32 s55, s33, 2")
    A("s_mul_i32 s55, s55, 9")
    A("s_lshl_b32 s56, s34, 1")
    A("s_add_u32 s55, s55, s56")
    for k in range(2):
        A("s_add_u32 s36, s55, %d" % k)
        A("s_lshr_b32 s38, s36, 3")
        A("s_add_u32 s39, s37, s38")
        A("s_cmp_ge_u32 s36, 16")
        A("s_cselect_b32 s39, 8, s39")
        A("s_and_b32 s36, s36, 7")
        A("s_xor_b32 s36, s36, s37")
        A("s_lshl_b32 s39, s39, 15")
        A("s_lshl_b32 s36, s36, 5")
        A("s_add_u32 s%d, s53, s39" % (57 + k))
        A("s_add_u32 s%d, s%d, s36" % (57 + k, 57 + k))
    A("s_cmp_eq_u32 s34, 4")
    A("s_cselect_b32 s58, 0x7ff00000, s58")
    A("s_mov_b32 s59, 0")
    make_srd(A, 44, 24, 25, "s59", "%d" % (8 * 144 * 1024 * 2))
    A("v_and_b32 v1, 15, v2")
    A("v_lshlrev_b32 v1, 11, v1")
    A("v_lshrrev_b32 v2, 4, v2")
    A("v_lshl_add_u32 v1, v2, 3, v1")
    A("s_waitcnt vmcnt(0)")
    for kq in range(4):
        for h in range(4):
            A("v_lshlrev_b32 v%d, 16, v%d" % (4 + kq * 8 + 2 * h, 40 + kq * 4 + h))
            A("v_and_b32 v%d, 0xffff0000, v%d" % (5 + kq * 8 + 2 * h, 40 + kq * 4 + h))
    for i in range(8):
        A("v_add_f32 v%d, v%d, v%d" % (4 + i, 4 + i, 12 + i))
        A("v_add_f32 v%d, v%d, v%d" % (20 + i, 20 + i, 28 + i))
    for i in range(8):
        A("v_add_f32 v%d, v%d, v%d" % (4 + i, 4 + i, 20 + i))
    for i in range(4):
        A("v_cvt_pk_bf16_f32 v%d, v%d, v%d" % (36 + i, 4 + 2 * i, 5 + 2 * i))
    A("buffer_store_dwordx2 v[36:37], v1, s[44:47], s57 offen")
    A("buffer_store_dwordx2 v[38:39], v1, s[44:47], s58 offen")
    A.label("L3_done")
    A("s_endpgm")


def kernel_reduce(A):
    K3 = "reduce_kernel"
    FB = 512 if PBF else 1024
    PT = 72 * FB
    A.raw(".globl %s\n.p2align 8\n.type %s,@function\n%s:" % (K3, K3, K3))
    A("s_cmp_ge_u32 s2, 1152")
    A("s_cbranch_scc1 L3_done")
    A("s_load_dwordx2 s[24:25], s[0:1], 80")
    A("s_load_dwordx2 s[28:29], s[0:1], 96")
    A("v_lshrrev_b32 v1, 6, v0")
    A("v_and_b32 v2, 63, v0")
    A("v_readfirstlane_b32 s30, v1")
    A("s_lshl_b32 s31, s2, 2")
    A("s_add_u32 s30, s30, s31")
    A("s_mul_hi_u32 s31, s30, %d" % ((1 << 32) // 72 + 1))
    A("s_mul_i32 s32, s31, 72")
    A("s_sub_u32 s32, s30, s32")
    NFW = 18 if FUSED else 9
    A("s_mul_hi_u32 s33, s32, %d" % ((1 << 32) // NFW + 1))
    A("s_mul_i32 s34, s33, %d" % NFW)
    A("s_sub_u32 s34, s32, s34")
    A("s_mul_i32 s35, s31, %d" % (4 * PT))
    A("s_mul_i32 s36, s32, %d" % FB)
    A("s_add_u32 s35, s35, s36")
    A("s_add_u32 s35, s35, %d" % P_BASE)
    A("s_waitcnt lgkmcnt(0)")
    make_srd(A, 40, 28, 29, "s35", "%d" % (3 * PT + FB))
    A("v_lshlrev_b32 v3, %d, v2" % (3 if PBF else 4))
    for kq in range(4):
        A("s_mov_b32 s%d, %d" % (48 + kq, kq * PT))
        if PBF:
            A("buffer_load_dwordx2 %s, v3, s[40:43], s%d offen" % (vr(24 + kq * 2, 2), 48 + kq))
        else:
            A("buffer_load_dwordx4 %s, v3, s[40:43], s%d offen" % (vr(4 + kq * 4, 4), 48 + kq))
    A("s_lshr_b32 s36, s33, 2")
    A("s_mul_i32 s36, s36, 9")
    A("s_add_u32 s36, s36, s34")
    A("s_and_b32 s37, s33, 3")
    A("s_lshl_b32 s37, s37, 1")
    A("s_lshr_b32 s38, s36, 3")
    A("s_add_u32 s39, s37, s38")
    A("s_cmp_ge_u32 s36, 16")
    A("s_cselect_b32 s39, 8, s39")
    A("s_and_b32 s36, s36, 7")
    A("s_xor_b32 s36, s36, s37")
    A("s_lshr_b32 s52, s31, 5")
    A("s_lshr_b32 s53, s31, 2")
    A("s_and_b32 s53, s53, 7")
    A("s_and_b32 s54, s31, 3")
    A("s_mul_i32 s53, s53, 144")
    A("s_lshl_b32 s39, s39, 4")
    A("s_add_u32 s53, s53, s39")
    A("s_lshl_b32 s53, s53, 11")
    A("s_lshl_b32 s52, s52, 10")
    A("s_lshl_b32 s54, s54, 8")
    A("s_lshl_b32 s36, s36, 5")
    A("s_add_u32 s53, s53, s52")
    A("s_add_u32 s53, s53, s54")
    A("s_add_u32 s53, s53, s36")
    A("s_mov_b32 s55, 0")
    make_srd(A, 44, 24, 25, "s55", "%d" % (8 * 144 * 1024 * 2))
    A("v_and_b32 v1, 15, v2")
    A("v_lshlrev_b32 v1, 11, v1")
    A("v_lshrrev_b32 v2, 4, v2")
    A("v_lshl_add_u32 v1, v2, 3, v1")
    A("s_waitcnt vmcnt(0)")
    if PBF:
        for kq in range(4):
            for h in range(2):
                A("v_lshlrev_b32 v%d, 16, v%d" % (4 + kq * 4 + 2 * h, 24 + kq * 2 + h))
                A("v_and_b32 v%d, 0xffff0000, v%d" % (5 + kq * 4 + 2 * h, 24 + kq * 2 + h))
    for i in range(4):
        A("v_add_f32 v%d, v%d, v%d" % (4 + i, 4 + i, 8 + i))
        A("v_add_f32 v%d, v%d, v%d" % (12 + i, 12 + i, 16 + i))
    for i in range(4):
        A("v_add_f32 v%d, v%d, v%d" % (4 + i, 4 + i, 12 + i))
    A("v_cvt_pk_bf16_f32 v20, v4, v5")
    A("v_cvt_pk_bf16_f32 v21, v6, v7")
    A("buffer_store_dwordx2 v[20:21], v1, s[44:47], s53 offen")
    A.label("L3_done")
    A("s_endpgm")


def kd(name, vgpr, sgpr=102):
    return """.amdhsa_kernel %s
  .amdhsa_next_free_vgpr %d
  .amdhsa_next_free_sgpr %d
  .amdhsa_accum_offset %d
  .amdhsa_group_segment_fixed_size 0
  .amdhsa_kernarg_size 104
  .amdhsa_user_sgpr_count 2
  .amdhsa_user_sgpr_kernarg_segment_ptr 1
  .amdhsa_system_sgpr_workgroup_id_x 1
.end_amdhsa_kernel
""" % (name, vgpr, sgpr, (vgpr + 3) // 4 * 4)


def main():
    A = Asm()
    hdr = open(os.path.join(os.path.dirname(os.path.abspath(__file__)), "..", "cdna_kernels", NAME + ".s.ref")).read().split("\n")
    head = [l for l in hdr if l.startswith(";") and "@launch" not in l and "Override launch" not in l and "grid=ceil" not in l]
    out = "\n".join(head) + "\n"
    if FUSED:
        out += "; @launch kernel=attn_kernel grid=(768,1,1) block=(256,1,1) lds=81920\n"
    else:
        out += "; @launch kernel=attn_kernel grid=(512,1,1) block=(256,1,1) lds=81920\n"
        out += "; @launch kernel=oproj_kernel grid=(256,1,1) block=(512,1,1) lds=131072\n"
    if not FR:
        out += "; @launch kernel=reduce_kernel grid=(%d,1,1) block=(256,1,1) lds=0\n" % (640 if (PBF and not FUSED) else 1152)
    if "twice" in EXP:
        out += "; @launch kernel=oproj_kernel grid=(256,1,1) block=(512,1,1) lds=131072\n"
    out += '.amdgcn_target "amdgcn-amd-amdhsa--gfx950"\n.text\n'
    kernel_attn(A)
    if FUSED:
        role_oproj(A)
    else:
        kernel_oproj(A)
    if FR:
        pass
    elif PBF and not FUSED:
        kernel_reduce_pbf(A)
    else:
        kernel_reduce(A)
    out += A.text()
    out += '.section .rodata,"a"\n.p2align 6\n'
    out += kd("attn_kernel", 256, 100 if STAMP else 76)
    if not FUSED:
        out += ".p2align 6\n" + kd("oproj_kernel", 256, 100 if STAMP else 74)
    if not FR:
        out += ".p2align 6\n" + kd("reduce_kernel", 56, 64)
    dst = sys.argv[1] if len(sys.argv) > 1 else os.path.join(os.path.dirname(os.path.abspath(__file__)), "..", "cdna_kernels", NAME + ".s")
    open(dst, "w").write(out)
    print("wrote", dst, A.ninst, "instructions")


if __name__ == "__main__":
    main()
```

```python
import sys, os, struct
sys.path.insert(0, os.path.dirname(os.path.abspath(__file__)))
from asmlib import Asm, VmQ

NAME = "concat_heads__mha_block_cached__mha_block_cached__near_ridge"
O_BRANCH_BYTES = 1152 * 4096 * 2
P_BASE = 2 * O_BRANCH_BYTES
SCALE_C = 1.4426950408889634 / (128.0 ** 0.5)
EXP = os.environ.get("EXP", "")
KVPOL = os.environ.get("KVPOL", "nt ")
WPOL = os.environ.get("WPOL", "")
FUSED = os.environ.get("FUSED", "0") == "1"
FR = os.environ.get("FR", "0") == "1"
OPOL = os.environ.get("OPOL", "sc1")
PBF = os.environ.get("PBF", "1") == "1"
PPOL = os.environ.get("PPOL", "sc1")
PLPOL = os.environ.get("PLPOL", "sc1")
XPOL = os.environ.get("XPOL", "")


def f32bits(x):
    return struct.unpack("<I", struct.pack("<f", x))[0]


def vr(base, n):
    return "v[%d:%d]" % (base, base + n - 1)


def sr(base, n):
    return "s[%d:%d]" % (base, base + n - 1)


def load_kernargs(A):
    A("s_load_dwordx16 s[4:19], s[0:1], 0")
    A("s_load_dwordx8 s[20:27], s[0:1], 64")
    A("s_load_dwordx2 s[28:29], s[0:1], 96")


def make_srd(A, d, lo, hi, off_s, nrec):
    A("s_add_u32 s%d, s%d, %s" % (d, lo, off_s))
    A("s_addc_u32 s%d, s%d, 0" % (d + 1, hi))
    A("s_and_b32 s%d, s%d, 0xffff" % (d + 1, d + 1))
    A("s_mov_b32 s%d, %s" % (d + 2, nrec))
    A("s_mov_b32 s%d, 0x00020000" % (d + 3))


STAMP = "stamp" in EXP


def stamp(A, i, _seen=set()):
    if "fine" in EXP:
        if i in _seen and i >= 4:
            return
        _seen.add(i)
    if STAMP:
        if "real" in EXP:
            A("s_memrealtime s[%d:%d]" % (80 + 2 * i, 81 + 2 * i))
        else:
            A("s_memtime s[%d:%d]" % (80 + 2 * i, 81 + 2 * i))


def dump_stamps(A, n, kidx, sWv, vt):
    if not STAMP:
        return
    A("s_waitcnt lgkmcnt(0)")
    A("s_lshl_b32 s96, s2, 8")
    A("s_lshl_b32 s97, s%d, 6" % sWv)
    A("s_add_u32 s96, s96, s97")
    A("s_add_u32 s96, s96, %d" % (200 * 1024 * 1024 + kidx * 1024 * 1024))
    A("s_add_u32 s76, s28, s96")
    A("s_addc_u32 s77, s29, 0")
    A("s_and_b32 s77, s77, 0xffff")
    A("s_mov_b32 s78, 64")
    A("s_mov_b32 s79, 0x00020000")
    A("v_mov_b32 v%d, 0" % vt)
    for i in range(n):
        A("v_mov_b32 v%d, s%d" % (vt + 1, 80 + 2 * i))
        A("buffer_store_dword v%d, v%d, s[76:79], 0 offen offset:%d" % (vt + 1, vt, 4 * i))
    A("s_waitcnt vmcnt(0)")


def gemm_phase(A, nk, wstride, mode, sW, sX, sWave, sRot, R, hooks):
    vq = VmQ()
    lane, t0, t1, t2, t3 = R["lane"], R["t0"], R["t1"], R["t2"], R["t3"]
    wdma, vx, wrd = R["wdma"], R["vx"], R["wrd"]
    sq0, swb, sm0, st, sk, sx, sw1k = R["sq0"], R["swb"], R["sm0"], R["st"], R["sk"], R["sx"], R["sw1k"]
    nat = mode == "nat"
    NW = 5 if nat else 8
    XD = 4 if nat else 7
    XB = 40960
    wslot = (lambda c: (c + 4) % 5) if nat else (lambda c: c % 8)
    xslot = lambda c: (c + 1) & 1
    A("v_lshrrev_b32 v%d, 4, v%d" % (t0, lane))
    A("v_and_b32 v%d, 15, v%d" % (t1, lane))
    if nat:
        A("s_and_b32 s%d, s%d, 1" % (st, sWave))
        A("s_lshl_b32 s%d, s%d, 2" % (st, st))
        A("v_or_b32 v%d, s%d, v%d" % (t2, st, t0))
    else:
        A("v_mov_b32 v%d, v%d" % (t2, t0))
    A("v_lshrrev_b32 v%d, 1, v%d" % (t3, t1))
    A("v_xor_b32 v%d, v%d, v%d" % (t2, t2, t3))
    A("v_lshlrev_b32 v%d, 5, v%d" % (t2, t2))
    A("v_and_b32 v%d, 1, v%d" % (t3, lane))
    A("v_lshl_add_u32 v%d, v%d, 4, v%d" % (t2, t3, t2))
    A("v_mul_u32_u24 v%d, %d, v%d" % (t3, wstride, t0))
    A("v_add_u32 v%d, v%d, v%d" % (wdma, t2, t3))
    if nat:
        A("v_mov_b32 v%d, v%d" % (wdma + 1, wdma))
        A("s_lshl_b32 s%d, s%d, 2" % (st, sWave))
        A("v_add_u32 v%d, s%d, v%d" % (t2, st, t0))
        A("v_xor_b32 v%d, v%d, v%d" % (t2, t2, lane))
        A("v_and_b32 v%d, 7, v%d" % (t2, t2))
        A("v_lshlrev_b32 v%d, 4, v%d" % (t2, t2))
        A("v_lshrrev_b32 v%d, 3, v%d" % (t3, lane))
        A("s_lshl_b32 s%d, s%d, 3" % (st, sWave))
        A("v_add_u32 v%d, s%d, v%d" % (t3, st, t3))
        A("v_lshl_add_u32 v%d, v%d, 10, v%d" % (vx, t3, t2))
        A("v_lshrrev_b32 v%d, 1, v%d" % (t2, t1))
        A("v_xor_b32 v%d, v%d, v%d" % (t2, t2, t0))
        A("v_lshlrev_b32 v%d, 4, v%d" % (t2, t2))
        A("v_lshl_add_u32 v%d, v%d, 7, v%d" % (t2, t1, t2))
        A("v_add_u32 v%d, %d, v%d" % (vx + 1, XB, t2))
        A("v_xor_b32 v%d, 64, v%d" % (vx + 2, vx + 1))
        A("s_lshl_b32 s%d, s%d, 12" % (st, sWave))
        A("v_add_u32 v%d, s%d, v%d" % (vx + 3, st, vx + 1))
        A("v_add_u32 v%d, s%d, v%d" % (vx + 4, st, vx + 2))
        A("v_bfe_u32 v%d, v%d, 2, 2" % (t1, lane))
        A("v_and_b32 v%d, 1, v%d" % (t2, t0))
        A("v_lshl_add_u32 v%d, v%d, 2, v%d" % (t2, t2, t1))
        A("v_lshl_add_u32 v%d, v%d, 3, v%d" % (t3, t0, t1))
        hoff = 1024
    else:
        A("v_xor_b32 v%d, 0x80, v%d" % (wdma + 1, wdma))
        A("v_lshlrev_b32 v%d, 4, v%d" % (vx, lane))
        A("v_lshrrev_b32 v%d, 2, v%d" % (t3, lane))
        A("v_and_b32 v%d, 7, v%d" % (t2, t3))
        hoff = 4096
    A("s_lshl_b32 s%d, s%d, 1" % (st, sWave))
    A("v_xor_b32 v%d, s%d, v%d" % (t2, st, t2))
    A("v_lshlrev_b32 v%d, 5, v%d" % (t2, t2))
    A("v_lshl_add_u32 v%d, v%d, 8, v%d" % (t2, t3, t2))
    A("v_and_b32 v%d, 3, v%d" % (t3, lane))
    A("v_lshl_add_u32 v%d, v%d, 3, v%d" % (wrd, t3, t2))
    if "slds" in R:
        A("v_add_u32 v%d, s%d, v%d" % (wrd, R["slds"], wrd))
    for dl in range(1, 8):
        A("v_xor_b32 v%d, %d, v%d" % (wrd + dl, dl << 5, wrd))
    A("s_lshl_b32 s%d, s%d, 13" % (sq0, sWave))
    A("s_mul_i32 s%d, s%d, %d" % (swb, sWave, 8 * wstride))
    A("s_lshl_b32 s%d, s%d, 11" % (sm0, sWave))
    if "slds" in R:
        A("s_add_u32 s%d, s%d, s%d" % (sm0, sm0, R["slds"]))
    A("s_lshl_b32 s%d, s%d, 10" % (sw1k, sWave))

    def kidx(ks):
        A("s_add_u32 s%d, s%d, %d" % (sk, sRot, ks))
        A("s_and_b32 s%d, s%d, %d" % (sk, sk, nk - 1))

    def dma_w(ks):
        kidx(ks)
        A("s_mul_i32 s%d, s%d, %d" % (st, sk, 32 * wstride))
        A("s_add_u32 s%d, s%d, s%d" % (st, st, swb))
        for mm in range(2):
            A("s_add_u32 m0, s%d, %d" % (sm0, wslot(ks) * 8192 + mm * 1024))
            if mm:
                A("s_add_u32 s%d, s%d, %d" % (st, st, 4 * wstride))
            A("buffer_load_dwordx4 v%d, %s, s%d offen %slds" % (wdma + mm, sr(sW, 4), st, WPOL))
            vq.issue(("w", ks))

    def dma_x(c):
        kidx(2 * c)
        A("s_lshl_b32 s%d, s%d, 6" % (sx, sk))
        for i in range(5):
            A("s_add_u32 m0, s%d, %d" % (sw1k, XB + xslot(c) * 20480 + i * 4096))
            if i:
                A("s_add_u32 s%d, s%d, 32768" % (sx, sx))
            A("buffer_load_dwordx4 v%d, %s, s%d offen %slds" % (vx, sr(sX, 4), sx, XPOL))
            vq.issue(("x", c))

    def xreads(c):
        out = []
        for p in range(2):
            base = R["xr"] + ((2 * c + p) % XD) * 12
            so = xslot(c) * 20480
            out.append("ds_read_b128 %s, v%d offset:%d" % (vr(base, 4), vx + 3 + p, so))
            out.append("ds_read_b128 %s, v%d offset:%d" % (vr(base + 4, 4), vx + 3 + p, so + 2048))
            out.append("ds_read_b128 %s, v%d offset:%d" % (vr(base + 8, 4), vx + 1 + p, so + 16384))
        return out

    def xload(ks):
        base = R["xr"] + (ks % XD) * 12
        kidx(ks)
        A("s_lshr_b32 s%d, s%d, 2" % (sx, sk))
        A("s_mul_i32 s%d, s%d, 36864" % (sx, sx))
        A("s_and_b32 s%d, s%d, 3" % (st, sk))
        A("s_lshl_b32 s%d, s%d, 10" % (st, st))
        A("s_add_u32 s%d, s%d, s%d" % (sx, sx, st))
        A("s_add_u32 s%d, s%d, s%d" % (st, sx, sq0))
        A("buffer_load_dwordx4 %s, v%d, %s, s%d offen" % (vr(base, 4), vx, sr(sX, 4), st) + " " + R.get("xpol", XPOL))
        A("s_add_u32 s%d, s%d, %d" % (st, st, 4096))
        A("buffer_load_dwordx4 %s, v%d, %s, s%d offen" % (vr(base + 4, 4), vx, sr(sX, 4), st) + " " + R.get("xpol", XPOL))
        A("s_add_u32 s%d, s%d, %d" % (st, sx, 8 * 4096))
        A("buffer_load_dwordx4 %s, v%d, %s, s%d offen" % (vr(base + 8, 4), vx, sr(sX, 4), st) + " " + R.get("xpol", XPOL))
        for _ in range(3):
            vq.issue(("x", ks))

    acc, fr = R["acc"], R["fr"]

    def wreads(ks, dl):
        return ["ds_read_b64_tr_b16 %s, v%d offset:%d" % (vr(fr + (ks & 1) * 32 + dl * 4 + h * 2, 2), wrd + dl, wslot(ks) * 8192 + h * hoff)
                for h in range(2)]

    nw = [0]
    nx = [0]

    def fill(i, maxw, maxx):
        k = 0
        while nw[0] < min(nk, i + 1 + NW - (0 if i >= 0 else 0)) and nw[0] <= i + NW and k < maxw:
            if nw[0] >= NW and nw[0] - NW > i:
                break
            dma_w(nw[0])
            nw[0] += 1
            k += 1
        k = 0
        if nat:
            while nx[0] < nk // 2 and (nx[0] < 2 or 2 * (nx[0] - 2) <= i) and k < maxx:
                dma_x(nx[0])
                nx[0] += 1
                k += 1
        else:
            while nx[0] < nk and nx[0] <= i + XD - 1 and k < maxx:
                xload(nx[0])
                nx[0] += 1
                k += 1

    PW, PX = int(os.environ.get("PW", "2")), int(os.environ.get("PX", "1" if nat else "2"))
    if nat:
        dma_w(0)
        dma_x(0)
        dma_w(1)
        nw[0], nx[0] = 2, 1
    elif "prex" in R:
        for i in range(NW):
            dma_w(i)
        R["prex"](A)
        xload(0)
        xload(1)
        nw[0], nx[0] = NW, 2
    else:
        dma_w(0)
        xload(0)
        dma_w(1)
        xload(1)
        nw[0], nx[0] = 2, 2
    if -1 in hooks:
        hooks[-1](A, vq)
    stamp(A, 1)
    A("s_waitcnt vmcnt(%d)" % vq.wait_for({("w", 0)} | ({("x", 0)} if nat else set())))
    A("s_barrier")
    stamp(A, 2)
    fill(-1, PW, PX)
    for dl in range(8):
        for r in wreads(0, dl):
            A(r)
    if nat:
        for r in xreads(0):
            A(r)
    for i in range(nk):
        need = set()
        if i + 1 < nk:
            need.add(("w", i + 1))
        if nat:
            if i % 2 == 1 and i + 1 < nk:
                need.add(("x", (i + 1) // 2))
        else:
            need.add(("x", i))
        n = vq.wait_for(need)
        A("s_waitcnt vmcnt(%d) lgkmcnt(0)" % n)
        A("s_barrier")
        if i == nk // 2:
            stamp(A, 3)
        if "fine" in EXP and nat and i in (1, 2, 4, 6):
            stamp(A, {1: 4, 2: 5, 4: 6, 6: 7}[i])
        fill(i, PW, PX)
        if i in hooks:
            hooks[i](A, vq)
        xr = xreads((i + 1) // 2) if (nat and i % 2 == 1 and i + 1 < nk) else []
        xb = R["xr"] + (i % XD) * 12
        for dl in range(8):
            if i + 1 < nk:
                for r in wreads(i + 1, dl):
                    A(r)
            if dl < len(xr):
                A(xr[dl])
            for t in range(3):
                if t == 2 and dl >= 2:
                    continue
                a = acc + (t * 8 + dl) * 4 if t < 2 else acc + 64 + dl * 4
                c = "0" if i == 0 else vr(a, 4)
                A("v_mfma_f32_16x16x32_bf16 %s, %s, %s, %s" % (vr(a, 4), vr(fr + (i & 1) * 32 + dl * 4, 4), vr(xb + t * 4, 4), c))
    return vq


def cross_lane(A, op, v, tmp):
    A("v_mov_b32 v%d, v%d" % (tmp, v))
    A("v_permlane32_swap_b32 v%d, v%d" % (v, tmp))
    A("%s v%d, v%d, v%d" % (op, v, v, tmp))
    A("v_mov_b32 v%d, v%d" % (tmp, v))
    A("v_permlane16_swap_b32 v%d, v%d" % (v, tmp))
    A("%s v%d, v%d, v%d" % (op, v, v, tmp))


THR = float(os.environ.get("THR", "8.0"))


def kernel_attn(A):
    K1 = "attn_kernel"
    A.raw(".globl %s\n.p2align 8\n.type %s,@function\n%s:" % (K1, K1, K1))
    if FUSED:
        A("s_cmp_ge_u32 s2, 768")
        A("s_cbranch_scc1 L1_exit")
        A("s_cmp_ge_u32 s2, 512")
        A("s_cbranch_scc0 L1_go")
        A("s_branch LF_oproj")
        A.label("L1_exit")
        A("s_endpgm")
        A.label("L1_go")
    else:
        A("s_cmp_ge_u32 s2, 512")
        A("s_cbranch_scc1 L1_done")
    stamp(A, 0)
    load_kernargs(A)
    PRIO = os.environ.get("PRIO", "a")

    def prio(tag, val):
        if tag in PRIO:
            A("s_cmp_ge_u32 s2, 256")
            A("s_cbranch_scc0 L1_pr%s" % tag)
            A("s_setprio %d" % val)
            A.label("L1_pr%s" % tag)
    prio("a", 1)
    sBr, sH, sB, sWv = 30, 31, 32, 33
    A("s_and_b32 s34, s2, 7")
    A("s_lshr_b32 s35, s2, 3")
    A("s_lshr_b32 s%d, s34, 2" % sBr)
    A("s_and_b32 s34, s34, 3")
    A("s_lshl_b32 s34, s34, 3")
    A("s_and_b32 s%d, s35, 7" % sH)
    A("s_add_u32 s%d, s%d, s34" % (sH, sH))
    A("s_lshr_b32 s%d, s35, 3" % sB)
    O, QF, S, LACC, ONES, F = 0, 96, 144, 180, 192, 196
    M = 232
    KA, VA = 235, 239
    VKD, VVD = 247, 248
    T0, T1, T2, T3, T4, T5 = 249, 250, 251, 252, 253, 254
    LANE = 255
    A("v_and_b32 v%d, 63, v0" % LANE)
    A("v_lshrrev_b32 v%d, 6, v0" % T0)
    A("v_readfirstlane_b32 s%d, v%d" % (sWv, T0))
    A("s_waitcnt lgkmcnt(0)")
    A("s_cmp_eq_u32 s%d, 0" % sBr)
    A("s_cselect_b64 s[4:5], s[4:5], s[14:15]")
    A("s_cselect_b64 s[6:7], s[6:7], s[16:17]")
    A("s_cselect_b64 s[8:9], s[8:9], s[18:19]")
    A("s_cselect_b64 s[10:11], s[10:11], s[20:21]")
    sK, sV, sW, sX, sO = 36, 40, 44, 48, 52
    A("s_lshl_b32 s34, s%d, 5" % sB)
    A("s_add_u32 s34, s34, s%d" % sH)
    A("s_lshl_b32 s34, s34, 17")
    make_srd(A, sK, 6, 7, "s34", "131072")
    make_srd(A, sV, 8, 9, "s34", "131072")
    A("s_lshl_b32 s34, s%d, 8" % sH)
    A("s_sub_u32 s35, %d, s34" % (512 * 8192))
    make_srd(A, sW, 10, 11, "s34", "s35")
    A("s_mul_i32 s35, s%d, 147456" % sB)
    make_srd(A, sX, 4, 5, "s35", "147456")
    A("s_mul_i32 s35, s%d, %d" % (sBr, O_BRANCH_BYTES))
    A("s_lshl_b32 s56, s%d, 5" % sB)
    A("s_add_u32 s56, s56, s%d" % sH)
    A("s_mul_i32 s56, s56, 36864")
    A("s_add_u32 s35, s35, s56")
    make_srd(A, sO, 28, 29, "s35", "36864")
    sRot, sRotK = 68, 69
    A("s_lshr_b32 s%d, s2, 3" % sRot)
    A("s_add_u32 s%d, s%d, s%d" % (sRot, sRot, sB))
    A("s_lshl_b32 s%d, s%d, 1" % (sRot, sRot))
    A("s_and_b32 s%d, s%d, 15" % (sRot, sRot))
    A("s_lshr_b32 s%d, s%d, 1" % (sRotK, sRot))
    sC, sW1k, sT, sT2, sW4k, sThr = 56, 57, 58, 59, 70, 71
    A("s_mov_b32 s%d, 0x%08x" % (sC, f32bits(SCALE_C)))
    A("s_mov_b32 s%d, 0x%08x" % (sThr, f32bits(THR)))
    A("s_lshl_b32 s%d, s%d, 10" % (sW1k, sWv))
    A("s_lshl_b32 s%d, s%d, 12" % (sW4k, sWv))

    g, lo = T0, T1
    VLIN = 92
    A("v_lshrrev_b32 v%d, 4, v%d" % (g, LANE))
    A("v_and_b32 v%d, 15, v%d" % (lo, LANE))
    A("s_lshl_b32 s%d, s%d, 2" % (sT, sWv))
    A("v_add_u32 v%d, s%d, v%d" % (T2, sT, g))
    A("v_xor_b32 v%d, v%d, v%d" % (T3, lo, T2))
    A("v_lshlrev_b32 v%d, 4, v%d" % (T3, T3))
    A("v_lshl_add_u32 v%d, v%d, 8, v%d" % (VKD, T2, T3))
    A("v_and_b32 v%d, 7, v%d" % (T3, T2))
    A("v_lshlrev_b32 v%d, 1, v%d" % (T3, T3))
    A("v_xor_b32 v%d, v%d, v%d" % (T3, lo, T3))
    A("v_lshlrev_b32 v%d, 4, v%d" % (T3, T3))
    A("v_lshl_add_u32 v%d, v%d, 8, v%d" % (VVD, T2, T3))
    A("v_lshlrev_b32 v%d, 4, v%d" % (T3, lo))
    A("v_lshl_add_u32 v%d, v%d, 8, v%d" % (VLIN, T2, T3))

    KS = lambda j: ((j + 2) % 3) * 16384
    VS = lambda j: 49152 + (j % 2) * 16384

    def blk_off(j, i):
        if i == 0:
            A("s_add_u32 s%d, s%d, %d" % (sT2, sRotK, j))
            A("s_and_b32 s%d, s%d, 7" % (sT2, sT2))
            A("s_lshl_b32 s%d, s%d, 14" % (sT2, sT2))
        else:
            A("s_add_u32 s%d, s%d, 4096" % (sT2, sT2))

    def kv_dma(vq, isv, j):
        if "nokv" in EXP and j >= 2:
            return
        srd, vd, base = (sV, VVD, VS(j)) if isv else (sK, VKD, KS(j))
        for i in range(4):
            A("s_add_u32 m0, s%d, %d" % (sW1k, base + i * 4096))
            blk_off(j, i)
            A("buffer_load_dwordx4 v%d, %s, s%d offen %slds" % (vd, sr(srd, 4), sT2, KVPOL))
            vq.issue(("v" if isv else "k", j))

    PRE = 208

    def pre_load(n, half):
        def fn(A, vq):
            for i in range(2 * half, 2 * half + 2):
                A("s_lshl_b32 s%d, s%d, 14" % (sT2, sRotK))
                if i:
                    A("s_add_u32 s%d, s%d, %d" % (sT2, sT2, 4096 * i))
                A("buffer_load_dwordx4 %s, v%d, %s, s%d offen %s" % (vr(PRE + n * 16 + i * 4, 4), VLIN, sr(sK if n == 0 else sV, 4), sT2, KVPOL))
                vq.issue(("pre", 0))
        return fn

    R = dict(acc=0, xr=96, fr=144, wrd=72, wdma=80, vx=82, lane=LANE, t0=T0, t1=T1, t2=T2, t3=T3,
             sq0=60, swb=62, sm0=63, st=64, sk=65, sx=66, sw1k=67)

    def h12(A, vq):
        kv_dma(vq, 0, 1)
        kv_dma(vq, 1, 1)
    def seq(*fs):
        def fn(A, vq):
            for f in fs:
                f(A, vq)
        return fn
    PREV = os.environ.get("PREV", "0")
    if PREV == "0":
        hooks = {1: pre_load(0, 0), 3: pre_load(0, 1), 5: pre_load(1, 0), 7: pre_load(1, 1)}
    elif PREV == "1":
        hooks = {0: seq(pre_load(0, 0), pre_load(0, 1)), 1: seq(pre_load(1, 0), pre_load(1, 1))}
    elif PREV == "3":
        hooks = {7: pre_load(0, 0), 8: pre_load(0, 1), 9: pre_load(1, 0), 10: pre_load(1, 1)}
    elif PREV == "4":
        hooks = {5: pre_load(0, 0), 6: pre_load(0, 1), 7: pre_load(1, 0), 8: pre_load(1, 1)}
    elif PREV == "2":
        hooks = {-1: seq(pre_load(0, 0), pre_load(0, 1), pre_load(1, 0), pre_load(1, 1))}
    hooks.update({12: h12, 14: lambda A, vq: kv_dma(vq, 0, 2)})
    vq = gemm_phase(A, 16, 8192, "nat", sW, sX, sWv, sRot, R, hooks)
    if ("pre", 0) in vq.q:
        A("s_waitcnt vmcnt(%d)" % vq.wait_for({("pre", 0)}))
    if "p1only" in EXP:
        A("s_waitcnt vmcnt(0)")
        A("s_branch L1_done")

    stamp(A, 4)
    SCR = 32768
    TA = 240
    A("v_lshrrev_b32 v%d, 4, v%d" % (g, LANE))
    A("v_and_b32 v%d, 15, v%d" % (lo, LANE))
    A("s_lshl_b32 s%d, s%d, 2" % (sT, sWv))
    A("v_lshrrev_b32 v%d, 1, v%d" % (T2, g))
    A("v_or_b32 v%d, s%d, v%d" % (T2, sT, T2))
    A("v_xor_b32 v%d, v%d, v%d" % (T2, T2, lo))
    A("v_lshlrev_b32 v%d, 4, v%d" % (T2, T2))
    A("v_lshl_add_u32 v%d, v%d, 8, v%d" % (T2, lo, T2))
    A("v_and_b32 v%d, 1, v%d" % (T3, g))
    A("v_lshl_add_u32 v%d, v%d, 3, v%d" % (T2, T3, T2))
    A("v_add_u32 v%d, s%d, v%d" % (T3, sW4k, T2))
    A("v_xor_b32 v%d, v%d, v%d" % (T4, g, lo))
    A("v_lshlrev_b32 v%d, 4, v%d" % (T4, T4))
    A("v_lshl_add_u32 v%d, v%d, 8, v%d" % (T4, lo, T4))
    A("v_add_u32 v%d, s%d, v%d" % (T5, sW4k, T4))
    PK = 144
    for dl in range(8):
        A("v_xor_b32 v%d, %d, v%d" % (TA + (dl & 3), dl << 5, T3))
        for t in range(2):
            a = (t * 8 + dl) * 4
            pk = PK + t * 16 + dl * 2
            A("v_cvt_pk_bf16_f32 v%d, v%d, v%d" % (pk, a, a + 1))
            A("v_cvt_pk_bf16_f32 v%d, v%d, v%d" % (pk + 1, a + 2, a + 3))
            A("ds_write_b64 v%d, %s offset:%d" % (TA + (dl & 3), vr(pk, 2), SCR + t * 16384))
    for ds in range(4):
        A("v_xor_b32 v%d, %d, v%d" % (TA + ds, ds << 6, T5))
        for t in range(2):
            A("ds_read_b128 %s, v%d offset:%d" % (vr(QF + t * 16 + ds * 4, 4), TA + ds, SCR + t * 16384))
    for dl in range(2):
        a = 64 + dl * 4
        A("v_cvt_pk_bf16_f32 v%d, v%d, v%d" % (176 + dl * 2, a, a + 1))
        A("v_cvt_pk_bf16_f32 v%d, v%d, v%d" % (176 + dl * 2 + 1, a + 2, a + 3))
        A("v_xor_b32 v%d, %d, v%d" % (T0 + dl, dl << 5, T3))
        A("ds_write_b64 v%d, %s offset:%d" % (T0 + dl, vr(176 + dl * 2, 2), SCR))
    A("s_waitcnt lgkmcnt(0)")
    A("s_barrier")
    for ds in range(4):
        A("v_xor_b32 v%d, %d, v%d" % (TA + ds, ds << 6, T4))
        A("ds_read_b128 %s, v%d offset:%d" % (vr(QF + 32 + ds * 4, 4), TA + ds, SCR + ds * 4096))
    for i in range(4):
        A("v_mov_b32 v%d, 0x3f803f80" % (ONES + i))
    A("s_waitcnt lgkmcnt(0)")
    A("s_barrier")
    for n in range(2):
        for i in range(4):
            A("ds_write_b128 v%d, %s offset:%d" % (VKD if n == 0 else VVD, vr(PRE + n * 16 + i * 4, 4), (KS(0) if n == 0 else VS(0)) + i * 4096))
    A("s_waitcnt lgkmcnt(0)")
    for ds in range(4):
        A("v_xor_b32 v%d, %d, v%d" % (KA + ds, ds << 6, T4))
    A("v_lshrrev_b32 v%d, 2, v%d" % (T2, LANE))
    A("v_and_b32 v%d, 7, v%d" % (T3, T2))
    A("v_lshlrev_b32 v%d, 5, v%d" % (T3, T3))
    A("v_lshl_add_u32 v%d, v%d, 8, v%d" % (T3, T2, T3))
    A("v_and_b32 v%d, 3, v%d" % (T2, LANE))
    A("v_lshl_add_u32 v%d, v%d, 3, v%d" % (T3, T2, T3))
    A("v_add_u32 v%d, 49152, v%d" % (T3, T3))
    for dt in range(8):
        A("v_xor_b32 v%d, %d, v%d" % (VA + dt, dt << 5, T3))
    for t in range(3):
        A("v_mov_b32 v%d, 0xf149f2ca" % (M + t))
    stamp(A, 5)
    prio("b", 0)
    prio("c", 1)

    NKF = 2
    for j in range(8):
        if j == int(os.environ.get("PJ", "5")):
            prio("d", 0)
            prio("e", 1)
        ONEB = os.environ.get("ONEB", "0") == "1"
        n = vq.wait_for({("k", j), ("v", j)} if ONEB else {("k", j)})
        A("s_waitcnt vmcnt(%d)" % n)
        A("s_barrier")
        if 1 <= j < 7:
            kv_dma(vq, 1, j + 1)
        if ONEB and 1 <= j and j + 2 < 8:
            kv_dma(vq, 0, j + 2)
        kb = KS(j)

        def kreads(l):
            buf = F + (l & 1) * 16
            for ds in range(4):
                if l < 4:
                    A("ds_read_b128 %s, v%d offset:%d" % (vr(buf + ds * 4, 4), KA + ds, kb + l * 4096))
                else:
                    A("v_add_u32 v%d, s%d, v%d" % (buf + ds * 4, sW4k, KA + ds))
                    A("ds_read_b128 %s, v%d offset:%d" % (vr(buf + ds * 4, 4), buf + ds * 4, kb))

        MX, TM = T3, T0

        def maxops(l):
            out = []
            for t in range(2):
                s0 = S + t * 16 + l * 4
                if l == 0:
                    out.append("v_max3_f32 v%d, v%d, v%d, v%d" % (MX + t, s0, s0 + 1, s0 + 2))
                    out.append("v_max_f32 v%d, v%d, v%d" % (MX + t, MX + t, s0 + 3))
                else:
                    out.append("v_max3_f32 v%d, v%d, v%d, v%d" % (MX + t, MX + t, s0, s0 + 1))
                    out.append("v_max3_f32 v%d, v%d, v%d, v%d" % (MX + t, MX + t, s0 + 2, s0 + 3))
            return [out[0], out[2], out[1], out[3]]

        DYN = os.environ.get("DYN", "20")
        kreads(0)
        kreads(1)
        if DYN:
            A("s_setprio %s" % DYN[0])
        for l in range(5):
            A("s_waitcnt lgkmcnt(%d)" % (4 if l < 4 else 0))
            mo = maxops(l - 2) if l >= 2 else []
            for ds in range(4):
                fa = vr(F + (l & 1) * 16 + ds * 4, 4)
                for t in ((0, 1) if l < 4 else (2,)):
                    d = S + t * 16 + l * 4 if t < 2 else S + 32
                    c = "0" if ds == 0 else vr(d, 4)
                    A("v_mfma_f32_16x16x32_bf16 %s, %s, %s, %s" % (vr(d, 4), fa, vr(QF + t * 16 + ds * 4, 4), c))
                if mo:
                    A(mo[ds])
            if l + 2 < 5:
                kreads(l + 2)
        if DYN:
            A("s_setprio %s" % DYN[1])
        for o in maxops(3):
            A(o)
        for t in range(2):
            A("v_mov_b32 v%d, v%d" % (TM + t, MX + t))
        A("v_max3_f32 v%d, v%d, v%d, v%d" % (MX + 2, S + 32, S + 33, S + 34))
        A("v_max_f32 v%d, v%d, v%d" % (MX + 2, MX + 2, S + 35))
        A("v_mov_b32 v%d, v%d" % (TM + 2, MX + 2))
        for t in range(3):
            A("v_permlane32_swap_b32 v%d, v%d" % (MX + t, TM + t))
        for t in range(3):
            A("v_max_f32 v%d, v%d, v%d" % (MX + t, MX + t, TM + t))
        for t in range(3):
            A("v_mov_b32 v%d, v%d" % (TM + t, MX + t))
        for t in range(3):
            A("v_permlane16_swap_b32 v%d, v%d" % (MX + t, TM + t))
        for t in range(3):
            A("v_max_f32 v%d, v%d, v%d" % (MX + t, MX + t, TM + t))
        for t in range(3):
            A("v_fma_f32 v%d, v%d, s%d, -v%d" % (TM + t, MX + t, sC, M + t))
        A("v_max3_f32 v%d, v%d, v%d, v%d" % (TM, TM, TM + 1, TM + 2))
        A("v_cmp_lt_f32 s[72:73], s%d, v%d" % (sThr, TM))
        if not ONEB:
            n = vq.wait_for({("v", j)})
            A("s_waitcnt vmcnt(%d)" % n)
            A("s_barrier")
        vb = VS(j) - 49152
        NF = 9

        def vreads(f):
            buf = F + (f % NF) * 4
            if f < 16:
                u, dt = f // 8, f % 8
                for hh in range(2):
                    A("ds_read_b64_tr_b16 %s, v%d offset:%d" % (vr(buf + hh * 2, 2), VA + dt, vb + (2 * u + hh) * 4096))
            else:
                for hh in range(2):
                    dt = (f - 16) * 2 + hh
                    A("v_add_u32 v%d, s%d, v%d" % (buf + hh * 2, sW4k, VA + dt))
                    A("ds_read_b64_tr_b16 %s, v%d offset:%d" % (vr(buf + hh * 2, 2), buf + hh * 2, vb))

        PD = 6
        for f in range(PD):
            vreads(f)
        if j + 3 < 8 and not ONEB:
            kv_dma(vq, 0, j + 3)
        A("s_cmp_lg_u64 s[72:73], 0")
        A("s_cbranch_scc0 L1_nr%d" % j)
        for t in range(3):
            A("v_mul_f32 v%d, s%d, v%d" % (MX + t, sC, MX + t))
            A("v_max_f32 v%d, v%d, v%d" % (MX + t, MX + t, M + t))
            A("v_sub_f32 v%d, v%d, v%d" % (TM, M + t, MX + t))
            A("v_exp_f32 v%d, v%d" % (TM, TM))
            A("v_mov_b32 v%d, v%d" % (M + t, MX + t))
            if j > 0:
                for i in range(32):
                    A("v_mul_f32 v%d, v%d, v%d" % (O + t * 32 + i, O + t * 32 + i, TM))
                for i in range(4):
                    A("v_mul_f32 v%d, v%d, v%d" % (LACC + t * 4 + i, LACC + t * 4 + i, TM))
        A.label("L1_nr%d" % j)

        def pexp(t, lo_, hi_):
            s0 = S + t * 16
            out = []
            for i in range(lo_, hi_):
                out.append("v_fma_f32 v%d, v%d, s%d, -v%d" % (s0 + i, s0 + i, sC, M + t))
            for i in range(lo_, hi_):
                out.append("v_exp_f32 v%d, v%d" % (s0 + i, s0 + i))
            for i in range(lo_, hi_, 2):
                out.append("v_cvt_pk_bf16_f32 v%d, v%d, v%d" % (s0 + (i // 8) * 8 + (i % 8) // 2, s0 + i, s0 + i + 1))
            return out

        for t in range(2):
            for o in pexp(t, 0, 8):
                A(o)
        pend = pexp(0, 8, 16) + pexp(1, 8, 16) + pexp(2, 0, 4)

        def rowsum(u):
            for t in range(2):
                d = vr(LACC + t * 4, 4)
                A("v_mfma_f32_16x16x32_bf16 %s, %s, %s, %s" % (d, vr(ONES, 4), vr(S + t * 16 + u * 8, 4), "0" if (j == 0 and u == 0) else d))

        if DYN:
            A("s_setprio %s" % DYN[0])
        rowsum(0)
        for f in range(20):
            if f == 8:
                rowsum(1)
                d = vr(LACC + 8, 4)
                A("v_mfma_f32_16x16x16_bf16 %s, %s, %s, %s" % (d, vr(ONES, 2), vr(S + 32, 2), "0" if j == 0 else d))
            rem = min(20, f + PD) - (f + 1)
            A("s_waitcnt lgkmcnt(%d)" % (2 * rem))
            fa = F + (f % NF) * 4
            if f < 16:
                u, dt = f // 8, f % 8
                for t in range(2):
                    d = vr(O + t * 32 + dt * 4, 4)
                    A("v_mfma_f32_16x16x32_bf16 %s, %s, %s, %s" % (d, vr(fa, 4), vr(S + t * 16 + u * 8, 4), "0" if (j == 0 and u == 0) else d))
                    k = 4 if f < 7 else len(pend)
                    if t == 1 and f < 7:
                        k = 3
                    for o in pend[:k]:
                        A(o)
                    pend = pend[k:]
            else:
                for hh in range(2):
                    dt = (f - 16) * 2 + hh
                    d = vr(O + 64 + dt * 4, 4)
                    A("v_mfma_f32_16x16x16_bf16 %s, %s, %s, %s" % (d, vr(fa + hh * 2, 2), vr(S + 32, 2), "0" if j == 0 else d))
            if f + PD < 20:
                vreads(f + PD)

    stamp(A, 6)
    A("s_barrier")
    A("v_lshlrev_b32 v%d, 4, v%d" % (T2, LANE))
    A("s_lshl_b32 s%d, s%d, 13" % (sT, sWv))
    A("v_add_u32 v%d, s%d, v%d" % (T3, sT, T2))
    for dt in range(8):
        A("ds_write_b128 v%d, %s offset:%d" % (T3, vr(O + 64 + dt * 4, 4), dt * 1024))
    A("v_and_b32 v%d, 15, v%d" % (T4, LANE))
    A("v_lshlrev_b32 v%d, 3, v%d" % (T4, T4))
    A("s_lshl_b32 s%d, s%d, 7" % (sT, sWv))
    A("v_add_u32 v%d, s%d, v%d" % (T5, sT, T4))
    A("v_mov_b32 v%d, v%d" % (KA + 1, M + 2))
    A("v_mov_b32 v%d, v%d" % (KA + 2, LACC + 8))
    A("ds_write_b64 v%d, %s offset:32768" % (T5, vr(KA + 1, 2)))
    VO = T2
    A("s_lshl_b32 s%d, s%d, 13" % (sT, sWv))
    for t in range(2):
        A("v_rcp_f32 v%d, v%d" % (T1, LACC + t * 4))
        for i in range(32):
            A("v_mul_f32 v%d, v%d, v%d" % (O + t * 32 + i, O + t * 32 + i, T1))
        for ds in range(4):
            a = O + t * 32 + ds * 8
            pk = QF + t * 16 + ds * 4
            for i in range(4):
                A("v_cvt_pk_bf16_f32 v%d, v%d, v%d" % (pk + i, a + 2 * i, a + 2 * i + 1))
            A("buffer_store_dwordx4 %s, v%d, %s, s%d offen offset:%d%s" % (vr(pk, 4), VO, sr(sO, 4), sT, 1024 * ds, " sc1" if FUSED else " " + OPOL))
        if t == 0:
            A("s_add_u32 s%d, s%d, 4096" % (sT, sT))
    A("s_waitcnt lgkmcnt(0)")
    A("s_barrier")
    ML = S
    OP = F
    for w2 in range(4):
        A("ds_read_b64 %s, v%d offset:%d" % (vr(ML + 2 * w2, 2), T4, 32768 + w2 * 128))
    A("s_lshl_b32 s%d, s%d, 11" % (sT, sWv))
    A("v_add_u32 v%d, s%d, v%d" % (T3, sT, T2))
    for w2 in range(4):
        for dd in range(2):
            A("ds_read_b128 %s, v%d offset:%d" % (vr(OP + (w2 * 2 + dd) * 4, 4), T3, w2 * 8192 + dd * 1024))
    A("s_waitcnt lgkmcnt(0)")
    A("v_max3_f32 v%d, v%d, v%d, v%d" % (T1, ML, ML + 2, ML + 4))
    A("v_max_f32 v%d, v%d, v%d" % (T1, T1, ML + 6))
    for w2 in range(4):
        A("v_sub_f32 v%d, v%d, v%d" % (ML + 2 * w2, ML + 2 * w2, T1))
        A("v_exp_f32 v%d, v%d" % (ML + 2 * w2, ML + 2 * w2))
    A("v_mul_f32 v%d, v%d, v%d" % (T5, ML, ML + 1))
    for w2 in range(1, 4):
        A("v_fma_f32 v%d, v%d, v%d, v%d" % (T5, ML + 2 * w2, ML + 2 * w2 + 1, T5))
    A("v_rcp_f32 v%d, v%d" % (T5, T5))
    for w2 in range(4):
        A("v_mul_f32 v%d, v%d, v%d" % (ML + 2 * w2, ML + 2 * w2, T5))
    for dd in range(2):
        for r in range(4):
            d = O + dd * 4 + r
            A("v_mul_f32 v%d, v%d, v%d" % (d, OP + dd * 4 + r, ML))
            for w2 in range(1, 4):
                A("v_fma_f32 v%d, v%d, v%d, v%d" % (d, OP + (w2 * 2 + dd) * 4 + r, ML + 2 * w2, d))
    A("s_lshl_b32 s%d, s%d, 10" % (sT, sWv))
    A("s_add_u32 s%d, s%d, %d" % (sT, sT, 8 * 4096))
    for i in range(4):
        A("v_cvt_pk_bf16_f32 v%d, v%d, v%d" % (QF + 32 + i, O + 2 * i, O + 2 * i + 1))
    A("buffer_store_dwordx4 %s, v%d, %s, s%d offen%s" % (vr(QF + 32, 4), VO, sr(sO, 4), sT, " sc1" if FUSED else " " + OPOL))
    if FUSED:
        A("s_waitcnt vmcnt(0)")
        A("s_barrier")
        A("s_cmp_eq_u32 s%d, 0" % sWv)
        A("s_cbranch_scc0 L1_nopub")
        A("s_lshl_b32 s%d, s%d, 3" % (sT, sBr))
        A("s_add_u32 s%d, s%d, s%d" % (sT, sT, sB))
        A("s_lshl_b32 s%d, s%d, 2" % (sT, sT))
        A("s_lshr_b32 s%d, s%d, 3" % (sT2, sH))
        A("s_add_u32 s%d, s%d, s%d" % (sT, sT, sT2))
        A("s_lshl_b32 s%d, s%d, 2" % (sT, sT))
        A("s_mov_b64 exec, 1")
        A("v_mov_b32 v%d, s%d" % (T0, sT))
        A("v_mov_b32 v%d, 1" % T1)
        A("global_atomic_add v%d, v%d, s[26:27] sc1" % (T0, T1))
        A("s_waitcnt vmcnt(0)")
        A("s_mov_b64 exec, -1")
        A.label("L1_nopub")
    if STAMP:
        A("s_waitcnt vmcnt(0)")
    stamp(A, 7)
    dump_stamps(A, 8, 0, sWv, 240)
    A.label("L1_done")
    A("s_endpgm")


def kernel_oproj3(A):
    K2 = "oproj_kernel"
    A.raw(".globl %s\n.p2align 8\n.type %s,@function\n%s:" % (K2, K2, K2))
    A("s_cmp_ge_u32 s2, 192")
    A("s_cbranch_scc1 L2_done")
    stamp(A, 0)
    load_kernargs(A)
    sBr, sMt, sNt, sW8 = 30, 31, 32, 33
    A("s_and_b32 s35, s2, 7")
    A("s_lshr_b32 s%d, s35, 2" % sBr)
    A("s_and_b32 s35, s35, 3")
    A("s_mul_i32 s35, s35, 3")
    A("s_lshr_b32 s36, s2, 3")
    A("s_and_b32 s%d, s36, 7" % sNt)
    A("s_lshr_b32 s36, s36, 3")
    A("s_add_u32 s%d, s35, s36" % sMt)
    ACC, XR, FR = 0, 96, 168
    WD, VX, RD = 200, 201, 202
    LANE, T0, T1, T2, T3 = 206, 207, 208, 209, 210
    A("v_and_b32 v%d, 63, v0" % LANE)
    A("v_lshrrev_b32 v%d, 6, v0" % T0)
    A("v_readfirstlane_b32 s%d, v%d" % (sW8, T0))
    A("s_waitcnt lgkmcnt(0)")
    stamp(A, 6)
    A("s_cmp_eq_u32 s%d, 0" % sBr)
    A("s_cselect_b64 s[12:13], s[12:13], s[22:23]")
    sW, sX, sO = 44, 48, 52
    A("s_lshl_b32 s36, s%d, 7" % sNt)
    A("s_sub_u32 s37, %d, s36" % (4096 * 1024))
    make_srd(A, sW, 12, 13, "s36", "s37")
    A("s_mul_i32 s35, s%d, %d" % (sBr, O_BRANCH_BYTES))
    make_srd(A, sX, 28, 29, "s35", "%d" % O_BRANCH_BYTES)
    A("s_mul_i32 s35, s%d, %d" % (sMt, 96 * 2048))
    A("s_lshl_b32 s37, s%d, 10" % sBr)
    A("s_add_u32 s36, s36, s37")
    A("s_add_u32 s35, s35, s36")
    A("s_sub_u32 s37, %d, s36" % (96 * 2048))
    make_srd(A, sO, 24, 25, "s35", "s37")
    sQ = 56
    A("s_mul_i32 s35, s%d, 6" % sMt)
    for i in range(6):
        A("s_add_u32 s36, s35, %d" % i)
        A("s_mul_i32 s37, s36, 57")
        A("s_lshr_b32 s37, s37, 9")
        A("s_mul_i32 s38, s37, 9")
        A("s_sub_u32 s38, s36, s38")
        A("s_mul_i32 s37, s37, %d" % (32 * 36864))
        A("s_lshl_b32 s38, s38, 12")
        A("s_add_u32 s%d, s37, s38" % (sQ + i))
    sRot, sk, st, sx, sL = 62, 63, 64, 65, 66
    A("s_lshl_b32 s%d, s%d, 1" % (sRot, sNt))
    A("s_mul_i32 s35, s%d, 5" % sMt)
    A("s_add_u32 s%d, s%d, s35" % (sRot, sRot))
    if os.environ.get("ROTM"):
        A("s_mul_i32 s35, s%d, 3" % sMt)
        A("s_add_u32 s%d, s%d, s35" % (sRot, sNt))
        A("s_and_b32 s%d, s%d, %s" % (sRot, sRot, os.environ.get("ROTM")))
    A("s_lshl_b32 s%d, s%d, 14" % (sL, sW8))
    A("v_bfe_u32 v%d, v%d, 1, 2" % (T0, LANE))
    A("v_lshrrev_b32 v%d, 4, v%d" % (T1, LANE))
    A("v_xor_b32 v%d, v%d, v%d" % (T0, T0, T1))
    A("v_lshlrev_b32 v%d, 5, v%d" % (T0, T0))
    A("v_and_b32 v%d, 1, v%d" % (T1, LANE))
    A("v_lshl_add_u32 v%d, v%d, 4, v%d" % (T0, T1, T0))
    A("v_lshrrev_b32 v%d, 3, v%d" % (T1, LANE))
    A("v_lshl_add_u32 v%d, v%d, 10, v%d" % (WD, T1, T0))
    A("v_lshlrev_b32 v%d, 4, v%d" % (VX, LANE))
    A("v_lshrrev_b32 v%d, 2, v%d" % (T0, LANE))
    A("v_bfe_u32 v%d, v%d, 3, 2" % (T1, LANE))
    A("v_lshlrev_b32 v%d, 5, v%d" % (T1, T1))
    A("v_lshl_add_u32 v%d, v%d, 7, v%d" % (T1, T0, T1))
    A("v_and_b32 v%d, 3, v%d" % (T0, LANE))
    A("v_lshl_add_u32 v%d, v%d, 3, v%d" % (T1, T0, T1))
    A("v_add_u32 v%d, s%d, v%d" % (RD, sL, T1))
    for nt in range(1, 4):
        A("v_xor_b32 v%d, %d, v%d" % (RD + nt, nt << 5, RD))
    vq = VmQ()
    NS, XD, NK = 4, 3, 16

    def kidx(i):
        A("s_add_u32 s%d, s%d, %d" % (sk, sRot, i))
        A("s_and_b32 s%d, s%d, 15" % (sk, sk))
        A("s_lshl_b32 s%d, s%d, 3" % (sk, sk))
        A("s_add_u32 s%d, s%d, s%d" % (sk, sk, sW8))

    def dma_w(i):
        A("s_lshl_b32 s%d, s%d, 15" % (st, sk))
        for m in range(4):
            A("s_add_u32 m0, s%d, %d" % (sL, (i % NS) * 4096 + m * 1024))
            if m:
                A("s_add_u32 s%d, s%d, 8192" % (st, st))
            A("buffer_load_dwordx4 v%d, %s, s%d offen lds" % (WD, sr(sW, 4), st))
            vq.issue(("w", i))

    def xload(i):
        A("s_lshr_b32 s%d, s%d, 2" % (sx, sk))
        A("s_mul_i32 s%d, s%d, 36864" % (sx, sx))
        A("s_and_b32 s%d, s%d, 3" % (st, sk))
        A("s_lshl_b32 s%d, s%d, 10" % (st, st))
        A("s_add_u32 s%d, s%d, s%d" % (sx, sx, st))
        for q in range(6):
            A("s_add_u32 s%d, s%d, s%d" % (st, sx, sQ + q))
            A("buffer_load_dwordx4 %s, v%d, %s, s%d offen" % (vr(XR + (i % XD) * 24 + q * 4, 4), VX, sr(sX, 4), st))
            vq.issue(("x", i))

    def wreads(i):
        for nt in range(4):
            for hh in range(2):
                A("ds_read_b64_tr_b16 %s, v%d offset:%d" % (vr(FR + (i & 1) * 16 + nt * 4 + hh * 2, 2), RD + nt, (i % NS) * 4096 + hh * 2048))

    for i in range(2):
        kidx(i)
        dma_w(i)
        xload(i)
    kidx(2)
    dma_w(2)
    stamp(A, 1)
    A("s_waitcnt vmcnt(%d)" % vq.wait_for({("w", 0)}))
    stamp(A, 2)
    wreads(0)
    for i in range(NK):
        need = {("x", i)}
        if i + 1 < NK:
            need.add(("w", i + 1))
        A("s_waitcnt vmcnt(%d) lgkmcnt(0)" % vq.wait_for(need))
        if i == NK // 2:
            stamp(A, 3)
        if i + 1 < NK:
            wreads(i + 1)
        if i + 3 < NK:
            kidx(i + 3)
            dma_w(i + 3)
        if i + 2 < NK:
            kidx(i + 2)
            xload(i + 2)
        for nt in range(4):
            for q in range(6):
                a = ACC + (nt * 6 + q) * 4
                c = "0" if i == 0 else vr(a, 4)
                A("v_mfma_f32_16x16x32_bf16 %s, %s, %s, %s" % (vr(a, 4), vr(FR + (i & 1) * 16 + nt * 4, 4), vr(XR + (i % XD) * 24 + q * 4, 4), c))
    stamp(A, 4)
    A("s_lshl_b32 s35, s%d, 13" % sW8)
    A("v_add_u32 v%d, s35, v%d" % (T0, VX))
    A("s_lshl_b32 s35, s%d, 10" % sW8)
    A("v_add_u32 v%d, s35, v%d" % (T1, VX))
    Y = 96
    for rnd in range(3):
        A("s_barrier")
        for f in range(8):
            A("ds_write_b128 v%d, %s offset:%d" % (T0, vr(ACC + (rnd * 8 + f) * 4, 4), f * 1024))
        A("s_waitcnt lgkmcnt(0)")
        A("s_barrier")
        for w2 in range(8):
            A("ds_read_b128 %s, v%d offset:%d" % (vr(Y + rnd * 32 + w2 * 4, 4), T1, w2 * 8192))
        A("s_waitcnt lgkmcnt(0)")
    A("v_and_b32 v%d, 15, v%d" % (T0, LANE))
    A("v_lshlrev_b32 v%d, 11, v%d" % (T0, T0))
    A("v_lshrrev_b32 v%d, 4, v%d" % (T1, LANE))
    A("v_lshl_add_u32 v%d, v%d, 3, v%d" % (T0, T1, T0))
    for rnd in range(3):
        y = Y + rnd * 32
        for step in (16, 8, 4):
            for i in range(step):
                A("v_add_f32 v%d, v%d, v%d" % (y + i, y + i, y + step + i))
        A("s_add_u32 s35, s%d, %d" % (sW8, 8 * rnd))
        A("s_mul_i32 s36, s35, 43")
        A("s_lshr_b32 s36, s36, 8")
        A("s_mul_i32 s37, s36, 6")
        A("s_sub_u32 s37, s35, s37")
        A("s_lshl_b32 s37, s37, 15")
        A("s_lshl_b32 s36, s36, 5")
        A("s_add_u32 s36, s36, s37")
        A("v_cvt_pk_bf16_f32 v%d, v%d, v%d" % (y + 8, y, y + 1))
        A("v_cvt_pk_bf16_f32 v%d, v%d, v%d" % (y + 9, y + 2, y + 3))
        A("buffer_store_dwordx2 %s, v%d, %s, s36 offen" % (vr(y + 8, 2), T0, sr(sO, 4)))
    if STAMP:
        A("s_waitcnt vmcnt(0)")
        stamp(A, 7)
        A("s_lshr_b32 s98, s%d, 1" % sW8)
        dump_stamps(A, 8, 1, 98, 212)
    A.label("L2_done")
    A("s_endpgm")


def kernel_oproj(A):
    K2 = "oproj_kernel"
    A.raw(".globl %s\n.p2align 8\n.type %s,@function\n%s:" % (K2, K2, K2))
    A("s_cmp_ge_u32 s2, 256")
    A("s_cbranch_scc1 L2_done")
    stamp(A, 0)
    load_kernargs(A)
    sBr, sKq, sB, sNb, sWv, sGr, sW8 = 30, 31, 32, 33, 34, 39, 40
    A("s_and_b32 s35, s2, 7")
    A("s_lshr_b32 s%d, s35, 2" % sBr)
    A("s_and_b32 s%d, s35, 3" % sKq)
    A("s_lshr_b32 s35, s2, 3")
    A("s_lshr_b32 s%d, s35, 2" % sB)
    A("s_and_b32 s%d, s35, 3" % sNb)
    LANE, T0, T1, T2, T3 = 254, 238, 239, 240, 241
    A("v_and_b32 v%d, 63, v0" % LANE)
    A("v_lshrrev_b32 v%d, 6, v0" % T0)
    A("v_readfirstlane_b32 s%d, v%d" % (sW8, T0))
    A("s_and_b32 s%d, s%d, 3" % (sWv, sW8))
    A("s_lshr_b32 s%d, s%d, 2" % (sGr, sW8))
    A("s_waitcnt lgkmcnt(0)")
    stamp(A, 6)
    A("s_cmp_eq_u32 s%d, 0" % sBr)
    A("s_cselect_b64 s[12:13], s[12:13], s[22:23]")
    sW, sX, sP = 44, 48, 52
    A("s_lshl_b32 s35, s%d, 1" % sKq)
    A("s_add_u32 s38, s35, s%d" % sGr)
    A("s_lshl_b32 s35, s38, 19")
    A("s_lshl_b32 s36, s%d, 8" % sNb)
    A("s_add_u32 s35, s35, s36")
    A("s_sub_u32 s37, %d, s36" % (512 * 1024))
    make_srd(A, sW, 12, 13, "s35", "s37")
    A("s_mul_i32 s35, s%d, %d" % (sBr, O_BRANCH_BYTES))
    A("s_lshl_b32 s36, s%d, 3" % sB)
    A("s_add_u32 s36, s36, s38")
    A("s_mul_i32 s36, s36, %d" % (4 * 36864))
    A("s_add_u32 s35, s35, s36")
    make_srd(A, sX, 28, 29, "s35", "%d" % (4 * 36864))
    sRot = 68
    A("s_lshl_b32 s%d, s%d, 1" % (sRot, sNb))
    A("s_add_u32 s%d, s%d, s%d" % (sRot, sRot, sB))
    A("s_lshl_b32 s%d, s%d, 1" % (sRot, sRot))
    PW_ = 5 * 1024 if PBF else 9 * 1024
    PT = 8 * PW_
    sTile = 41
    A("s_lshl_b32 s%d, s%d, 5" % (sTile, sBr))
    A("s_lshl_b32 s35, s%d, 2" % sB)
    A("s_add_u32 s%d, s%d, s35" % (sTile, sTile))
    A("s_add_u32 s%d, s%d, s%d" % (sTile, sTile, sNb))
    A("s_lshl_b32 s35, s%d, 2" % sTile)
    if not FR:
        A("s_add_u32 s35, s35, s%d" % sKq)
    A("s_mul_i32 s35, s35, %d" % PT)
    A("s_mul_i32 s36, s%d, %d" % (sW8, PW_))
    A("s_add_u32 s35, s35, s36")
    A("s_add_u32 s35, s35, %d" % P_BASE)
    make_srd(A, sP, 28, 29, "s35", "%d" % (3 * PT + PW_ if FR else PW_))
    sO = 56
    if FR:
        A("s_mul_i32 s35, s%d, %d" % (sB, 144 * 2048))
        A("s_lshl_b32 s36, s%d, 10" % sBr)
        A("s_lshl_b32 s37, s%d, 8" % sNb)
        A("s_add_u32 s36, s36, s37")
        A("s_add_u32 s35, s35, s36")
        A("s_sub_u32 s37, %d, s36" % (144 * 2048))
        make_srd(A, sO, 24, 25, "s35", "s37")
    A("s_lshl_b32 s69, s%d, 16" % sGr)
    R = dict(acc=0, xr=88, fr=172, wrd=72, wdma=80, vx=82, lane=LANE, t0=T0, t1=T1, t2=T2, t3=T3,
             sq0=60, swb=62, sm0=63, st=64, sk=65, sx=66, sw1k=67, slds=69)
    gemm_phase(A, 16, 1024, "perm", sW, sX, sWv, sRot, R, {})
    stamp(A, 4)
    A("s_barrier")
    A("v_lshlrev_b32 v%d, 4, v%d" % (T0, LANE))
    A("s_mul_i32 s35, s%d, 9216" % sW8)
    A("v_add_u32 v%d, s35, v%d" % (T1, T0))
    A("s_xor_b32 s36, s%d, 4" % sW8)
    A("s_mul_i32 s36, s36, 9216")
    A("v_add_u32 v%d, s36, v%d" % (T2, T0))
    X = 96
    A("s_cmp_eq_u32 s%d, 0" % sGr)
    A("s_cbranch_scc0 L2_grB")
    for grp in range(2):
        keep = range(0, 9) if grp == 0 else range(9, 18)
        give = range(9, 18) if grp == 0 else range(0, 9)
        for i, f in enumerate(give):
            A("ds_write_b128 v%d, %s offset:%d" % (T1, vr(f * 4, 4), i * 1024))
        A("s_waitcnt lgkmcnt(0)")
        A("s_barrier")
        for i in range(9):
            A("ds_read_b128 %s, v%d offset:%d" % (vr(X + i * 4, 4), T2, i * 1024))
        A("s_waitcnt lgkmcnt(0)")
        for i, f in enumerate(keep):
            for r in range(4):
                A("v_add_f32 v%d, v%d, v%d" % (X + i * 4 + r, X + i * 4 + r, f * 4 + r))
        if FR:
            A("v_and_b32 v%d, 15, v%d" % (T3, LANE))
            A("v_lshlrev_b32 v%d, 11, v%d" % (T3, T3))
            A("v_lshrrev_b32 v%d, 4, v%d" % (T1, LANE))
            A("v_lshl_add_u32 v%d, v%d, 3, v%d" % (T3, T1, T3))
            A("s_lshl_b32 s35, s%d, 6" % sWv)
            A("v_add_u32 v%d, s35, v%d" % (T3, T3))
            A("s_lshl_b32 s36, s%d, 16" % sWv)
            for i, f in enumerate(keep):
                t, dl = (f // 8, f % 8) if f < 16 else (2, f - 16)
                A("v_xor_b32 v%d, %d, v%d" % (140 + i, dl << 5, T3))
                if t < 2:
                    A("v_add_u32 v%d, s36, v%d" % (140 + i, 140 + i))
                    if t == 1:
                        A("v_add_u32 v%d, 0x8000, v%d" % (140 + i, 140 + i))
                else:
                    A("v_add_u32 v%d, 0x40000, v%d" % (140 + i, 140 + i))
        if grp == 0:
            A.flush()
            A("s_branch L2_join")
            A.label("L2_grB")
    A.label("L2_join")
    A("s_mov_b32 s35, 0")
    if FR:
        assert PBF
        A("s_lshr_b32 s38, s%d, 1" % sW8)
        A("s_cmp_eq_u32 s38, s%d" % sKq)
        A("s_cbranch_scc1 L2_nostore")
        A("s_mul_i32 s35, s%d, %d" % (sKq, PT))
        for i in range(9):
            A("v_cvt_pk_bf16_f32 v%d, v%d, v%d" % (2 * i, X + 4 * i, X + 4 * i + 1))
            A("v_cvt_pk_bf16_f32 v%d, v%d, v%d" % (2 * i + 1, X + 4 * i + 2, X + 4 * i + 3))
            if i == 8:
                A("s_add_u32 s35, s35, 4096")
            if i % 2 == 1 or i == 8:
                u = i // 2
                A("buffer_store_dwordx4 %s, v%d, %s, s35 offen offset:%d sc1" % (vr(4 * u, 4), T0, sr(sP, 4), (u % 4) * 1024))
        A.label("L2_nostore")
        A("s_waitcnt vmcnt(0)")
        A("s_barrier")
        A("s_cmp_eq_u32 s%d, 0" % sW8)
        A("s_cbranch_scc0 L2_waited")
        A("s_lshl_b32 s35, s%d, 2" % sTile)
        A("v_mov_b32 v%d, s35" % T1)
        A("v_mov_b32 v%d, 1" % T2)
        A("s_mov_b64 exec, 1")
        A("global_atomic_add v%d, v%d, s[26:27] sc1" % (T1, T2))
        A("s_mov_b64 exec, -1")
        A("s_mov_b32 s36, 400000")
        A.label("L2_poll")
        A("global_load_dword v%d, v%d, s[26:27] sc1" % (T2, T1))
        A("s_waitcnt vmcnt(0)")
        A("v_readfirstlane_b32 s35, v%d" % T2)
        A("s_cmp_ge_u32 s35, 4")
        A("s_cbranch_scc1 L2_waited")
        A("s_sleep 2")
        A("s_sub_u32 s36, s36, 1")
        A("s_cmp_lg_u32 s36, 0")
        A("s_cbranch_scc1 L2_poll")
        A.label("L2_waited")
        A("s_barrier")
        A("s_cmp_eq_u32 s38, s%d" % sKq)
        A("s_cbranch_scc0 L2_fin")
        for j in range(1, 4):
            A("s_add_u32 s35, s%d, %d" % (sKq, j))
            A("s_and_b32 s35, s35, 3")
            A("s_mul_i32 s35, s35, %d" % PT)
            for u in range(5):
                if u == 4:
                    A("s_add_u32 s35, s35, 4096")
                A("buffer_load_dwordx4 %s, v%d, %s, s35 offen offset:%d sc1" % (vr((j - 1) * 20 + u * 4, 4), T0, sr(sP, 4), (u % 4) * 1024))
        for j in range(1, 4):
            A("s_waitcnt vmcnt(%d)" % (5 * (3 - j)))
            for i in range(18):
                src = (j - 1) * 20 + i
                A("v_lshlrev_b32 v%d, 16, v%d" % (T1, src))
                A("v_and_b32 v%d, 0xffff0000, v%d" % (T2, src))
                A("v_add_f32 v%d, v%d, v%d" % (X + 2 * i, X + 2 * i, T1))
                A("v_add_f32 v%d, v%d, v%d" % (X + 2 * i + 1, X + 2 * i + 1, T2))
        for i in range(9):
            A("v_cvt_pk_bf16_f32 v%d, v%d, v%d" % (190 + 2 * i, X + 4 * i, X + 4 * i + 1))
            A("v_cvt_pk_bf16_f32 v%d, v%d, v%d" % (191 + 2 * i, X + 4 * i + 2, X + 4 * i + 3))
            A("buffer_store_dwordx2 %s, v%d, %s, 0 offen" % (vr(190 + 2 * i, 2), 140 + i, sr(sO, 4)))
        A.label("L2_fin")
    elif PBF:
        for i in range(9):
            A("v_cvt_pk_bf16_f32 v%d, v%d, v%d" % (2 * i, X + 4 * i, X + 4 * i + 1))
            A("v_cvt_pk_bf16_f32 v%d, v%d, v%d" % (2 * i + 1, X + 4 * i + 2, X + 4 * i + 3))
            if i == 8:
                A("s_mov_b32 s35, 4096")
            if i % 2 == 1 or i == 8:
                u = i // 2
                A("buffer_store_dwordx4 %s, v%d, %s, s35 offen offset:%d %s" % (vr(4 * u, 4), T0, sr(sP, 4), (u % 4) * 1024, PPOL))
    else:
        for i in range(9):
            if i % 4 == 0 and i:
                A("s_add_u32 s35, s35, 4096")
            A("buffer_store_dwordx4 %s, v%d, %s, s35 offen offset:%d" % (vr(X + i * 4, 4), T0, sr(sP, 4), (i % 4) * 1024))
    if STAMP:
        A("s_waitcnt vmcnt(0)")
        stamp(A, 7)
        A("s_lshr_b32 s98, s%d, 1" % sW8)
        dump_stamps(A, 8, 1, 98, 240)
    A.label("L2_done")
    A("s_endpgm")


def role_oproj(A):
    A.label("LF_oproj")
    stamp(A, 0)
    load_kernargs(A)
    sBr, sKq, sB, sNb, sWv = 30, 31, 32, 33, 34
    A("s_sub_u32 s39, s2, 512")
    A("s_and_b32 s35, s39, 7")
    A("s_lshr_b32 s%d, s35, 2" % sBr)
    A("s_and_b32 s%d, s35, 3" % sKq)
    A("s_lshr_b32 s35, s39, 3")
    A("s_lshr_b32 s%d, s35, 2" % sB)
    A("s_and_b32 s%d, s35, 3" % sNb)
    LANE, T0, T1, T2, T3 = 254, 238, 239, 240, 241
    A("v_and_b32 v%d, 63, v0" % LANE)
    A("v_lshrrev_b32 v%d, 6, v0" % T0)
    A("v_readfirstlane_b32 s%d, v%d" % (sWv, T0))
    A("s_waitcnt lgkmcnt(0)")
    A("s_cmp_eq_u32 s%d, 0" % sBr)
    A("s_cselect_b64 s[12:13], s[12:13], s[22:23]")
    sW, sX, sP = 44, 48, 52
    A("s_lshl_b32 s35, s%d, 20" % sKq)
    A("s_lshl_b32 s36, s%d, 8" % sNb)
    A("s_add_u32 s35, s35, s36")
    A("s_sub_u32 s37, %d, s36" % (1024 * 1024))
    make_srd(A, sW, 12, 13, "s35", "s37")
    A("s_mul_i32 s35, s%d, %d" % (sBr, O_BRANCH_BYTES))
    A("s_lshl_b32 s36, s%d, 2" % sB)
    A("s_add_u32 s36, s36, s%d" % sKq)
    A("s_mul_i32 s36, s36, %d" % (8 * 36864))
    A("s_add_u32 s35, s35, s36")
    make_srd(A, sX, 28, 29, "s35", "%d" % (8 * 36864))
    sRot = 68
    A("s_lshl_b32 s%d, s%d, 1" % (sRot, sNb))
    A("s_add_u32 s%d, s%d, s%d" % (sRot, sRot, sB))
    A("s_lshl_b32 s%d, s%d, 2" % (sRot, sRot))
    FB = 512 if PBF else 1024
    PW_ = 18 * FB
    PT = 4 * PW_
    sTile = 41
    A("s_lshl_b32 s%d, s%d, 5" % (sTile, sBr))
    A("s_lshl_b32 s35, s%d, 2" % sB)
    A("s_add_u32 s%d, s%d, s35" % (sTile, sTile))
    A("s_add_u32 s%d, s%d, s%d" % (sTile, sTile, sNb))
    A("s_lshl_b32 s35, s%d, 2" % sTile)
    A("s_add_u32 s35, s35, s%d" % sKq)
    A("s_mul_i32 s35, s35, %d" % PT)
    A("s_mul_i32 s36, s%d, %d" % (sWv, PW_))
    A("s_add_u32 s35, s35, s36")
    A("s_add_u32 s35, s35, %d" % P_BASE)
    make_srd(A, sP, 28, 29, "s35", "%d" % PW_)

    def wait_o(A):
        A("s_cmp_eq_u32 s%d, 0" % sWv)
        A("s_cbranch_scc0 LF_waited")
        A("s_lshl_b32 s35, s%d, 3" % sBr)
        A("s_add_u32 s35, s35, s%d" % sB)
        A("s_lshl_b32 s35, s35, 2")
        A("s_add_u32 s35, s35, s%d" % sKq)
        A("s_lshl_b32 s35, s35, 2")
        A("v_mov_b32 v%d, s35" % T0)
        A("s_mov_b32 s36, 200000")
        A.label("LF_poll")
        A("global_load_dword v%d, v%d, s[26:27] sc1" % (T1, T0))
        A("s_waitcnt vmcnt(0)")
        A("v_readfirstlane_b32 s35, v%d" % T1)
        A("s_cmp_ge_u32 s35, 8")
        A("s_cbranch_scc1 LF_waited")
        A("s_sleep 4")
        A("s_sub_u32 s36, s36, 1")
        A("s_cmp_lg_u32 s36, 0")
        A("s_cbranch_scc1 LF_poll")
        A.label("LF_waited")
        A("s_barrier")
        stamp(A, 6)

    R = dict(acc=0, xr=88, fr=172, wrd=72, wdma=80, vx=82, lane=LANE, t0=T0, t1=T1, t2=T2, t3=T3,
             sq0=60, swb=62, sm0=63, st=64, sk=65, sx=66, sw1k=67, prex=wait_o, xpol="sc1")
    gemm_phase(A, 32, 1024, "perm", sW, sX, sWv, sRot, R, {})
    stamp(A, 4)
    A("s_mov_b32 s35, 0")
    if PBF:
        A("v_lshlrev_b32 v%d, 3, v%d" % (T1, LANE))
        for i in range(18):
            A("v_cvt_pk_bf16_f32 v%d, v%d, v%d" % (96 + 2 * i, 4 * i, 4 * i + 1))
            A("v_cvt_pk_bf16_f32 v%d, v%d, v%d" % (97 + 2 * i, 4 * i + 2, 4 * i + 3))
            if i % 8 == 0 and i:
                A("s_add_u32 s35, s35, 4096")
            A("buffer_store_dwordx2 %s, v%d, %s, s35 offen offset:%d" % (vr(96 + 2 * i, 2), T1, sr(sP, 4), (i % 8) * 512))
    else:
        A("v_lshlrev_b32 v%d, 4, v%d" % (T1, LANE))
        for i in range(18):
            if i % 4 == 0 and i:
                A("s_add_u32 s35, s35, 4096")
            A("buffer_store_dwordx4 %s, v%d, %s, s35 offen offset:%d" % (vr(i * 4, 4), T1, sr(sP, 4), (i % 4) * 1024))
    if STAMP:
        A("s_waitcnt vmcnt(0)")
        stamp(A, 7)
        A("s_mov_b32 s99, s2")
        A("s_sub_u32 s2, s2, 512")
        dump_stamps(A, 8, 1, sWv, 240)
    A("s_endpgm")


def kernel_reduce_pbf(A):
    K3 = "reduce_kernel"
    PT = 40 * 1024
    A.raw(".globl %s\n.p2align 8\n.type %s,@function\n%s:" % (K3, K3, K3))
    A("s_cmp_ge_u32 s2, 640")
    A("s_cbranch_scc1 L3_done")
    A("s_load_dwordx2 s[24:25], s[0:1], 80")
    A("s_load_dwordx2 s[28:29], s[0:1], 96")
    A("v_lshrrev_b32 v1, 6, v0")
    A("v_and_b32 v2, 63, v0")
    A("v_readfirstlane_b32 s30, v1")
    A("s_lshl_b32 s31, s2, 2")
    A("s_add_u32 s30, s30, s31")
    A("s_mul_hi_u32 s31, s30, %d" % ((1 << 32) // 40 + 1))
    A("s_mul_i32 s32, s31, 40")
    A("s_sub_u32 s32, s30, s32")
    A("s_mul_hi_u32 s33, s32, %d" % ((1 << 32) // 5 + 1))
    A("s_mul_i32 s34, s33, 5")
    A("s_sub_u32 s34, s32, s34")
    A("s_mul_i32 s35, s31, %d" % (4 * PT))
    A("s_lshl_b32 s36, s32, 10")
    A("s_add_u32 s35, s35, s36")
    A("s_add_u32 s35, s35, %d" % P_BASE)
    A("s_waitcnt lgkmcnt(0)")
    make_srd(A, 40, 28, 29, "s35", "%d" % (3 * PT + 1024))
    A("v_lshlrev_b32 v3, 4, v2")
    for kq in range(4):
        A("s_mov_b32 s%d, %d" % (48 + kq, kq * PT))
        A("buffer_load_dwordx4 %s, v3, s[40:43], s%d offen" % (vr(40 + kq * 4, 4), 48 + kq))
    A("s_lshr_b32 s52, s31, 5")
    A("s_lshr_b32 s53, s31, 2")
    A("s_and_b32 s53, s53, 7")
    A("s_and_b32 s54, s31, 3")
    A("s_mul_i32 s53, s53, %d" % (144 * 2048))
    A("s_lshl_b32 s52, s52, 10")
    A("s_lshl_b32 s54, s54, 8")
    A("s_add_u32 s53, s53, s52")
    A("s_add_u32 s53, s53, s54")
    A("s_and_b32 s37, s33, 3")
    A("s_lshl_b32 s37, s37, 1")
    A("s_lshr_b32 s55, s33, 2")
    A("s_mul_i32 s55, s55, 9")
    A("s_lshl_b32 s56, s34, 1")
    A("s_add_u32 s55, s55, s56")
    for k in range(2):
        A("s_add_u32 s36, s55, %d" % k)
        A("s_lshr_b32 s38, s36, 3")
        A("s_add_u32 s39, s37, s38")
        A("s_cmp_ge_u32 s36, 16")
        A("s_cselect_b32 s39, 8, s39")
        A("s_and_b32 s36, s36, 7")
        A("s_xor_b32 s36, s36, s37")
        A("s_lshl_b32 s39, s39, 15")
        A("s_lshl_b32 s36, s36, 5")
        A("s_add_u32 s%d, s53, s39" % (57 + k))
        A("s_add_u32 s%d, s%d, s36" % (57 + k, 57 + k))
    A("s_cmp_eq_u32 s34, 4")
    A("s_cselect_b32 s58, 0x7ff00000, s58")
    A("s_mov_b32 s59, 0")
    make_srd(A, 44, 24, 25, "s59", "%d" % (8 * 144 * 1024 * 2))
    A("v_and_b32 v1, 15, v2")
    A("v_lshlrev_b32 v1, 11, v1")
    A("v_lshrrev_b32 v2, 4, v2")
    A("v_lshl_add_u32 v1, v2, 3, v1")
    A("s_waitcnt vmcnt(0)")
    for kq in range(4):
        for h in range(4):
            A("v_lshlrev_b32 v%d, 16, v%d" % (4 + kq * 8 + 2 * h, 40 + kq * 4 + h))
            A("v_and_b32 v%d, 0xffff0000, v%d" % (5 + kq * 8 + 2 * h, 40 + kq * 4 + h))
    for i in range(8):
        A("v_add_f32 v%d, v%d, v%d" % (4 + i, 4 + i, 12 + i))
        A("v_add_f32 v%d, v%d, v%d" % (20 + i, 20 + i, 28 + i))
    for i in range(8):
        A("v_add_f32 v%d, v%d, v%d" % (4 + i, 4 + i, 20 + i))
    for i in range(4):
        A("v_cvt_pk_bf16_f32 v%d, v%d, v%d" % (36 + i, 4 + 2 * i, 5 + 2 * i))
    A("buffer_store_dwordx2 v[36:37], v1, s[44:47], s57 offen")
    A("buffer_store_dwordx2 v[38:39], v1, s[44:47], s58 offen")
    A.label("L3_done")
    A("s_endpgm")


def kernel_reduce(A):
    K3 = "reduce_kernel"
    FB = 512 if PBF else 1024
    PT = 72 * FB
    A.raw(".globl %s\n.p2align 8\n.type %s,@function\n%s:" % (K3, K3, K3))
    A("s_cmp_ge_u32 s2, 1152")
    A("s_cbranch_scc1 L3_done")
    A("s_load_dwordx2 s[24:25], s[0:1], 80")
    A("s_load_dwordx2 s[28:29], s[0:1], 96")
    A("v_lshrrev_b32 v1, 6, v0")
    A("v_and_b32 v2, 63, v0")
    A("v_readfirstlane_b32 s30, v1")
    A("s_lshl_b32 s31, s2, 2")
    A("s_add_u32 s30, s30, s31")
    A("s_mul_hi_u32 s31, s30, %d" % ((1 << 32) // 72 + 1))
    A("s_mul_i32 s32, s31, 72")
    A("s_sub_u32 s32, s30, s32")
    NFW = 18 if FUSED else 9
    A("s_mul_hi_u32 s33, s32, %d" % ((1 << 32) // NFW + 1))
    A("s_mul_i32 s34, s33, %d" % NFW)
    A("s_sub_u32 s34, s32, s34")
    A("s_mul_i32 s35, s31, %d" % (4 * PT))
    A("s_mul_i32 s36, s32, %d" % FB)
    A("s_add_u32 s35, s35, s36")
    A("s_add_u32 s35, s35, %d" % P_BASE)
    A("s_waitcnt lgkmcnt(0)")
    make_srd(A, 40, 28, 29, "s35", "%d" % (3 * PT + FB))
    A("v_lshlrev_b32 v3, %d, v2" % (3 if PBF else 4))
    for kq in range(4):
        A("s_mov_b32 s%d, %d" % (48 + kq, kq * PT))
        if PBF:
            A("buffer_load_dwordx2 %s, v3, s[40:43], s%d offen" % (vr(24 + kq * 2, 2), 48 + kq))
        else:
            A("buffer_load_dwordx4 %s, v3, s[40:43], s%d offen" % (vr(4 + kq * 4, 4), 48 + kq))
    A("s_lshr_b32 s36, s33, 2")
    A("s_mul_i32 s36, s36, 9")
    A("s_add_u32 s36, s36, s34")
    A("s_and_b32 s37, s33, 3")
    A("s_lshl_b32 s37, s37, 1")
    A("s_lshr_b32 s38, s36, 3")
    A("s_add_u32 s39, s37, s38")
    A("s_cmp_ge_u32 s36, 16")
    A("s_cselect_b32 s39, 8, s39")
    A("s_and_b32 s36, s36, 7")
    A("s_xor_b32 s36, s36, s37")
    A("s_lshr_b32 s52, s31, 5")
    A("s_lshr_b32 s53, s31, 2")
    A("s_and_b32 s53, s53, 7")
    A("s_and_b32 s54, s31, 3")
    A("s_mul_i32 s53, s53, 144")
    A("s_lshl_b32 s39, s39, 4")
    A("s_add_u32 s53, s53, s39")
    A("s_lshl_b32 s53, s53, 11")
    A("s_lshl_b32 s52, s52, 10")
    A("s_lshl_b32 s54, s54, 8")
    A("s_lshl_b32 s36, s36, 5")
    A("s_add_u32 s53, s53, s52")
    A("s_add_u32 s53, s53, s54")
    A("s_add_u32 s53, s53, s36")
    A("s_mov_b32 s55, 0")
    make_srd(A, 44, 24, 25, "s55", "%d" % (8 * 144 * 1024 * 2))
    A("v_and_b32 v1, 15, v2")
    A("v_lshlrev_b32 v1, 11, v1")
    A("v_lshrrev_b32 v2, 4, v2")
    A("v_lshl_add_u32 v1, v2, 3, v1")
    A("s_waitcnt vmcnt(0)")
    if PBF:
        for kq in range(4):
            for h in range(2):
                A("v_lshlrev_b32 v%d, 16, v%d" % (4 + kq * 4 + 2 * h, 24 + kq * 2 + h))
                A("v_and_b32 v%d, 0xffff0000, v%d" % (5 + kq * 4 + 2 * h, 24 + kq * 2 + h))
    for i in range(4):
        A("v_add_f32 v%d, v%d, v%d" % (4 + i, 4 + i, 8 + i))
        A("v_add_f32 v%d, v%d, v%d" % (12 + i, 12 + i, 16 + i))
    for i in range(4):
        A("v_add_f32 v%d, v%d, v%d" % (4 + i, 4 + i, 12 + i))
    A("v_cvt_pk_bf16_f32 v20, v4, v5")
    A("v_cvt_pk_bf16_f32 v21, v6, v7")
    A("buffer_store_dwordx2 v[20:21], v1, s[44:47], s53 offen")
    A.label("L3_done")
    A("s_endpgm")


def kd(name, vgpr, sgpr=102):
    return """.amdhsa_kernel %s
  .amdhsa_next_free_vgpr %d
  .amdhsa_next_free_sgpr %d
  .amdhsa_accum_offset %d
  .amdhsa_group_segment_fixed_size 0
  .amdhsa_kernarg_size 104
  .amdhsa_user_sgpr_count 2
  .amdhsa_user_sgpr_kernarg_segment_ptr 1
  .amdhsa_system_sgpr_workgroup_id_x 1
.end_amdhsa_kernel
""" % (name, vgpr, sgpr, (vgpr + 3) // 4 * 4)


def main():
    A = Asm()
    hdr = open(os.path.join(os.path.dirname(os.path.abspath(__file__)), "..", "cdna_kernels", NAME + ".s.ref")).read().split("\n")
    head = [l for l in hdr if l.startswith(";") and "@launch" not in l and "Override launch" not in l and "grid=ceil" not in l]
    out = "\n".join(head) + "\n"
    if FUSED:
        out += "; @launch kernel=attn_kernel grid=(768,1,1) block=(256,1,1) lds=81920\n"
    else:
        out += "; @launch kernel=attn_kernel grid=(512,1,1) block=(256,1,1) lds=81920\n"
        out += "; @launch kernel=oproj_kernel grid=(256,1,1) block=(512,1,1) lds=131072\n"
    if not FR:
        out += "; @launch kernel=reduce_kernel grid=(%d,1,1) block=(256,1,1) lds=0\n" % (640 if (PBF and not FUSED) else 1152)
    if "twice" in EXP:
        out += "; @launch kernel=oproj_kernel grid=(256,1,1) block=(512,1,1) lds=131072\n"
    out += '.amdgcn_target "amdgcn-amd-amdhsa--gfx950"\n.text\n'
    kernel_attn(A)
    if FUSED:
        role_oproj(A)
    else:
        kernel_oproj(A)
    if FR:
        pass
    elif PBF and not FUSED:
        kernel_reduce_pbf(A)
    else:
        kernel_reduce(A)
    out += A.text()
    out += '.section .rodata,"a"\n.p2align 6\n'
    out += kd("attn_kernel", 256, 100 if STAMP else 76)
    if not FUSED:
        out += ".p2align 6\n" + kd("oproj_kernel", 256, 100 if STAMP else 74)
    if not FR:
        out += ".p2align 6\n" + kd("reduce_kernel", 56, 64)
    dst = sys.argv[1] if len(sys.argv) > 1 else os.path.join(os.path.dirname(os.path.abspath(__file__)), "..", "cdna_kernels", NAME + ".s")
    open(dst, "w").write(out)
    print("wrote", dst, A.ninst, "instructions")


if __name__ == "__main__":
    main()
```

```python
import sys, os, struct
sys.path.insert(0, os.path.dirname(os.path.abspath(__file__)))
from asmlib import Asm, VmQ

NAME = "concat_heads__mha_block_cached__mha_block_cached__near_ridge"
O_BRANCH_BYTES = 1152 * 4096 * 2
P_BASE = 2 * O_BRANCH_BYTES
SCALE_C = 1.4426950408889634 / (128.0 ** 0.5)
EXP = os.environ.get("EXP", "")
KVPOL = os.environ.get("KVPOL", "nt ")
WPOL = os.environ.get("WPOL", "")
FUSED = os.environ.get("FUSED", "0") == "1"
FR = os.environ.get("FR", "0") == "1"
OPOL = os.environ.get("OPOL", "sc1")
PBF = os.environ.get("PBF", "1") == "1"
PPOL = os.environ.get("PPOL", "sc1")
PLPOL = os.environ.get("PLPOL", "sc1")
XPOL = os.environ.get("XPOL", "")


def f32bits(x):
    return struct.unpack("<I", struct.pack("<f", x))[0]


def vr(base, n):
    return "v[%d:%d]" % (base, base + n - 1)


def sr(base, n):
    return "s[%d:%d]" % (base, base + n - 1)


def load_kernargs(A):
    A("s_load_dwordx16 s[4:19], s[0:1], 0")
    A("s_load_dwordx8 s[20:27], s[0:1], 64")
    A("s_load_dwordx2 s[28:29], s[0:1], 96")


def make_srd(A, d, lo, hi, off_s, nrec):
    A("s_add_u32 s%d, s%d, %s" % (d, lo, off_s))
    A("s_addc_u32 s%d, s%d, 0" % (d + 1, hi))
    A("s_and_b32 s%d, s%d, 0xffff" % (d + 1, d + 1))
    A("s_mov_b32 s%d, %s" % (d + 2, nrec))
    A("s_mov_b32 s%d, 0x00020000" % (d + 3))


STAMP = "stamp" in EXP


def stamp(A, i, _seen=set()):
    if "fine" in EXP:
        if i in _seen and i >= 4:
            return
        _seen.add(i)
    if STAMP:
        if "real" in EXP:
            A("s_memrealtime s[%d:%d]" % (80 + 2 * i, 81 + 2 * i))
        else:
            A("s_memtime s[%d:%d]" % (80 + 2 * i, 81 + 2 * i))


def dump_stamps(A, n, kidx, sWv, vt):
    if not STAMP:
        return
    A("s_waitcnt lgkmcnt(0)")
    A("s_lshl_b32 s96, s2, 8")
    A("s_lshl_b32 s97, s%d, 6" % sWv)
    A("s_add_u32 s96, s96, s97")
    A("s_add_u32 s96, s96, %d" % (200 * 1024 * 1024 + kidx * 1024 * 1024))
    A("s_add_u32 s76, s28, s96")
    A("s_addc_u32 s77, s29, 0")
    A("s_and_b32 s77, s77, 0xffff")
    A("s_mov_b32 s78, 64")
    A("s_mov_b32 s79, 0x00020000")
    A("v_mov_b32 v%d, 0" % vt)
    for i in range(n):
        A("v_mov_b32 v%d, s%d" % (vt + 1, 80 + 2 * i))
        A("buffer_store_dword v%d, v%d, s[76:79], 0 offen offset:%d" % (vt + 1, vt, 4 * i))
    A("s_waitcnt vmcnt(0)")


def gemm_phase(A, nk, wstride, mode, sW, sX, sWave, sRot, R, hooks):
    vq = VmQ()
    lane, t0, t1, t2, t3 = R["lane"], R["t0"], R["t1"], R["t2"], R["t3"]
    wdma, vx, wrd = R["wdma"], R["vx"], R["wrd"]
    sq0, swb, sm0, st, sk, sx, sw1k = R["sq0"], R["swb"], R["sm0"], R["st"], R["sk"], R["sx"], R["sw1k"]
    nat = mode == "nat"
    NW = 5 if nat else 8
    XD = 4 if nat else 7
    XB = 40960
    wslot = (lambda c: (c + 4) % 5) if nat else (lambda c: c % 8)
    xslot = lambda c: (c + 1) & 1
    A("v_lshrrev_b32 v%d, 4, v%d" % (t0, lane))
    A("v_and_b32 v%d, 15, v%d" % (t1, lane))
    if nat:
        A("s_and_b32 s%d, s%d, 1" % (st, sWave))
        A("s_lshl_b32 s%d, s%d, 2" % (st, st))
        A("v_or_b32 v%d, s%d, v%d" % (t2, st, t0))
    else:
        A("v_mov_b32 v%d, v%d" % (t2, t0))
    A("v_lshrrev_b32 v%d, 1, v%d" % (t3, t1))
    A("v_xor_b32 v%d, v%d, v%d" % (t2, t2, t3))
    A("v_lshlrev_b32 v%d, 5, v%d" % (t2, t2))
    A("v_and_b32 v%d, 1, v%d" % (t3, lane))
    A("v_lshl_add_u32 v%d, v%d, 4, v%d" % (t2, t3, t2))
    A("v_mul_u32_u24 v%d, %d, v%d" % (t3, wstride, t0))
    A("v_add_u32 v%d, v%d, v%d" % (wdma, t2, t3))
    if nat:
        A("v_mov_b32 v%d, v%d" % (wdma + 1, wdma))
        A("s_lshl_b32 s%d, s%d, 2" % (st, sWave))
        A("v_add_u32 v%d, s%d, v%d" % (t2, st, t0))
        A("v_xor_b32 v%d, v%d, v%d" % (t2, t2, lane))
        A("v_and_b32 v%d, 7, v%d" % (t2, t2))
        A("v_lshlrev_b32 v%d, 4, v%d" % (t2, t2))
        A("v_lshrrev_b32 v%d, 3, v%d" % (t3, lane))
        A("s_lshl_b32 s%d, s%d, 3" % (st, sWave))
        A("v_add_u32 v%d, s%d, v%d" % (t3, st, t3))
        A("v_lshl_add_u32 v%d, v%d, 10, v%d" % (vx, t3, t2))
        A("v_lshrrev_b32 v%d, 1, v%d" % (t2, t1))
        A("v_xor_b32 v%d, v%d, v%d" % (t2, t2, t0))
        A("v_lshlrev_b32 v%d, 4, v%d" % (t2, t2))
        A("v_lshl_add_u32 v%d, v%d, 7, v%d" % (t2, t1, t2))
        A("v_add_u32 v%d, %d, v%d" % (vx + 1, XB, t2))
        A("v_xor_b32 v%d, 64, v%d" % (vx + 2, vx + 1))
        A("s_lshl_b32 s%d, s%d, 12" % (st, sWave))
        A("v_add_u32 v%d, s%d, v%d" % (vx + 3, st, vx + 1))
        A("v_add_u32 v%d, s%d, v%d" % (vx + 4, st, vx + 2))
        A("v_bfe_u32 v%d, v%d, 2, 2" % (t1, lane))
        A("v_and_b32 v%d, 1, v%d" % (t2, t0))
        A("v_lshl_add_u32 v%d, v%d, 2, v%d" % (t2, t2, t1))
        A("v_lshl_add_u32 v%d, v%d, 3, v%d" % (t3, t0, t1))
        hoff = 1024
    else:
        A("v_xor_b32 v%d, 0x80, v%d" % (wdma + 1, wdma))
        A("v_lshlrev_b32 v%d, 4, v%d" % (vx, lane))
        A("v_lshrrev_b32 v%d, 2, v%d" % (t3, lane))
        A("v_and_b32 v%d, 7, v%d" % (t2, t3))
        hoff = 4096
    A("s_lshl_b32 s%d, s%d, 1" % (st, sWave))
    A("v_xor_b32 v%d, s%d, v%d" % (t2, st, t2))
    A("v_lshlrev_b32 v%d, 5, v%d" % (t2, t2))
    A("v_lshl_add_u32 v%d, v%d, 8, v%d" % (t2, t3, t2))
    A("v_and_b32 v%d, 3, v%d" % (t3, lane))
    A("v_lshl_add_u32 v%d, v%d, 3, v%d" % (wrd, t3, t2))
    if "slds" in R:
        A("v_add_u32 v%d, s%d, v%d" % (wrd, R["slds"], wrd))
    for dl in range(1, 8):
        A("v_xor_b32 v%d, %d, v%d" % (wrd + dl, dl << 5, wrd))
    A("s_lshl_b32 s%d, s%d, 13" % (sq0, sWave))
    A("s_mul_i32 s%d, s%d, %d" % (swb, sWave, 8 * wstride))
    A("s_lshl_b32 s%d, s%d, 11" % (sm0, sWave))
    if "slds" in R:
        A("s_add_u32 s%d, s%d, s%d" % (sm0, sm0, R["slds"]))
    A("s_lshl_b32 s%d, s%d, 10" % (sw1k, sWave))

    def kidx(ks):
        A("s_add_u32 s%d, s%d, %d" % (sk, sRot, ks))
        A("s_and_b32 s%d, s%d, %d" % (sk, sk, nk - 1))

    def dma_w(ks):
        kidx(ks)
        A("s_mul_i32 s%d, s%d, %d" % (st, sk, 32 * wstride))
        A("s_add_u32 s%d, s%d, s%d" % (st, st, swb))
        for mm in range(2):
            A("s_add_u32 m0, s%d, %d" % (sm0, wslot(ks) * 8192 + mm * 1024))
            if mm:
                A("s_add_u32 s%d, s%d, %d" % (st, st, 4 * wstride))
            A("buffer_load_dwordx4 v%d, %s, s%d offen %slds" % (wdma + mm, sr(sW, 4), st, WPOL))
            vq.issue(("w", ks))

    def dma_x(c):
        kidx(2 * c)
        A("s_lshl_b32 s%d, s%d, 6" % (sx, sk))
        for i in range(5):
            A("s_add_u32 m0, s%d, %d" % (sw1k, XB + xslot(c) * 20480 + i * 4096))
            if i:
                A("s_add_u32 s%d, s%d, 32768" % (sx, sx))
            A("buffer_load_dwordx4 v%d, %s, s%d offen %slds" % (vx, sr(sX, 4), sx, XPOL))
            vq.issue(("x", c))

    def xreads(c):
        out = []
        for p in range(2):
            base = R["xr"] + ((2 * c + p) % XD) * 12
            so = xslot(c) * 20480
            out.append("ds_read_b128 %s, v%d offset:%d" % (vr(base, 4), vx + 3 + p, so))
            out.append("ds_read_b128 %s, v%d offset:%d" % (vr(base + 4, 4), vx + 3 + p, so + 2048))
            out.append("ds_read_b128 %s, v%d offset:%d" % (vr(base + 8, 4), vx + 1 + p, so + 16384))
        return out

    def xload(ks):
        base = R["xr"] + (ks % XD) * 12
        kidx(ks)
        A("s_lshr_b32 s%d, s%d, 2" % (sx, sk))
        A("s_mul_i32 s%d, s%d, 36864" % (sx, sx))
        A("s_and_b32 s%d, s%d, 3" % (st, sk))
        A("s_lshl_b32 s%d, s%d, 10" % (st, st))
        A("s_add_u32 s%d, s%d, s%d" % (sx, sx, st))
        A("s_add_u32 s%d, s%d, s%d" % (st, sx, sq0))
        A("buffer_load_dwordx4 %s, v%d, %s, s%d offen" % (vr(base, 4), vx, sr(sX, 4), st) + " " + R.get("xpol", XPOL))
        A("s_add_u32 s%d, s%d, %d" % (st, st, 4096))
        A("buffer_load_dwordx4 %s, v%d, %s, s%d offen" % (vr(base + 4, 4), vx, sr(sX, 4), st) + " " + R.get("xpol", XPOL))
        A("s_add_u32 s%d, s%d, %d" % (st, sx, 8 * 4096))
        A("buffer_load_dwordx4 %s, v%d, %s, s%d offen" % (vr(base + 8, 4), vx, sr(sX, 4), st) + " " + R.get("xpol", XPOL))
        for _ in range(3):
            vq.issue(("x", ks))

    acc, fr = R["acc"], R["fr"]

    def wreads(ks, dl):
        return ["ds_read_b64_tr_b16 %s, v%d offset:%d" % (vr(fr + (ks & 1) * 32 + dl * 4 + h * 2, 2), wrd + dl, wslot(ks) * 8192 + h * hoff)
                for h in range(2)]

    nw = [0]
    nx = [0]

    def fill(i, maxw, maxx):
        k = 0
        while nw[0] < min(nk, i + 1 + NW - (0 if i >= 0 else 0)) and nw[0] <= i + NW and k < maxw:
            if nw[0] >= NW and nw[0] - NW > i:
                break
            dma_w(nw[0])
            nw[0] += 1
            k += 1
        k = 0
        if nat:
            while nx[0] < nk // 2 and (nx[0] < 2 or 2 * (nx[0] - 2) <= i) and k < maxx:
                dma_x(nx[0])
                nx[0] += 1
                k += 1
        else:
            while nx[0] < nk and nx[0] <= i + XD - 1 and k < maxx:
                xload(nx[0])
                nx[0] += 1
                k += 1

    PW, PX = int(os.environ.get("PW", "2")), int(os.environ.get("PX", "1" if nat else "2"))
    UPF = int(os.environ.get("UPF", "0"))
    if nat and UPF:
        dma_w(0)
        dma_x(0)
        dma_w(1)
        dma_x(1)
        for i in range(2, 2 + UPF):
            dma_w(i)
        nw[0], nx[0] = 2 + UPF, 2
    elif nat:
        dma_w(0)
        dma_x(0)
        dma_w(1)
        nw[0], nx[0] = 2, 1
    elif "prex" in R:
        for i in range(NW):
            dma_w(i)
        R["prex"](A)
        xload(0)
        xload(1)
        nw[0], nx[0] = NW, 2
    else:
        dma_w(0)
        xload(0)
        dma_w(1)
        xload(1)
        nw[0], nx[0] = 2, 2
    if -1 in hooks:
        hooks[-1](A, vq)
    stamp(A, 1)
    A("s_waitcnt vmcnt(%d)" % vq.wait_for({("w", 0)} | ({("x", 0)} if nat else set())))
    A("s_barrier")
    stamp(A, 2)
    fill(-1, PW, PX)
    for dl in range(8):
        for r in wreads(0, dl):
            A(r)
    if nat:
        for r in xreads(0):
            A(r)
    for i in range(nk):
        need = set()
        if i + 1 < nk:
            need.add(("w", i + 1))
        if nat:
            if i % 2 == 1 and i + 1 < nk:
                need.add(("x", (i + 1) // 2))
        else:
            need.add(("x", i))
        n = vq.wait_for(need)
        A("s_waitcnt vmcnt(%d) lgkmcnt(0)" % n)
        A("s_barrier")
        if i == nk // 2:
            stamp(A, 3)
        if "fine" in EXP and nat and i in (1, 2, 4, 6):
            stamp(A, {1: 4, 2: 5, 4: 6, 6: 7}[i])
        fill(i, PW, PX)
        if i in hooks:
            hooks[i](A, vq)
        xr = xreads((i + 1) // 2) if (nat and i % 2 == 1 and i + 1 < nk) else []
        xb = R["xr"] + (i % XD) * 12
        for dl in range(8):
            if i + 1 < nk:
                for r in wreads(i + 1, dl):
                    A(r)
            if dl < len(xr):
                A(xr[dl])
            for t in range(3):
                if t == 2 and dl >= 2:
                    continue
                a = acc + (t * 8 + dl) * 4 if t < 2 else acc + 64 + dl * 4
                c = "0" if i == 0 else vr(a, 4)
                A("v_mfma_f32_16x16x32_bf16 %s, %s, %s, %s" % (vr(a, 4), vr(fr + (i & 1) * 32 + dl * 4, 4), vr(xb + t * 4, 4), c))
    return vq


def cross_lane(A, op, v, tmp):
    A("v_mov_b32 v%d, v%d" % (tmp, v))
    A("v_permlane32_swap_b32 v%d, v%d" % (v, tmp))
    A("%s v%d, v%d, v%d" % (op, v, v, tmp))
    A("v_mov_b32 v%d, v%d" % (tmp, v))
    A("v_permlane16_swap_b32 v%d, v%d" % (v, tmp))
    A("%s v%d, v%d, v%d" % (op, v, v, tmp))


THR = float(os.environ.get("THR", "8.0"))


def kernel_attn(A):
    K1 = "attn_kernel"
    A.raw(".globl %s\n.p2align 8\n.type %s,@function\n%s:" % (K1, K1, K1))
    if FUSED:
        A("s_cmp_ge_u32 s2, 768")
        A("s_cbranch_scc1 L1_exit")
        A("s_cmp_ge_u32 s2, 512")
        A("s_cbranch_scc0 L1_go")
        A("s_branch LF_oproj")
        A.label("L1_exit")
        A("s_endpgm")
        A.label("L1_go")
    else:
        A("s_cmp_ge_u32 s2, 512")
        A("s_cbranch_scc1 L1_done")
    stamp(A, 0)
    load_kernargs(A)
    PRIO = os.environ.get("PRIO", "a")

    def prio(tag, val):
        if tag in PRIO:
            A("s_cmp_ge_u32 s2, 256")
            A("s_cbranch_scc0 L1_pr%s" % tag)
            A("s_setprio %d" % val)
            A.label("L1_pr%s" % tag)
    prio("a", 1)
    sBr, sH, sB, sWv = 30, 31, 32, 33
    A("s_and_b32 s34, s2, 7")
    A("s_lshr_b32 s35, s2, 3")
    A("s_lshr_b32 s%d, s34, 2" % sBr)
    A("s_and_b32 s34, s34, 3")
    A("s_lshl_b32 s34, s34, 3")
    A("s_and_b32 s%d, s35, 7" % sH)
    A("s_add_u32 s%d, s%d, s34" % (sH, sH))
    A("s_lshr_b32 s%d, s35, 3" % sB)
    O, QF, S, LACC, ONES, F = 0, 96, 144, 180, 192, 196
    M = 232
    KA, VA = 235, 239
    VKD, VVD = 247, 248
    T0, T1, T2, T3, T4, T5 = 249, 250, 251, 252, 253, 254
    LANE = 255
    A("v_and_b32 v%d, 63, v0" % LANE)
    A("v_lshrrev_b32 v%d, 6, v0" % T0)
    A("v_readfirstlane_b32 s%d, v%d" % (sWv, T0))
    A("s_waitcnt lgkmcnt(0)")
    A("s_cmp_eq_u32 s%d, 0" % sBr)
    A("s_cselect_b64 s[4:5], s[4:5], s[14:15]")
    A("s_cselect_b64 s[6:7], s[6:7], s[16:17]")
    A("s_cselect_b64 s[8:9], s[8:9], s[18:19]")
    A("s_cselect_b64 s[10:11], s[10:11], s[20:21]")
    sK, sV, sW, sX, sO = 36, 40, 44, 48, 52
    A("s_lshl_b32 s34, s%d, 5" % sB)
    A("s_add_u32 s34, s34, s%d" % sH)
    A("s_lshl_b32 s34, s34, 17")
    make_srd(A, sK, 6, 7, "s34", "131072")
    make_srd(A, sV, 8, 9, "s34", "131072")
    A("s_lshl_b32 s34, s%d, 8" % sH)
    A("s_sub_u32 s35, %d, s34" % (512 * 8192))
    make_srd(A, sW, 10, 11, "s34", "s35")
    A("s_mul_i32 s35, s%d, 147456" % sB)
    make_srd(A, sX, 4, 5, "s35", "147456")
    A("s_mul_i32 s35, s%d, %d" % (sBr, O_BRANCH_BYTES))
    A("s_lshl_b32 s56, s%d, 5" % sB)
    A("s_add_u32 s56, s56, s%d" % sH)
    A("s_mul_i32 s56, s56, 36864")
    A("s_add_u32 s35, s35, s56")
    make_srd(A, sO, 28, 29, "s35", "36864")
    sRot, sRotK = 68, 69
    A("s_lshr_b32 s%d, s2, 3" % sRot)
    A("s_add_u32 s%d, s%d, s%d" % (sRot, sRot, sB))
    A("s_lshl_b32 s%d, s%d, 1" % (sRot, sRot))
    A("s_and_b32 s%d, s%d, 15" % (sRot, sRot))
    A("s_lshr_b32 s%d, s%d, 1" % (sRotK, sRot))
    sC, sW1k, sT, sT2, sW4k, sThr = 56, 57, 58, 59, 70, 71
    A("s_mov_b32 s%d, 0x%08x" % (sC, f32bits(SCALE_C)))
    A("s_mov_b32 s%d, 0x%08x" % (sThr, f32bits(THR)))
    A("s_lshl_b32 s%d, s%d, 10" % (sW1k, sWv))
    A("s_lshl_b32 s%d, s%d, 12" % (sW4k, sWv))

    g, lo = T0, T1
    VLIN = 92
    A("v_lshrrev_b32 v%d, 4, v%d" % (g, LANE))
    A("v_and_b32 v%d, 15, v%d" % (lo, LANE))
    A("s_lshl_b32 s%d, s%d, 2" % (sT, sWv))
    A("v_add_u32 v%d, s%d, v%d" % (T2, sT, g))
    A("v_xor_b32 v%d, v%d, v%d" % (T3, lo, T2))
    A("v_lshlrev_b32 v%d, 4, v%d" % (T3, T3))
    A("v_lshl_add_u32 v%d, v%d, 8, v%d" % (VKD, T2, T3))
    A("v_and_b32 v%d, 7, v%d" % (T3, T2))
    A("v_lshlrev_b32 v%d, 1, v%d" % (T3, T3))
    A("v_xor_b32 v%d, v%d, v%d" % (T3, lo, T3))
    A("v_lshlrev_b32 v%d, 4, v%d" % (T3, T3))
    A("v_lshl_add_u32 v%d, v%d, 8, v%d" % (VVD, T2, T3))
    A("v_lshlrev_b32 v%d, 4, v%d" % (T3, lo))
    A("v_lshl_add_u32 v%d, v%d, 8, v%d" % (VLIN, T2, T3))

    KS = lambda j: ((j + 2) % 3) * 16384
    VS = lambda j: 49152 + (j % 2) * 16384

    def blk_off(j, i):
        if i == 0:
            A("s_add_u32 s%d, s%d, %d" % (sT2, sRotK, j))
            A("s_and_b32 s%d, s%d, 7" % (sT2, sT2))
            A("s_lshl_b32 s%d, s%d, 14" % (sT2, sT2))
        else:
            A("s_add_u32 s%d, s%d, 4096" % (sT2, sT2))

    def kv_dma(vq, isv, j):
        if "nokv" in EXP and j >= 2:
            return
        srd, vd, base = (sV, VVD, VS(j)) if isv else (sK, VKD, KS(j))
        for i in range(4):
            A("s_add_u32 m0, s%d, %d" % (sW1k, base + i * 4096))
            blk_off(j, i)
            A("buffer_load_dwordx4 v%d, %s, s%d offen %slds" % (vd, sr(srd, 4), sT2, KVPOL))
            vq.issue(("v" if isv else "k", j))

    PRE = 208

    def pre_load(n, half):
        def fn(A, vq):
            for i in range(2 * half, 2 * half + 2):
                A("s_lshl_b32 s%d, s%d, 14" % (sT2, sRotK))
                if i:
                    A("s_add_u32 s%d, s%d, %d" % (sT2, sT2, 4096 * i))
                A("buffer_load_dwordx4 %s, v%d, %s, s%d offen %s" % (vr(PRE + n * 16 + i * 4, 4), VLIN, sr(sK if n == 0 else sV, 4), sT2, KVPOL))
                vq.issue(("pre", 0))
        return fn

    R = dict(acc=0, xr=96, fr=144, wrd=72, wdma=80, vx=82, lane=LANE, t0=T0, t1=T1, t2=T2, t3=T3,
             sq0=60, swb=62, sm0=63, st=64, sk=65, sx=66, sw1k=67)

    def h12(A, vq):
        kv_dma(vq, 0, 1)
        kv_dma(vq, 1, 1)
    def seq(*fs):
        def fn(A, vq):
            for f in fs:
                f(A, vq)
        return fn
    PREV = os.environ.get("PREV", "0")
    if PREV == "0":
        hooks = {1: pre_load(0, 0), 3: pre_load(0, 1), 5: pre_load(1, 0), 7: pre_load(1, 1)}
    elif PREV == "1":
        hooks = {0: seq(pre_load(0, 0), pre_load(0, 1)), 1: seq(pre_load(1, 0), pre_load(1, 1))}
    elif PREV == "3":
        hooks = {7: pre_load(0, 0), 8: pre_load(0, 1), 9: pre_load(1, 0), 10: pre_load(1, 1)}
    elif PREV == "4":
        hooks = {5: pre_load(0, 0), 6: pre_load(0, 1), 7: pre_load(1, 0), 8: pre_load(1, 1)}
    elif PREV == "2":
        hooks = {-1: seq(pre_load(0, 0), pre_load(0, 1), pre_load(1, 0), pre_load(1, 1))}
    L2P = os.environ.get("L2P", "")

    def l2pre(items):
        def fn(A, vq):
            for (isv, jj, i) in items:
                A("s_add_u32 s%d, s%d, %d" % (sT2, sRotK, jj))
                A("s_and_b32 s%d, s%d, 7" % (sT2, sT2))
                A("s_lshl_b32 s%d, s%d, 14" % (sT2, sT2))
                A("s_add_u32 s%d, s%d, %d" % (sT2, sT2, 4096 * i))
                A("buffer_load_dwordx4 v[88:91], v%d, %s, s%d offen %s" % (VLIN, sr(sV if isv else sK, 4), sT2, L2P.replace("d", "")))
                vq.issue(("l2p", 0))
        return fn
    if L2P:
        lst = [(0, 1, i) for i in range(4)] + [(1, 1, i) for i in range(4)] + [(0, 2, i) for i in range(4)]
        for k, st_ in enumerate((2, 4, 6, 8, 9, 10)):
            hooks[st_] = l2pre(lst[2 * k: 2 * k + 2])
    hooks.update({12: h12, 14: lambda A, vq: kv_dma(vq, 0, 2)})
    vq = gemm_phase(A, 16, 8192, "nat", sW, sX, sWv, sRot, R, hooks)
    if ("pre", 0) in vq.q:
        A("s_waitcnt vmcnt(%d)" % vq.wait_for({("pre", 0)}))
    if "p1only" in EXP:
        A("s_waitcnt vmcnt(0)")
        A("s_branch L1_done")

    stamp(A, 4)
    SCR = 32768
    TA = 240
    A("v_lshrrev_b32 v%d, 4, v%d" % (g, LANE))
    A("v_and_b32 v%d, 15, v%d" % (lo, LANE))
    A("s_lshl_b32 s%d, s%d, 2" % (sT, sWv))
    A("v_lshrrev_b32 v%d, 1, v%d" % (T2, g))
    A("v_or_b32 v%d, s%d, v%d" % (T2, sT, T2))
    A("v_xor_b32 v%d, v%d, v%d" % (T2, T2, lo))
    A("v_lshlrev_b32 v%d, 4, v%d" % (T2, T2))
    A("v_lshl_add_u32 v%d, v%d, 8, v%d" % (T2, lo, T2))
    A("v_and_b32 v%d, 1, v%d" % (T3, g))
    A("v_lshl_add_u32 v%d, v%d, 3, v%d" % (T2, T3, T2))
    A("v_add_u32 v%d, s%d, v%d" % (T3, sW4k, T2))
    A("v_xor_b32 v%d, v%d, v%d" % (T4, g, lo))
    A("v_lshlrev_b32 v%d, 4, v%d" % (T4, T4))
    A("v_lshl_add_u32 v%d, v%d, 8, v%d" % (T4, lo, T4))
    A("v_add_u32 v%d, s%d, v%d" % (T5, sW4k, T4))
    PK = 144
    for dl in range(8):
        A("v_xor_b32 v%d, %d, v%d" % (TA + (dl & 3), dl << 5, T3))
        for t in range(2):
            a = (t * 8 + dl) * 4
            pk = PK + t * 16 + dl * 2
            A("v_cvt_pk_bf16_f32 v%d, v%d, v%d" % (pk, a, a + 1))
            A("v_cvt_pk_bf16_f32 v%d, v%d, v%d" % (pk + 1, a + 2, a + 3))
            A("ds_write_b64 v%d, %s offset:%d" % (TA + (dl & 3), vr(pk, 2), SCR + t * 16384))
    for ds in range(4):
        A("v_xor_b32 v%d, %d, v%d" % (TA + ds, ds << 6, T5))
        for t in range(2):
            A("ds_read_b128 %s, v%d offset:%d" % (vr(QF + t * 16 + ds * 4, 4), TA + ds, SCR + t * 16384))
    for dl in range(2):
        a = 64 + dl * 4
        A("v_cvt_pk_bf16_f32 v%d, v%d, v%d" % (176 + dl * 2, a, a + 1))
        A("v_cvt_pk_bf16_f32 v%d, v%d, v%d" % (176 + dl * 2 + 1, a + 2, a + 3))
        A("v_xor_b32 v%d, %d, v%d" % (T0 + dl, dl << 5, T3))
        A("ds_write_b64 v%d, %s offset:%d" % (T0 + dl, vr(176 + dl * 2, 2), SCR))
    A("s_waitcnt lgkmcnt(0)")
    A("s_barrier")
    for ds in range(4):
        A("v_xor_b32 v%d, %d, v%d" % (TA + ds, ds << 6, T4))
        A("ds_read_b128 %s, v%d offset:%d" % (vr(QF + 32 + ds * 4, 4), TA + ds, SCR + ds * 4096))
    for i in range(4):
        A("v_mov_b32 v%d, 0x3f803f80" % (ONES + i))
    A("s_waitcnt lgkmcnt(0)")
    A("s_barrier")
    for n in range(2):
        for i in range(4):
            A("ds_write_b128 v%d, %s offset:%d" % (VKD if n == 0 else VVD, vr(PRE + n * 16 + i * 4, 4), (KS(0) if n == 0 else VS(0)) + i * 4096))
    A("s_waitcnt lgkmcnt(0)")
    for ds in range(4):
        A("v_xor_b32 v%d, %d, v%d" % (KA + ds, ds << 6, T4))
    A("v_lshrrev_b32 v%d, 2, v%d" % (T2, LANE))
    A("v_and_b32 v%d, 7, v%d" % (T3, T2))
    A("v_lshlrev_b32 v%d, 5, v%d" % (T3, T3))
    A("v_lshl_add_u32 v%d, v%d, 8, v%d" % (T3, T2, T3))
    A("v_and_b32 v%d, 3, v%d" % (T2, LANE))
    A("v_lshl_add_u32 v%d, v%d, 3, v%d" % (T3, T2, T3))
    A("v_add_u32 v%d, 49152, v%d" % (T3, T3))
    for dt in range(8):
        A("v_xor_b32 v%d, %d, v%d" % (VA + dt, dt << 5, T3))
    for t in range(3):
        A("v_mov_b32 v%d, 0xf149f2ca" % (M + t))
    stamp(A, 5)
    prio("b", 0)
    prio("c", 1)

    NKF = 2
    for j in range(8):
        if j == int(os.environ.get("PJ", "5")):
            prio("d", 0)
            prio("e", 1)
        ONEB = os.environ.get("ONEB", "0") == "1"
        n = vq.wait_for({("k", j), ("v", j)} if ONEB else {("k", j)})
        A("s_waitcnt vmcnt(%d)" % n)
        if "nobar" not in EXP:
            A("s_barrier")
        if 1 <= j < 7:
            kv_dma(vq, 1, j + 1)
        if ONEB and 1 <= j and j + 2 < 8:
            kv_dma(vq, 0, j + 2)
        kb = KS(j)

        def kreads(l):
            buf = F + (l & 1) * 16
            for ds in range(4):
                if l < 4:
                    A("ds_read_b128 %s, v%d offset:%d" % (vr(buf + ds * 4, 4), KA + ds, kb + l * 4096))
                else:
                    A("v_add_u32 v%d, s%d, v%d" % (buf + ds * 4, sW4k, KA + ds))
                    A("ds_read_b128 %s, v%d offset:%d" % (vr(buf + ds * 4, 4), buf + ds * 4, kb))

        MX, TM = T3, T0

        def maxops(l):
            out = []
            for t in range(2):
                s0 = S + t * 16 + l * 4
                if l == 0:
                    out.append("v_max3_f32 v%d, v%d, v%d, v%d" % (MX + t, s0, s0 + 1, s0 + 2))
                    out.append("v_max_f32 v%d, v%d, v%d" % (MX + t, MX + t, s0 + 3))
                else:
                    out.append("v_max3_f32 v%d, v%d, v%d, v%d" % (MX + t, MX + t, s0, s0 + 1))
                    out.append("v_max3_f32 v%d, v%d, v%d, v%d" % (MX + t, MX + t, s0 + 2, s0 + 3))
            return [out[0], out[2], out[1], out[3]]

        DYN = os.environ.get("DYN", "20")
        SPEC = os.environ.get("SPEC", "1") == "1" and j > 0

        def pexp(t, lo_, hi_):
            s0 = S + t * 16
            out = []
            for i in range(lo_, hi_):
                out.append("v_fma_f32 v%d, v%d, s%d, -v%d" % (s0 + i, s0 + i, sC, M + t))
            for i in range(lo_, hi_):
                out.append("v_exp_f32 v%d, v%d" % (s0 + i, s0 + i))
            for i in range(lo_, hi_, 2):
                out.append("v_cvt_pk_bf16_f32 v%d, v%d, v%d" % (s0 + (i // 8) * 8 + (i % 8) // 2, s0 + i, s0 + i + 1))
            return out

        if SPEC:
            A.label("L1_redo%d" % j)
        kreads(0)
        kreads(1)
        if DYN:
            A("s_setprio %s" % DYN[0])
        for l in range(5):
            A("s_waitcnt lgkmcnt(%d)" % (4 if l < 4 else 0))
            if SPEC:
                mo = []
                if 1 <= l <= 3:
                    mo = maxops(l - 1) + pexp(0, 4 * (l - 1), 4 * l) + pexp(1, 4 * (l - 1), 4 * l)
            else:
                mo = maxops(l - 2) if l >= 2 else []
            nm = 0
            for ds in range(4):
                fa = vr(F + (l & 1) * 16 + ds * 4, 4)
                for t in ((0, 1) if l < 4 else (2,)):
                    d = S + t * 16 + l * 4 if t < 2 else S + 32
                    c = "0" if ds == 0 else vr(d, 4)
                    A("v_mfma_f32_16x16x32_bf16 %s, %s, %s, %s" % (vr(d, 4), fa, vr(QF + t * 16 + ds * 4, 4), c))
                    nm += 1
                    if SPEC and nm >= 3:
                        for o in mo[:4]:
                            A(o)
                        mo = mo[4:]
                if mo and not SPEC:
                    A(mo[ds])
            if l + 2 < 5:
                kreads(l + 2)
        if DYN:
            A("s_setprio %s" % DYN[1])
        for o in maxops(3):
            A(o)
        A("v_max3_f32 v%d, v%d, v%d, v%d" % (MX + 2, S + 32, S + 33, S + 34))
        A("v_max_f32 v%d, v%d, v%d" % (MX + 2, MX + 2, S + 35))

        def crossmax():
            for t in range(3):
                A("v_mov_b32 v%d, v%d" % (TM + t, MX + t))
            for t in range(3):
                A("v_permlane32_swap_b32 v%d, v%d" % (MX + t, TM + t))
            for t in range(3):
                A("v_max_f32 v%d, v%d, v%d" % (MX + t, MX + t, TM + t))
            for t in range(3):
                A("v_mov_b32 v%d, v%d" % (TM + t, MX + t))
            for t in range(3):
                A("v_permlane16_swap_b32 v%d, v%d" % (MX + t, TM + t))
            for t in range(3):
                A("v_max_f32 v%d, v%d, v%d" % (MX + t, MX + t, TM + t))
        for t in range(3):
            A("v_fma_f32 v%d, v%d, s%d, -v%d" % (TM + t, MX + t, sC, M + t))
        A("v_max3_f32 v%d, v%d, v%d, v%d" % (TM, TM, TM + 1, TM + 2))
        A("v_cmp_lt_f32 s[72:73], s%d, v%d" % (sThr, TM))

        def rescale():
            crossmax()
            for t in range(3):
                A("v_mul_f32 v%d, s%d, v%d" % (MX + t, sC, MX + t))
                A("v_max_f32 v%d, v%d, v%d" % (MX + t, MX + t, M + t))
                A("v_sub_f32 v%d, v%d, v%d" % (TM, M + t, MX + t))
                A("v_exp_f32 v%d, v%d" % (TM, TM))
                A("v_mov_b32 v%d, v%d" % (M + t, MX + t))
                if j > 0:
                    for i in range(32):
                        A("v_mul_f32 v%d, v%d, v%d" % (O + t * 32 + i, O + t * 32 + i, TM))
                    for i in range(4):
                        A("v_mul_f32 v%d, v%d, v%d" % (LACC + t * 4 + i, LACC + t * 4 + i, TM))

        if SPEC:
            A("s_nop 1")
            A("s_cmp_lg_u64 s[72:73], 0")
            A("s_cbranch_scc0 L1_nr%d" % j)
            rescale()
            A.flush()
            A("s_branch L1_redo%d" % j)
            A.label("L1_nr%d" % j)
        if not ONEB:
            n = vq.wait_for({("v", j)})
            A("s_waitcnt vmcnt(%d)" % n)
            if "nobar" not in EXP:
                A("s_barrier")
        vb = VS(j) - 49152
        NF = 9

        def vreads(f):
            buf = F + (f % NF) * 4
            if f < 16:
                u, dt = f // 8, f % 8
                for hh in range(2):
                    A("ds_read_b64_tr_b16 %s, v%d offset:%d" % (vr(buf + hh * 2, 2), VA + dt, vb + (2 * u + hh) * 4096))
            else:
                for hh in range(2):
                    dt = (f - 16) * 2 + hh
                    A("v_add_u32 v%d, s%d, v%d" % (buf + hh * 2, sW4k, VA + dt))
                    A("ds_read_b64_tr_b16 %s, v%d offset:%d" % (vr(buf + hh * 2, 2), buf + hh * 2, vb))

        PD = 7
        for f in range(PD):
            vreads(f)
        if j + 3 < 8 and not ONEB:
            kv_dma(vq, 0, j + 3)
        if not SPEC:
            A("s_cmp_lg_u64 s[72:73], 0")
            A("s_cbranch_scc0 L1_nr%d" % j)
            rescale()
            A.label("L1_nr%d" % j)
            for t in range(2):
                for o in pexp(t, 0, 8):
                    A(o)
            pend = pexp(0, 8, 16) + pexp(1, 8, 16) + pexp(2, 0, 4)
        else:
            pend = pexp(0, 12, 16) + pexp(1, 12, 16) + pexp(2, 0, 4)

        def rowsum(u):
            for t in range(2):
                d = vr(LACC + t * 4, 4)
                A("v_mfma_f32_16x16x32_bf16 %s, %s, %s, %s" % (d, vr(ONES, 4), vr(S + t * 16 + u * 8, 4), "0" if (j == 0 and u == 0) else d))

        if DYN:
            A("s_setprio %s" % DYN[0])
        rowsum(0)
        for f in range(20):
            if f == 8:
                rowsum(1)
                d = vr(LACC + 8, 4)
                A("v_mfma_f32_16x16x16_bf16 %s, %s, %s, %s" % (d, vr(ONES, 2), vr(S + 32, 2), "0" if j == 0 else d))
            if f % 2 == 0:
                rem = min(20, f + PD) - (f + 2)
                A("s_waitcnt lgkmcnt(%d)" % (2 * rem))
            fa = F + (f % NF) * 4
            if f < 16:
                u, dt = f // 8, f % 8
                for t in range(2):
                    d = vr(O + t * 32 + dt * 4, 4)
                    A("v_mfma_f32_16x16x32_bf16 %s, %s, %s, %s" % (d, vr(fa, 4), vr(S + t * 16 + u * 8, 4), "0" if (j == 0 and u == 0) else d))
                    k = 4 if f < 7 else len(pend)
                    if t == 1 and f < 7:
                        k = 3
                    if SPEC and f < 7:
                        k = 2
                    for o in pend[:k]:
                        A(o)
                    pend = pend[k:]
            else:
                for hh in range(2):
                    dt = (f - 16) * 2 + hh
                    d = vr(O + 64 + dt * 4, 4)
                    A("v_mfma_f32_16x16x16_bf16 %s, %s, %s, %s" % (d, vr(fa + hh * 2, 2), vr(S + 32, 2), "0" if j == 0 else d))
            if f + PD < 20:
                vreads(f + PD)

    stamp(A, 6)
    A("s_barrier")
    A("v_lshlrev_b32 v%d, 4, v%d" % (T2, LANE))
    A("s_lshl_b32 s%d, s%d, 13" % (sT, sWv))
    A("v_add_u32 v%d, s%d, v%d" % (T3, sT, T2))
    for dt in range(8):
        A("ds_write_b128 v%d, %s offset:%d" % (T3, vr(O + 64 + dt * 4, 4), dt * 1024))
    A("v_and_b32 v%d, 15, v%d" % (T4, LANE))
    A("v_lshlrev_b32 v%d, 3, v%d" % (T4, T4))
    A("s_lshl_b32 s%d, s%d, 7" % (sT, sWv))
    A("v_add_u32 v%d, s%d, v%d" % (T5, sT, T4))
    A("v_mov_b32 v%d, v%d" % (KA + 1, M + 2))
    A("v_mov_b32 v%d, v%d" % (KA + 2, LACC + 8))
    A("ds_write_b64 v%d, %s offset:32768" % (T5, vr(KA + 1, 2)))
    VO = T2
    A("s_lshl_b32 s%d, s%d, 13" % (sT, sWv))
    for t in range(2):
        A("v_rcp_f32 v%d, v%d" % (T1, LACC + t * 4))
        for i in range(32):
            A("v_mul_f32 v%d, v%d, v%d" % (O + t * 32 + i, O + t * 32 + i, T1))
        for ds in range(4):
            a = O + t * 32 + ds * 8
            pk = QF + t * 16 + ds * 4
            for i in range(4):
                A("v_cvt_pk_bf16_f32 v%d, v%d, v%d" % (pk + i, a + 2 * i, a + 2 * i + 1))
            A("buffer_store_dwordx4 %s, v%d, %s, s%d offen offset:%d%s" % (vr(pk, 4), VO, sr(sO, 4), sT, 1024 * ds, " sc1" if FUSED else " " + OPOL))
        if t == 0:
            A("s_add_u32 s%d, s%d, 4096" % (sT, sT))
    A("s_waitcnt lgkmcnt(0)")
    A("s_barrier")
    ML = S
    OP = F
    for w2 in range(4):
        A("ds_read_b64 %s, v%d offset:%d" % (vr(ML + 2 * w2, 2), T4, 32768 + w2 * 128))
    A("s_lshl_b32 s%d, s%d, 11" % (sT, sWv))
    A("v_add_u32 v%d, s%d, v%d" % (T3, sT, T2))
    for w2 in range(4):
        for dd in range(2):
            A("ds_read_b128 %s, v%d offset:%d" % (vr(OP + (w2 * 2 + dd) * 4, 4), T3, w2 * 8192 + dd * 1024))
    A("s_waitcnt lgkmcnt(0)")
    A("v_max3_f32 v%d, v%d, v%d, v%d" % (T1, ML, ML + 2, ML + 4))
    A("v_max_f32 v%d, v%d, v%d" % (T1, T1, ML + 6))
    for w2 in range(4):
        A("v_sub_f32 v%d, v%d, v%d" % (ML + 2 * w2, ML + 2 * w2, T1))
        A("v_exp_f32 v%d, v%d" % (ML + 2 * w2, ML + 2 * w2))
    A("v_mul_f32 v%d, v%d, v%d" % (T5, ML, ML + 1))
    for w2 in range(1, 4):
        A("v_fma_f32 v%d, v%d, v%d, v%d" % (T5, ML + 2 * w2, ML + 2 * w2 + 1, T5))
    A("v_rcp_f32 v%d, v%d" % (T5, T5))
    for w2 in range(4):
        A("v_mul_f32 v%d, v%d, v%d" % (ML + 2 * w2, ML + 2 * w2, T5))
    for dd in range(2):
        for r in range(4):
            d = O + dd * 4 + r
            A("v_mul_f32 v%d, v%d, v%d" % (d, OP + dd * 4 + r, ML))
            for w2 in range(1, 4):
                A("v_fma_f32 v%d, v%d, v%d, v%d" % (d, OP + (w2 * 2 + dd) * 4 + r, ML + 2 * w2, d))
    A("s_lshl_b32 s%d, s%d, 10" % (sT, sWv))
    A("s_add_u32 s%d, s%d, %d" % (sT, sT, 8 * 4096))
    for i in range(4):
        A("v_cvt_pk_bf16_f32 v%d, v%d, v%d" % (QF + 32 + i, O + 2 * i, O + 2 * i + 1))
    A("buffer_store_dwordx4 %s, v%d, %s, s%d offen%s" % (vr(QF + 32, 4), VO, sr(sO, 4), sT, " sc1" if FUSED else " " + OPOL))
    if FUSED:
        A("s_waitcnt vmcnt(0)")
        A("s_barrier")
        A("s_cmp_eq_u32 s%d, 0" % sWv)
        A("s_cbranch_scc0 L1_nopub")
        A("s_lshl_b32 s%d, s%d, 3" % (sT, sBr))
        A("s_add_u32 s%d, s%d, s%d" % (sT, sT, sB))
        A("s_lshl_b32 s%d, s%d, 2" % (sT, sT))
        A("s_lshr_b32 s%d, s%d, 3" % (sT2, sH))
        A("s_add_u32 s%d, s%d, s%d" % (sT, sT, sT2))
        A("s_lshl_b32 s%d, s%d, 2" % (sT, sT))
        A("s_mov_b64 exec, 1")
        A("v_mov_b32 v%d, s%d" % (T0, sT))
        A("v_mov_b32 v%d, 1" % T1)
        A("global_atomic_add v%d, v%d, s[26:27] sc1" % (T0, T1))
        A("s_waitcnt vmcnt(0)")
        A("s_mov_b64 exec, -1")
        A.label("L1_nopub")
    if STAMP:
        A("s_waitcnt vmcnt(0)")
    stamp(A, 7)
    dump_stamps(A, 8, 0, sWv, 240)
    A.label("L1_done")
    A("s_endpgm")


def kernel_oproj3(A):
    K2 = "oproj_kernel"
    A.raw(".globl %s\n.p2align 8\n.type %s,@function\n%s:" % (K2, K2, K2))
    A("s_cmp_ge_u32 s2, 192")
    A("s_cbranch_scc1 L2_done")
    stamp(A, 0)
    load_kernargs(A)
    sBr, sMt, sNt, sW8 = 30, 31, 32, 33
    A("s_and_b32 s35, s2, 7")
    A("s_lshr_b32 s%d, s35, 2" % sBr)
    A("s_and_b32 s35, s35, 3")
    A("s_mul_i32 s35, s35, 3")
    A("s_lshr_b32 s36, s2, 3")
    A("s_and_b32 s%d, s36, 7" % sNt)
    A("s_lshr_b32 s36, s36, 3")
    A("s_add_u32 s%d, s35, s36" % sMt)
    ACC, XR, FR = 0, 96, 168
    WD, VX, RD = 200, 201, 202
    LANE, T0, T1, T2, T3 = 206, 207, 208, 209, 210
    A("v_and_b32 v%d, 63, v0" % LANE)
    A("v_lshrrev_b32 v%d, 6, v0" % T0)
    A("v_readfirstlane_b32 s%d, v%d" % (sW8, T0))
    A("s_waitcnt lgkmcnt(0)")
    stamp(A, 6)
    A("s_cmp_eq_u32 s%d, 0" % sBr)
    A("s_cselect_b64 s[12:13], s[12:13], s[22:23]")
    sW, sX, sO = 44, 48, 52
    A("s_lshl_b32 s36, s%d, 7" % sNt)
    A("s_sub_u32 s37, %d, s36" % (4096 * 1024))
    make_srd(A, sW, 12, 13, "s36", "s37")
    A("s_mul_i32 s35, s%d, %d" % (sBr, O_BRANCH_BYTES))
    make_srd(A, sX, 28, 29, "s35", "%d" % O_BRANCH_BYTES)
    A("s_mul_i32 s35, s%d, %d" % (sMt, 96 * 2048))
    A("s_lshl_b32 s37, s%d, 10" % sBr)
    A("s_add_u32 s36, s36, s37")
    A("s_add_u32 s35, s35, s36")
    A("s_sub_u32 s37, %d, s36" % (96 * 2048))
    make_srd(A, sO, 24, 25, "s35", "s37")
    sQ = 56
    A("s_mul_i32 s35, s%d, 6" % sMt)
    for i in range(6):
        A("s_add_u32 s36, s35, %d" % i)
        A("s_mul_i32 s37, s36, 57")
        A("s_lshr_b32 s37, s37, 9")
        A("s_mul_i32 s38, s37, 9")
        A("s_sub_u32 s38, s36, s38")
        A("s_mul_i32 s37, s37, %d" % (32 * 36864))
        A("s_lshl_b32 s38, s38, 12")
        A("s_add_u32 s%d, s37, s38" % (sQ + i))
    sRot, sk, st, sx, sL = 62, 63, 64, 65, 66
    A("s_lshl_b32 s%d, s%d, 1" % (sRot, sNt))
    A("s_mul_i32 s35, s%d, 5" % sMt)
    A("s_add_u32 s%d, s%d, s35" % (sRot, sRot))
    if os.environ.get("ROTM"):
        A("s_mul_i32 s35, s%d, 3" % sMt)
        A("s_add_u32 s%d, s%d, s35" % (sRot, sNt))
        A("s_and_b32 s%d, s%d, %s" % (sRot, sRot, os.environ.get("ROTM")))
    A("s_lshl_b32 s%d, s%d, 14" % (sL, sW8))
    A("v_bfe_u32 v%d, v%d, 1, 2" % (T0, LANE))
    A("v_lshrrev_b32 v%d, 4, v%d" % (T1, LANE))
    A("v_xor_b32 v%d, v%d, v%d" % (T0, T0, T1))
    A("v_lshlrev_b32 v%d, 5, v%d" % (T0, T0))
    A("v_and_b32 v%d, 1, v%d" % (T1, LANE))
    A("v_lshl_add_u32 v%d, v%d, 4, v%d" % (T0, T1, T0))
    A("v_lshrrev_b32 v%d, 3, v%d" % (T1, LANE))
    A("v_lshl_add_u32 v%d, v%d, 10, v%d" % (WD, T1, T0))
    A("v_lshlrev_b32 v%d, 4, v%d" % (VX, LANE))
    A("v_lshrrev_b32 v%d, 2, v%d" % (T0, LANE))
    A("v_bfe_u32 v%d, v%d, 3, 2" % (T1, LANE))
    A("v_lshlrev_b32 v%d, 5, v%d" % (T1, T1))
    A("v_lshl_add_u32 v%d, v%d, 7, v%d" % (T1, T0, T1))
    A("v_and_b32 v%d, 3, v%d" % (T0, LANE))
    A("v_lshl_add_u32 v%d, v%d, 3, v%d" % (T1, T0, T1))
    A("v_add_u32 v%d, s%d, v%d" % (RD, sL, T1))
    for nt in range(1, 4):
        A("v_xor_b32 v%d, %d, v%d" % (RD + nt, nt << 5, RD))
    vq = VmQ()
    NS, XD, NK = 4, 3, 16

    def kidx(i):
        A("s_add_u32 s%d, s%d, %d" % (sk, sRot, i))
        A("s_and_b32 s%d, s%d, 15" % (sk, sk))
        A("s_lshl_b32 s%d, s%d, 3" % (sk, sk))
        A("s_add_u32 s%d, s%d, s%d" % (sk, sk, sW8))

    def dma_w(i):
        A("s_lshl_b32 s%d, s%d, 15" % (st, sk))
        for m in range(4):
            A("s_add_u32 m0, s%d, %d" % (sL, (i % NS) * 4096 + m * 1024))
            if m:
                A("s_add_u32 s%d, s%d, 8192" % (st, st))
            A("buffer_load_dwordx4 v%d, %s, s%d offen lds" % (WD, sr(sW, 4), st))
            vq.issue(("w", i))

    def xload(i):
        A("s_lshr_b32 s%d, s%d, 2" % (sx, sk))
        A("s_mul_i32 s%d, s%d, 36864" % (sx, sx))
        A("s_and_b32 s%d, s%d, 3" % (st, sk))
        A("s_lshl_b32 s%d, s%d, 10" % (st, st))
        A("s_add_u32 s%d, s%d, s%d" % (sx, sx, st))
        for q in range(6):
            A("s_add_u32 s%d, s%d, s%d" % (st, sx, sQ + q))
            A("buffer_load_dwordx4 %s, v%d, %s, s%d offen" % (vr(XR + (i % XD) * 24 + q * 4, 4), VX, sr(sX, 4), st))
            vq.issue(("x", i))

    def wreads(i):
        for nt in range(4):
            for hh in range(2):
                A("ds_read_b64_tr_b16 %s, v%d offset:%d" % (vr(FR + (i & 1) * 16 + nt * 4 + hh * 2, 2), RD + nt, (i % NS) * 4096 + hh * 2048))

    for i in range(2):
        kidx(i)
        dma_w(i)
        xload(i)
    kidx(2)
    dma_w(2)
    stamp(A, 1)
    A("s_waitcnt vmcnt(%d)" % vq.wait_for({("w", 0)}))
    stamp(A, 2)
    wreads(0)
    for i in range(NK):
        need = {("x", i)}
        if i + 1 < NK:
            need.add(("w", i + 1))
        A("s_waitcnt vmcnt(%d) lgkmcnt(0)" % vq.wait_for(need))
        if i == NK // 2:
            stamp(A, 3)
        if i + 1 < NK:
            wreads(i + 1)
        if i + 3 < NK:
            kidx(i + 3)
            dma_w(i + 3)
        if i + 2 < NK:
            kidx(i + 2)
            xload(i + 2)
        for nt in range(4):
            for q in range(6):
                a = ACC + (nt * 6 + q) * 4
                c = "0" if i == 0 else vr(a, 4)
                A("v_mfma_f32_16x16x32_bf16 %s, %s, %s, %s" % (vr(a, 4), vr(FR + (i & 1) * 16 + nt * 4, 4), vr(XR + (i % XD) * 24 + q * 4, 4), c))
    stamp(A, 4)
    A("s_lshl_b32 s35, s%d, 13" % sW8)
    A("v_add_u32 v%d, s35, v%d" % (T0, VX))
    A("s_lshl_b32 s35, s%d, 10" % sW8)
    A("v_add_u32 v%d, s35, v%d" % (T1, VX))
    Y = 96
    for rnd in range(3):
        A("s_barrier")
        for f in range(8):
            A("ds_write_b128 v%d, %s offset:%d" % (T0, vr(ACC + (rnd * 8 + f) * 4, 4), f * 1024))
        A("s_waitcnt lgkmcnt(0)")
        A("s_barrier")
        for w2 in range(8):
            A("ds_read_b128 %s, v%d offset:%d" % (vr(Y + rnd * 32 + w2 * 4, 4), T1, w2 * 8192))
        A("s_waitcnt lgkmcnt(0)")
    A("v_and_b32 v%d, 15, v%d" % (T0, LANE))
    A("v_lshlrev_b32 v%d, 11, v%d" % (T0, T0))
    A("v_lshrrev_b32 v%d, 4, v%d" % (T1, LANE))
    A("v_lshl_add_u32 v%d, v%d, 3, v%d" % (T0, T1, T0))
    for rnd in range(3):
        y = Y + rnd * 32
        for step in (16, 8, 4):
            for i in range(step):
                A("v_add_f32 v%d, v%d, v%d" % (y + i, y + i, y + step + i))
        A("s_add_u32 s35, s%d, %d" % (sW8, 8 * rnd))
        A("s_mul_i32 s36, s35, 43")
        A("s_lshr_b32 s36, s36, 8")
        A("s_mul_i32 s37, s36, 6")
        A("s_sub_u32 s37, s35, s37")
        A("s_lshl_b32 s37, s37, 15")
        A("s_lshl_b32 s36, s36, 5")
        A("s_add_u32 s36, s36, s37")
        A("v_cvt_pk_bf16_f32 v%d, v%d, v%d" % (y + 8, y, y + 1))
        A("v_cvt_pk_bf16_f32 v%d, v%d, v%d" % (y + 9, y + 2, y + 3))
        A("buffer_store_dwordx2 %s, v%d, %s, s36 offen" % (vr(y + 8, 2), T0, sr(sO, 4)))
    if STAMP:
        A("s_waitcnt vmcnt(0)")
        stamp(A, 7)
        A("s_lshr_b32 s98, s%d, 1" % sW8)
        dump_stamps(A, 8, 1, 98, 212)
    A.label("L2_done")
    A("s_endpgm")


def kernel_oproj(A):
    K2 = "oproj_kernel"
    A.raw(".globl %s\n.p2align 8\n.type %s,@function\n%s:" % (K2, K2, K2))
    A("s_cmp_ge_u32 s2, 256")
    A("s_cbranch_scc1 L2_done")
    stamp(A, 0)
    load_kernargs(A)
    sBr, sKq, sB, sNb, sWv, sGr, sW8 = 30, 31, 32, 33, 34, 39, 40
    A("s_and_b32 s35, s2, 7")
    A("s_lshr_b32 s%d, s35, 2" % sBr)
    A("s_and_b32 s%d, s35, 3" % sKq)
    A("s_lshr_b32 s35, s2, 3")
    A("s_lshr_b32 s%d, s35, 2" % sB)
    A("s_and_b32 s%d, s35, 3" % sNb)
    LANE, T0, T1, T2, T3 = 254, 238, 239, 240, 241
    A("v_and_b32 v%d, 63, v0" % LANE)
    A("v_lshrrev_b32 v%d, 6, v0" % T0)
    A("v_readfirstlane_b32 s%d, v%d" % (sW8, T0))
    A("s_and_b32 s%d, s%d, 3" % (sWv, sW8))
    A("s_lshr_b32 s%d, s%d, 2" % (sGr, sW8))
    A("s_waitcnt lgkmcnt(0)")
    stamp(A, 6)
    A("s_cmp_eq_u32 s%d, 0" % sBr)
    A("s_cselect_b64 s[12:13], s[12:13], s[22:23]")
    sW, sX, sP = 44, 48, 52
    A("s_lshl_b32 s35, s%d, 1" % sKq)
    A("s_add_u32 s38, s35, s%d" % sGr)
    A("s_lshl_b32 s35, s38, 19")
    A("s_lshl_b32 s36, s%d, 8" % sNb)
    A("s_add_u32 s35, s35, s36")
    A("s_sub_u32 s37, %d, s36" % (512 * 1024))
    make_srd(A, sW, 12, 13, "s35", "s37")
    A("s_mul_i32 s35, s%d, %d" % (sBr, O_BRANCH_BYTES))
    A("s_lshl_b32 s36, s%d, 3" % sB)
    A("s_add_u32 s36, s36, s38")
    A("s_mul_i32 s36, s36, %d" % (4 * 36864))
    A("s_add_u32 s35, s35, s36")
    make_srd(A, sX, 28, 29, "s35", "%d" % (4 * 36864))
    sRot = 68
    A("s_lshl_b32 s%d, s%d, 1" % (sRot, sNb))
    A("s_add_u32 s%d, s%d, s%d" % (sRot, sRot, sB))
    A("s_lshl_b32 s%d, s%d, 1" % (sRot, sRot))
    PW_ = 5 * 1024 if PBF else 9 * 1024
    PT = 8 * PW_
    sTile = 41
    A("s_lshl_b32 s%d, s%d, 5" % (sTile, sBr))
    A("s_lshl_b32 s35, s%d, 2" % sB)
    A("s_add_u32 s%d, s%d, s35" % (sTile, sTile))
    A("s_add_u32 s%d, s%d, s%d" % (sTile, sTile, sNb))
    A("s_lshl_b32 s35, s%d, 2" % sTile)
    if not FR:
        A("s_add_u32 s35, s35, s%d" % sKq)
    A("s_mul_i32 s35, s35, %d" % PT)
    A("s_mul_i32 s36, s%d, %d" % (sW8, PW_))
    A("s_add_u32 s35, s35, s36")
    A("s_add_u32 s35, s35, %d" % P_BASE)
    make_srd(A, sP, 28, 29, "s35", "%d" % (3 * PT + PW_ if FR else PW_))
    sO = 56
    if FR:
        A("s_mul_i32 s35, s%d, %d" % (sB, 144 * 2048))
        A("s_lshl_b32 s36, s%d, 10" % sBr)
        A("s_lshl_b32 s37, s%d, 8" % sNb)
        A("s_add_u32 s36, s36, s37")
        A("s_add_u32 s35, s35, s36")
        A("s_sub_u32 s37, %d, s36" % (144 * 2048))
        make_srd(A, sO, 24, 25, "s35", "s37")
    A("s_lshl_b32 s69, s%d, 16" % sGr)
    R = dict(acc=0, xr=88, fr=172, wrd=72, wdma=80, vx=82, lane=LANE, t0=T0, t1=T1, t2=T2, t3=T3,
             sq0=60, swb=62, sm0=63, st=64, sk=65, sx=66, sw1k=67, slds=69)
    gemm_phase(A, 16, 1024, "perm", sW, sX, sWv, sRot, R, {})
    stamp(A, 4)
    A("s_barrier")
    A("v_lshlrev_b32 v%d, 4, v%d" % (T0, LANE))
    A("s_mul_i32 s35, s%d, 9216" % sW8)
    A("v_add_u32 v%d, s35, v%d" % (T1, T0))
    A("s_xor_b32 s36, s%d, 4" % sW8)
    A("s_mul_i32 s36, s36, 9216")
    A("v_add_u32 v%d, s36, v%d" % (T2, T0))
    X = 96
    A("s_cmp_eq_u32 s%d, 0" % sGr)
    A("s_cbranch_scc0 L2_grB")
    for grp in range(2):
        keep = range(0, 9) if grp == 0 else range(9, 18)
        give = range(9, 18) if grp == 0 else range(0, 9)
        for i, f in enumerate(give):
            A("ds_write_b128 v%d, %s offset:%d" % (T1, vr(f * 4, 4), i * 1024))
        A("s_waitcnt lgkmcnt(0)")
        A("s_barrier")
        for i in range(9):
            A("ds_read_b128 %s, v%d offset:%d" % (vr(X + i * 4, 4), T2, i * 1024))
        A("s_waitcnt lgkmcnt(0)")
        for i, f in enumerate(keep):
            for r in range(4):
                A("v_add_f32 v%d, v%d, v%d" % (X + i * 4 + r, X + i * 4 + r, f * 4 + r))
        if FR:
            A("v_and_b32 v%d, 15, v%d" % (T3, LANE))
            A("v_lshlrev_b32 v%d, 11, v%d" % (T3, T3))
            A("v_lshrrev_b32 v%d, 4, v%d" % (T1, LANE))
            A("v_lshl_add_u32 v%d, v%d, 3, v%d" % (T3, T1, T3))
            A("s_lshl_b32 s35, s%d, 6" % sWv)
            A("v_add_u32 v%d, s35, v%d" % (T3, T3))
            A("s_lshl_b32 s36, s%d, 16" % sWv)
            for i, f in enumerate(keep):
                t, dl = (f // 8, f % 8) if f < 16 else (2, f - 16)
                A("v_xor_b32 v%d, %d, v%d" % (140 + i, dl << 5, T3))
                if t < 2:
                    A("v_add_u32 v%d, s36, v%d" % (140 + i, 140 + i))
                    if t == 1:
                        A("v_add_u32 v%d, 0x8000, v%d" % (140 + i, 140 + i))
                else:
                    A("v_add_u32 v%d, 0x40000, v%d" % (140 + i, 140 + i))
        if grp == 0:
            A.flush()
            A("s_branch L2_join")
            A.label("L2_grB")
    A.label("L2_join")
    A("s_mov_b32 s35, 0")
    if FR:
        assert PBF
        A("s_lshr_b32 s38, s%d, 1" % sW8)
        A("s_cmp_eq_u32 s38, s%d" % sKq)
        A("s_cbranch_scc1 L2_nostore")
        A("s_mul_i32 s35, s%d, %d" % (sKq, PT))
        for i in range(9):
            A("v_cvt_pk_bf16_f32 v%d, v%d, v%d" % (2 * i, X + 4 * i, X + 4 * i + 1))
            A("v_cvt_pk_bf16_f32 v%d, v%d, v%d" % (2 * i + 1, X + 4 * i + 2, X + 4 * i + 3))
            if i == 8:
                A("s_add_u32 s35, s35, 4096")
            if i % 2 == 1 or i == 8:
                u = i // 2
                A("buffer_store_dwordx4 %s, v%d, %s, s35 offen offset:%d sc1" % (vr(4 * u, 4), T0, sr(sP, 4), (u % 4) * 1024))
        A.label("L2_nostore")
        A("s_waitcnt vmcnt(0)")
        A("s_barrier")
        A("s_cmp_eq_u32 s%d, 0" % sW8)
        A("s_cbranch_scc0 L2_waited")
        A("s_lshl_b32 s35, s%d, 2" % sTile)
        A("v_mov_b32 v%d, s35" % T1)
        A("v_mov_b32 v%d, 1" % T2)
        A("s_mov_b64 exec, 1")
        A("global_atomic_add v%d, v%d, s[26:27] sc1" % (T1, T2))
        A("s_mov_b64 exec, -1")
        A("s_mov_b32 s36, 400000")
        A.label("L2_poll")
        A("global_load_dword v%d, v%d, s[26:27] sc1" % (T2, T1))
        A("s_waitcnt vmcnt(0)")
        A("v_readfirstlane_b32 s35, v%d" % T2)
        A("s_cmp_ge_u32 s35, 4")
        A("s_cbranch_scc1 L2_waited")
        A("s_sleep 2")
        A("s_sub_u32 s36, s36, 1")
        A("s_cmp_lg_u32 s36, 0")
        A("s_cbranch_scc1 L2_poll")
        A.label("L2_waited")
        A("s_barrier")
        A("s_cmp_eq_u32 s38, s%d" % sKq)
        A("s_cbranch_scc0 L2_fin")
        for j in range(1, 4):
            A("s_add_u32 s35, s%d, %d" % (sKq, j))
            A("s_and_b32 s35, s35, 3")
            A("s_mul_i32 s35, s35, %d" % PT)
            for u in range(5):
                if u == 4:
                    A("s_add_u32 s35, s35, 4096")
                A("buffer_load_dwordx4 %s, v%d, %s, s35 offen offset:%d sc1" % (vr((j - 1) * 20 + u * 4, 4), T0, sr(sP, 4), (u % 4) * 1024))
        for j in range(1, 4):
            A("s_waitcnt vmcnt(%d)" % (5 * (3 - j)))
            for i in range(18):
                src = (j - 1) * 20 + i
                A("v_lshlrev_b32 v%d, 16, v%d" % (T1, src))
                A("v_and_b32 v%d, 0xffff0000, v%d" % (T2, src))
                A("v_add_f32 v%d, v%d, v%d" % (X + 2 * i, X + 2 * i, T1))
                A("v_add_f32 v%d, v%d, v%d" % (X + 2 * i + 1, X + 2 * i + 1, T2))
        for i in range(9):
            A("v_cvt_pk_bf16_f32 v%d, v%d, v%d" % (190 + 2 * i, X + 4 * i, X + 4 * i + 1))
            A("v_cvt_pk_bf16_f32 v%d, v%d, v%d" % (191 + 2 * i, X + 4 * i + 2, X + 4 * i + 3))
            A("buffer_store_dwordx2 %s, v%d, %s, 0 offen" % (vr(190 + 2 * i, 2), 140 + i, sr(sO, 4)))
        A.label("L2_fin")
    elif PBF:
        for i in range(9):
            A("v_cvt_pk_bf16_f32 v%d, v%d, v%d" % (2 * i, X + 4 * i, X + 4 * i + 1))
            A("v_cvt_pk_bf16_f32 v%d, v%d, v%d" % (2 * i + 1, X + 4 * i + 2, X + 4 * i + 3))
            if i == 8:
                A("s_mov_b32 s35, 4096")
            if i % 2 == 1 or i == 8:
                u = i // 2
                A("buffer_store_dwordx4 %s, v%d, %s, s35 offen offset:%d %s" % (vr(4 * u, 4), T0, sr(sP, 4), (u % 4) * 1024, PPOL))
    else:
        for i in range(9):
            if i % 4 == 0 and i:
                A("s_add_u32 s35, s35, 4096")
            A("buffer_store_dwordx4 %s, v%d, %s, s35 offen offset:%d" % (vr(X + i * 4, 4), T0, sr(sP, 4), (i % 4) * 1024))
    if STAMP:
        A("s_waitcnt vmcnt(0)")
        stamp(A, 7)
        A("s_lshr_b32 s98, s%d, 1" % sW8)
        dump_stamps(A, 8, 1, 98, 240)
    A.label("L2_done")
    A("s_endpgm")


def role_oproj(A):
    A.label("LF_oproj")
    stamp(A, 0)
    load_kernargs(A)
    sBr, sKq, sB, sNb, sWv = 30, 31, 32, 33, 34
    A("s_sub_u32 s39, s2, 512")
    A("s_and_b32 s35, s39, 7")
    A("s_lshr_b32 s%d, s35, 2" % sBr)
    A("s_and_b32 s%d, s35, 3" % sKq)
    A("s_lshr_b32 s35, s39, 3")
    A("s_lshr_b32 s%d, s35, 2" % sB)
    A("s_and_b32 s%d, s35, 3" % sNb)
    LANE, T0, T1, T2, T3 = 254, 238, 239, 240, 241
    A("v_and_b32 v%d, 63, v0" % LANE)
    A("v_lshrrev_b32 v%d, 6, v0" % T0)
    A("v_readfirstlane_b32 s%d, v%d" % (sWv, T0))
    A("s_waitcnt lgkmcnt(0)")
    A("s_cmp_eq_u32 s%d, 0" % sBr)
    A("s_cselect_b64 s[12:13], s[12:13], s[22:23]")
    sW, sX, sP = 44, 48, 52
    A("s_lshl_b32 s35, s%d, 20" % sKq)
    A("s_lshl_b32 s36, s%d, 8" % sNb)
    A("s_add_u32 s35, s35, s36")
    A("s_sub_u32 s37, %d, s36" % (1024 * 1024))
    make_srd(A, sW, 12, 13, "s35", "s37")
    A("s_mul_i32 s35, s%d, %d" % (sBr, O_BRANCH_BYTES))
    A("s_lshl_b32 s36, s%d, 2" % sB)
    A("s_add_u32 s36, s36, s%d" % sKq)
    A("s_mul_i32 s36, s36, %d" % (8 * 36864))
    A("s_add_u32 s35, s35, s36")
    make_srd(A, sX, 28, 29, "s35", "%d" % (8 * 36864))
    sRot = 68
    A("s_lshl_b32 s%d, s%d, 1" % (sRot, sNb))
    A("s_add_u32 s%d, s%d, s%d" % (sRot, sRot, sB))
    A("s_lshl_b32 s%d, s%d, 2" % (sRot, sRot))
    FB = 512 if PBF else 1024
    PW_ = 18 * FB
    PT = 4 * PW_
    sTile = 41
    A("s_lshl_b32 s%d, s%d, 5" % (sTile, sBr))
    A("s_lshl_b32 s35, s%d, 2" % sB)
    A("s_add_u32 s%d, s%d, s35" % (sTile, sTile))
    A("s_add_u32 s%d, s%d, s%d" % (sTile, sTile, sNb))
    A("s_lshl_b32 s35, s%d, 2" % sTile)
    A("s_add_u32 s35, s35, s%d" % sKq)
    A("s_mul_i32 s35, s35, %d" % PT)
    A("s_mul_i32 s36, s%d, %d" % (sWv, PW_))
    A("s_add_u32 s35, s35, s36")
    A("s_add_u32 s35, s35, %d" % P_BASE)
    make_srd(A, sP, 28, 29, "s35", "%d" % PW_)

    def wait_o(A):
        A("s_cmp_eq_u32 s%d, 0" % sWv)
        A("s_cbranch_scc0 LF_waited")
        A("s_lshl_b32 s35, s%d, 3" % sBr)
        A("s_add_u32 s35, s35, s%d" % sB)
        A("s_lshl_b32 s35, s35, 2")
        A("s_add_u32 s35, s35, s%d" % sKq)
        A("s_lshl_b32 s35, s35, 2")
        A("v_mov_b32 v%d, s35" % T0)
        A("s_mov_b32 s36, 200000")
        A.label("LF_poll")
        A("global_load_dword v%d, v%d, s[26:27] sc1" % (T1, T0))
        A("s_waitcnt vmcnt(0)")
        A("v_readfirstlane_b32 s35, v%d" % T1)
        A("s_cmp_ge_u32 s35, 8")
        A("s_cbranch_scc1 LF_waited")
        A("s_sleep 4")
        A("s_sub_u32 s36, s36, 1")
        A("s_cmp_lg_u32 s36, 0")
        A("s_cbranch_scc1 LF_poll")
        A.label("LF_waited")
        A("s_barrier")
        stamp(A, 6)

    R = dict(acc=0, xr=88, fr=172, wrd=72, wdma=80, vx=82, lane=LANE, t0=T0, t1=T1, t2=T2, t3=T3,
             sq0=60, swb=62, sm0=63, st=64, sk=65, sx=66, sw1k=67, prex=wait_o, xpol="sc1")
    gemm_phase(A, 32, 1024, "perm", sW, sX, sWv, sRot, R, {})
    stamp(A, 4)
    A("s_mov_b32 s35, 0")
    if PBF:
        A("v_lshlrev_b32 v%d, 3, v%d" % (T1, LANE))
        for i in range(18):
            A("v_cvt_pk_bf16_f32 v%d, v%d, v%d" % (96 + 2 * i, 4 * i, 4 * i + 1))
            A("v_cvt_pk_bf16_f32 v%d, v%d, v%d" % (97 + 2 * i, 4 * i + 2, 4 * i + 3))
            if i % 8 == 0 and i:
                A("s_add_u32 s35, s35, 4096")
            A("buffer_store_dwordx2 %s, v%d, %s, s35 offen offset:%d" % (vr(96 + 2 * i, 2), T1, sr(sP, 4), (i % 8) * 512))
    else:
        A("v_lshlrev_b32 v%d, 4, v%d" % (T1, LANE))
        for i in range(18):
            if i % 4 == 0 and i:
                A("s_add_u32 s35, s35, 4096")
            A("buffer_store_dwordx4 %s, v%d, %s, s35 offen offset:%d" % (vr(i * 4, 4), T1, sr(sP, 4), (i % 4) * 1024))
    if STAMP:
        A("s_waitcnt vmcnt(0)")
        stamp(A, 7)
        A("s_mov_b32 s99, s2")
        A("s_sub_u32 s2, s2, 512")
        dump_stamps(A, 8, 1, sWv, 240)
    A("s_endpgm")


def kernel_reduce_pbf(A):
    K3 = "reduce_kernel"
    PT = 40 * 1024
    A.raw(".globl %s\n.p2align 8\n.type %s,@function\n%s:" % (K3, K3, K3))
    A("s_cmp_ge_u32 s2, 640")
    A("s_cbranch_scc1 L3_done")
    A("s_load_dwordx2 s[24:25], s[0:1], 80")
    A("s_load_dwordx2 s[28:29], s[0:1], 96")
    A("v_lshrrev_b32 v1, 6, v0")
    A("v_and_b32 v2, 63, v0")
    A("v_readfirstlane_b32 s30, v1")
    A("s_lshl_b32 s31, s2, 2")
    A("s_add_u32 s30, s30, s31")
    A("s_mul_hi_u32 s31, s30, %d" % ((1 << 32) // 40 + 1))
    A("s_mul_i32 s32, s31, 40")
    A("s_sub_u32 s32, s30, s32")
    A("s_mul_hi_u32 s33, s32, %d" % ((1 << 32) // 5 + 1))
    A("s_mul_i32 s34, s33, 5")
    A("s_sub_u32 s34, s32, s34")
    A("s_mul_i32 s35, s31, %d" % (4 * PT))
    A("s_lshl_b32 s36, s32, 10")
    A("s_add_u32 s35, s35, s36")
    A("s_add_u32 s35, s35, %d" % P_BASE)
    A("s_waitcnt lgkmcnt(0)")
    make_srd(A, 40, 28, 29, "s35", "%d" % (3 * PT + 1024))
    A("v_lshlrev_b32 v3, 4, v2")
    for kq in range(4):
        A("s_mov_b32 s%d, %d" % (48 + kq, kq * PT))
        A("buffer_load_dwordx4 %s, v3, s[40:43], s%d offen" % (vr(40 + kq * 4, 4), 48 + kq))
    A("s_lshr_b32 s52, s31, 5")
    A("s_lshr_b32 s53, s31, 2")
    A("s_and_b32 s53, s53, 7")
    A("s_and_b32 s54, s31, 3")
    A("s_mul_i32 s53, s53, %d" % (144 * 2048))
    A("s_lshl_b32 s52, s52, 10")
    A("s_lshl_b32 s54, s54, 8")
    A("s_add_u32 s53, s53, s52")
    A("s_add_u32 s53, s53, s54")
    A("s_and_b32 s37, s33, 3")
    A("s_lshl_b32 s37, s37, 1")
    A("s_lshr_b32 s55, s33, 2")
    A("s_mul_i32 s55, s55, 9")
    A("s_lshl_b32 s56, s34, 1")
    A("s_add_u32 s55, s55, s56")
    for k in range(2):
        A("s_add_u32 s36, s55, %d" % k)
        A("s_lshr_b32 s38, s36, 3")
        A("s_add_u32 s39, s37, s38")
        A("s_cmp_ge_u32 s36, 16")
        A("s_cselect_b32 s39, 8, s39")
        A("s_and_b32 s36, s36, 7")
        A("s_xor_b32 s36, s36, s37")
        A("s_lshl_b32 s39, s39, 15")
        A("s_lshl_b32 s36, s36, 5")
        A("s_add_u32 s%d, s53, s39" % (57 + k))
        A("s_add_u32 s%d, s%d, s36" % (57 + k, 57 + k))
    A("s_cmp_eq_u32 s34, 4")
    A("s_cselect_b32 s58, 0x7ff00000, s58")
    A("s_mov_b32 s59, 0")
    make_srd(A, 44, 24, 25, "s59", "%d" % (8 * 144 * 1024 * 2))
    A("v_and_b32 v1, 15, v2")
    A("v_lshlrev_b32 v1, 11, v1")
    A("v_lshrrev_b32 v2, 4, v2")
    A("v_lshl_add_u32 v1, v2, 3, v1")
    A("s_waitcnt vmcnt(0)")
    for kq in range(4):
        for h in range(4):
            A("v_lshlrev_b32 v%d, 16, v%d" % (4 + kq * 8 + 2 * h, 40 + kq * 4 + h))
            A("v_and_b32 v%d, 0xffff0000, v%d" % (5 + kq * 8 + 2 * h, 40 + kq * 4 + h))
    for i in range(8):
        A("v_add_f32 v%d, v%d, v%d" % (4 + i, 4 + i, 12 + i))
        A("v_add_f32 v%d, v%d, v%d" % (20 + i, 20 + i, 28 + i))
    for i in range(8):
        A("v_add_f32 v%d, v%d, v%d" % (4 + i, 4 + i, 20 + i))
    for i in range(4):
        A("v_cvt_pk_bf16_f32 v%d, v%d, v%d" % (36 + i, 4 + 2 * i, 5 + 2 * i))
    A("buffer_store_dwordx2 v[36:37], v1, s[44:47], s57 offen")
    A("buffer_store_dwordx2 v[38:39], v1, s[44:47], s58 offen")
    A.label("L3_done")
    A("s_endpgm")


def kernel_reduce(A):
    K3 = "reduce_kernel"
    FB = 512 if PBF else 1024
    PT = 72 * FB
    A.raw(".globl %s\n.p2align 8\n.type %s,@function\n%s:" % (K3, K3, K3))
    A("s_cmp_ge_u32 s2, 1152")
    A("s_cbranch_scc1 L3_done")
    A("s_load_dwordx2 s[24:25], s[0:1], 80")
    A("s_load_dwordx2 s[28:29], s[0:1], 96")
    A("v_lshrrev_b32 v1, 6, v0")
    A("v_and_b32 v2, 63, v0")
    A("v_readfirstlane_b32 s30, v1")
    A("s_lshl_b32 s31, s2, 2")
    A("s_add_u32 s30, s30, s31")
    A("s_mul_hi_u32 s31, s30, %d" % ((1 << 32) // 72 + 1))
    A("s_mul_i32 s32, s31, 72")
    A("s_sub_u32 s32, s30, s32")
    NFW = 18 if FUSED else 9
    A("s_mul_hi_u32 s33, s32, %d" % ((1 << 32) // NFW + 1))
    A("s_mul_i32 s34, s33, %d" % NFW)
    A("s_sub_u32 s34, s32, s34")
    A("s_mul_i32 s35, s31, %d" % (4 * PT))
    A("s_mul_i32 s36, s32, %d" % FB)
    A("s_add_u32 s35, s35, s36")
    A("s_add_u32 s35, s35, %d" % P_BASE)
    A("s_waitcnt lgkmcnt(0)")
    make_srd(A, 40, 28, 29, "s35", "%d" % (3 * PT + FB))
    A("v_lshlrev_b32 v3, %d, v2" % (3 if PBF else 4))
    for kq in range(4):
        A("s_mov_b32 s%d, %d" % (48 + kq, kq * PT))
        if PBF:
            A("buffer_load_dwordx2 %s, v3, s[40:43], s%d offen" % (vr(24 + kq * 2, 2), 48 + kq))
        else:
            A("buffer_load_dwordx4 %s, v3, s[40:43], s%d offen" % (vr(4 + kq * 4, 4), 48 + kq))
    A("s_lshr_b32 s36, s33, 2")
    A("s_mul_i32 s36, s36, 9")
    A("s_add_u32 s36, s36, s34")
    A("s_and_b32 s37, s33, 3")
    A("s_lshl_b32 s37, s37, 1")
    A("s_lshr_b32 s38, s36, 3")
    A("s_add_u32 s39, s37, s38")
    A("s_cmp_ge_u32 s36, 16")
    A("s_cselect_b32 s39, 8, s39")
    A("s_and_b32 s36, s36, 7")
    A("s_xor_b32 s36, s36, s37")
    A("s_lshr_b32 s52, s31, 5")
    A("s_lshr_b32 s53, s31, 2")
    A("s_and_b32 s53, s53, 7")
    A("s_and_b32 s54, s31, 3")
    A("s_mul_i32 s53, s53, 144")
    A("s_lshl_b32 s39, s39, 4")
    A("s_add_u32 s53, s53, s39")
    A("s_lshl_b32 s53, s53, 11")
    A("s_lshl_b32 s52, s52, 10")
    A("s_lshl_b32 s54, s54, 8")
    A("s_lshl_b32 s36, s36, 5")
    A("s_add_u32 s53, s53, s52")
    A("s_add_u32 s53, s53, s54")
    A("s_add_u32 s53, s53, s36")
    A("s_mov_b32 s55, 0")
    make_srd(A, 44, 24, 25, "s55", "%d" % (8 * 144 * 1024 * 2))
    A("v_and_b32 v1, 15, v2")
    A("v_lshlrev_b32 v1, 11, v1")
    A("v_lshrrev_b32 v2, 4, v2")
    A("v_lshl_add_u32 v1, v2, 3, v1")
    A("s_waitcnt vmcnt(0)")
    if PBF:
        for kq in range(4):
            for h in range(2):
                A("v_lshlrev_b32 v%d, 16, v%d" % (4 + kq * 4 + 2 * h, 24 + kq * 2 + h))
                A("v_and_b32 v%d, 0xffff0000, v%d" % (5 + kq * 4 + 2 * h, 24 + kq * 2 + h))
    for i in range(4):
        A("v_add_f32 v%d, v%d, v%d" % (4 + i, 4 + i, 8 + i))
        A("v_add_f32 v%d, v%d, v%d" % (12 + i, 12 + i, 16 + i))
    for i in range(4):
        A("v_add_f32 v%d, v%d, v%d" % (4 + i, 4 + i, 12 + i))
    A("v_cvt_pk_bf16_f32 v20, v4, v5")
    A("v_cvt_pk_bf16_f32 v21, v6, v7")
    A("buffer_store_dwordx2 v[20:21], v1, s[44:47], s53 offen")
    A.label("L3_done")
    A("s_endpgm")


def kd(name, vgpr, sgpr=102):
    return """.amdhsa_kernel %s
  .amdhsa_next_free_vgpr %d
  .amdhsa_next_free_sgpr %d
  .amdhsa_accum_offset %d
  .amdhsa_group_segment_fixed_size 0
  .amdhsa_kernarg_size 104
  .amdhsa_user_sgpr_count 2
  .amdhsa_user_sgpr_kernarg_segment_ptr 1
  .amdhsa_system_sgpr_workgroup_id_x 1
.end_amdhsa_kernel
""" % (name, vgpr, sgpr, (vgpr + 3) // 4 * 4)


def main():
    A = Asm()
    hdr = open(os.path.join(os.path.dirname(os.path.abspath(__file__)), "..", "cdna_kernels", NAME + ".s.ref")).read().split("\n")
    head = [l for l in hdr if l.startswith(";") and "@launch" not in l and "Override launch" not in l and "grid=ceil" not in l]
    out = "\n".join(head) + "\n"
    if FUSED:
        out += "; @launch kernel=attn_kernel grid=(768,1,1) block=(256,1,1) lds=81920\n"
    else:
        out += "; @launch kernel=attn_kernel grid=(512,1,1) block=(256,1,1) lds=81920\n"
        out += "; @launch kernel=oproj_kernel grid=(256,1,1) block=(512,1,1) lds=131072\n"
    if not FR:
        out += "; @launch kernel=reduce_kernel grid=(%d,1,1) block=(256,1,1) lds=0\n" % (640 if (PBF and not FUSED) else 1152)
    if "twice" in EXP:
        out += "; @launch kernel=oproj_kernel grid=(256,1,1) block=(512,1,1) lds=131072\n"
    out += '.amdgcn_target "amdgcn-amd-amdhsa--gfx950"\n.text\n'
    kernel_attn(A)
    if FUSED:
        role_oproj(A)
    else:
        kernel_oproj(A)
    if FR:
        pass
    elif PBF and not FUSED:
        kernel_reduce_pbf(A)
    else:
        kernel_reduce(A)
    out += A.text()
    out += '.section .rodata,"a"\n.p2align 6\n'
    out += kd("attn_kernel", 256, 100 if STAMP else 76)
    if not FUSED:
        out += ".p2align 6\n" + kd("oproj_kernel", 256, 100 if STAMP else 74)
    if not FR:
        out += ".p2align 6\n" + kd("reduce_kernel", 56, 64)
    dst = sys.argv[1] if len(sys.argv) > 1 else os.path.join(os.path.dirname(os.path.abspath(__file__)), "..", "cdna_kernels", NAME + ".s")
    open(dst, "w").write(out)
    print("wrote", dst, A.ninst, "instructions")


if __name__ == "__main__":
    main()
```
